```python
import torch

def _softmax(x, axis=-1):
    return torch.softmax(x, dim=axis)
def _gelu(x):
    return torch.nn.functional.gelu(x, approximate="tanh")
def _silu(x):
    return torch.nn.functional.silu(x)
def _sigmoid(x):
    return torch.sigmoid(x)
def _layernorm(x, axis=-1, eps=1e-5):
    m = x.mean(dim=axis, keepdim=True)
    v = x.var(dim=axis, keepdim=True, unbiased=False)
    return (x - m) / torch.sqrt(v + eps)
def _scatter_add(tgt, idx, src, axis=0):
    return tgt.clone().index_add_(axis, idx, src)
def _segment_sum(src, seg, n):
    out = torch.zeros((n,) + src.shape[1:], dtype=src.dtype)
    return out.index_add_(0, seg, src)
def _pad(x, pw):
    flat = tuple(v for pair in reversed(pw) for v in pair)
    return torch.nn.functional.pad(x, flat)

kernel_name = 'parallel_sum__sliding_block_cached__glu_gated_swiglu__decode'

def setup_inputs():

    _w = (lambda a: (lambda t: t.to(torch.bfloat16) if t.is_floating_point() else t)(torch.as_tensor(a)))
    def _A_setup():
        B, Sq, D = 2, 1, 576
        Hq, Hkv, Sk, Dh = 32, 16, 32768, 128
        assert Hq % Hkv == 0, (Hq, Hkv)
        return {
            "x": _w((lambda *s: torch.randn(*s, dtype=torch.bfloat16) * 0.05)(B, Sq, D)),
            "k_cache": _w((lambda *s: torch.randn(*s, dtype=torch.bfloat16) * 1.6)(B, Hkv, Sk, Dh)),
            "v_cache": _w((lambda *s: torch.randn(*s, dtype=torch.bfloat16) * 0.8)(B, Hkv, Sk, Dh)),
            "wq": _w((lambda *s: torch.randn(*s, dtype=torch.bfloat16) * 1.6)(D, Hq * Dh) * (D ** -0.5)),
            "wo": _w((lambda *s: torch.randn(*s, dtype=torch.bfloat16) * 0.8)(Hq * Dh, D) * ((Hq * Dh) ** -0.5)),
        }
    _A_in = _A_setup()

    def _B_setup():
        B, S, D, F = 2, 1, 576, 4608
        return {
            "x": _w((lambda *s: torch.randn(*s, dtype=torch.bfloat16) * 0.05)(B, S, D)),
            "w1": _w((lambda *s: torch.randn(*s, dtype=torch.bfloat16) * 0.4)(D, F) * (2.0 / D) ** 0.5),
            "w3": _w((lambda *s: torch.randn(*s, dtype=torch.bfloat16) * 0.4)(D, F) * (2.0 / D) ** 0.5),
            "w2": _w((lambda *s: torch.randn(*s, dtype=torch.bfloat16) * 0.4)(F, D) * (2.0 / F) ** 0.5),
        }
    _B_in = _B_setup()

    return {
        "A_x": _A_in["x"],
        "A_k_cache": _A_in["k_cache"],
        "A_v_cache": _A_in["v_cache"],
        "A_wq": _A_in["wq"],
        "A_wo": _A_in["wo"],
        "B_x": _B_in["x"],
        "B_w1": _B_in["w1"],
        "B_w3": _B_in["w3"],
        "B_w2": _B_in["w2"],
    }

def reference(A_x, A_k_cache, A_v_cache, A_wq, A_wo, B_x, B_w1, B_w3, B_w2):
    def _A_ref(x, k_cache, v_cache, wq, wo):
        B, Sq, D = x.shape
        Hq, Dh = 32, 128
        Hkv, Sk = k_cache.shape[1], k_cache.shape[2]
        W = min(4096, max(256, Sk // 4))
        rep = Hq // Hkv
        q = (lambda x, *d: x.permute(*d))((x @ wq).reshape(B, Sq, Hq, Dh), 0, 2, 1, 3)
        k = (lambda x, n, axis: torch.repeat_interleave(x, n, dim=axis))(k_cache[:, :, Sk - W:, :], rep, axis=1)
        v = (lambda x, n, axis: torch.repeat_interleave(x, n, dim=axis))(v_cache[:, :, Sk - W:, :], rep, axis=1)
        scores = torch.einsum("bhqd,bhkd->bhqk", q, k) * (Dh ** -0.5)
        p = _softmax(scores, axis=-1)
        o = torch.einsum("bhqk,bhkd->bhqd", p, v)
        return (lambda x, *d: x.permute(*d))(o, 0, 2, 1, 3).reshape(B, Sq, Hq * Dh) @ wo

    def _B_ref(x, w1, w3, w2):
        gate = torch.einsum("bsd,df->bsf", x, w1)
        up = torch.einsum("bsd,df->bsf", x, w3)
        h = _silu(gate) * up
        out = torch.einsum("bsf,fd->bsd", h, w2)
        return out

    x = A_x
    xn = _layernorm(x, axis=-1)
    return x + _A_ref(xn, A_k_cache, A_v_cache, A_wq, A_wo) + _B_ref(xn, B_w1, B_w3, B_w2)
```

```python
import sys
NAME = "parallel_sum__sliding_block_cached__glu_gated_swiglu__decode_kernel"

HEADER = """; Fused decode step: out = x + Attn(LN(x)) + SwiGLU(LN(x)), one launch, 256 workgroups x 9 waves.
"""

S1 = 0
QL = 24576
HD = QL + 512
MW = HD + 256
OACC = 25600
LACC = OACC + 1024
FACC = LACC + 64
LDS_BYTES = OACC + 2048
REC = 6144
FPO = 1536
QP = 2 << 20
GP = QP + (512 << 10)
STAMP = 7 << 19
WS_BYTES = 4 << 20
HUGE = 0x40000000
LOG2E = 0x3FB8AA3B
SCALE = 0x3DB504F3

X, K, V, WQ, WO, W1, W3, W2, OUT, DBG, WS = [4 + 4 * i for i in range(11)]
sHKV, sJ, sB, sS, sSL, sCK = 48, 49, 50, 51, 52, 53
sT0, sT1, sT2, sT3 = 54, 55, 56, 57
sHASH = 58
sQ2, sF0, sF1, sF2 = 59, 60, 61, 62
sLOG2E = 63
sSPIN = 64
sML = 65
sC1, sC2, sC3 = 66, 67, 68
sM0, sM1, sR0, sR1 = 70, 71, 72, 73
sMASK = 74
sST = 80

vK, vV, vA1, vA2 = 1, 2, 3, 4
MK = 5
vT0, vT1, vT2 = 9, 10, 11
A0, A1 = 12, 16
ACC, D1, D2 = 20, 24, 28
SR = 32
QB = 36
KR = 40
VR = 104
def kreg(t): return KR + 4 * t
def vreg(t): return VR + 4 * t
XS = 80
XA = 90
XT = 96
S1D = 132
WL = 40
PL = 60
HV = 66
TT = 72
FC = 104


def r4(b): return f"v[{b}:{b+3}]"
def r2(b): return f"v[{b}:{b+1}]"
def srd(b): return f"s[{b}:{b+3}]"
DPPF = "row_mask:0xf bank_mask:0xf"


def gen(depth=6, b2=10, stamps=False, pol=" nt", spin=200000, prio=3):
    L = []
    A = L.append
    nst = [0]

    def stamp(i):
        if stamps:
            A(f"s_memrealtime s[{sST+2*i}:{sST+2*i+1}]")

    A(HEADER.rstrip("\n"))
    A(f"; @launch grid=(256,1,1) block=(576,1,1) lds={LDS_BYTES}")
    A('.amdgcn_target "amdgcn-amd-amdhsa--gfx950"')
    A(".text"); A(f".globl {NAME}"); A(".p2align 8"); A(f".type {NAME},@function"); A(f"{NAME}:")
    stamp(0)
    A("s_cmp_ge_u32 s2, 256"); A("s_cbranch_scc1 L_end")
    for d, off in ((X, 0), (WQ, 24), (W1, 48), (W3, 56), (K, 8), (V, 16), (WS, 88), (DBG, 80), (WO, 32), (W2, 64), (OUT, 72)):
        A(f"s_load_dwordx2 s[{d}:{d+1}], s[0:1], {off}")
    A("v_lshrrev_b32 v1, 6, v0")
    A("v_and_b32 v0, 63, v0")
    A("v_readfirstlane_b32 s3, v1")
    for d, n in ((X, 2304), (K, 1 << 28), (V, 1 << 28), (WQ, 576 * 8192), (WO, 4096 * 1152), (W1, 576 * 9216), (W3, 576 * 9216),
                 (W2, 4608 * 1152), (OUT, 2304), (DBG, 256), (WS, WS_BYTES)):
        A(f"s_mov_b32 s{d+2}, {n}"); A(f"s_mov_b32 s{d+3}, 0x00020000")
    A(f"s_lshr_b32 s{sHKV}, s2, 4"); A(f"s_and_b32 s{sJ}, s2, 15"); A(f"s_lshr_b32 s{sB}, s{sJ}, 3"); A(f"s_and_b32 s{sS}, s2, 7")
    A(f"s_mul_i32 s{sSL}, s2, 9363"); A(f"s_lshr_b32 s{sSL}, s{sSL}, 16")
    A(f"s_mul_i32 s{sT0}, s{sSL}, 7"); A(f"s_sub_u32 s{sCK}, s2, s{sT0}")
    A(f"s_mov_b32 s{sLOG2E}, {LOG2E:#x}")
    A(f"s_mov_b32 s{sSPIN}, 0")
    A(f"v_lshrrev_b32 v{vT0}, 4, v0"); A(f"v_and_b32 v{vT1}, 15, v0")
    A(f"v_and_b32 v{vT2}, 1, v0"); A(f"v_lshlrev_b32 v{vT2}, 4, v{vT2}")
    A(f"v_mov_b32 v{MK}, 0xffff"); A(f"v_lshlrev_b32 v{vT2}, v{vT2}, v{MK}")
    A(f"v_bfe_u32 v{TT}, v0, 1, 2")
    for j in range(4):
        A(f"v_cmp_eq_u32 vcc, {j}, v{TT}"); A("s_nop 1"); A(f"v_cndmask_b32 v{MK+j}, 0, v{vT2}, vcc")
    A("s_cmp_eq_u32 s3, 8"); A("s_cbranch_scc1 L_service")

    A(f"s_mul_i32 s{sT0}, s{sS}, 72"); A(f"s_lshl_b32 s{sT1}, s3, 2"); A(f"s_add_u32 s{sT0}, s{sT0}, s{sT1}")
    A(f"v_add_u32 v{XT}, s{sT0}, v{vT0}")
    A(f"s_mul_i32 s{sT2}, s{sCK}, 20"); A(f"s_min_u32 s{sT3}, s{sCK}, 4"); A(f"s_add_u32 s{sT2}, s{sT2}, s{sT3}")
    A(f"s_add_u32 s{sT2}, s{sT2}, s3"); A(f"s_lshl_b32 s{sT2}, s{sT2}, 2")
    A(f"v_add_u32 v{XT+1}, s{sT2}, v{vT0}")
    A(f"v_bfe_u32 v{XT+2}, v0, 3, 1"); A(f"v_mul_u32_u24 v{XT+2}, 1152, v{XT+2}")
    A(f"v_lshl_add_u32 v{XT+3}, v{XT}, 1, v{XT+2}")
    A(f"v_lshl_add_u32 v{XT+4}, v{XT+1}, 1, v{XT+2}")
    A(f"v_lshrrev_b32 v{XT+5}, 5, v0"); A(f"v_mul_u32_u24 v{XT+5}, 1152, v{XT+5}")
    A(f"v_and_b32 v{XT+6}, 31, v0"); A(f"v_mad_u32_u24 v{XT+5}, v{XT+6}, 36, v{XT+5}")
    A(f"s_lshl_b32 s{sT0}, s{sHKV}, 9"); A(f"s_lshl_b32 s{sT1}, s{sB}, 8"); A(f"s_add_u32 s{sT0}, s{sT0}, s{sT1}")
    A(f"v_lshlrev_b32 v{vA1}, 13, v{XT}"); A(f"v_lshl_add_u32 v{vA1}, v{vT1}, 4, v{vA1}"); A(f"v_add_u32 v{vA1}, s{sT0}, v{vA1}")
    A(f"s_lshl_b32 s{sT0}, s{sSL}, 8")
    A(f"v_mul_u32_u24 v{vA2}, 9216, v{XT+1}"); A(f"v_lshl_add_u32 v{vA2}, v{vT1}, 4, v{vA2}"); A(f"v_add_u32 v{vA2}, s{sT0}, v{vA2}")
    A(f"s_cmp_lt_u32 s3, 2"); A(f"s_cselect_b32 s{sQ2}, {2*262144}, {HUGE}")
    A(f"s_cmp_lt_u32 s{sCK}, 4"); A(f"s_cselect_b32 s{sT0}, 5, 4"); A(f"s_cmp_lt_u32 s3, s{sT0}")
    A(f"s_cselect_b32 s{sF2}, {2*294912}, {HUGE}")
    A(f"s_mov_b32 s{sF0}, 0"); A(f"s_mov_b32 s{sF1}, 294912"); A(f"s_mov_b32 s{sT3}, 262144")
    A("s_cmp_lt_u32 s2, 252")
    for s in (sF0, sF1, sF2):
        A(f"s_cselect_b32 s{s}, s{s}, {HUGE}")
    A(f"s_lshl_b32 s{sT0}, s{sB}, 4"); A(f"s_add_u32 s{sT0}, s{sT0}, s{sHKV}"); A(f"s_lshl_b32 s{sT0}, s{sT0}, 23")
    A(f"s_add_u32 s{sT0}, s{sT0}, {7 << 20}")
    A(f"s_lshl_b32 s{sT1}, s{sS}, 17"); A(f"s_add_u32 s{sT0}, s{sT0}, s{sT1}")
    A(f"s_lshl_b32 s{sT1}, s3, 10"); A(f"s_add_u32 s{sT0}, s{sT0}, s{sT1}")
    A(f"v_lshlrev_b32 v{vV}, 4, v0"); A(f"v_add_u32 v{vV}, s{sT0}, v{vV}")
    A(f"v_and_b32 v{vK}, 3, v0"); A(f"v_lshlrev_b32 v{vK}, 4, v{vK}")
    A(f"v_bfe_u32 v{XT+6}, v0, 2, 2"); A(f"v_lshl_add_u32 v{vK}, v{XT+6}, 8, v{vK}")
    A(f"v_lshl_add_u32 v{vK}, v{vT0}, 6, v{vK}"); A(f"v_add_u32 v{vK}, s{sT0}, v{vK}")
    A(f"s_lshl_b32 s{sT0}, s2, 3"); A(f"s_add_u32 s{sT0}, s{sT0}, s3"); A(f"s_mul_i32 s{sHASH}, s{sT0}, 0x9E3779B1")
    A(f"s_lshr_b32 s{sHASH}, s{sHASH}, 11"); A(f"s_and_b32 s{sHASH}, s{sHASH}, {15 << 13}")
    A("s_waitcnt lgkmcnt(0)")
    stamp(1)
    A(f"buffer_load_dwordx4 {r4(XS)}, v{XT+5}, {srd(X)}, 0 offen")
    A(f"buffer_load_dwordx4 {r4(XS+4)}, v{XT+5}, {srd(X)}, 0 offen offset:16")
    A(f"buffer_load_dword v{XS+8}, v{XT+5}, {srd(X)}, 0 offen offset:32")
    for k in range(3):
        A(f"buffer_load_ushort v{XA+k}, v{XT+3}, {srd(X)}, 0 offen offset:{64*k}")
    for k in range(3):
        A(f"buffer_load_ushort v{XA+3+k}, v{XT+4}, {srd(X)}, 0 offen offset:{64*k}")

    loads = []
    for k, so in enumerate(("0", f"s{sT3}", f"s{sQ2}")):
        loads.append(("Q%d" % k, [f"buffer_load_dwordx4 {r4(S1D+4*k)}, v{vA1}, {srd(WQ)}, {so} offen{pol}"]))
    for m, (nm, sr) in enumerate((("G", W1), ("U", W3))):
        for k, so in enumerate((sF0, sF1, sF2)):
            loads.append((f"{nm}{k}", [f"buffer_load_dwordx4 {r4(S1D+12+12*m+4*k)}, v{vA2}, {srd(sr)}, s{so} offen{pol}"]))
    for t in range(16):
        loads.append((f"K{t}", [f"s_xor_b32 s{sT0}, s{sHASH}, {t << 13}", f"buffer_load_dwordx4 {r4(kreg(t))}, v{vK}, {srd(K)}, s{sT0} offen{pol}"]))
    for t in range(16):
        loads.append((f"V{t}", [f"s_xor_b32 s{sT0}, s{sHASH}, {t << 13}", f"buffer_load_dwordx4 {r4(vreg(t))}, v{vV}, {srd(V)}, s{sT0} offen{pol}"]))

    def late_loads():
        return [("W0", [f"buffer_load_dwordx4 {r4(WL)}, v{vA2}, {srd(W2)}, 0 offen{pol}"]),
                ("W1", [f"buffer_load_dwordx4 {r4(WL+4)}, v{vA2}, {srd(W2)}, 0 offen offset:2304{pol}"]),
                ("W2", [f"buffer_load_dwordx4 {r4(WL+8)}, v{vA2}, {srd(W2)}, s{sC1} offen{pol}"]),
                ("W3", [f"buffer_load_dwordx4 {r4(WL+12)}, v{vA1}, {srd(WO)}, 0 offen{pol}"]),
                ("W4", [f"buffer_load_dwordx4 {r4(WL+16)}, v{vA1}, {srd(WO)}, 0 offen offset:2304{pol}"])]
    loads += late_loads()
    names = [n for n, _ in loads]

    def bf16r(dst, src, tmp=None):
        A(f"v_cvt_pk_bf16_f32 v{dst}, v{src}, v{src}"); A(f"v_and_b32 v{dst}, 0xffff0000, v{dst}")

    def allred32(r, t, op="v_add_f32"):
        for n in (1, 2, 4, 8):
            A("s_nop 1"); A(f"{op}_dpp v{r}, v{r}, v{r} row_ror:{n} {DPPF}")
        A(f"v_mov_b32 v{t}, v{r}"); A("s_nop 1"); A(f"v_permlane16_swap_b32 v{r}, v{t}"); A("s_nop 1"); A(f"{op} v{r}, v{r}, v{t}")

    def layernorm():
        U = 12
        for i in range(9):
            A(f"v_lshlrev_b32 v{U+2*i}, 16, v{XS+i}"); A(f"v_and_b32 v{U+2*i+1}, 0xffff0000, v{XS+i}")
        s = XS
        A(f"v_add_f32 v{s}, v{U}, v{U+1}"); A(f"v_add_f32 v{s+1}, v{U+2}, v{U+3}")
        for i in range(4, 18, 2):
            A(f"v_add_f32 v{s}, v{s}, v{U+i}"); A(f"v_add_f32 v{s+1}, v{s+1}, v{U+i+1}")
        A(f"v_add_f32 v{s}, v{s}, v{s+1}")
        allred32(s, s + 1)
        A(f"v_mul_f32 v{s}, {0x3AE38E39:#x}, v{s}")
        for i in range(18):
            A(f"v_sub_f32 v{U+i}, v{U+i}, v{s}")
        A(f"v_mul_f32 v{s+2}, v{U}, v{U}"); A(f"v_mul_f32 v{s+3}, v{U+1}, v{U+1}")
        for i in range(2, 18, 2):
            A(f"v_fmac_f32 v{s+2}, v{U+i}, v{U+i}"); A(f"v_fmac_f32 v{s+3}, v{U+i+1}, v{U+i+1}")
        A(f"v_add_f32 v{s+2}, v{s+2}, v{s+3}")
        allred32(s + 2, s + 3)
        A(f"v_mul_f32 v{s+2}, {0x3AE38E39:#x}, v{s+2}")
        bf16r(s + 2, s + 2)
        A(f"v_add_f32 v{s+2}, {0x3727C5AC:#x}, v{s+2}")
        bf16r(s + 2, s + 2)
        A(f"v_sqrt_f32 v{s+2}, v{s+2}"); A("s_nop 0")
        bf16r(s + 2, s + 2)
        A(f"v_rcp_f32 v{s+2}, v{s+2}")
        bf16r(s, s)
        A("s_nop 0")
        A(f"v_readlane_b32 s{sM0}, v{s}, 0"); A(f"v_readlane_b32 s{sM1}, v{s}, 32")
        A(f"v_readlane_b32 s{sR0}, v{s+2}, 0"); A(f"v_readlane_b32 s{sR1}, v{s+2}, 32")
        A(f"s_mov_b32 s{sMASK}, 0xff00ff00"); A(f"s_mov_b32 s{sMASK+1}, 0xff00ff00")
        A(f"v_mov_b32 v{s}, s{sM0}"); A(f"v_mov_b32 v{s+1}, s{sM1}"); A(f"v_mov_b32 v{s+2}, s{sR0}"); A(f"v_mov_b32 v{s+3}, s{sR1}")
        A(f"v_cndmask_b32 v{s}, v{s}, v{s+1}, s[{sMASK}:{sMASK+1}]")
        A(f"v_cndmask_b32 v{s+2}, v{s+2}, v{s+3}, s[{sMASK}:{sMASK+1}]")
        for k in range(6):
            r = XA + k
            A(f"v_lshlrev_b32 v{r}, 16, v{r}"); A(f"v_sub_f32 v{r}, v{r}, v{s}")
            bf16r(r, r)
            A(f"v_mul_f32 v{r}, v{r}, v{s+2}"); A(f"v_cvt_pk_bf16_f32 v{r}, v{r}, v{r}")

    aflip = [0]
    def gemv_mfma(val, data, acc, first):
        a = A0 if aflip[0] == 0 else A1
        aflip[0] ^= 1
        for j in range(4):
            A(f"v_and_b32 v{a+j}, v{val}, v{MK+j}")
        A("s_nop 1")
        A(f"v_mfma_f32_16x16x32_bf16 {r4(acc)}, {r4(a)}, {r4(data)}, {'0' if first else r4(acc)}")

    def s1_slot(acc, typ):
        A(f"s_mul_i32 s{sT1}, s3, 3072"); A(f"v_lshlrev_b32 v{XT}, 4, v0"); A(f"v_add_u32 v{XT}, s{sT1}, v{XT}")
        A("s_nop 6")
        A(f"ds_write_b128 v{XT}, {r4(acc)} offset:{S1 + 1024*typ}")

    def late_addr():
        A(f"v_bfe_u32 v{vT2}, v0, 3, 1")
        A(f"v_lshl_add_u32 v{vA1}, v{vT0}, 2, v{vT2}")
        A(f"s_lshl_b32 s{sT1}, s2, 4"); A(f"v_add_u32 v{vA1}, s{sT1}, v{vA1}")
        A(f"v_mul_u32_u24 v{vA1}, 1152, v{vA1}")
        A(f"v_mad_u32_u24 v{vA2}, v{vT0}, 6, v{vT2}")
        A(f"s_mul_i32 s{sT1}, s2, 18"); A(f"v_add_u32 v{vA2}, s{sT1}, v{vA2}")
        A(f"v_mul_u32_u24 v{vA2}, 1152, v{vA2}")
        A(f"v_and_b32 v{vT2}, 7, v0"); A(f"v_lshlrev_b32 v{vT2}, 4, v{vT2}")
        A(f"s_lshl_b32 s{sT1}, s3, 7"); A(f"v_add_u32 v{vT2}, s{sT1}, v{vT2}")
        A(f"v_add_u32 v{vA1}, v{vA1}, v{vT2}"); A(f"v_add_u32 v{vA2}, v{vA2}, v{vT2}")
        A(f"v_cmp_eq_u32 vcc, 3, v{vT0}"); A(f"v_mov_b32 v{vT2}, {HUGE}"); A("s_nop 0")
        A(f"v_cndmask_b32 v{vA2}, v{vA2}, v{vT2}, vcc")
        A(f"s_mov_b32 s{sC1}, 4608")

    def wgmax(dst, tmp):
        A(f"v_bfe_u32 v{dst}, v0, 1, 1"); A(f"v_lshlrev_b32 v{dst}, 5, v{dst}")
        A(f"ds_read_b128 {r4(tmp)}, v{dst} offset:{MW}"); A(f"ds_read_b128 {r4(tmp+4)}, v{dst} offset:{MW+16}")
        A("s_waitcnt lgkmcnt(0)")
        A(f"v_max3_f32 v{tmp}, v{tmp}, v{tmp+1}, v{tmp+2}"); A(f"v_max3_f32 v{tmp+3}, v{tmp+3}, v{tmp+4}, v{tmp+5}")
        A(f"v_max3_f32 v{tmp}, v{tmp}, v{tmp+6}, v{tmp+7}"); A(f"v_max_f32 v{tmp}, v{tmp}, v{tmp+3}")
        A(f"v_mul_f32 v{dst}, s{sLOG2E}, v{tmp}")

    def qk_block():
        A("s_barrier")
        stamp(4)
        A(f"v_bfe_u32 v{vT2}, v0, 1, 1"); A(f"v_lshlrev_b32 v{vT2}, 8, v{vT2}"); A(f"v_lshl_add_u32 v{vT2}, v{vT0}, 6, v{vT2}")
        A(f"v_bfe_u32 v{vT1}, v0, 2, 2"); A(f"v_lshl_add_u32 v{vT2}, v{vT1}, 4, v{vT2}")
        A(f"ds_read_b128 {r4(QB)}, v{vT2} offset:{QL}")
        A("s_waitcnt lgkmcnt(0)")
        Ds = [A0, A1, D1, D2]
        def mf(t): A(f"v_mfma_f32_16x16x32_bf16 {r4(Ds[t%4])}, {r4(kreg(t))}, {r4(QB)}, 0")
        def ops(t):
            b = t & 3; S = SR + (t >> 2); D = Ds[t % 4]; bm = f"row_mask:0xf bank_mask:{1<<b:#x}"
            A(f"v_add_f32_dpp v{S}, v{D+((b+1)&3)}, v{D+b} row_ror:12 {bm}")
            A(f"v_add_f32_dpp v{S}, v{D+((b+2)&3)}, v{S} row_ror:8 {bm}")
            A(f"v_add_f32_dpp v{S}, v{D+((b+3)&3)}, v{S} row_ror:4 {bm}")
        for t in range(4): mf(t)
        A("s_nop 4")
        for t in range(16):
            ops(t)
            if t + 4 < 16: mf(t + 4)
            elif t < 15: A("s_nop 0")
        for p in (0, 2):
            a, b = SR + p, SR + p + 1
            A(f"v_cvt_pk_bf16_f32 v{b}, v{a}, v{b}"); A(f"v_lshlrev_b32 v{a}, 16, v{b}"); A(f"v_and_b32 v{b}, 0xffff0000, v{b}")
            A(f"v_mul_f32 v{a}, {SCALE:#x}, v{a}"); A(f"v_mul_f32 v{b}, {SCALE:#x}, v{b}")
            A(f"v_cvt_pk_bf16_f32 v{b}, v{a}, v{b}"); A(f"v_lshlrev_b32 v{a}, 16, v{b}"); A(f"v_and_b32 v{b}, 0xffff0000, v{b}")
        m = D1
        A(f"v_max3_f32 v{m}, v{SR}, v{SR+1}, v{SR+2}"); A(f"v_max_f32 v{m}, v{m}, v{SR+3}")
        for n in (4, 8):
            A("s_nop 1"); A(f"v_max_f32_dpp v{m}, v{m}, v{m} row_ror:{n} {DPPF}")
        for sw in ("v_permlane16_swap_b32", "v_permlane32_swap_b32"):
            A(f"v_mov_b32 v{m+1}, v{m}"); A("s_nop 1"); A(f"{sw} v{m}, v{m+1}"); A("s_nop 1"); A(f"v_max_f32 v{m}, v{m}, v{m+1}")
        A(f"v_lshlrev_b32 v{m+1}, 4, v0"); A(f"s_lshl_b32 s{sT1}, s3, 2"); A(f"v_add_u32 v{m+1}, s{sT1}, v{m+1}")
        A("s_mov_b64 exec, 5")
        A(f"ds_write_b32 v{m+1}, v{m} offset:{MW}")
        A("s_mov_b64 exec, -1")
        for j in range(8): A(f"v_mov_b32 v{A0+j}, 0")
        A("s_waitcnt lgkmcnt(0)")
        A("s_barrier")
        wgmax(vT2, D1)
        for T in range(4):
            A(f"v_fma_f32 v{SR+T}, v{SR+T}, s{sLOG2E}, -v{vT2}")
        for T in range(4):
            A(f"v_exp_f32 v{SR+T}, v{SR+T}")
        l = D1
        A(f"v_add_f32 v{l}, v{SR}, v{SR+1}"); A(f"v_add_f32 v{l+1}, v{SR+2}, v{SR+3}"); A(f"v_add_f32 v{l}, v{l}, v{l+1}")
        for n in (4, 8):
            A("s_nop 1"); A(f"v_add_f32_dpp v{l}, v{l}, v{l} row_ror:{n} {DPPF}")
        A(f"v_and_b32 v{l+1}, 2, v0"); A(f"v_lshlrev_b32 v{l+1}, 1, v{l+1}")
        A(f"s_mov_b32 s{sMASK}, 0x00050005"); A(f"s_mov_b32 s{sMASK+1}, 0x00050005")
        A(f"s_mov_b64 exec, s[{sMASK}:{sMASK+1}]")
        A(f"ds_add_f32 v{l+1}, v{l} offset:{LACC}")
        A("s_mov_b64 exec, -1")
        A(f"v_and_b32 v{l+2}, 1, v0"); A(f"v_lshlrev_b32 v{l+2}, 4, v{l+2}"); A(f"v_mov_b32 v{l+3}, 0xffff"); A(f"v_lshlrev_b32 v{l+2}, v{l+2}, v{l+3}")
        for T in range(4):
            A(f"v_cvt_pk_bf16_f32 v{SR+T}, v{SR+T}, v{SR+T}")
        for T in range(4):
            A(f"v_and_b32 v{SR+T}, v{SR+T}, v{l+2}")
        A("s_nop 1")
        late_addr()
        stamp(5)

    def pv(t):
        b = t & 3; P = SR + (t >> 2); a = A0 if t % 2 == 0 else A1
        for j in range(4):
            n = (4 * (j - b)) % 16
            ctl = "quad_perm:[0,1,2,3]" if n == 0 else f"row_ror:{n}"
            A(f"v_mov_b32_dpp v{a+j}, v{P} {ctl} row_mask:0xf bank_mask:{1<<j:#x}")
        A("s_nop 1")
        A(f"v_mfma_f32_16x16x32_bf16 {r4(ACC)}, {r4(a)}, {r4(vreg(t))}, {'0' if t == 0 else r4(ACC)}")

    state = {"qk": False, "pv": 0}

    def on_landed(nm):
        if nm == "Q0":
            stamp(2)
            layernorm(); gemv_mfma(XA, S1D, ACC, True)
        elif nm in ("Q1", "Q2"):
            k = int(nm[1]); gemv_mfma(XA + k, S1D + 4 * k, ACC, False)
            if k == 2:
                s1_slot(ACC, 0); A("s_waitcnt lgkmcnt(0)"); A("s_barrier")
        elif nm[0] in "GU":
            k = int(nm[1]); m = 0 if nm[0] == "G" else 1
            gemv_mfma(XA + 3 + k, S1D + 12 + 12 * m + 4 * k, D1 if m == 0 else D2, k == 0)
            if k == 2:
                s1_slot(D1 if m == 0 else D2, 1 + m)
                if m == 1:
                    A("s_waitcnt lgkmcnt(0)"); A("s_barrier")
                    stamp(3)
        elif nm[0] == "V" and state["qk"]:
            t = int(nm[1:])
            while state["pv"] <= t:
                pv(state["pv"]); state["pv"] += 1

    N = len(loads)
    landed = -1
    assert names.index("K10") > names.index("U2") + depth
    assert names.index(f"V{b2}") - depth >= names.index("K15")
    for i, (nm, code) in enumerate(loads):
        for c in code: A(c)
        if i >= depth:
            A(f"s_waitcnt vmcnt({depth})")
            landed = i - depth
            on_landed(names[landed])
        if nm == f"V{b2}":
            qk_block(); state["qk"] = True
            if names[landed][0] == "V": on_landed(names[landed])
    iV15 = names.index("V15")
    while landed < iV15:
        landed += 1
        A(f"s_waitcnt vmcnt({N-1-landed})")
        on_landed(names[landed])
    stamp(6)
    A(f"v_and_b32 v{vT1}, 15, v0")
    A(f"v_lshrrev_b32 v{TT}, 1, v{vT0}"); A(f"v_lshl_add_u32 v{TT}, v{vT1}, 1, v{TT}")
    A(f"v_bfe_u32 v{TT+1}, v0, 2, 1"); A(f"v_xor_b32 v{TT}, v{TT}, v{TT+1}")
    A(f"v_lshlrev_b32 v{TT}, 4, v{TT}"); A(f"v_and_b32 v{TT+1}, 1, v{vT0}"); A(f"v_lshl_add_u32 v{TT}, v{TT+1}, 3, v{TT}")
    A("s_nop 0")
    for v in range(4):
        A(f"ds_add_f32 v{TT}, v{ACC+v} offset:{OACC + (v>>1)*512 + (v&1)*4}")
    A("s_waitcnt lgkmcnt(0)")
    A("s_barrier")
    A("s_branch L_tail")

    A("L_service:")
    if prio: A(f"s_setprio {prio}")
    SV = 104
    A(f"v_lshlrev_b32 v{vK}, 4, v0")
    A(f"s_mul_i32 s{sT0}, s2, {REC}"); A(f"v_add_u32 v{vV}, s{sT0}, v{vK}")
    for i in range(4): A(f"v_mov_b32 v{SV+i}, -1")
    for i in range(4): A(f"v_mov_b32 v{SV+4+i}, 0")
    A(f"ds_write_b128 v{vK}, {r4(SV+4)} offset:{OACC}"); A(f"ds_write_b128 v{vK}, {r4(SV+4)} offset:{OACC+1024}")
    A(f"s_mov_b32 s{sT1}, 4096")
    A("s_waitcnt lgkmcnt(0)")
    stamp(1)
    for i in range(6):
        so = "0" if i < 4 else f"s{sT1}"
        A(f"buffer_store_dwordx4 {r4(SV)}, v{vV}, {srd(WS)}, {so} offen offset:{1024*(i%4)} sc1")
    def sum_slots(typ, dst):
        T = SV + 8
        for w in range(8):
            A(f"ds_read_b128 {r4(T+4*w)}, v{vK} offset:{S1 + w*3072 + typ*1024}")
        for w in range(1, 8):
            A(f"s_waitcnt lgkmcnt({7-w})")
            for v in range(4):
                A(f"v_add_f32 v{dst+v}, v{T+v if w == 1 else dst+v}, v{T+4*w+v}")
    A("s_barrier")
    sum_slots(0, ACC)
    A(f"s_lshl_b32 s{sT0}, s2, 10"); A(f"s_add_u32 s{sT0}, s{sT0}, {QP}")
    A(f"buffer_store_dwordx4 {r4(ACC)}, v{vA1}, {srd(WS)}, s{sT0} offen sc1") if False else None
    A(f"v_lshrrev_b32 v{vA1}, 5, v0"); A(f"v_lshlrev_b32 v{vA1}, 9, v{vA1}"); A(f"v_lshl_add_u32 v{vA1}, v{vT1}, 5, v{vA1}")
    A(f"v_and_b32 v{vT2}, 1, v{vT0}"); A(f"v_lshl_add_u32 v{vA1}, v{vT2}, 4, v{vA1}")
    A(f"buffer_store_dwordx4 {r4(ACC)}, v{vA1}, {srd(WS)}, s{sT0} offen sc1")
    A(f"v_mov_b32 v{SV}, 1"); A(f"s_lshl_b32 s{sT0}, s{sHKV}, 2"); A(f"v_mov_b32 v{SV+1}, s{sT0}")
    A("s_waitcnt vmcnt(0)")
    A("s_mov_b64 exec, 1")
    A(f"buffer_atomic_add v{SV}, v{SV+1}, {srd(DBG)}, 0 offen sc1")
    A("s_mov_b64 exec, -1")
    stamp(2)
    A("s_barrier")
    sum_slots(1, D1); sum_slots(2, D2)
    A(f"v_lshrrev_b32 v{vA2}, 5, v0"); A(f"v_mul_u32_u24 v{vA2}, 18432, v{vA2}"); A(f"v_lshl_add_u32 v{vA2}, v{vT1}, 5, v{vA2}")
    A(f"v_lshl_add_u32 v{vA2}, v{vT2}, 4, v{vA2}")
    A(f"s_mul_i32 s{sT0}, s{sCK}, 36864"); A(f"s_lshl_b32 s{sT1}, s{sSL}, 9"); A(f"s_add_u32 s{sT0}, s{sT0}, s{sT1}")
    A(f"s_add_u32 s{sT0}, s{sT0}, {GP}"); A(f"s_add_u32 s{sT1}, s{sT0}, {7*36864}")
    A("s_cmp_lt_u32 s2, 252")
    A(f"s_cselect_b32 s{sT0}, s{sT0}, {HUGE}"); A(f"s_cselect_b32 s{sT1}, s{sT1}, {HUGE}")
    A(f"buffer_store_dwordx4 {r4(D1)}, v{vA2}, {srd(WS)}, s{sT0} offen sc1")
    A(f"buffer_store_dwordx4 {r4(D2)}, v{vA2}, {srd(WS)}, s{sT1} offen sc1")
    A(f"s_lshl_b32 s{sT0}, s{sJ}, 2"); A(f"v_mov_b32 v{SV+1}, s{sT0}")
    A("s_waitcnt vmcnt(0)")
    A("s_mov_b64 exec, 1")
    A(f"buffer_atomic_add v{SV}, v{SV+1}, {srd(DBG)}, 0 offen offset:128 sc1")
    A("s_mov_b64 exec, -1")
    stamp(3)
    A(f"v_lshlrev_b32 v{SV+2}, 2, v0")
    A("L_pollq:")
    A(f"buffer_load_dword v{SV+3}, v{SV+2}, {srd(DBG)}, 0 offen sc1")
    A("s_waitcnt vmcnt(0)")
    A(f"v_readlane_b32 s{sT0}, v{SV+3}, s{sHKV}")
    A(f"s_add_u32 s{sSPIN}, s{sSPIN}, 1"); A(f"s_cmp_gt_u32 s{sSPIN}, {spin}"); A("s_cbranch_scc1 L_gotq")
    A(f"s_cmp_lg_u32 s{sT0}, 16"); A("s_cbranch_scc1 L_pollq")
    A("L_gotq:")
    stamp(7)
    A(f"v_lshrrev_b32 v{vA1}, 5, v0"); A(f"v_lshlrev_b32 v{vA1}, 13, v{vA1}")
    A(f"v_and_b32 v{vT2}, 31, v0"); A(f"v_lshl_add_u32 v{vA1}, v{vT2}, 4, v{vA1}")
    A(f"s_lshl_b32 s{sT0}, s{sHKV}, 14"); A(f"s_lshl_b32 s{sT1}, s{sB}, 9"); A(f"s_add_u32 s{sT0}, s{sT0}, s{sT1}")
    A(f"s_add_u32 s{sT0}, s{sT0}, {QP}"); A(f"s_add_u32 s{sT1}, s{sT0}, 4096")
    T = SV + 8
    for rc in range(8):
        A(f"buffer_load_dwordx4 {r4(T+4*rc)}, v{vA1}, {srd(WS)}, s{sT0 if rc < 4 else sT1} offen offset:{1024*(rc%4)} sc1")
    A(f"buffer_load_dword v{SV+3}, v{SV+2}, {srd(DBG)}, 0 offen sc1")
    for rc in range(1, 8):
        A(f"s_waitcnt vmcnt({8-rc})")
        for v in range(4):
            A(f"v_add_f32 v{ACC+v}, v{T+v if rc == 1 else ACC+v}, v{T+4*rc+v}")
    A(f"v_cvt_pk_bf16_f32 v{ACC}, v{ACC}, v{ACC+1}"); A(f"v_cvt_pk_bf16_f32 v{ACC+1}, v{ACC+2}, v{ACC+3}")
    A(f"v_lshlrev_b32 v{vT2}, 3, v0")
    A(f"ds_write_b64 v{vT2}, {r2(ACC)} offset:{QL}")
    A(f"s_mov_b32 s{sMASK}, 0"); A(f"s_mov_b32 s{sMASK+1}, 0xffff")
    A("s_branch L_chka")
    A("L_polla:")
    A(f"buffer_load_dword v{SV+3}, v{SV+2}, {srd(DBG)}, 0 offen sc1")
    A("L_chka:")
    A("s_waitcnt vmcnt(0)")
    A(f"v_cmp_ne_u32 vcc, 16, v{SV+3}")
    A(f"s_add_u32 s{sSPIN}, s{sSPIN}, 1"); A(f"s_cmp_gt_u32 s{sSPIN}, {spin}"); A("s_cbranch_scc1 L_gota")
    A(f"s_and_b64 vcc, vcc, s[{sMASK}:{sMASK+1}]"); A("s_cbranch_scc1 L_polla")
    A("L_gota:")
    stamp(8)
    A(f"v_lshrrev_b32 v{vA1}, 5, v0"); A(f"v_mul_u32_u24 v{vA1}, 18432, v{vA1}")
    A(f"v_and_b32 v{vT2}, 31, v0"); A(f"v_lshl_add_u32 v{vA1}, v{vT2}, 2, v{vA1}")
    A(f"v_cmp_le_u32 vcc, 18, v{vT2}"); A(f"v_mov_b32 v{vA2}, {HUGE}"); A("s_nop 0"); A(f"v_cndmask_b32 v{vA1}, v{vA1}, v{vA2}, vcc")
    A(f"s_mul_i32 s{sT0}, s2, 72"); A(f"s_add_u32 s{sT0}, s{sT0}, {GP}")
    for i in range(14):
        A(f"buffer_load_dword v{T+i}, v{vA1}, {srd(WS)}, s{sT0} offen sc1")
        if i < 13: A(f"s_add_u32 s{sT0}, s{sT0}, 36864")
    A("s_waitcnt vmcnt(0)")
    for m in range(2):
        for i in range(1, 7):
            A(f"v_add_f32 v{T+7*m}, v{T+7*m}, v{T+7*m+i}")
    g, u = T, T + 7
    bf16r(g, g); bf16r(u, u)
    A(f"v_mul_f32 v{g+1}, s{sLOG2E}, v{g}"); A(f"v_exp_f32 v{g+1}, -v{g+1}"); A("s_nop 0")
    A(f"v_add_f32 v{g+1}, 1.0, v{g+1}"); A(f"v_rcp_f32 v{g+1}, v{g+1}"); A("s_nop 0")
    A(f"v_mul_f32 v{g}, v{g}, v{g+1}")
    bf16r(g, g)
    A(f"v_mul_f32 v{g}, v{g}, v{u}"); A(f"v_cvt_pk_bf16_f32 v{g}, v{g}, v{g}")
    A(f"v_lshrrev_b32 v{vA1}, 5, v0"); A(f"v_mul_u32_u24 v{vA1}, 96, v{vA1}"); A(f"v_lshl_add_u32 v{vA1}, v{vT2}, 2, v{vA1}")
    A(f"s_mov_b32 s{sMASK}, 0x00ffffff"); A(f"s_mov_b32 s{sMASK+1}, 0x00ffffff")
    A(f"s_mov_b64 exec, s[{sMASK}:{sMASK+1}]")
    A(f"ds_write_b32 v{vA1}, v{g} offset:{HD}")
    A("s_mov_b64 exec, -1")
    late_addr()
    A("s_waitcnt lgkmcnt(0)")
    stamp(9)
    A("s_barrier")
    stamp(4)
    for nm, code in late_loads():
        for c in code: A(c)
    A(f"s_lshl_b32 s{sT0}, s{sSL}, 6"); A(f"v_lshlrev_b32 v{SV+20}, 2, v0"); A(f"v_add_u32 v{SV+20}, s{sT0}, v{SV+20}")
    A(f"buffer_load_dword v{SV+21}, v{SV+20}, {srd(X)}, 0 offen")
    A("s_barrier")
    wgmax(SV + 4, SV + 8)
    A(f"v_bfe_u32 v{vT2}, v0, 3, 1"); A(f"v_xor_b32 v{vT2}, v0, v{vT2}"); A(f"v_lshlrev_b32 v{vT2}, 4, v{vT2}")
    A(f"v_and_b32 v{SV+6}, 2, v0"); A(f"v_lshlrev_b32 v{SV+6}, 1, v{SV+6}")
    A(f"s_mul_i32 s{sT0}, s2, {REC}"); A(f"v_lshlrev_b32 v{SV+7}, 1, v{SV+6}"); A(f"v_add_u32 v{SV+7}, s{sT0}, v{SV+7}")
    A("s_barrier")
    A(f"ds_read_b128 {r4(SV+8)}, v{vT2} offset:{OACC}")
    A(f"ds_read_b32 v{SV+5}, v{SV+6} offset:{LACC}")
    A("s_waitcnt lgkmcnt(1)")
    A(f"buffer_store_dwordx4 {r4(SV+8)}, v{vV}, {srd(WS)}, 0 offen sc1")
    A("s_waitcnt lgkmcnt(0)")
    A("s_mov_b64 exec, 5")
    A(f"buffer_store_dwordx2 {r2(SV+4)}, v{SV+7}, {srd(WS)}, 0 offen offset:1024 sc1")
    A("s_mov_b64 exec, -1")
    stamp(6)

    A("L_tail:")
    A(f"v_and_b32 v{vT1}, 15, v0"); A(f"s_lshl_b32 s{sT0}, s{sHKV}, 4"); A(f"v_add_u32 v{vT1}, s{sT0}, v{vT1}")
    A(f"v_mul_u32_u24 v{vT1}, {REC}, v{vT1}")
    A(f"s_lshl_b32 s{sT0}, s{sJ}, 6"); A(f"v_lshl_add_u32 v{vT2}, v{vT0}, 4, v{vT1}")
    A(f"s_lshl_b32 s{sML}, s{sB}, 3")
    A(f"buffer_load_dwordx4 {r4(PL)}, v{vT2}, {srd(WS)}, s{sT0} offen sc1")
    A(f"buffer_load_dwordx2 {r2(PL+4)}, v{vT1}, {srd(WS)}, s{sML} offen offset:1024 sc1")
    A(f"v_bfe_u32 v{TT}, v0, 3, 1"); A(f"v_mul_u32_u24 v{TT}, 96, v{TT}"); A(f"v_mad_u32_u24 v{TT}, v{vT0}, 24, v{TT}")
    for i in range(3):
        A(f"ds_read_b64 {r2(HV+2*i)}, v{TT} offset:{HD+8*i}")
    A("s_waitcnt lgkmcnt(0)")
    A("s_waitcnt vmcnt(4)")
    for n in range(3):
        for rho in range(2):
            gemv_mfma(HV + 2 * n + rho, WL + 4 * n, D1 if rho == 0 else D2, n == 0)
    A(f"v_lshrrev_b32 v{TT}, 1, v{vT0}"); A(f"v_mul_u32_u24 v{TT}, 2304, v{TT}")
    A(f"v_and_b32 v{TT+1}, 7, v0"); A(f"v_lshl_add_u32 v{TT}, v{TT+1}, 5, v{TT}")
    A(f"v_and_b32 v{TT+1}, 1, v{vT0}"); A(f"v_lshl_add_u32 v{TT}, v{TT+1}, 4, v{TT}")
    A(f"s_mul_i32 s{sT1}, s2, {REC}"); A(f"s_lshl_b32 s{sT2}, s3, 8"); A(f"s_add_u32 s{sT1}, s{sT1}, s{sT2}"); A(f"s_add_u32 s{sT1}, s{sT1}, {FPO}")
    A("s_branch L_chko")
    A("L_pollo:")
    A(f"buffer_load_dwordx4 {r4(PL)}, v{vT2}, {srd(WS)}, s{sT0} offen sc1")
    A(f"buffer_load_dwordx2 {r2(PL+4)}, v{vT1}, {srd(WS)}, s{sML} offen offset:1024 sc1")
    A("L_chko:")
    A("s_waitcnt vmcnt(0)")
    A(f"v_max3_u32 v{TT+1}, v{PL}, v{PL+1}, v{PL+2}"); A(f"v_max3_u32 v{TT+2}, v{PL+3}, v{PL+4}, v{PL+5}")
    A(f"v_max_u32 v{TT+1}, v{TT+1}, v{TT+2}")
    A(f"v_cmp_eq_u32 vcc, -1, v{TT+1}")
    A(f"s_add_u32 s{sSPIN}, s{sSPIN}, 1"); A(f"s_cmp_gt_u32 s{sSPIN}, {spin}"); A("s_cbranch_scc1 L_goto")
    A("s_cbranch_vccnz L_pollo")
    A("L_goto:")
    stamp(10) if False else None
    m, l = PL + 4, PL + 5
    M = TT + 1
    steps = ("quad_perm:[1,0,3,2]", "quad_perm:[2,3,0,1]", "row_half_mirror")
    A(f"v_max_f32_dpp v{M}, v{m}, v{m} {steps[0]} {DPPF}")
    for s in steps[1:]:
        A("s_nop 1"); A(f"v_max_f32_dpp v{M}, v{M}, v{M} {s} {DPPF}")
    A(f"v_sub_f32 v{m}, v{m}, v{M}"); A(f"v_exp_f32 v{m}, v{m}"); A("s_nop 0")
    A(f"v_mul_f32 v{l}, v{l}, v{m}")
    for v in range(4): A(f"v_mul_f32 v{PL+v}, v{PL+v}, v{m}")
    for s in steps:
        for r in (l, PL, PL + 1, PL + 2, PL + 3):
            A(f"v_add_f32_dpp v{r}, v{r}, v{r} {s} {DPPF}")
    A(f"v_rcp_f32 v{l}, v{l}"); A("s_nop 0")
    for v in range(4): A(f"v_mul_f32 v{PL+v}, v{PL+v}, v{l}")
    for v in range(4): A(f"v_cvt_pk_bf16_f32 v{PL+v}, v{PL+v}, v{PL+v}")
    for n in range(2):
        for rho in range(2):
            gemv_mfma(PL + 2 * n + rho, WL + 12 + 4 * n, D1 if rho == 0 else D2, False)
    A(f"s_mov_b32 s{sMASK}, 0x00ff00ff"); A(f"s_mov_b32 s{sMASK+1}, 0x00ff00ff")
    A("s_nop 5")
    for v in range(4):
        A(f"v_add_f32_dpp v{D1+v}, v{D2+v}, v{D1+v} row_ror:8 {DPPF}")
    A(f"s_mov_b64 exec, s[{sMASK}:{sMASK+1}]")
    A(f"buffer_store_dwordx4 {r4(D1)}, v{TT}, {srd(WS)}, s{sT1} offen sc1")
    A("s_mov_b64 exec, -1")
    stamp(10)
    A(f"s_cmp_lg_u32 s{sCK}, 0"); A("s_cbranch_scc1 L_fin")
    A("s_cmp_ge_u32 s2, 252"); A("s_cbranch_scc1 L_fin")
    A("s_cmp_eq_u32 s3, 8"); A("s_cbranch_scc1 L_final")
    A(f"v_lshrrev_b32 v{TT}, 3, v0"); A(f"s_lshl_b32 s{sT0}, s3, 5"); A(f"v_add_u32 v{TT}, s{sT0}, v{TT}")
    A(f"v_mul_u32_u24 v{TT}, {REC}, v{TT}"); A(f"v_and_b32 v{TT+1}, 7, v0"); A(f"v_lshl_add_u32 v{TT}, v{TT+1}, 4, v{TT}")
    A(f"s_lshl_b32 s{sT0}, s{sSL}, 7"); A(f"s_add_u32 s{sT0}, s{sT0}, {FPO}")
    A(f"s_add_u32 s{sC1}, s{sT0}, {8*REC}"); A(f"s_add_u32 s{sC2}, s{sT0}, {16*REC}"); A(f"s_add_u32 s{sC3}, s{sT0}, {24*REC}")
    A("L_pollf:")
    for k, so in enumerate((sT0, sC1, sC2, sC3)):
        A(f"buffer_load_dwordx4 {r4(FC+4*k)}, v{TT}, {srd(WS)}, s{so} offen sc1")
    A("s_waitcnt vmcnt(0)")
    A(f"v_max3_u32 v{TT+1}, v{FC}, v{FC+1}, v{FC+2}")
    for i in range(3, 15, 2):
        A(f"v_max3_u32 v{TT+1}, v{TT+1}, v{FC+i}, v{FC+i+1}")
    A(f"v_max_u32 v{TT+1}, v{TT+1}, v{FC+15}")
    A(f"v_cmp_eq_u32 vcc, -1, v{TT+1}")
    A(f"s_add_u32 s{sSPIN}, s{sSPIN}, 1"); A(f"s_cmp_gt_u32 s{sSPIN}, {spin}"); A("s_cbranch_scc1 L_gotf")
    A("s_cbranch_vccnz L_pollf")
    A("L_gotf:")
    for v in range(4):
        A(f"v_add_f32 v{FC+v}, v{FC+v}, v{FC+4+v}"); A(f"v_add_f32 v{FC+8+v}, v{FC+8+v}, v{FC+12+v}")
    for v in range(4):
        A(f"v_add_f32 v{FC+v}, v{FC+v}, v{FC+8+v}")
    a, b = FC + 4, FC + 5
    A("s_nop 0")
    A(f"v_add_f32_dpp v{a}, v{FC}, v{FC} row_ror:8 row_mask:0xf bank_mask:0x3")
    A(f"v_add_f32_dpp v{a}, v{FC+1}, v{FC+1} row_ror:8 row_mask:0xf bank_mask:0xc")
    A(f"v_add_f32_dpp v{b}, v{FC+2}, v{FC+2} row_ror:8 row_mask:0xf bank_mask:0x3")
    A(f"v_add_f32_dpp v{b}, v{FC+3}, v{FC+3} row_ror:8 row_mask:0xf bank_mask:0xc")
    A(f"v_and_b32 v{TT}, 7, v0"); A(f"v_lshlrev_b32 v{TT}, 4, v{TT}")
    A(f"v_permlane16_swap_b32 v{a}, v{b}")
    A(f"v_bfe_u32 v{TT+1}, v0, 3, 2"); A(f"v_lshl_add_u32 v{TT}, v{TT+1}, 2, v{TT}")
    A(f"v_add_f32 v{a}, v{a}, v{b}")
    A(f"ds_add_f32 v{TT}, v{a} offset:{FACC}")
    A("s_waitcnt lgkmcnt(0)")
    A("s_barrier")
    A("s_branch L_fin")
    A("L_final:")
    A(f"v_lshlrev_b32 v{TT}, 3, v0")
    A(f"v_lshlrev_b32 v{TT+2}, 16, v{SV+21}"); A(f"v_and_b32 v{TT+3}, 0xffff0000, v{SV+21}")
    A("s_mov_b64 exec, 0xffff")
    A("s_barrier")
    A(f"ds_read_b64 {r2(TT+4)}, v{TT} offset:{FACC}")
    A("s_waitcnt lgkmcnt(0)")
    A(f"v_add_f32 v{TT+2}, v{TT+2}, v{TT+4}"); A(f"v_add_f32 v{TT+3}, v{TT+3}, v{TT+5}")
    A(f"v_cvt_pk_bf16_f32 v{TT+2}, v{TT+2}, v{TT+3}")
    A(f"buffer_store_dword v{TT+2}, v{SV+20}, {srd(OUT)}, 0 offen")
    A("L_fin:")
    if stamps:
        A(f"s_memrealtime s[76:77]")
        A("s_mov_b64 exec, -1")
        A("s_waitcnt lgkmcnt(0)")
        A(f"s_mul_i32 s{sT0}, s2, 9"); A(f"s_add_u32 s{sT0}, s{sT0}, s3"); A(f"s_lshl_b32 s{sT0}, s{sT0}, 7"); A(f"s_add_u32 s{sT0}, s{sT0}, {STAMP}")
        for i in range(22): A(f"v_mov_b32 v{104+i}, s{sST+i}")
        A("v_mov_b32 v126, s76"); A("v_mov_b32 v127, s77"); A(f"v_mov_b32 v128, s{sSPIN}")
        A("s_getreg_b32 s76, hwreg(HW_REG_XCC_ID)"); A("v_mov_b32 v129, s76"); A("v_mov_b32 v130, 0"); A("v_mov_b32 v131, 0")
        A("v_mov_b32 v100, 0")
        A("s_mov_b64 exec, 1")
        for i in range(7):
            A(f"buffer_store_dwordx4 {r4(104+4*i)}, v100, {srd(WS)}, s{sT0} offen offset:{16*i}")
    A("L_end:")
    A("s_endpgm")
    A('.section .rodata,"a"'); A(".p2align 6"); A(f".amdhsa_kernel {NAME}")
    A("  .amdhsa_next_free_vgpr 168"); A("  .amdhsa_next_free_sgpr 102"); A("  .amdhsa_accum_offset 168")
    A("  .amdhsa_group_segment_fixed_size 0"); A("  .amdhsa_kernarg_size 96"); A("  .amdhsa_user_sgpr_count 2")
    A("  .amdhsa_user_sgpr_kernarg_segment_ptr 1"); A("  .amdhsa_system_sgpr_workgroup_id_x 1")
    A(".end_amdhsa_kernel")
    return "\n".join(x for x in L if x is not None) + "\n"


if __name__ == "__main__":
    kw = eval("dict(%s)" % (sys.argv[2] if len(sys.argv) > 2 else ""))
    open(sys.argv[1], "w").write(gen(**kw))
```

```python
import sys
NAME = "parallel_sum__sliding_block_cached__glu_gated_swiglu__decode_kernel"

HEADER = """; Fused decode step: out = x + Attn(LN(x)) + SwiGLU(LN(x)), one launch, 256 workgroups x 9 waves.
"""

S1 = 0
OS = 0
FS = 8192
QL = 24576
HD = QL + 512
MW = HD + 320
LW = MW + 64
ZL = LW + 64
TG = ZL + 128
QF = TG + 4
GO = QF + 4
XN = 25856
ZP = XN + 4608
LDS_BYTES = ZP + 256
assert GO + 4 <= XN
REC = 6144
FPO = 1536
EP = 1280
QP = 2 << 20
GP = QP + (512 << 10)
STAMP = 7 << 19
WS_BYTES = 4 << 20
HUGE = 0x40000000
LOG2E = 0x3FB8AA3B
SCALE = 0x3DB504F3
TMASK = 0x3FF
ML_NAT = True
STAMP_NAMES = ["start", "karg", "B0", "B1", "B2", "sm", "Vend", "s7", "s8", "gotO", "FPst", "end", "x/B4", "B5"]

X, K, V, WQ, WO, W1, W3, W2, OUT, DBG, WS = [4 + 4 * i for i in range(11)]
SRD_INFO = {X: (0, 2304), K: (2, 1 << 28), V: (4, 1 << 28), WQ: (6, 576 * 8192), WO: (8, 4096 * 1152), W1: (12, 576 * 9216),
            W3: (14, 576 * 9216), W2: (16, 4608 * 1152), OUT: (18, 2304), DBG: (20, 256), WS: (22, WS_BYTES)}
sHKV, sJ, sB, sS, sSL, sCK = 48, 49, 50, 51, 52, 53
sT0, sT1, sT2, sT3 = 54, 55, 56, 57
sHASH = 58
sQ2, sF0, sF1, sF2 = 59, 60, 61, 62
sLOG2E = 63
sSPIN = 64
sTM = 65
sC1, sC2, sC3 = 66, 67, 68
sEP = 69
sMASK = 70
sSEL = 72
KA = 76
def stamp_reg(i): return {0: 100, 1: 74}.get(i, KA + 2 * (i - 2))

vK, vV, vA1, vA2 = 1, 2, 3, 4
MK = 5
vT0, vT1, vT2 = 9, 10, 11
A0, A1 = 12, 16
ACC, D1, D2 = 20, 24, 28
SR = 32
QB = 36
KR = 40
VR = 104
def kreg(t): return KR + 4 * t
def vreg(t): return VR + 4 * t
XA = 90
XT = 96
S1D = 132
WL = 40
PL = 60
HV = 68
vTAG = 74
TT = 76
FC = 104
SV = 104


def r4(b): return f"v[{b}:{b+3}]"
def r2(b): return f"v[{b}:{b+1}]"
def srd(b): return f"s[{b}:{b+3}]"
DPPF = "row_mask:0xf bank_mask:0xf"


def gen(depth=5, b2=11, lag=3, stamps=False, pol=" nt", spin=100000, prio=3, wsbase=0, osleep=0, fsleep=0, latepos='end', prios=None, burst=0, mlsleep=6, npo=1, npf=1, outsc='', dry=False, klin=False, skip='', gdelay=0, gsleep=0, psleep=0, nogather=False, noqk=False, sx=None, nost=False, stpol=' sc1', stlin=False, nst=3, stch=0, stmode=None, ldq=' sc1', stml=' sc1', ldml=' sc1', sto=' sc1', ldo=' sc1', stf=' sc1', ldf=' sc1', xpol='', fakeg=False, fakeq=0, pref=None, prest=None):
    L = []
    A = L.append

    def stamp(i):
        if stamps:
            r = stamp_reg(i)
            A(f"s_memrealtime s[{r}:{r+1}]")

    def srd_const(d):
        A(f"s_mov_b32 s{d+2}, {SRD_INFO[d][1]}"); A(f"s_mov_b32 s{d+3}, 0x00020000")

    def srd_ptr(d):
        o = KA + SRD_INFO[d][0]
        if d == WS and wsbase:
            A(f"s_add_u32 s{d}, s{o}, {wsbase}"); A(f"s_addc_u32 s{d+1}, s{o+1}, 0")
        else:
            A(f"s_mov_b64 s[{d}:{d+1}], s[{o}:{o+1}]")

    def masks(tmp):
        A(f"v_and_b32 v{vT2}, 1, v0"); A(f"v_lshlrev_b32 v{vT2}, 4, v{vT2}")
        A(f"v_mov_b32 v{MK}, 0xffff"); A(f"v_lshlrev_b32 v{vT2}, v{vT2}, v{MK}")
        A(f"v_bfe_u32 v{tmp}, v0, 1, 2")
        for j in range(4):
            A(f"v_cmp_eq_u32 vcc, {j}, v{tmp}"); A("s_nop 1"); A(f"v_cndmask_b32 v{MK+j}, 0, v{vT2}, vcc")

    def ffn_ids():
        A(f"s_mul_i32 s{sSL}, s2, 9363"); A(f"s_lshr_b32 s{sSL}, s{sSL}, 16")
        A(f"s_mul_i32 s{sT0}, s{sSL}, 7"); A(f"s_sub_u32 s{sCK}, s2, s{sT0}")

    def tag4(r):
        for v in range(4): A(f"v_bfi_b32 v{r+v}, s{sTM}, v{vTAG}, v{r+v}")

    def untag_check(regs, tags, acc):
        for r, t in zip(regs, tags): A(f"v_xor_b32 v{r}, v{t}, v{r}")
        A(f"v_or3_b32 v{acc}, v{regs[0]}, v{regs[1]}, v{regs[2]}")
        rest = regs[3:]
        while len(rest) >= 2:
            A(f"v_or3_b32 v{acc}, v{acc}, v{rest[0]}, v{rest[1]}"); rest = rest[2:]
        if rest: A(f"v_or_b32 v{acc}, v{acc}, v{rest[0]}")
        A(f"v_and_b32 v{acc}, s{sTM}, v{acc}")
        A(f"v_cmp_ne_u32 vcc, 0, v{acc}")

    A(HEADER.rstrip("\n"))
    A(f"; @launch grid=(256,1,1) block=(576,1,1) lds={LDS_BYTES}")
    A('.amdgcn_target "amdgcn-amd-amdhsa--gfx950"')
    A(".text"); A(f".globl {NAME}"); A(".p2align 8"); A(f".type {NAME},@function"); A(f"{NAME}:")
    stamp(0)
    A(f"s_load_dwordx16 s[{KA}:{KA+15}], s[0:1], 0")
    A(f"s_load_dwordx8 s[{KA+16}:{KA+23}], s[0:1], 64")
    A("v_lshrrev_b32 v1, 6, v0")
    A("s_cmp_ge_u32 s2, 256"); A("s_cbranch_scc1 L_end")
    A("v_readfirstlane_b32 s3, v1")
    A("v_and_b32 v0, 63, v0")
    A(f"s_lshr_b32 s{sHKV}, s2, 4"); A(f"s_and_b32 s{sJ}, s2, 15"); A(f"s_lshr_b32 s{sB}, s{sJ}, 3"); A(f"s_and_b32 s{sS}, s2, 7")
    A(f"v_lshrrev_b32 v{vT0}, 4, v0"); A(f"v_and_b32 v{vT1}, 15, v0")
    A("s_cmp_eq_u32 s3, 8"); A("s_cbranch_scc1 L_service")

    srd_const(WQ); srd_const(W1); srd_const(W3)
    A(f"s_mul_i32 s{sT0}, s{sS}, 72"); A(f"s_lshl_b32 s{sT1}, s3, 2"); A(f"s_add_u32 s{sT0}, s{sT0}, s{sT1}")
    A(f"v_add_u32 v{XT}, s{sT0}, v{vT0}")
    A(f"s_lshl_b32 s{sT0}, s{sHKV}, 9"); A(f"s_lshl_b32 s{sT1}, s{sB}, 8"); A(f"s_add_u32 s{sT0}, s{sT0}, s{sT1}")
    A(f"v_lshlrev_b32 v{vA1}, 13, v{XT}"); A(f"v_lshl_add_u32 v{vA1}, v{vT1}, 4, v{vA1}"); A(f"v_add_u32 v{vA1}, s{sT0}, v{vA1}")
    A(f"s_cmp_lt_u32 s3, 2"); A(f"s_cselect_b32 s{sQ2}, {2*262144}, {HUGE}")
    A(f"s_mov_b32 s{sT3}, 262144")
    ffn_ids()
    A(f"s_mul_i32 s{sT0}, s{sCK}, 20"); A(f"s_min_u32 s{sT1}, s{sCK}, 4"); A(f"s_add_u32 s{sT0}, s{sT0}, s{sT1}")
    A(f"s_add_u32 s{sT0}, s{sT0}, s3"); A(f"s_lshl_b32 s{sT0}, s{sT0}, 2")
    A(f"v_add_u32 v{XT+1}, s{sT0}, v{vT0}")
    A(f"s_lshl_b32 s{sT0}, s{sSL}, 8")
    A(f"v_mul_u32_u24 v{vA2}, 9216, v{XT+1}"); A(f"v_lshl_add_u32 v{vA2}, v{vT1}, 4, v{vA2}"); A(f"v_add_u32 v{vA2}, s{sT0}, v{vA2}")
    A(f"s_cmp_lt_u32 s{sCK}, 4"); A(f"s_cselect_b32 s{sT0}, 5, 4"); A(f"s_cmp_lt_u32 s3, s{sT0}")
    A(f"s_cselect_b32 s{sF2}, {2*294912}, {HUGE}")
    A("s_cmp_lt_u32 s2, 252")
    A(f"s_cselect_b32 s{sF0}, 0, {HUGE}"); A(f"s_cselect_b32 s{sF1}, 294912, {HUGE}"); A(f"s_cselect_b32 s{sF2}, s{sF2}, {HUGE}")
    A("s_waitcnt lgkmcnt(0)")
    stamp(1)

    loads = []
    for k, so in enumerate(("0", f"s{sT3}", f"s{sQ2}")):
        loads.append(("Q%d" % k, [f"buffer_load_dwordx4 {r4(S1D+4*k)}, v{vA1}, {srd(WQ)}, {so} offen{pol}"]))
    for m, (nm, sr) in enumerate((("G", W1), ("U", W3))):
        for k, so in enumerate((sF0, sF1, sF2)):
            loads.append((f"{nm}{k}", [f"buffer_load_dwordx4 {r4(S1D+12+12*m+4*k)}, v{vA2}, {srd(sr)}, s{so} offen{pol}"]))
    for t in range(16):
        loads.append((f"K{t}", [f"s_xor_b32 s{sT0}, s{sHASH}, {t << 13}", f"buffer_load_dwordx4 {r4(kreg(t))}, v{vK}, {srd(K)}, s{sT0} offen{pol}"]))
    for t in range(16):
        loads.append((f"V{t}", [f"s_xor_b32 s{sT0}, s{sHASH}, {t << 13}", f"buffer_load_dwordx4 {r4(vreg(t))}, v{vV}, {srd(V)}, s{sT0} offen{pol}"]))

    def late_loads():
        return [("W0", [f"buffer_load_dwordx4 {r4(WL)}, v{vA2}, {srd(W2)}, 0 offen{pol}"]),
                ("W1", [f"buffer_load_dwordx4 {r4(WL+4)}, v{vA2}, {srd(W2)}, 0 offen offset:2304{pol}"]),
                ("W2", [f"buffer_load_dwordx4 {r4(WL+8)}, v{vA2}, {srd(W2)}, s{sC1} offen{pol}"]),
                ("W3", [f"buffer_load_dwordx4 {r4(WL+12)}, v{vA1}, {srd(WO)}, 0 offen{pol}"]),
                ("W4", [f"buffer_load_dwordx4 {r4(WL+16)}, v{vA1}, {srd(WO)}, 0 offen offset:2304{pol}"])]
    if latepos == "end":
        loads += late_loads()
    elif latepos == "defer":
        pass
    else:
        at = [n for n, _ in loads].index(f"V{b2}") + 1
        loads[at:at] = late_loads()
    if skip:
        for i_, (n_, c_) in enumerate(loads):
            if n_[0] in skip:
                c_ = list(c_); parts = c_[-1].split(", "); parts[3] = "s75 offen nt"; c_[-1] = ", ".join(parts[:4]); loads[i_] = (n_, [f"s_mov_b32 s75, {HUGE}"] + c_)
    names = [n for n, _ in loads]

    def bf16r(dst, src):
        A(f"v_cvt_pk_bf16_f32 v{dst}, v{src}, v{src}"); A(f"v_and_b32 v{dst}, 0xffff0000, v{dst}")

    def allred32(r, t, op="v_add_f32"):
        for n in (1, 2, 4, 8):
            A("s_nop 1"); A(f"{op}_dpp v{r}, v{r}, v{r} row_ror:{n} {DPPF}")
        A(f"v_mov_b32 v{t}, v{r}"); A("s_nop 1"); A(f"v_permlane16_swap_b32 v{r}, v{t}"); A("s_nop 1"); A(f"{op} v{r}, v{r}, v{t}")

    def allred_banks_rows(r, t, op):
        for n in (4, 8):
            A("s_nop 1"); A(f"{op}_dpp v{r}, v{r}, v{r} row_ror:{n} {DPPF}")
        for sw in ("v_permlane16_swap_b32", "v_permlane32_swap_b32"):
            A(f"v_mov_b32 v{t}, v{r}"); A("s_nop 1"); A(f"{sw} v{r}, v{t}"); A("s_nop 1"); A(f"{op} v{r}, v{r}, v{t}")

    aflip = [0]
    def gemv_mfma(val, data, acc, first):
        a = A0 if aflip[0] == 0 else A1
        aflip[0] ^= 1
        for j in range(4):
            A(f"v_and_b32 v{a+j}, v{val}, v{MK+j}")
        A("s_nop 1")
        A(f"v_mfma_f32_16x16x32_bf16 {r4(acc)}, {r4(a)}, {r4(data)}, {'0' if first else r4(acc)}")

    def w2_mfmas():
        for n in range(3):
            for rho in range(2):
                gemv_mfma(HV + 2 * n + rho, WL + 4 * n, D1 if rho == 0 else D2, n == 0)

    def s1_slot(acc, typ):
        A("s_nop 7")
        A(f"ds_write_b128 v{XT}, {r4(acc)} offset:{S1 + 1024*typ}")

    def late_addr():
        A(f"v_bfe_u32 v{vT2}, v0, 3, 1")
        A(f"v_lshl_add_u32 v{vA1}, v{vT0}, 2, v{vT2}")
        A(f"s_lshl_b32 s{sT1}, s2, 4"); A(f"v_add_u32 v{vA1}, s{sT1}, v{vA1}")
        A(f"v_mul_u32_u24 v{vA1}, 1152, v{vA1}")
        A(f"v_mad_u32_u24 v{vA2}, v{vT0}, 6, v{vT2}")
        A(f"s_mul_i32 s{sT1}, s2, 18"); A(f"v_add_u32 v{vA2}, s{sT1}, v{vA2}")
        A(f"v_mul_u32_u24 v{vA2}, 1152, v{vA2}")
        A(f"v_and_b32 v{vT2}, 7, v0"); A(f"v_lshlrev_b32 v{vT2}, 4, v{vT2}")
        A(f"s_lshl_b32 s{sT1}, s3, 7"); A(f"v_add_u32 v{vT2}, s{sT1}, v{vT2}")
        A(f"v_add_u32 v{vA1}, v{vA1}, v{vT2}"); A(f"v_add_u32 v{vA2}, v{vA2}, v{vT2}")
        A(f"v_cmp_eq_u32 vcc, 3, v{vT0}"); A(f"v_mov_b32 v{vT2}, {HUGE}"); A("s_nop 0")
        A(f"v_cndmask_b32 v{vA2}, v{vA2}, v{vT2}, vcc")
        A(f"s_mov_b32 s{sC1}, 4608")

    def tail_addr():
        A(f"v_lshrrev_b32 v{TT}, 1, v{vT0}"); A(f"v_mul_u32_u24 v{TT}, 2304, v{TT}")
        A(f"v_and_b32 v{TT+1}, 7, v0"); A(f"v_lshl_add_u32 v{TT}, v{TT+1}, 5, v{TT}")
        A(f"v_and_b32 v{TT+1}, 1, v{vT0}"); A(f"v_lshl_add_u32 v{TT}, v{TT+1}, 4, v{TT}")
        A(f"s_mul_i32 s{sC2}, s2, {REC}"); A(f"s_lshl_b32 s{sT1}, s3, 8"); A(f"s_add_u32 s{sC2}, s{sC2}, s{sT1}"); A(f"s_add_u32 s{sC2}, s{sC2}, {FPO}")
        A(f"v_bfe_u32 v{TT+1}, v0, 3, 1"); A(f"v_mul_u32_u24 v{TT+1}, 160, v{TT+1}"); A(f"v_mad_u32_u24 v{TT+1}, v{vT0}, 24, v{TT+1}")
        for i in range(3):
            A(f"ds_read_b64 {r2(HV+2*i)}, v{TT+1} offset:{HD+8+8*i}")
        A(f"v_mov_b32 v{TT+1}, 0"); A(f"ds_read_b32 v{vTAG}, v{TT+1} offset:{TG}")
        A(f"v_lshrrev_b32 v{vT1}, 3, v0"); A(f"v_lshlrev_b32 v{vT1}, 4, v{vT1}")
        A(f"s_mov_b32 s{sMASK}, 0x00ff00ff"); A(f"s_mov_b32 s{sMASK+1}, 0x00ff00ff")
        A(f"s_movk_i32 s{sTM}, {TMASK:#x}")

    def qk_block():
        A(f"v_bfe_u32 v{vT2}, v0, 1, 1"); A(f"v_lshlrev_b32 v{vT2}, 8, v{vT2}"); A(f"v_lshl_add_u32 v{vT2}, v{vT0}, 6, v{vT2}")
        A(f"v_bfe_u32 v{vT1}, v0, 2, 2"); A(f"v_lshl_add_u32 v{vT2}, v{vT1}, 4, v{vT2}")
        A(f"v_mov_b32 v{vT1}, 0")
        stamp(7)
        A("L_qwait:")
        A(f"ds_read_b32 v{SR}, v{vT1} offset:{QF}")
        A(f"ds_read_b128 {r4(QB)}, v{vT2} offset:{QL}")
        A(f"s_add_u32 s{sSPIN}, s{sSPIN}, 1"); A(f"s_cmp_gt_u32 s{sSPIN}, {spin*16}")
        A("s_waitcnt lgkmcnt(0)")
        A(f"v_cmp_eq_u32 vcc, 0, v{SR}")
        if sx in (None, "gather"):
            A("s_cbranch_scc1 L_qgot")
            A("s_cbranch_vccnz L_qwait")
        A("L_qgot:")
        stamp(4)
        Ds = [A0, A1, D1, D2]
        def mf(t): A(f"v_mfma_f32_16x16x32_bf16 {r4(Ds[t%4])}, {r4(kreg(t))}, {r4(QB)}, 0")
        def ops(t):
            b = t & 3; S = SR + (t >> 2); D = Ds[t % 4]; bm = f"row_mask:0xf bank_mask:{1<<b:#x}"
            A(f"v_add_f32_dpp v{S}, v{D+((b+1)&3)}, v{D+b} row_ror:12 {bm}")
            A(f"v_add_f32_dpp v{S}, v{D+((b+2)&3)}, v{S} row_ror:8 {bm}")
            A(f"v_add_f32_dpp v{S}, v{D+((b+3)&3)}, v{S} row_ror:4 {bm}")
        for t in range(4): mf(t)
        A("s_nop 4")
        for t in range(16):
            ops(t)
            if t + 4 < 16: mf(t + 4)
            elif t < 15: A("s_nop 0")
        for p in (0, 2):
            a, b = SR + p, SR + p + 1
            A(f"v_cvt_pk_bf16_f32 v{b}, v{a}, v{b}"); A(f"v_lshlrev_b32 v{a}, 16, v{b}"); A(f"v_and_b32 v{b}, 0xffff0000, v{b}")
            A(f"v_mul_f32 v{a}, {SCALE:#x}, v{a}"); A(f"v_mul_f32 v{b}, {SCALE:#x}, v{b}")
            A(f"v_cvt_pk_bf16_f32 v{b}, v{a}, v{b}"); A(f"v_lshlrev_b32 v{a}, 16, v{b}"); A(f"v_and_b32 v{b}, 0xffff0000, v{b}")
        m = D1; l = D1 + 1
        A(f"v_max3_f32 v{m}, v{SR}, v{SR+1}, v{SR+2}"); A(f"v_max_f32 v{m}, v{m}, v{SR+3}")
        allred_banks_rows(m, m + 2, "v_max_f32")
        A(f"v_mul_f32 v{vT2}, s{sLOG2E}, v{m}")
        for T in range(4):
            A(f"v_fma_f32 v{SR+T}, v{SR+T}, s{sLOG2E}, -v{vT2}")
        for T in range(4):
            A(f"v_exp_f32 v{SR+T}, v{SR+T}")
        A(f"s_lshl_b32 s{sT1}, s3, 3"); A(f"v_lshl_add_u32 v{QB+1}, v0, 5, s{sT1}")
        A(f"v_add_f32 v{l}, v{SR}, v{SR+1}"); A(f"v_add_f32 v{l+1}, v{SR+2}, v{SR+3}"); A(f"v_add_f32 v{l}, v{l}, v{l+1}")
        allred_banks_rows(l, l + 1, "v_add_f32")
        A("s_mov_b64 exec, 5")
        A(f"ds_write_b64 v{QB+1}, {r2(m)} offset:{MW}")
        A("s_mov_b64 exec, -1")
        for j in range(8): A(f"v_mov_b32 v{A0+j}, 0")
        A(f"v_and_b32 v{D2}, 1, v0"); A(f"v_lshlrev_b32 v{D2}, 4, v{D2}"); A(f"v_mov_b32 v{D2+1}, 0xffff"); A(f"v_lshlrev_b32 v{D2}, v{D2}, v{D2+1}")
        for T in range(4):
            A(f"v_cvt_pk_bf16_f32 v{SR+T}, v{SR+T}, v{SR+T}")
        for T in range(4):
            A(f"v_and_b32 v{SR+T}, v{SR+T}, v{D2}")
        A(f"v_and_b32 v{QB}, 15, v0"); A(f"v_lshlrev_b32 v{QB}, 5, v{QB}"); A(f"v_lshl_add_u32 v{QB}, v{vT0}, 3, v{QB}")
        A(f"s_lshl_b32 s{sT1}, s3, 10"); A(f"v_add_u32 v{QB}, s{sT1}, v{QB}")
        tail_addr()
        stamp(5)

    def pv(t):
        b = t & 3; P = SR + (t >> 2); a = A0 if t % 2 == 0 else A1
        for j in range(4):
            n = (4 * (j - b)) % 16
            ctl = "quad_perm:[0,1,2,3]" if n == 0 else f"row_ror:{n}"
            A(f"v_mov_b32_dpp v{a+j}, v{P} {ctl} row_mask:0xf bank_mask:{1<<j:#x}")
        A("s_nop 1")
        A(f"v_mfma_f32_16x16x32_bf16 {r4(ACC)}, {r4(a)}, {r4(vreg(t))}, {'0' if t == 0 else r4(ACC)}")

    state = {"qk": False, "pv": 0, "s1": 0}

    def rest_of_prologue():
        for d in (K, V): srd_const(d); srd_ptr(d)
        A(f"s_lshl_b32 s{sT0}, s{sB}, 4"); A(f"s_add_u32 s{sT0}, s{sT0}, s{sHKV}"); A(f"s_lshl_b32 s{sT0}, s{sT0}, 23")
        A(f"s_add_u32 s{sT0}, s{sT0}, {7 << 20}")
        A(f"s_lshl_b32 s{sT1}, s{sS}, 17"); A(f"s_add_u32 s{sT0}, s{sT0}, s{sT1}")
        A(f"s_lshl_b32 s{sT1}, s3, 10"); A(f"s_add_u32 s{sT0}, s{sT0}, s{sT1}")
        A(f"v_lshlrev_b32 v{vV}, 4, v0"); A(f"v_add_u32 v{vV}, s{sT0}, v{vV}")
        A(f"v_and_b32 v{vK}, 3, v0"); A(f"v_lshlrev_b32 v{vK}, 4, v{vK}")
        A(f"v_bfe_u32 v{XT+6}, v0, 2, 2"); A(f"v_lshl_add_u32 v{vK}, v{XT+6}, 8, v{vK}")
        A(f"v_lshl_add_u32 v{vK}, v{vT0}, 6, v{vK}"); A(f"v_add_u32 v{vK}, s{sT0}, v{vK}")
        if klin: A(f"v_mov_b32 v{vK}, v{vV}")
        A(f"s_lshl_b32 s{sT0}, s2, 3"); A(f"s_add_u32 s{sT0}, s{sT0}, s3"); A(f"s_mul_i32 s{sHASH}, s{sT0}, 0x9E3779B1")
        A(f"s_lshr_b32 s{sHASH}, s{sHASH}, 11"); A(f"s_and_b32 s{sHASH}, s{sHASH}, {15 << 13}")
        for d in (WO, W2, WS): srd_const(d); srd_ptr(d)
        A(f"s_mov_b32 s{sLOG2E}, {LOG2E:#x}"); A(f"s_mov_b32 s{sSPIN}, 0")
        masks(XT + 6)
        A(f"v_bfe_u32 v{XT+2}, v0, 3, 1"); A(f"v_mul_u32_u24 v{XT+2}, 2304, v{XT+2}")
        A(f"v_lshl_add_u32 v{XT+3}, v{XT}, 2, v{XT+2}"); A(f"v_lshl_add_u32 v{XT+4}, v{XT+1}, 2, v{XT+2}")
        A(f"s_mul_i32 s{sT1}, s3, 3072"); A(f"v_lshlrev_b32 v{XT}, 4, v0"); A(f"v_add_u32 v{XT}, s{sT1}, v{XT}")

    def on_landed(nm):
        if dry:
            if nm == "U2": stamp(3); late_addr()
            return
        if nm == "Q0":
            if sx != "start": A("s_barrier")
            for k in range(3):
                A(f"ds_read_b32 v{XA+k}, v{XT+3} offset:{XN+128*k}")
            for k in range(3):
                A(f"ds_read_b32 v{XA+3+k}, v{XT+4} offset:{XN+128*k}")
            A("s_waitcnt lgkmcnt(0)")
            gemv_mfma(XA, S1D, ACC, True)
        elif nm in ("Q1", "Q2"):
            k = int(nm[1]); gemv_mfma(XA + k, S1D + 4 * k, ACC, False)
            if k == 2: s1_slot(ACC, 0)
        elif nm[0] in "GU":
            k = int(nm[1]); m = 0 if nm[0] == "G" else 1
            gemv_mfma(XA + 3 + k, S1D + 12 + 12 * m + 4 * k, D1 if m == 0 else D2, k == 0)
            if k == 2:
                s1_slot(D1 if m == 0 else D2, 1 + m)
                if m == 1:
                    A("s_waitcnt lgkmcnt(0)")
                    if sx not in ("start", "ln"): A("s_barrier")
                    stamp(3)
                    late_addr()
        elif nm[0] in "VW" and state["qk"] and not noqk:
            t = max(int(n[1:]) for n in names[:names.index(nm)+1] if n[0] == "V")
            while state["pv"] <= t:
                pv(state["pv"]); state["pv"] += 1

    N = len(loads)
    landed = -1
    assert depth + max(8, lag) < names.index("K12")
    pro_at = min(depth, 8)
    ib2 = names.index(f"V{b2}")
    for i, (nm, code) in enumerate(loads):
        if nm == "Q0": srd_ptr(WQ)
        if nm == "G0": srd_ptr(W1)
        if nm == "U0": srd_ptr(W3)
        if prios and nm in prios: A(f"s_setprio {prios[nm]}")
        if nm == "K12": stamp(2)
        for c in code: A(c)
        if i == pro_at: rest_of_prologue()
        if i >= depth and not (ib2 - burst < i <= ib2):
            if i - depth > landed:
                A(f"s_waitcnt vmcnt({depth})")
                landed = i - depth
            if landed >= 9: on_landed(names[landed])
            if landed >= lag:
                while state["s1"] <= min(landed, 8):
                    on_landed(names[state["s1"]]); state["s1"] += 1
        if i == ib2:
            if landed < names.index("K15"):
                landed = names.index("K15"); A(f"s_waitcnt vmcnt({i - landed})")
            if dry or noqk: stamp(7)
            else: qk_block()
            state["qk"] = True
    iV15 = names.index("V15")
    while landed < iV15:
        landed += 1
        if names[landed][0] == "V":
            A(f"s_waitcnt vmcnt({N-1-landed})")
            on_landed(names[landed])
    stamp(6)
    if dry or sx:
        A("s_waitcnt vmcnt(0)"); stamp(8); A("s_branch L_fin")
    A("s_nop 7")
    A(f"ds_write2st64_b64 v{QB}, {r2(ACC)}, {r2(ACC+2)} offset0:{OS//512} offset1:{OS//512+1}")
    A("s_waitcnt lgkmcnt(0)")
    A("s_barrier")
    stamp(12)
    if latepos == "defer":
        A(f"v_mov_b32 v{PL}, 0")
        A("L_gowait:")
        A(f"ds_read_b32 v{PL+1}, v{PL} offset:{GO}")
        A(f"s_add_u32 s{sSPIN}, s{sSPIN}, 1"); A(f"s_cmp_gt_u32 s{sSPIN}, {spin*16}")
        A("s_waitcnt lgkmcnt(0)")
        A(f"v_cmp_eq_u32 vcc, 0, v{PL+1}")
        A("s_cbranch_scc1 L_gogot")
        A("s_cbranch_vccz L_gogot")
        A("s_sleep 2")
        A("s_branch L_gowait")
        A("L_gogot:")
        for nm, code in late_loads():
            for c in code: A(c)
    if latepos != "mid": A("s_waitcnt vmcnt(2)")
    w2_mfmas()
    A("s_waitcnt vmcnt(0)")
    stamp(8)
    A("s_barrier")
    A(f"ds_read_b128 {r4(PL)}, v{vT1} offset:{ZL}")
    A("s_waitcnt lgkmcnt(0)")
    stamp(13)
    A("s_branch L_tail")

    A("L_service:")
    if dry or sx == "start": A("s_endpgm")
    if prio: A(f"s_setprio {prio}")
    XS = SV + 8
    QA, GA = 60, 61
    srd_const(X); srd_const(WS)
    A(f"v_lshrrev_b32 v{vA1}, 5, v0"); A(f"v_mul_u32_u24 v{vA2}, 1152, v{vA1}")
    A(f"v_and_b32 v{vT2}, 31, v0"); A(f"v_mad_u32_u24 v{vA2}, v{vT2}, 36, v{vA2}")
    A("s_waitcnt lgkmcnt(0)")
    stamp(1)
    srd_ptr(X)
    A(f"buffer_load_dwordx4 {r4(XS)}, v{vA2}, {srd(X)}, 0 offen")
    A(f"buffer_load_dwordx4 {r4(XS+4)}, v{vA2}, {srd(X)}, 0 offen offset:16")
    A(f"buffer_load_dword v{XS+8}, v{vA2}, {srd(X)}, 0 offen offset:32")
    srd_ptr(WS)
    A(f"s_load_dword s{sEP}, s[{WS}:{WS+1}], {EP}")
    A(f"v_lshlrev_b32 v{vK}, 4, v0")
    A(f"s_mul_i32 s{sT0}, s2, {REC}"); A(f"v_add_u32 v{vV}, s{sT0}, v{vK}")
    ffn_ids()
    A(f"v_lshlrev_b32 v{QA}, 9, v{vA1}"); A(f"v_lshl_add_u32 v{QA}, v{vT1}, 5, v{QA}")
    A(f"v_and_b32 v{vT2}, 1, v{vT0}"); A(f"v_lshl_add_u32 v{QA}, v{vT2}, 4, v{QA}")
    A(f"s_lshl_b32 s{sC1}, s2, 10"); A(f"s_add_u32 s{sC1}, s{sC1}, {QP}")
    A(f"v_mul_u32_u24 v{GA}, 18432, v{vA1}"); A(f"v_lshl_add_u32 v{GA}, v{vT1}, 5, v{GA}")
    A(f"v_lshl_add_u32 v{GA}, v{vT2}, 4, v{GA}")
    A(f"s_mul_i32 s{sC2}, s{sCK}, 36864"); A(f"s_lshl_b32 s{sT1}, s{sSL}, 9"); A(f"s_add_u32 s{sC2}, s{sC2}, s{sT1}")
    A(f"s_add_u32 s{sC2}, s{sC2}, {GP}"); A(f"s_add_u32 s{sC3}, s{sC2}, {7*36864}")
    A("s_cmp_lt_u32 s2, 252")
    A(f"s_cselect_b32 s{sC2}, s{sC2}, {HUGE}"); A(f"s_cselect_b32 s{sC3}, s{sC3}, {HUGE}")
    if pref is not None:
        A(f"buffer_load_dwordx4 {r4(140)}, v{QA}, {srd(WS)}, s{sC1} offen{pref}")
        A(f"buffer_load_dwordx4 {r4(144)}, v{GA}, {srd(WS)}, s{sC2} offen{pref}")
        A(f"buffer_load_dwordx4 {r4(148)}, v{GA}, {srd(WS)}, s{sC3} offen{pref}")
        A(f"buffer_load_dwordx4 {r4(152)}, v{vV}, {srd(WS)}, 0 offen{pref}")
    if prest is not None:
        A(f"buffer_store_dwordx4 {r4(140)}, v{QA}, {srd(WS)}, s{sC1} offen{prest}")
        A(f"buffer_store_dwordx4 {r4(140)}, v{GA}, {srd(WS)}, s{sC2} offen{prest}")
        A(f"buffer_store_dwordx4 {r4(140)}, v{GA}, {srd(WS)}, s{sC3} offen{prest}")
    A(f"v_mov_b32 v{SV+4}, 0"); A(f"v_lshlrev_b32 v{SV+5}, 2, v0"); A(f"ds_write_b32 v{SV+5}, v{SV+4} offset:{ZP}")
    A(f"ds_write_b32 v{SV+4}, v{SV+4} offset:{QF}"); A(f"ds_write_b32 v{SV+4}, v{SV+4} offset:{GO}")
    A(f"v_mov_b32 v{SV+6}, -1"); A(f"v_and_b32 v{SV+5}, 124, v{SV+5}"); A(f"ds_write_b32 v{SV+5}, v{SV+6} offset:{MW}")
    for d in (WO, W2, OUT): srd_const(d); srd_ptr(d)
    A(f"s_mov_b32 s{sLOG2E}, {LOG2E:#x}"); A(f"s_mov_b32 s{sSPIN}, 0"); A(f"s_movk_i32 s{sTM}, {TMASK:#x}")
    masks(SV + 5)
    A(f"v_lshlrev_b32 v{vA2}, 1, v{vA2}")
    U = 12
    A("s_waitcnt vmcnt(0)")
    stamp(12)
    for i in range(9):
        A(f"v_lshlrev_b32 v{U+2*i}, 16, v{XS+i}"); A(f"v_and_b32 v{U+2*i+1}, 0xffff0000, v{XS+i}")
    s = XS
    A(f"v_add_f32 v{s}, v{U}, v{U+1}"); A(f"v_add_f32 v{s+1}, v{U+2}, v{U+3}")
    for i in range(4, 18, 2):
        A(f"v_add_f32 v{s}, v{s}, v{U+i}"); A(f"v_add_f32 v{s+1}, v{s+1}, v{U+i+1}")
    A(f"v_add_f32 v{s}, v{s}, v{s+1}")
    allred32(s, s + 1)
    A(f"v_mul_f32 v{s}, {0x3AE38E39:#x}, v{s}")
    W = 40
    for i in range(18):
        A(f"v_sub_f32 v{W+i}, v{U+i}, v{s}")
    A(f"v_mul_f32 v{s+2}, v{W}, v{W}"); A(f"v_mul_f32 v{s+3}, v{W+1}, v{W+1}")
    for i in range(2, 18, 2):
        A(f"v_fmac_f32 v{s+2}, v{W+i}, v{W+i}"); A(f"v_fmac_f32 v{s+3}, v{W+i+1}, v{W+i+1}")
    A(f"v_add_f32 v{s+2}, v{s+2}, v{s+3}")
    allred32(s + 2, s + 3)
    A(f"v_mul_f32 v{s+2}, {0x3AE38E39:#x}, v{s+2}")
    bf16r(s + 2, s + 2)
    A(f"v_add_f32 v{s+2}, {0x3727C5AC:#x}, v{s+2}")
    bf16r(s + 2, s + 2)
    A(f"v_sqrt_f32 v{s+2}, v{s+2}")
    bf16r(s, s)
    bf16r(s + 2, s + 2)
    A(f"v_rcp_f32 v{s+2}, v{s+2}")
    for i in range(18):
        A(f"v_sub_f32 v{U+i}, v{U+i}, v{s}")
    for i in range(0, 18, 2):
        A(f"v_cvt_pk_bf16_f32 v{U+i+1}, v{U+i}, v{U+i+1}"); A(f"v_lshlrev_b32 v{U+i}, 16, v{U+i+1}"); A(f"v_and_b32 v{U+i+1}, 0xffff0000, v{U+i+1}")
        A(f"v_mul_f32 v{U+i}, v{U+i}, v{s+2}"); A(f"v_mul_f32 v{U+i+1}, v{U+i+1}, v{s+2}")
        A(f"v_cvt_pk_bf16_f32 v{U+i}, v{U+i}, v{U+i}"); A(f"v_cvt_pk_bf16_f32 v{U+i+1}, v{U+i+1}, v{U+i+1}")
        A(f"ds_write_b64 v{vA2}, {r2(U+i)} offset:{XN+4*i}")
    A("s_waitcnt lgkmcnt(0)")
    A("s_barrier")
    if sx == "ln": A("s_endpgm")
    stamp(2)
    A(f"s_add_u32 s{sEP}, s{sEP}, 1"); A(f"s_and_b32 s{sT0}, s{sEP}, s{sTM}")
    A(f"v_mov_b32 v{vTAG}, s{sT0}")
    A(f"ds_write_b32 v{SV+4}, v{vTAG} offset:{TG}")
    A(f"v_lshlrev_b32 v{vA1}, 13, v{vA1}")
    A(f"v_and_b32 v{vT2}, 31, v0"); A(f"v_lshl_add_u32 v{vA1}, v{vT2}, 4, v{vA1}")
    A(f"s_lshl_b32 s{sT2}, s{sHKV}, 14"); A(f"s_lshl_b32 s{sT3}, s{sB}, 9"); A(f"s_add_u32 s{sT2}, s{sT2}, s{sT3}")
    A(f"s_add_u32 s{sT2}, s{sT2}, {QP}"); A(f"s_add_u32 s{sT3}, s{sT2}, 4096")
    GV3, TG0, TG3 = 62, 63, 64
    A(f"v_lshrrev_b32 v{vA2}, 5, v0"); A(f"v_mul_u32_u24 v{vA2}, 7, v{vA2}")
    A(f"v_and_b32 v{SV}, 1, v{vT0}"); A(f"v_lshl_add_u32 v{vA2}, v{SV}, 2, v{vA2}")
    A(f"v_bfe_u32 v{SV+1}, v0, 3, 1"); A(f"v_lshl_add_u32 v{vA2}, v{vA2}, 1, v{SV+1}")
    A(f"v_mul_u32_u24 v{vA2}, 18432, v{vA2}")
    A(f"v_and_b32 v{SV+1}, 7, v0"); A(f"v_lshl_add_u32 v{vA2}, v{SV+1}, 4, v{vA2}")
    A(f"v_mov_b32 v{SV+2}, {HUGE}")
    A(f"v_cmp_gt_u32 vcc, 5, v{SV+1}"); A("s_nop 1")
    A(f"v_cndmask_b32 v{vA2}, v{SV+2}, v{vA2}, vcc"); A(f"v_cndmask_b32 v{TG0}, 0, v{vTAG}, vcc")
    A(f"v_cmp_eq_u32 vcc, 0, v{SV}"); A("s_nop 1")
    A(f"v_cndmask_b32 v{GV3}, v{SV+2}, v{vA2}, vcc"); A(f"v_cndmask_b32 v{TG3}, 0, v{TG0}, vcc")
    A(f"s_mul_i32 s{sQ2}, s2, 18"); A(f"s_and_b32 s{sF0}, s{sQ2}, 2"); A(f"s_andn2_b32 s{sQ2}, s{sQ2}, 3")
    A(f"s_lshl_b32 s{sQ2}, s{sQ2}, 2"); A(f"s_add_u32 s{sQ2}, s{sQ2}, {GP}")
    A(f"s_add_u32 s{sF1}, s{sQ2}, 36864"); A(f"s_add_u32 s{sF2}, s{sQ2}, {2*36864}"); A(f"s_add_u32 s{sHASH}, s{sQ2}, {3*36864}")

    def sum_slots(typ, dst):
        T = SV + 8
        for w in range(8):
            A(f"ds_read_b128 {r4(T+4*w)}, v{vK} offset:{S1 + w*3072 + typ*1024}")
        for w in range(1, 8):
            A(f"s_waitcnt lgkmcnt({7-w})")
            for v in range(4):
                A(f"v_add_f32 v{dst+v}, v{T+v if w == 1 else dst+v}, v{T+4*w+v}")
        for v in range(4): A(f"v_add_u32 v{dst+v}, {(TMASK+1)//2}, v{dst+v}")
        tag4(dst)
    A("s_barrier")
    if stlin:
        A(f"s_mul_i32 s{sC1}, s2, 3072"); A(f"s_add_u32 s{sC1}, s{sC1}, {QP}"); A(f"s_add_u32 s{sC2}, s{sC1}, 1024"); A(f"s_add_u32 s{sC3}, s{sC1}, 2048")
        A(f"v_mov_b32 v{QA}, v{vK}"); A(f"v_mov_b32 v{GA}, v{vK}")
    if stch:
        A(f"v_lshlrev_b32 v{QA}, {stch}, v{vT0}"); A(f"v_lshl_add_u32 v{QA}, v{vT1}, 4, v{QA}"); A(f"v_mov_b32 v{GA}, v{QA}")
        per = (1 << stch) // 256
        A(f"s_and_b32 s{sC1}, s2, {per-1}"); A(f"s_lshl_b32 s{sC1}, s{sC1}, 8")
        A(f"s_lshr_b32 s{sC2}, s2, {stch-8}"); A(f"s_mul_i32 s{sC2}, s{sC2}, {12 << stch}"); A(f"s_add_u32 s{sC1}, s{sC1}, s{sC2}")
        A(f"s_add_u32 s{sC2}, s{sC1}, {4 << stch}"); A(f"s_add_u32 s{sC3}, s{sC1}, {8 << stch}")
    def tst(r, va, so):
        if stmode is None: A(f"buffer_store_dwordx4 {r4(r)}, v{va}, {srd(WS)}, s{so} offen{stpol}")
        elif stmode == "dw":
            A(f"v_lshlrev_b32 v{SV}, 2, v0"); A(f"buffer_store_dword v{r}, v{SV}, {srd(WS)}, s{so} offen{stpol}")
        elif stmode == "l8":
            A(f"v_lshlrev_b32 v{SV}, 7, v0"); A("s_mov_b64 exec, 0xff"); A(f"buffer_store_dwordx4 {r4(r)}, v{SV}, {srd(WS)}, s{so} offen{stpol}"); A("s_mov_b64 exec, -1")
        elif stmode == "h64":
            A(f"v_and_b32 v{SV}, 3, v0"); A(f"v_lshlrev_b32 v{SV}, 4, v{SV}"); A(f"v_lshrrev_b32 v{SV+1}, 2, v0"); A(f"v_lshl_add_u32 v{SV}, v{SV+1}, 7, v{SV}")
            A("s_mov_b64 exec, 0xffffffff"); A(f"buffer_store_dwordx4 {r4(r)}, v{SV}, {srd(WS)}, s{so} offen{stpol}"); A("s_mov_b64 exec, -1")
        elif stmode == "half":
            A("s_mov_b64 exec, 0xffffffff"); A(f"buffer_store_dwordx4 {r4(r)}, v{va}, {srd(WS)}, s{so} offen{stpol}"); A("s_mov_b64 exec, -1")
        elif stmode == "atom":
            A(f"v_lshlrev_b32 v{SV}, 3, v0"); A(f"buffer_atomic_swap_x2 {r2(r)}, v{SV}, {srd(WS)}, s{so} offen{stpol}"); A(f"buffer_atomic_swap_x2 {r2(r+2)}, v{SV}, {srd(WS)}, s{so} offen offset:512{stpol}")
    sum_slots(0, ACC)
    if fakeq:
        A(f"s_and_b32 s{sT0}, s2, 3"); A(f"s_cmp_eq_u32 s{sT0}, 0"); A(f"s_cselect_b64 exec, {((1 << fakeq) - 1) if fakeq < 33 else -1}, 0")
        A(f"buffer_store_dwordx4 {r4(ACC)}, v{vK}, {srd(WS)}, s{sC1} offen{stpol}"); A("s_mov_b64 exec, -1")
    elif not nost and nst >= 1: tst(ACC, QA, sC1)
    sum_slots(1, D1)
    if not nost and nst >= 2 and not fakeg: tst(D1, GA, sC2)
    sum_slots(2, D2)
    if not nost and nst >= 3 and not fakeg: tst(D2, GA, sC3)
    stamp(3)
    T = SV + 8
    GT = 40
    if sx == "b1": A("s_endpgm")
    for _ in range(gdelay): A("s_sleep 127")
    if nogather: A("s_branch L_gotg")
    A("s_branch L_gather1")
    A("L_gather:")
    if gsleep: A(f"s_sleep {gsleep}")
    A("L_gather1:")
    nq = 1 if fakeq else 8
    if fakeq:
        A(f"v_lshlrev_b32 v{vA1}, 12, v{vT0}"); A(f"v_and_b32 v{SV}, 15, v0"); A(f"v_lshl_add_u32 v{vA1}, v{SV}, 4, v{vA1}")
        A(f"s_lshl_b32 s{sT2}, s{sHKV}, 14"); A(f"s_add_u32 s{sT2}, s{sT2}, {QP}")
    for rc in range(nq):
        A(f"buffer_load_dwordx4 {r4(T+4*rc)}, v{vA1}, {srd(WS)}, s{sT2 if rc < 4 else sT3} offen offset:{1024*(rc%4)}{ldq}")
    if not fakeg:
        for i, so in enumerate((sQ2, sF1, sF2, sHASH)):
            A(f"buffer_load_dwordx4 {r4(GT+4*i)}, v{vA2 if i < 3 else GV3}, {srd(WS)}, s{so} offen{ldq}")
    A(f"s_add_u32 s{sSPIN}, s{sSPIN}, 1"); A(f"s_cmp_gt_u32 s{sSPIN}, {spin}")
    A("s_waitcnt vmcnt(0)")
    untag_check([T + i for i in range(4*nq)] + ([] if fakeg else [GT + i for i in range(16)]), [vTAG] * (4*nq) + ([] if fakeg else [TG0] * 12 + [TG3] * 4), SV)
    A("s_cbranch_scc1 L_gotg")
    A("s_cbranch_vccnz L_gather")
    A("L_gotg:")
    stamp(7)
    for rc in range(1, 8):
        for v in range(4):
            A(f"v_add_f32 v{ACC+v}, v{T+v if rc == 1 else ACC+v}, v{T+4*rc+v}")
    A(f"v_cvt_pk_bf16_f32 v{ACC}, v{ACC}, v{ACC+1}"); A(f"v_cvt_pk_bf16_f32 v{ACC+1}, v{ACC+2}, v{ACC+3}")
    A(f"v_lshlrev_b32 v{vA1}, 3, v0")
    A(f"ds_write_b64 v{vA1}, {r2(ACC)} offset:{QL}")
    for v in range(4):
        A(f"v_add_f32 v{GT+v}, v{GT+v}, v{GT+4+v}"); A(f"v_add_f32 v{GT+8+v}, v{GT+8+v}, v{GT+12+v}")
    for v in range(4): A(f"v_add_f32 v{GT+v}, v{GT+v}, v{GT+8+v}")
    for v in range(4): A(f"v_mov_b32 v{GT+4+v}, v{GT+v}")
    A("s_nop 1")
    for v in range(4): A(f"v_permlane16_swap_b32 v{GT+v}, v{GT+4+v}")
    A("s_nop 1")
    for v in range(4): A(f"v_add_f32 v{GT+v}, v{GT+v}, v{GT+4+v}")
    for v in range(4): A(f"v_mov_b32 v{GT+4+v}, v{GT+v}")
    A("s_nop 1")
    for v in range(4): A(f"v_permlane32_swap_b32 v{GT+v}, v{GT+4+v}")
    A("s_nop 1")
    for v in range(8): bf16r(GT + v, GT + v)
    for v in range(4): A(f"v_mul_f32 v{GT+8+v}, s{sLOG2E}, v{GT+v}")
    for v in range(4): A(f"v_exp_f32 v{GT+8+v}, -v{GT+8+v}")
    for v in range(4): A(f"v_add_f32 v{GT+8+v}, 1.0, v{GT+8+v}")
    for v in range(4): A(f"v_rcp_f32 v{GT+8+v}, v{GT+8+v}")
    for v in range(4): A(f"v_mul_f32 v{GT+v}, v{GT+v}, v{GT+8+v}")
    for v in range(4): bf16r(GT + v, GT + v)
    for v in range(4): A(f"v_mul_f32 v{GT+v}, v{GT+v}, v{GT+4+v}")
    for v in range(4): A(f"v_cvt_pk_bf16_f32 v{GT+v}, v{GT+v}, v{GT+v}")
    A(f"v_bfe_u32 v{vA1}, v0, 3, 1"); A(f"v_mul_u32_u24 v{vA1}, 160, v{vA1}"); A(f"v_lshl_add_u32 v{vA1}, v{SV+1}, 4, v{vA1}")
    A(f"s_lshl_b32 s{sF0}, s{sF0}, 2"); A(f"v_subrev_u32 v{vA1}, s{sF0}, v{vA1}"); A(f"v_add_u32 v{vA1}, {HD+8}, v{vA1}")
    A("s_mov_b64 exec, 0xffff")
    A(f"ds_write_b64 v{vA1}, {r2(GT)}"); A(f"ds_write_b64 v{vA1}, {r2(GT+2)} offset:8")
    A("s_mov_b64 exec, -1")
    A(f"v_mov_b32 v{SV+2}, 0"); A(f"v_mov_b32 v{SV+3}, 1")
    A("s_waitcnt lgkmcnt(0)")
    A(f"ds_write_b32 v{SV+2}, v{SV+3} offset:{QF}")
    if sx == "gather": A("s_endpgm")
    stamp(5)
    late_addr()
    for nm, code in late_loads():
        for c in code: A(c)
    A(f"s_lshl_b32 s{sT0}, s{sSL}, 6"); A(f"v_lshlrev_b32 v{SV+20}, 2, v0"); A(f"v_add_u32 v{SV+20}, s{sT0}, v{SV+20}")
    A(f"buffer_load_dword v{SV+21}, v{SV+20}, {srd(X)}, 0 offen")
    tail_addr()
    A(f"v_and_b32 v{vA1}, 15, v0"); A(f"s_lshl_b32 s{sT1}, s{sHKV}, 4"); A(f"v_add_u32 v{vA1}, s{sT1}, v{vA1}")
    A(f"v_mul_u32_u24 v{vA1}, {REC}, v{vA1}")
    A(f"s_lshl_b32 s{sT2}, s{sJ}, 6"); A(f"v_lshl_add_u32 v{vA2}, v{vT0}, 4, v{vA1}")
    A(f"s_cmp_eq_u32 s{sB}, 1"); A(f"s_cselect_b64 s[{sSEL}:{sSEL+1}], -1, 0")
    A("s_mov_b32 s0, 0x01010101"); A("s_mov_b32 s1, 0x01010101")
    ML = 128
    FW = 80
    A(f"v_and_b32 v{SV+2}, 15, v0"); A(f"v_lshlrev_b32 v{SV+2}, 3, v{SV+2}")
    A("L_mlwait:")
    A(f"s_sleep {mlsleep}")
    A(f"ds_read_b32 v{SV+3}, v{SV+2} offset:{MW+4}")
    A(f"s_add_u32 s{sSPIN}, s{sSPIN}, 1"); A(f"s_cmp_gt_u32 s{sSPIN}, {spin*16}")
    A("s_waitcnt lgkmcnt(0)")
    A(f"v_cmp_eq_u32 vcc, -1, v{SV+3}")
    A("s_cbranch_scc1 L_mlgot")
    A("s_cbranch_vccnz L_mlwait")
    A("L_mlgot:")
    A(f"v_mov_b32 v{SV+2}, 0")
    for i in range(8): A(f"ds_read_b128 {r4(ML+4*i)}, v{SV+2} offset:{MW+16*i}")
    A("s_waitcnt lgkmcnt(0)")
    stamp(4)
    for h in range(2):
        b = ML + 16 * h; Mh = SV + 4 + 2 * h; Lh = Mh + 1
        A(f"v_max3_f32 v{Mh}, v{b}, v{b+2}, v{b+4}"); A(f"v_max3_f32 v{Mh}, v{Mh}, v{b+6}, v{b+8}")
        A(f"v_max3_f32 v{Mh}, v{Mh}, v{b+10}, v{b+12}"); A(f"v_max_f32 v{Mh}, v{Mh}, v{b+14}")
        for w in range(8): A(f"v_sub_f32 v{b+2*w}, v{b+2*w}, v{Mh}")
        for w in range(8): A(f"v_mul_f32 v{b+2*w}, s{sLOG2E}, v{b+2*w}")
        for w in range(8): A(f"v_exp_f32 v{b+2*w}, v{b+2*w}")
        A(f"v_mul_f32 v{Lh}, v{b}, v{b+1}")
        for w in range(1, 8): A(f"v_fmac_f32 v{Lh}, v{b+2*w}, v{b+2*w+1}")
    A(f"s_mov_b32 s{sQ2+1}, 0"); A(f"s_mov_b32 s{sQ2+2}, -1")
    for w in range(8): A(f"v_cndmask_b32 v{FW+w}, v{ML+2*w}, v{ML+16+2*w}, s[{sQ2+1}:{sQ2+2}]")
    tag4(SV + 4)
    A("s_mov_b64 exec, 1")
    A(f"buffer_store_dwordx4 {r4(SV+4)}, v{vV}, {srd(WS)}, 0 offen offset:1024{stml}")
    A("s_mov_b64 exec, -1")
    m, l = PL + 4, PL + 5
    M = TT + 1
    steps = ("quad_perm:[1,0,3,2]", "quad_perm:[2,3,0,1]", "row_half_mirror")
    def coef():
        A(f"v_cndmask_b32 v{m}, v{m}, v{PL+6}, s[{sSEL}:{sSEL+1}]"); A(f"v_cndmask_b32 v{l}, v{l}, v{PL+7}, s[{sSEL}:{sSEL+1}]")
        A("s_nop 0")
        A(f"v_max_f32_dpp v{M}, v{m}, v{m} {steps[0]} {DPPF}")
        for s_ in steps[1:]:
            A("s_nop 1"); A(f"v_max_f32_dpp v{M}, v{M}, v{M} {s_} {DPPF}")
        A(f"v_sub_f32 v{m}, v{m}, v{M}"); A(f"v_mul_f32 v{m}, s{sLOG2E}, v{m}"); A(f"v_exp_f32 v{m}, v{m}"); A("s_nop 0")
        A(f"v_mul_f32 v{l}, v{l}, v{m}")
        for s_ in steps:
            A("s_nop 1"); A(f"v_add_f32_dpp v{l}, v{l}, v{l} {s_} {DPPF}")
        A(f"v_rcp_f32 v{l}, v{l}"); A("s_nop 0")
        A(f"v_mul_f32 v{m}, v{m}, v{l}")
    A(f"buffer_load_dwordx4 {r4(PL+4)}, v{vA1}, {srd(WS)}, 0 offen offset:1024{ldml}")
    A("s_waitcnt vmcnt(5)")
    w2_mfmas()
    A("s_waitcnt vmcnt(0)")
    untag_check([PL + 4 + i for i in range(4)], [vTAG] * 4, TT + 1)
    A(f"s_mov_b64 s[{sQ2+1}:{sQ2+2}], vcc")
    A(f"v_mov_b32 v{SV+2}, 0"); A(f"v_mov_b32 v{SV+3}, 1")
    A("s_cbranch_vccnz L_nogo")
    A(f"ds_write_b32 v{SV+2}, v{SV+3} offset:{GO}")
    A("L_nogo:")
    coef()
    stamp(8)
    A("s_barrier")
    OT = 128
    for w in range(8):
        A(f"ds_read_b128 {r4(OT+4*w)}, v{vK} offset:{OS+w*1024}")
    for w in range(8):
        A(f"s_waitcnt lgkmcnt({7-w})")
        f = FW + (w & ~1); sel = w & 1
        for hlf in range(2):
            d = f"v[{OT+2*hlf}:{OT+2*hlf+1}]"; x = f"v[{OT+4*w+2*hlf}:{OT+4*w+2*hlf+1}]"
            if w == 0: A(f"v_pk_mul_f32 {d}, {x}, v[{f}:{f+1}] op_sel:[0,{sel}] op_sel_hi:[1,{sel}]")
            else: A(f"v_pk_fma_f32 {d}, {x}, v[{f}:{f+1}], {d} op_sel:[0,{sel},0] op_sel_hi:[1,{sel},1]")
    tag4(OT)
    A(f"buffer_store_dwordx4 {r4(OT)}, v{vV}, {srd(WS)}, 0 offen{sto}")
    stamp(6)
    A(f"s_cmp_eq_u64 s[{sQ2+1}:{sQ2+2}], 0"); A("s_cbranch_scc1 L_pollo")
    A("L_pollml:")
    if psleep: A(f"s_sleep {psleep}")
    A(f"buffer_load_dwordx4 {r4(PL+4)}, v{vA1}, {srd(WS)}, 0 offen offset:1024{ldml}")
    A(f"s_add_u32 s{sSPIN}, s{sSPIN}, 1"); A(f"s_cmp_gt_u32 s{sSPIN}, {spin}")
    A("s_waitcnt vmcnt(0)")
    untag_check([PL + 4 + i for i in range(4)], [vTAG] * 4, TT + 1)
    A("s_cbranch_scc1 L_gotml")
    A("s_cbranch_vccnz L_pollml")
    A("L_gotml:")
    A(f"ds_write_b32 v{SV+2}, v{SV+3} offset:{GO}")
    coef()
    A("L_pollo:")
    PB = 136
    for k in range(npo - 1):
        A(f"buffer_load_dwordx4 {r4(PB+4*k)}, v{vA2}, {srd(WS)}, s{sT2} offen{ldo}")
        if osleep: A(f"s_sleep {osleep}")
    A("L_po0:")
    if psleep: A(f"s_sleep {psleep}")
    for k in range(npo):
        kk = (k + npo - 1) % npo
        A(f"buffer_load_dwordx4 {r4(PB+4*kk)}, v{vA2}, {srd(WS)}, s{sT2} offen{ldo}")
        if k == 0: A(f"s_add_u32 s{sSPIN}, s{sSPIN}, 1"); A(f"s_cmp_gt_u32 s{sSPIN}, {spin}")
        A(f"s_waitcnt vmcnt({npo-1})")
        for v in range(4): A(f"v_xor_b32 v{PL+v}, v{vTAG}, v{PB+4*k+v}")
        A(f"v_or3_b32 v{TT+1}, v{PL}, v{PL+1}, v{PL+2}"); A(f"v_or_b32 v{TT+1}, v{TT+1}, v{PL+3}")
        A(f"v_and_b32 v{TT+1}, s{sTM}, v{TT+1}"); A(f"v_cmp_ne_u32 vcc, 0, v{TT+1}")
        if k < npo - 1: A("s_cbranch_vccz L_goto")
        else:
            A("s_cbranch_scc1 L_goto"); A("s_cbranch_vccnz L_po0")
    A("L_goto:")
    stamp(9)
    for v in range(4): A(f"v_mul_f32 v{PL+v}, v{PL+v}, v{m}")
    for s_ in steps:
        for r in (PL, PL + 1, PL + 2, PL + 3):
            A(f"v_add_f32_dpp v{r}, v{r}, v{r} {s_} {DPPF}")
    for v in range(4): A(f"v_cvt_pk_bf16_f32 v{PL+v}, v{PL+v}, v{PL+v}")
    A("s_mov_b64 exec, s[0:1]")
    A(f"ds_write_b128 v{vT1}, {r4(PL)} offset:{ZL}")
    A("s_mov_b64 exec, -1")
    A("s_waitcnt lgkmcnt(0)")
    A("s_barrier")
    stamp(13)

    A("L_tail:")
    for n in range(2):
        for rho in range(2):
            gemv_mfma(PL + 2 * n + rho, WL + 12 + 4 * n, D1 if rho == 0 else D2, False)
    A("s_nop 7")
    for v in range(4):
        A(f"v_add_f32_dpp v{D1+v}, v{D2+v}, v{D1+v} row_ror:8 {DPPF}")
    tag4(D1)
    A(f"s_mov_b64 exec, s[{sMASK}:{sMASK+1}]")
    A(f"buffer_store_dwordx4 {r4(D1)}, v{TT}, {srd(WS)}, s{sC2} offen{stf}")
    A("s_mov_b64 exec, -1")
    stamp(10)
    A(f"s_cmp_lg_u32 s{sCK}, 0"); A("s_cbranch_scc1 L_fin")
    A("s_cmp_ge_u32 s2, 252"); A("s_cbranch_scc1 L_fin")
    A("s_cmp_eq_u32 s3, 8"); A("s_cbranch_scc1 L_final")
    A(f"v_lshrrev_b32 v{TT}, 3, v0"); A(f"s_lshl_b32 s{sT0}, s3, 5"); A(f"v_add_u32 v{TT}, s{sT0}, v{TT}")
    A(f"v_mul_u32_u24 v{TT}, {REC}, v{TT}"); A(f"v_and_b32 v{TT+1}, 7, v0"); A(f"v_lshl_add_u32 v{TT}, v{TT+1}, 4, v{TT}")
    A(f"s_lshl_b32 s{sT0}, s{sSL}, 7"); A(f"s_add_u32 s{sT0}, s{sT0}, {FPO}")
    A(f"s_add_u32 s{sC1}, s{sT0}, {8*REC}"); A(f"s_add_u32 s{sC2}, s{sT0}, {16*REC}"); A(f"s_add_u32 s{sC3}, s{sT0}, {24*REC}")
    FB = FC - 16 * 0 + 16
    def fpoll(k):
        for q, so in enumerate((sT0, sC1, sC2, sC3)):
            A(f"buffer_load_dwordx4 {r4(FB+16*k+4*q)}, v{TT}, {srd(WS)}, s{so} offen{ldf}")
    for k in range(npf - 1):
        fpoll(k)
        if fsleep: A(f"s_sleep {fsleep}")
    A("L_pf0:")
    for k in range(npf):
        fpoll((k + npf - 1) % npf)
        if k == 0: A(f"s_add_u32 s{sSPIN}, s{sSPIN}, 1"); A(f"s_cmp_gt_u32 s{sSPIN}, {spin}")
        A(f"s_waitcnt vmcnt({4*(npf-1)})")
        for v in range(16): A(f"v_xor_b32 v{FC+v}, v{vTAG}, v{FB+16*k+v}")
        A(f"v_or3_b32 v{TT+1}, v{FC}, v{FC+1}, v{FC+2}")
        for i in range(3, 15, 2): A(f"v_or3_b32 v{TT+1}, v{TT+1}, v{FC+i}, v{FC+i+1}")
        A(f"v_or_b32 v{TT+1}, v{TT+1}, v{FC+15}")
        A(f"v_and_b32 v{TT+1}, s{sTM}, v{TT+1}"); A(f"v_cmp_ne_u32 vcc, 0, v{TT+1}")
        if k < npf - 1: A("s_cbranch_vccz L_gotf")
        else:
            A("s_cbranch_scc1 L_gotf"); A("s_cbranch_vccnz L_pf0")
    A("L_gotf:")
    stamp(9)
    for v in range(4):
        A(f"v_add_f32 v{FC+v}, v{FC+v}, v{FC+4+v}"); A(f"v_add_f32 v{FC+8+v}, v{FC+8+v}, v{FC+12+v}")
    for v in range(4):
        A(f"v_add_f32 v{FC+v}, v{FC+v}, v{FC+8+v}")
    a, b = FC + 4, FC + 5
    A("s_nop 0")
    A(f"v_add_f32_dpp v{a}, v{FC}, v{FC} row_ror:8 row_mask:0xf bank_mask:0x3")
    A(f"v_add_f32_dpp v{a}, v{FC+1}, v{FC+1} row_ror:8 row_mask:0xf bank_mask:0xc")
    A(f"v_add_f32_dpp v{b}, v{FC+2}, v{FC+2} row_ror:8 row_mask:0xf bank_mask:0x3")
    A(f"v_add_f32_dpp v{b}, v{FC+3}, v{FC+3} row_ror:8 row_mask:0xf bank_mask:0xc")
    A(f"v_and_b32 v{TT}, 7, v0"); A(f"v_lshlrev_b32 v{TT}, 4, v{TT}")
    A(f"v_permlane16_swap_b32 v{a}, v{b}")
    A(f"v_bfe_u32 v{TT+1}, v0, 3, 2"); A(f"v_lshl_add_u32 v{TT}, v{TT+1}, 2, v{TT}")
    A(f"v_add_f32 v{a}, v{a}, v{b}")
    A(f"s_lshl_b32 s{sT0}, s3, 7"); A(f"v_mov_b32 v{b}, v{a}"); A(f"v_add_u32 v{TT}, s{sT0}, v{TT}"); A("s_nop 0")
    A(f"v_permlane32_swap_b32 v{a}, v{b}"); A("s_nop 1")
    A(f"v_add_f32 v{a}, v{a}, v{b}")
    A(f"ds_write_b32 v{TT}, v{a} offset:{FS}")
    A("s_waitcnt lgkmcnt(0)")
    A("s_barrier")
    A("s_branch L_fin")
    A("L_final:")
    A(f"v_lshlrev_b32 v{TT}, 3, v0")
    A(f"v_lshlrev_b32 v{TT+2}, 16, v{SV+21}"); A(f"v_and_b32 v{TT+3}, 0xffff0000, v{SV+21}")
    A(f"v_mov_b32 v{TT+1}, s{sEP}"); A(f"v_mov_b32 v{SV}, {EP}")
    A(f"s_cmp_eq_u32 s2, 0"); A(f"s_cselect_b32 s{sT0}, 0, {HUGE}")
    A("s_mov_b64 exec, 0xffff")
    A("s_barrier")
    for w in range(8):
        A(f"ds_read_b64 {r2(80+2*w)}, v{TT} offset:{FS+128*w}")
    for w in range(8):
        A(f"s_waitcnt lgkmcnt({7-w})")
        A(f"v_add_f32 v{TT+2}, v{TT+2}, v{80+2*w}"); A(f"v_add_f32 v{TT+3}, v{TT+3}, v{81+2*w}")
    A(f"v_cvt_pk_bf16_f32 v{TT+2}, v{TT+2}, v{TT+3}")
    A(f"buffer_store_dword v{TT+2}, v{SV+20}, {srd(OUT)}, 0 offen{outsc}")
    A("s_mov_b64 exec, 1")
    A(f"buffer_store_dword v{TT+1}, v{SV}, {srd(WS)}, s{sT0} offen sc1")
    A("L_fin:")
    if stamps:
        stamp(11)
        A("s_mov_b64 exec, -1")
        A("s_waitcnt vmcnt(0) lgkmcnt(0)")
        A(f"s_mul_i32 s{sT0}, s2, 9"); A(f"s_add_u32 s{sT0}, s{sT0}, s3"); A(f"s_lshl_b32 s{sT0}, s{sT0}, 7"); A(f"s_add_u32 s{sT0}, s{sT0}, {STAMP}")
        for i in range(14):
            A(f"v_mov_b32 v{104+2*i}, s{stamp_reg(i)}"); A(f"v_mov_b32 v{105+2*i}, s{stamp_reg(i)+1}")
        A(f"v_mov_b32 v132, s{sSPIN}")
        A("s_getreg_b32 s76, hwreg(HW_REG_XCC_ID)"); A("v_mov_b32 v133, s76"); A("s_getreg_b32 s76, hwreg(HW_REG_HW_ID)"); A("v_mov_b32 v134, s76"); A("v_mov_b32 v135, 0")
        A("v_mov_b32 v100, 0")
        A("s_mov_b64 exec, 1")
        for i in range(8):
            A(f"buffer_store_dwordx4 {r4(104+4*i)}, v100, {srd(WS)}, s{sT0} offen offset:{16*i}")
    A("L_end:")
    A("s_endpgm")
    A('.section .rodata,"a"'); A(".p2align 6"); A(f".amdhsa_kernel {NAME}")
    A("  .amdhsa_next_free_vgpr 168"); A("  .amdhsa_next_free_sgpr 102"); A("  .amdhsa_accum_offset 168")
    A("  .amdhsa_group_segment_fixed_size 0"); A("  .amdhsa_kernarg_size 96"); A("  .amdhsa_user_sgpr_count 2")
    A("  .amdhsa_user_sgpr_kernarg_segment_ptr 1"); A("  .amdhsa_system_sgpr_workgroup_id_x 1")
    A(".end_amdhsa_kernel")
    return "\n".join(x for x in L if x is not None) + "\n"


if __name__ == "__main__":
    kw = eval("dict(%s)" % (sys.argv[2] if len(sys.argv) > 2 else ""))
    open(sys.argv[1], "w").write(gen(**kw))
```

```python
import sys
NAME = "parallel_sum__sliding_block_cached__glu_gated_swiglu__decode_kernel"

HEADER = """; Fused decode step: out = x + Attn(LN(x)) + SwiGLU(LN(x)), one launch, 256 workgroups x 9 waves.
"""

S1 = 0
OS = 0
FS = 8192
QL = 24576
HD = QL + 512
MW = HD + 320
LW = MW + 64
ZL = LW + 64
TG = ZL + 128
QF = TG + 4
GO = QF + 4
XN = 25856
ZP = XN + 4608
LDS_BYTES = ZP + 256
assert GO + 4 <= XN
REC = 6144
FPO = 1536
EP = 1280
QP = 2 << 20
GP = QP + (512 << 10)
STAMP = 7 << 19
WS_BYTES = 4 << 20
HUGE = 0x40000000
LOG2E = 0x3FB8AA3B
SCALE = 0x3DB504F3
TMASK = 0x3FF
ML_NAT = True
STAMP_NAMES = ["start", "karg", "B0", "B1", "B2", "sm", "Vend", "s7", "s8", "gotO", "FPst", "end", "x/B4", "B5"]

X, K, V, WQ, WO, W1, W3, W2, OUT, DBG, WS = [4 + 4 * i for i in range(11)]
SRD_INFO = {X: (0, 2304), K: (2, 1 << 28), V: (4, 1 << 28), WQ: (6, 576 * 8192), WO: (8, 4096 * 1152), W1: (12, 576 * 9216),
            W3: (14, 576 * 9216), W2: (16, 4608 * 1152), OUT: (18, 2304), DBG: (20, 256), WS: (22, WS_BYTES)}
sHKV, sJ, sB, sS, sSL, sCK = 48, 49, 50, 51, 52, 53
sT0, sT1, sT2, sT3 = 54, 55, 56, 57
sHASH = 58
sQ2, sF0, sF1, sF2 = 59, 60, 61, 62
sLOG2E = 63
sSPIN = 64
sTM = 65
sC1, sC2, sC3 = 66, 67, 68
sEP = 69
sMASK = 70
sSEL = 72
KA = 76
def stamp_reg(i): return {0: 100, 1: 74}.get(i, KA + 2 * (i - 2))

vK, vV, vA1, vA2 = 1, 2, 3, 4
MK = 5
vT0, vT1, vT2 = 9, 10, 11
A0, A1 = 12, 16
ACC, D1, D2 = 20, 24, 28
SR = 32
QB = 36
KR = 40
VR = 104
def kreg(t): return KR + 4 * t
def vreg(t): return VR + 4 * t
XA = 90
XT = 96
S1D = 132
WL = 40
PL = 60
HV = 68
vTAG = 74
TT = 76
FC = 104
SV = 104


def r4(b): return f"v[{b}:{b+3}]"
def r2(b): return f"v[{b}:{b+1}]"
def srd(b): return f"s[{b}:{b+3}]"
DPPF = "row_mask:0xf bank_mask:0xf"


def gen(depth=5, b2=11, lag=3, stamps=False, pol=" nt", spin=100000, prio=3, wsbase=0, osleep=0, fsleep=0, latepos='end', prios=None, burst=0, mlsleep=6, npo=1, npf=1, outsc='', dry=False, klin=False, skip='', gdelay=0, gsleep=0, psleep=0, nogather=False, noqk=False, sx=None, nost=False, stpol=' sc1', stlin=False, nst=3, stch=0, stmode=None, ldq=' sc1', stml=' sc1', ldml=' sc1', sto=' sc1', ldo=' sc1', stf=' sc1', ldf=' sc1', xpol='', fakeg=False, fakeq=0, pref=None, prest=None, hold=0):
    L = []
    A = L.append

    def stamp(i):
        if stamps:
            r = stamp_reg(i)
            A(f"s_memrealtime s[{r}:{r+1}]")

    def srd_const(d):
        A(f"s_mov_b32 s{d+2}, {SRD_INFO[d][1]}"); A(f"s_mov_b32 s{d+3}, 0x00020000")

    def srd_ptr(d):
        o = KA + SRD_INFO[d][0]
        if d == WS and wsbase:
            A(f"s_add_u32 s{d}, s{o}, {wsbase}"); A(f"s_addc_u32 s{d+1}, s{o+1}, 0")
        else:
            A(f"s_mov_b64 s[{d}:{d+1}], s[{o}:{o+1}]")

    def masks(tmp):
        A(f"v_and_b32 v{vT2}, 1, v0"); A(f"v_lshlrev_b32 v{vT2}, 4, v{vT2}")
        A(f"v_mov_b32 v{MK}, 0xffff"); A(f"v_lshlrev_b32 v{vT2}, v{vT2}, v{MK}")
        A(f"v_bfe_u32 v{tmp}, v0, 1, 2")
        for j in range(4):
            A(f"v_cmp_eq_u32 vcc, {j}, v{tmp}"); A("s_nop 1"); A(f"v_cndmask_b32 v{MK+j}, 0, v{vT2}, vcc")

    def ffn_ids():
        A(f"s_mul_i32 s{sSL}, s2, 9363"); A(f"s_lshr_b32 s{sSL}, s{sSL}, 16")
        A(f"s_mul_i32 s{sT0}, s{sSL}, 7"); A(f"s_sub_u32 s{sCK}, s2, s{sT0}")

    def tag4(r):
        for v in range(4): A(f"v_bfi_b32 v{r+v}, s{sTM}, v{vTAG}, v{r+v}")

    def untag_check(regs, tags, acc):
        for r, t in zip(regs, tags): A(f"v_xor_b32 v{r}, v{t}, v{r}")
        A(f"v_or3_b32 v{acc}, v{regs[0]}, v{regs[1]}, v{regs[2]}")
        rest = regs[3:]
        while len(rest) >= 2:
            A(f"v_or3_b32 v{acc}, v{acc}, v{rest[0]}, v{rest[1]}"); rest = rest[2:]
        if rest: A(f"v_or_b32 v{acc}, v{acc}, v{rest[0]}")
        A(f"v_and_b32 v{acc}, s{sTM}, v{acc}")
        A(f"v_cmp_ne_u32 vcc, 0, v{acc}")

    A(HEADER.rstrip("\n"))
    A(f"; @launch grid=(256,1,1) block=(576,1,1) lds={LDS_BYTES}")
    A('.amdgcn_target "amdgcn-amd-amdhsa--gfx950"')
    A(".text"); A(f".globl {NAME}"); A(".p2align 8"); A(f".type {NAME},@function"); A(f"{NAME}:")
    stamp(0)
    if hold: A("s_memrealtime s[100:101]")
    A(f"s_load_dwordx16 s[{KA}:{KA+15}], s[0:1], 0")
    A(f"s_load_dwordx8 s[{KA+16}:{KA+23}], s[0:1], 64")
    A("v_lshrrev_b32 v1, 6, v0")
    A("s_cmp_ge_u32 s2, 256"); A("s_cbranch_scc1 L_end")
    A("v_readfirstlane_b32 s3, v1")
    A("v_and_b32 v0, 63, v0")
    A(f"s_lshr_b32 s{sHKV}, s2, 4"); A(f"s_and_b32 s{sJ}, s2, 15"); A(f"s_lshr_b32 s{sB}, s{sJ}, 3"); A(f"s_and_b32 s{sS}, s2, 7")
    A(f"v_lshrrev_b32 v{vT0}, 4, v0"); A(f"v_and_b32 v{vT1}, 15, v0")
    A("s_cmp_eq_u32 s3, 8"); A("s_cbranch_scc1 L_service")

    srd_const(WQ); srd_const(W1); srd_const(W3)
    A(f"s_mul_i32 s{sT0}, s{sS}, 72"); A(f"s_lshl_b32 s{sT1}, s3, 2"); A(f"s_add_u32 s{sT0}, s{sT0}, s{sT1}")
    A(f"v_add_u32 v{XT}, s{sT0}, v{vT0}")
    A(f"s_lshl_b32 s{sT0}, s{sHKV}, 9"); A(f"s_lshl_b32 s{sT1}, s{sB}, 8"); A(f"s_add_u32 s{sT0}, s{sT0}, s{sT1}")
    A(f"v_lshlrev_b32 v{vA1}, 13, v{XT}"); A(f"v_lshl_add_u32 v{vA1}, v{vT1}, 4, v{vA1}"); A(f"v_add_u32 v{vA1}, s{sT0}, v{vA1}")
    A(f"s_cmp_lt_u32 s3, 2"); A(f"s_cselect_b32 s{sQ2}, {2*262144}, {HUGE}")
    A(f"s_mov_b32 s{sT3}, 262144")
    ffn_ids()
    A(f"s_mul_i32 s{sT0}, s{sCK}, 20"); A(f"s_min_u32 s{sT1}, s{sCK}, 4"); A(f"s_add_u32 s{sT0}, s{sT0}, s{sT1}")
    A(f"s_add_u32 s{sT0}, s{sT0}, s3"); A(f"s_lshl_b32 s{sT0}, s{sT0}, 2")
    A(f"v_add_u32 v{XT+1}, s{sT0}, v{vT0}")
    A(f"s_lshl_b32 s{sT0}, s{sSL}, 8")
    A(f"v_mul_u32_u24 v{vA2}, 9216, v{XT+1}"); A(f"v_lshl_add_u32 v{vA2}, v{vT1}, 4, v{vA2}"); A(f"v_add_u32 v{vA2}, s{sT0}, v{vA2}")
    A(f"s_cmp_lt_u32 s{sCK}, 4"); A(f"s_cselect_b32 s{sT0}, 5, 4"); A(f"s_cmp_lt_u32 s3, s{sT0}")
    A(f"s_cselect_b32 s{sF2}, {2*294912}, {HUGE}")
    A("s_cmp_lt_u32 s2, 252")
    A(f"s_cselect_b32 s{sF0}, 0, {HUGE}"); A(f"s_cselect_b32 s{sF1}, 294912, {HUGE}"); A(f"s_cselect_b32 s{sF2}, s{sF2}, {HUGE}")
    A("s_waitcnt lgkmcnt(0)")
    stamp(1)

    loads = []
    for k, so in enumerate(("0", f"s{sT3}", f"s{sQ2}")):
        loads.append(("Q%d" % k, [f"buffer_load_dwordx4 {r4(S1D+4*k)}, v{vA1}, {srd(WQ)}, {so} offen{pol}"]))
    for m, (nm, sr) in enumerate((("G", W1), ("U", W3))):
        for k, so in enumerate((sF0, sF1, sF2)):
            loads.append((f"{nm}{k}", [f"buffer_load_dwordx4 {r4(S1D+12+12*m+4*k)}, v{vA2}, {srd(sr)}, s{so} offen{pol}"]))
    for t in range(16):
        loads.append((f"K{t}", [f"s_xor_b32 s{sT0}, s{sHASH}, {t << 13}", f"buffer_load_dwordx4 {r4(kreg(t))}, v{vK}, {srd(K)}, s{sT0} offen{pol}"]))
    for t in range(16):
        loads.append((f"V{t}", [f"s_xor_b32 s{sT0}, s{sHASH}, {t << 13}", f"buffer_load_dwordx4 {r4(vreg(t))}, v{vV}, {srd(V)}, s{sT0} offen{pol}"]))

    def late_loads():
        return [("W0", [f"buffer_load_dwordx4 {r4(WL)}, v{vA2}, {srd(W2)}, 0 offen{pol}"]),
                ("W1", [f"buffer_load_dwordx4 {r4(WL+4)}, v{vA2}, {srd(W2)}, 0 offen offset:2304{pol}"]),
                ("W2", [f"buffer_load_dwordx4 {r4(WL+8)}, v{vA2}, {srd(W2)}, s{sC1} offen{pol}"]),
                ("W3", [f"buffer_load_dwordx4 {r4(WL+12)}, v{vA1}, {srd(WO)}, 0 offen{pol}"]),
                ("W4", [f"buffer_load_dwordx4 {r4(WL+16)}, v{vA1}, {srd(WO)}, 0 offen offset:2304{pol}"])]
    if latepos == "end":
        loads += late_loads()
    elif latepos == "defer":
        pass
    else:
        at = [n for n, _ in loads].index(f"V{b2}") + 1
        loads[at:at] = late_loads()
    if skip:
        for i_, (n_, c_) in enumerate(loads):
            if n_[0] in skip:
                c_ = list(c_); parts = c_[-1].split(", "); parts[3] = "s75 offen nt"; c_[-1] = ", ".join(parts[:4]); loads[i_] = (n_, [f"s_mov_b32 s75, {HUGE}"] + c_)
    names = [n for n, _ in loads]

    def bf16r(dst, src):
        A(f"v_cvt_pk_bf16_f32 v{dst}, v{src}, v{src}"); A(f"v_and_b32 v{dst}, 0xffff0000, v{dst}")

    def allred32(r, t, op="v_add_f32"):
        for n in (1, 2, 4, 8):
            A("s_nop 1"); A(f"{op}_dpp v{r}, v{r}, v{r} row_ror:{n} {DPPF}")
        A(f"v_mov_b32 v{t}, v{r}"); A("s_nop 1"); A(f"v_permlane16_swap_b32 v{r}, v{t}"); A("s_nop 1"); A(f"{op} v{r}, v{r}, v{t}")

    def allred_banks_rows(r, t, op):
        for n in (4, 8):
            A("s_nop 1"); A(f"{op}_dpp v{r}, v{r}, v{r} row_ror:{n} {DPPF}")
        for sw in ("v_permlane16_swap_b32", "v_permlane32_swap_b32"):
            A(f"v_mov_b32 v{t}, v{r}"); A("s_nop 1"); A(f"{sw} v{r}, v{t}"); A("s_nop 1"); A(f"{op} v{r}, v{r}, v{t}")

    aflip = [0]
    def gemv_mfma(val, data, acc, first):
        a = A0 if aflip[0] == 0 else A1
        aflip[0] ^= 1
        for j in range(4):
            A(f"v_and_b32 v{a+j}, v{val}, v{MK+j}")
        A("s_nop 1")
        A(f"v_mfma_f32_16x16x32_bf16 {r4(acc)}, {r4(a)}, {r4(data)}, {'0' if first else r4(acc)}")

    def w2_mfmas():
        for n in range(3):
            for rho in range(2):
                gemv_mfma(HV + 2 * n + rho, WL + 4 * n, D1 if rho == 0 else D2, n == 0)

    def s1_slot(acc, typ):
        A("s_nop 7")
        A(f"ds_write_b128 v{XT}, {r4(acc)} offset:{S1 + 1024*typ}")

    def late_addr():
        A(f"v_bfe_u32 v{vT2}, v0, 3, 1")
        A(f"v_lshl_add_u32 v{vA1}, v{vT0}, 2, v{vT2}")
        A(f"s_lshl_b32 s{sT1}, s2, 4"); A(f"v_add_u32 v{vA1}, s{sT1}, v{vA1}")
        A(f"v_mul_u32_u24 v{vA1}, 1152, v{vA1}")
        A(f"v_mad_u32_u24 v{vA2}, v{vT0}, 6, v{vT2}")
        A(f"s_mul_i32 s{sT1}, s2, 18"); A(f"v_add_u32 v{vA2}, s{sT1}, v{vA2}")
        A(f"v_mul_u32_u24 v{vA2}, 1152, v{vA2}")
        A(f"v_and_b32 v{vT2}, 7, v0"); A(f"v_lshlrev_b32 v{vT2}, 4, v{vT2}")
        A(f"s_lshl_b32 s{sT1}, s3, 7"); A(f"v_add_u32 v{vT2}, s{sT1}, v{vT2}")
        A(f"v_add_u32 v{vA1}, v{vA1}, v{vT2}"); A(f"v_add_u32 v{vA2}, v{vA2}, v{vT2}")
        A(f"v_cmp_eq_u32 vcc, 3, v{vT0}"); A(f"v_mov_b32 v{vT2}, {HUGE}"); A("s_nop 0")
        A(f"v_cndmask_b32 v{vA2}, v{vA2}, v{vT2}, vcc")
        A(f"s_mov_b32 s{sC1}, 4608")

    def tail_addr():
        A(f"v_lshrrev_b32 v{TT}, 1, v{vT0}"); A(f"v_mul_u32_u24 v{TT}, 2304, v{TT}")
        A(f"v_and_b32 v{TT+1}, 7, v0"); A(f"v_lshl_add_u32 v{TT}, v{TT+1}, 5, v{TT}")
        A(f"v_and_b32 v{TT+1}, 1, v{vT0}"); A(f"v_lshl_add_u32 v{TT}, v{TT+1}, 4, v{TT}")
        A(f"s_mul_i32 s{sC2}, s2, {REC}"); A(f"s_lshl_b32 s{sT1}, s3, 8"); A(f"s_add_u32 s{sC2}, s{sC2}, s{sT1}"); A(f"s_add_u32 s{sC2}, s{sC2}, {FPO}")
        A(f"v_bfe_u32 v{TT+1}, v0, 3, 1"); A(f"v_mul_u32_u24 v{TT+1}, 160, v{TT+1}"); A(f"v_mad_u32_u24 v{TT+1}, v{vT0}, 24, v{TT+1}")
        for i in range(3):
            A(f"ds_read_b64 {r2(HV+2*i)}, v{TT+1} offset:{HD+8+8*i}")
        A(f"v_mov_b32 v{TT+1}, 0"); A(f"ds_read_b32 v{vTAG}, v{TT+1} offset:{TG}")
        A(f"v_lshrrev_b32 v{vT1}, 3, v0"); A(f"v_lshlrev_b32 v{vT1}, 4, v{vT1}")
        A(f"s_mov_b32 s{sMASK}, 0x00ff00ff"); A(f"s_mov_b32 s{sMASK+1}, 0x00ff00ff")
        A(f"s_movk_i32 s{sTM}, {TMASK:#x}")

    def qk_block():
        A(f"v_bfe_u32 v{vT2}, v0, 1, 1"); A(f"v_lshlrev_b32 v{vT2}, 8, v{vT2}"); A(f"v_lshl_add_u32 v{vT2}, v{vT0}, 6, v{vT2}")
        A(f"v_bfe_u32 v{vT1}, v0, 2, 2"); A(f"v_lshl_add_u32 v{vT2}, v{vT1}, 4, v{vT2}")
        A(f"v_mov_b32 v{vT1}, 0")
        stamp(7)
        A("L_qwait:")
        A(f"ds_read_b32 v{SR}, v{vT1} offset:{QF}")
        A(f"ds_read_b128 {r4(QB)}, v{vT2} offset:{QL}")
        A(f"s_add_u32 s{sSPIN}, s{sSPIN}, 1"); A(f"s_cmp_gt_u32 s{sSPIN}, {spin*16}")
        A("s_waitcnt lgkmcnt(0)")
        A(f"v_cmp_eq_u32 vcc, 0, v{SR}")
        if sx in (None, "gather"):
            A("s_cbranch_scc1 L_qgot")
            A("s_cbranch_vccnz L_qwait")
        A("L_qgot:")
        stamp(4)
        Ds = [A0, A1, D1, D2]
        def mf(t): A(f"v_mfma_f32_16x16x32_bf16 {r4(Ds[t%4])}, {r4(kreg(t))}, {r4(QB)}, 0")
        def ops(t):
            b = t & 3; S = SR + (t >> 2); D = Ds[t % 4]; bm = f"row_mask:0xf bank_mask:{1<<b:#x}"
            A(f"v_add_f32_dpp v{S}, v{D+((b+1)&3)}, v{D+b} row_ror:12 {bm}")
            A(f"v_add_f32_dpp v{S}, v{D+((b+2)&3)}, v{S} row_ror:8 {bm}")
            A(f"v_add_f32_dpp v{S}, v{D+((b+3)&3)}, v{S} row_ror:4 {bm}")
        for t in range(4): mf(t)
        A("s_nop 4")
        for t in range(16):
            ops(t)
            if t + 4 < 16: mf(t + 4)
            elif t < 15: A("s_nop 0")
        for p in (0, 2):
            a, b = SR + p, SR + p + 1
            A(f"v_cvt_pk_bf16_f32 v{b}, v{a}, v{b}"); A(f"v_lshlrev_b32 v{a}, 16, v{b}"); A(f"v_and_b32 v{b}, 0xffff0000, v{b}")
            A(f"v_mul_f32 v{a}, {SCALE:#x}, v{a}"); A(f"v_mul_f32 v{b}, {SCALE:#x}, v{b}")
            A(f"v_cvt_pk_bf16_f32 v{b}, v{a}, v{b}"); A(f"v_lshlrev_b32 v{a}, 16, v{b}"); A(f"v_and_b32 v{b}, 0xffff0000, v{b}")
        m = D1; l = D1 + 1
        A(f"v_max3_f32 v{m}, v{SR}, v{SR+1}, v{SR+2}"); A(f"v_max_f32 v{m}, v{m}, v{SR+3}")
        allred_banks_rows(m, m + 2, "v_max_f32")
        A(f"v_mul_f32 v{vT2}, s{sLOG2E}, v{m}")
        for T in range(4):
            A(f"v_fma_f32 v{SR+T}, v{SR+T}, s{sLOG2E}, -v{vT2}")
        for T in range(4):
            A(f"v_exp_f32 v{SR+T}, v{SR+T}")
        A(f"s_lshl_b32 s{sT1}, s3, 3"); A(f"v_lshl_add_u32 v{QB+1}, v0, 5, s{sT1}")
        A(f"v_add_f32 v{l}, v{SR}, v{SR+1}"); A(f"v_add_f32 v{l+1}, v{SR+2}, v{SR+3}"); A(f"v_add_f32 v{l}, v{l}, v{l+1}")
        allred_banks_rows(l, l + 1, "v_add_f32")
        A("s_mov_b64 exec, 5")
        A(f"ds_write_b64 v{QB+1}, {r2(m)} offset:{MW}")
        A("s_mov_b64 exec, -1")
        for j in range(8): A(f"v_mov_b32 v{A0+j}, 0")
        A(f"v_and_b32 v{D2}, 1, v0"); A(f"v_lshlrev_b32 v{D2}, 4, v{D2}"); A(f"v_mov_b32 v{D2+1}, 0xffff"); A(f"v_lshlrev_b32 v{D2}, v{D2}, v{D2+1}")
        for T in range(4):
            A(f"v_cvt_pk_bf16_f32 v{SR+T}, v{SR+T}, v{SR+T}")
        for T in range(4):
            A(f"v_and_b32 v{SR+T}, v{SR+T}, v{D2}")
        A(f"v_and_b32 v{QB}, 15, v0"); A(f"v_lshlrev_b32 v{QB}, 5, v{QB}"); A(f"v_lshl_add_u32 v{QB}, v{vT0}, 3, v{QB}")
        A(f"s_lshl_b32 s{sT1}, s3, 10"); A(f"v_add_u32 v{QB}, s{sT1}, v{QB}")
        tail_addr()
        stamp(5)

    def pv(t):
        b = t & 3; P = SR + (t >> 2); a = A0 if t % 2 == 0 else A1
        for j in range(4):
            n = (4 * (j - b)) % 16
            ctl = "quad_perm:[0,1,2,3]" if n == 0 else f"row_ror:{n}"
            A(f"v_mov_b32_dpp v{a+j}, v{P} {ctl} row_mask:0xf bank_mask:{1<<j:#x}")
        A("s_nop 1")
        A(f"v_mfma_f32_16x16x32_bf16 {r4(ACC)}, {r4(a)}, {r4(vreg(t))}, {'0' if t == 0 else r4(ACC)}")

    state = {"qk": False, "pv": 0, "s1": 0}

    def rest_of_prologue():
        for d in (K, V): srd_const(d); srd_ptr(d)
        A(f"s_lshl_b32 s{sT0}, s{sB}, 4"); A(f"s_add_u32 s{sT0}, s{sT0}, s{sHKV}"); A(f"s_lshl_b32 s{sT0}, s{sT0}, 23")
        A(f"s_add_u32 s{sT0}, s{sT0}, {7 << 20}")
        A(f"s_lshl_b32 s{sT1}, s{sS}, 17"); A(f"s_add_u32 s{sT0}, s{sT0}, s{sT1}")
        A(f"s_lshl_b32 s{sT1}, s3, 10"); A(f"s_add_u32 s{sT0}, s{sT0}, s{sT1}")
        A(f"v_lshlrev_b32 v{vV}, 4, v0"); A(f"v_add_u32 v{vV}, s{sT0}, v{vV}")
        A(f"v_and_b32 v{vK}, 3, v0"); A(f"v_lshlrev_b32 v{vK}, 4, v{vK}")
        A(f"v_bfe_u32 v{XT+6}, v0, 2, 2"); A(f"v_lshl_add_u32 v{vK}, v{XT+6}, 8, v{vK}")
        A(f"v_lshl_add_u32 v{vK}, v{vT0}, 6, v{vK}"); A(f"v_add_u32 v{vK}, s{sT0}, v{vK}")
        if klin: A(f"v_mov_b32 v{vK}, v{vV}")
        A(f"s_lshl_b32 s{sT0}, s2, 3"); A(f"s_add_u32 s{sT0}, s{sT0}, s3"); A(f"s_mul_i32 s{sHASH}, s{sT0}, 0x9E3779B1")
        A(f"s_lshr_b32 s{sHASH}, s{sHASH}, 11"); A(f"s_and_b32 s{sHASH}, s{sHASH}, {15 << 13}")
        for d in (WO, W2, WS): srd_const(d); srd_ptr(d)
        A(f"s_mov_b32 s{sLOG2E}, {LOG2E:#x}"); A(f"s_mov_b32 s{sSPIN}, 0")
        masks(XT + 6)
        A(f"v_bfe_u32 v{XT+2}, v0, 3, 1"); A(f"v_mul_u32_u24 v{XT+2}, 2304, v{XT+2}")
        A(f"v_lshl_add_u32 v{XT+3}, v{XT}, 2, v{XT+2}"); A(f"v_lshl_add_u32 v{XT+4}, v{XT+1}, 2, v{XT+2}")
        A(f"s_mul_i32 s{sT1}, s3, 3072"); A(f"v_lshlrev_b32 v{XT}, 4, v0"); A(f"v_add_u32 v{XT}, s{sT1}, v{XT}")

    def on_landed(nm):
        if dry:
            if nm == "U2": stamp(3); late_addr()
            return
        if nm == "Q0":
            if sx != "start": A("s_barrier")
            for k in range(3):
                A(f"ds_read_b32 v{XA+k}, v{XT+3} offset:{XN+128*k}")
            for k in range(3):
                A(f"ds_read_b32 v{XA+3+k}, v{XT+4} offset:{XN+128*k}")
            A("s_waitcnt lgkmcnt(0)")
            gemv_mfma(XA, S1D, ACC, True)
        elif nm in ("Q1", "Q2"):
            k = int(nm[1]); gemv_mfma(XA + k, S1D + 4 * k, ACC, False)
            if k == 2: s1_slot(ACC, 0)
        elif nm[0] in "GU":
            k = int(nm[1]); m = 0 if nm[0] == "G" else 1
            gemv_mfma(XA + 3 + k, S1D + 12 + 12 * m + 4 * k, D1 if m == 0 else D2, k == 0)
            if k == 2:
                s1_slot(D1 if m == 0 else D2, 1 + m)
                if m == 1:
                    A("s_waitcnt lgkmcnt(0)")
                    if sx not in ("start", "ln"): A("s_barrier")
                    stamp(3)
                    late_addr()
        elif nm[0] in "VW" and state["qk"] and not noqk:
            t = max(int(n[1:]) for n in names[:names.index(nm)+1] if n[0] == "V")
            while state["pv"] <= t:
                pv(state["pv"]); state["pv"] += 1

    N = len(loads)
    landed = -1
    assert depth + max(8, lag) < names.index("K12")
    pro_at = min(depth, 8)
    ib2 = names.index(f"V{b2}")
    for i, (nm, code) in enumerate(loads):
        if nm == "Q0": srd_ptr(WQ)
        if nm == "G0": srd_ptr(W1)
        if nm == "U0": srd_ptr(W3)
        if prios and nm in prios: A(f"s_setprio {prios[nm]}")
        if nm == "K12": stamp(2)
        for c in code: A(c)
        if i == pro_at: rest_of_prologue()
        if i >= depth and not (ib2 - burst < i <= ib2):
            if i - depth > landed:
                A(f"s_waitcnt vmcnt({depth})")
                landed = i - depth
            if landed >= 9: on_landed(names[landed])
            if landed >= lag:
                while state["s1"] <= min(landed, 8):
                    on_landed(names[state["s1"]]); state["s1"] += 1
        if i == ib2:
            if landed < names.index("K15"):
                landed = names.index("K15"); A(f"s_waitcnt vmcnt({i - landed})")
            if dry or noqk: stamp(7)
            else: qk_block()
            state["qk"] = True
    iV15 = names.index("V15")
    while landed < iV15:
        landed += 1
        if names[landed][0] == "V":
            A(f"s_waitcnt vmcnt({N-1-landed})")
            on_landed(names[landed])
    stamp(6)
    if dry or sx:
        A("s_waitcnt vmcnt(0)"); stamp(8); A("s_branch L_fin")
    A("s_nop 7")
    A(f"ds_write2st64_b64 v{QB}, {r2(ACC)}, {r2(ACC+2)} offset0:{OS//512} offset1:{OS//512+1}")
    A("s_waitcnt lgkmcnt(0)")
    A("s_barrier")
    stamp(12)
    if latepos == "defer":
        A(f"v_mov_b32 v{PL}, 0")
        A("L_gowait:")
        A(f"ds_read_b32 v{PL+1}, v{PL} offset:{GO}")
        A(f"s_add_u32 s{sSPIN}, s{sSPIN}, 1"); A(f"s_cmp_gt_u32 s{sSPIN}, {spin*16}")
        A("s_waitcnt lgkmcnt(0)")
        A(f"v_cmp_eq_u32 vcc, 0, v{PL+1}")
        A("s_cbranch_scc1 L_gogot")
        A("s_cbranch_vccz L_gogot")
        A("s_sleep 2")
        A("s_branch L_gowait")
        A("L_gogot:")
        for nm, code in late_loads():
            for c in code: A(c)
    if latepos != "mid": A("s_waitcnt vmcnt(2)")
    w2_mfmas()
    A("s_waitcnt vmcnt(0)")
    stamp(8)
    A("s_barrier")
    A(f"ds_read_b128 {r4(PL)}, v{vT1} offset:{ZL}")
    A("s_waitcnt lgkmcnt(0)")
    stamp(13)
    A("s_branch L_tail")

    A("L_service:")
    if dry or sx == "start": A("s_endpgm")
    if prio: A(f"s_setprio {prio}")
    XS = SV + 8
    QA, GA = 60, 61
    srd_const(X); srd_const(WS)
    A(f"v_lshrrev_b32 v{vA1}, 5, v0"); A(f"v_mul_u32_u24 v{vA2}, 1152, v{vA1}")
    A(f"v_and_b32 v{vT2}, 31, v0"); A(f"v_mad_u32_u24 v{vA2}, v{vT2}, 36, v{vA2}")
    A("s_waitcnt lgkmcnt(0)")
    stamp(1)
    srd_ptr(X)
    A(f"buffer_load_dwordx4 {r4(XS)}, v{vA2}, {srd(X)}, 0 offen")
    A(f"buffer_load_dwordx4 {r4(XS+4)}, v{vA2}, {srd(X)}, 0 offen offset:16")
    A(f"buffer_load_dword v{XS+8}, v{vA2}, {srd(X)}, 0 offen offset:32")
    srd_ptr(WS)
    A(f"s_load_dword s{sEP}, s[{WS}:{WS+1}], {EP}")
    A(f"v_lshlrev_b32 v{vK}, 4, v0")
    A(f"s_mul_i32 s{sT0}, s2, {REC}"); A(f"v_add_u32 v{vV}, s{sT0}, v{vK}")
    ffn_ids()
    A(f"v_lshlrev_b32 v{QA}, 9, v{vA1}"); A(f"v_lshl_add_u32 v{QA}, v{vT1}, 5, v{QA}")
    A(f"v_and_b32 v{vT2}, 1, v{vT0}"); A(f"v_lshl_add_u32 v{QA}, v{vT2}, 4, v{QA}")
    A(f"s_lshl_b32 s{sC1}, s2, 10"); A(f"s_add_u32 s{sC1}, s{sC1}, {QP}")
    A(f"v_mul_u32_u24 v{GA}, 18432, v{vA1}"); A(f"v_lshl_add_u32 v{GA}, v{vT1}, 5, v{GA}")
    A(f"v_lshl_add_u32 v{GA}, v{vT2}, 4, v{GA}")
    A(f"s_mul_i32 s{sC2}, s{sCK}, 36864"); A(f"s_lshl_b32 s{sT1}, s{sSL}, 9"); A(f"s_add_u32 s{sC2}, s{sC2}, s{sT1}")
    A(f"s_add_u32 s{sC2}, s{sC2}, {GP}"); A(f"s_add_u32 s{sC3}, s{sC2}, {7*36864}")
    A("s_cmp_lt_u32 s2, 252")
    A(f"s_cselect_b32 s{sC2}, s{sC2}, {HUGE}"); A(f"s_cselect_b32 s{sC3}, s{sC3}, {HUGE}")
    if pref is not None:
        A(f"buffer_load_dwordx4 {r4(140)}, v{QA}, {srd(WS)}, s{sC1} offen{pref}")
        A(f"buffer_load_dwordx4 {r4(144)}, v{GA}, {srd(WS)}, s{sC2} offen{pref}")
        A(f"buffer_load_dwordx4 {r4(148)}, v{GA}, {srd(WS)}, s{sC3} offen{pref}")
        A(f"buffer_load_dwordx4 {r4(152)}, v{vV}, {srd(WS)}, 0 offen{pref}")
    if prest is not None:
        A(f"buffer_store_dwordx4 {r4(140)}, v{QA}, {srd(WS)}, s{sC1} offen{prest}")
        A(f"buffer_store_dwordx4 {r4(140)}, v{GA}, {srd(WS)}, s{sC2} offen{prest}")
        A(f"buffer_store_dwordx4 {r4(140)}, v{GA}, {srd(WS)}, s{sC3} offen{prest}")
    A(f"v_mov_b32 v{SV+4}, 0"); A(f"v_lshlrev_b32 v{SV+5}, 2, v0"); A(f"ds_write_b32 v{SV+5}, v{SV+4} offset:{ZP}")
    A(f"ds_write_b32 v{SV+4}, v{SV+4} offset:{QF}"); A(f"ds_write_b32 v{SV+4}, v{SV+4} offset:{GO}")
    A(f"v_mov_b32 v{SV+6}, -1"); A(f"v_and_b32 v{SV+5}, 124, v{SV+5}"); A(f"ds_write_b32 v{SV+5}, v{SV+6} offset:{MW}")
    for d in (WO, W2, OUT): srd_const(d); srd_ptr(d)
    A(f"s_mov_b32 s{sLOG2E}, {LOG2E:#x}"); A(f"s_mov_b32 s{sSPIN}, 0"); A(f"s_movk_i32 s{sTM}, {TMASK:#x}")
    masks(SV + 5)
    A(f"v_lshlrev_b32 v{vA2}, 1, v{vA2}")
    U = 12
    A("s_waitcnt vmcnt(0)")
    stamp(12)
    for i in range(9):
        A(f"v_lshlrev_b32 v{U+2*i}, 16, v{XS+i}"); A(f"v_and_b32 v{U+2*i+1}, 0xffff0000, v{XS+i}")
    s = XS
    A(f"v_add_f32 v{s}, v{U}, v{U+1}"); A(f"v_add_f32 v{s+1}, v{U+2}, v{U+3}")
    for i in range(4, 18, 2):
        A(f"v_add_f32 v{s}, v{s}, v{U+i}"); A(f"v_add_f32 v{s+1}, v{s+1}, v{U+i+1}")
    A(f"v_add_f32 v{s}, v{s}, v{s+1}")
    allred32(s, s + 1)
    A(f"v_mul_f32 v{s}, {0x3AE38E39:#x}, v{s}")
    W = 40
    for i in range(18):
        A(f"v_sub_f32 v{W+i}, v{U+i}, v{s}")
    A(f"v_mul_f32 v{s+2}, v{W}, v{W}"); A(f"v_mul_f32 v{s+3}, v{W+1}, v{W+1}")
    for i in range(2, 18, 2):
        A(f"v_fmac_f32 v{s+2}, v{W+i}, v{W+i}"); A(f"v_fmac_f32 v{s+3}, v{W+i+1}, v{W+i+1}")
    A(f"v_add_f32 v{s+2}, v{s+2}, v{s+3}")
    allred32(s + 2, s + 3)
    A(f"v_mul_f32 v{s+2}, {0x3AE38E39:#x}, v{s+2}")
    bf16r(s + 2, s + 2)
    A(f"v_add_f32 v{s+2}, {0x3727C5AC:#x}, v{s+2}")
    bf16r(s + 2, s + 2)
    A(f"v_sqrt_f32 v{s+2}, v{s+2}")
    bf16r(s, s)
    bf16r(s + 2, s + 2)
    A(f"v_rcp_f32 v{s+2}, v{s+2}")
    for i in range(18):
        A(f"v_sub_f32 v{U+i}, v{U+i}, v{s}")
    for i in range(0, 18, 2):
        A(f"v_cvt_pk_bf16_f32 v{U+i+1}, v{U+i}, v{U+i+1}"); A(f"v_lshlrev_b32 v{U+i}, 16, v{U+i+1}"); A(f"v_and_b32 v{U+i+1}, 0xffff0000, v{U+i+1}")
        A(f"v_mul_f32 v{U+i}, v{U+i}, v{s+2}"); A(f"v_mul_f32 v{U+i+1}, v{U+i+1}, v{s+2}")
        A(f"v_cvt_pk_bf16_f32 v{U+i}, v{U+i}, v{U+i}"); A(f"v_cvt_pk_bf16_f32 v{U+i+1}, v{U+i+1}, v{U+i+1}")
        A(f"ds_write_b64 v{vA2}, {r2(U+i)} offset:{XN+4*i}")
    A("s_waitcnt lgkmcnt(0)")
    A("s_barrier")
    if sx == "ln": A("s_endpgm")
    stamp(2)
    A(f"s_add_u32 s{sEP}, s{sEP}, 1"); A(f"s_and_b32 s{sT0}, s{sEP}, s{sTM}")
    A(f"v_mov_b32 v{vTAG}, s{sT0}")
    A(f"ds_write_b32 v{SV+4}, v{vTAG} offset:{TG}")
    A(f"v_lshlrev_b32 v{vA1}, 13, v{vA1}")
    A(f"v_and_b32 v{vT2}, 31, v0"); A(f"v_lshl_add_u32 v{vA1}, v{vT2}, 4, v{vA1}")
    A(f"s_lshl_b32 s{sT2}, s{sHKV}, 14"); A(f"s_lshl_b32 s{sT3}, s{sB}, 9"); A(f"s_add_u32 s{sT2}, s{sT2}, s{sT3}")
    A(f"s_add_u32 s{sT2}, s{sT2}, {QP}"); A(f"s_add_u32 s{sT3}, s{sT2}, 4096")
    GV3, TG0, TG3 = 62, 63, 64
    A(f"v_lshrrev_b32 v{vA2}, 5, v0"); A(f"v_mul_u32_u24 v{vA2}, 7, v{vA2}")
    A(f"v_and_b32 v{SV}, 1, v{vT0}"); A(f"v_lshl_add_u32 v{vA2}, v{SV}, 2, v{vA2}")
    A(f"v_bfe_u32 v{SV+1}, v0, 3, 1"); A(f"v_lshl_add_u32 v{vA2}, v{vA2}, 1, v{SV+1}")
    A(f"v_mul_u32_u24 v{vA2}, 18432, v{vA2}")
    A(f"v_and_b32 v{SV+1}, 7, v0"); A(f"v_lshl_add_u32 v{vA2}, v{SV+1}, 4, v{vA2}")
    A(f"v_mov_b32 v{SV+2}, {HUGE}")
    A(f"v_cmp_gt_u32 vcc, 5, v{SV+1}"); A("s_nop 1")
    A(f"v_cndmask_b32 v{vA2}, v{SV+2}, v{vA2}, vcc"); A(f"v_cndmask_b32 v{TG0}, 0, v{vTAG}, vcc")
    A(f"v_cmp_eq_u32 vcc, 0, v{SV}"); A("s_nop 1")
    A(f"v_cndmask_b32 v{GV3}, v{SV+2}, v{vA2}, vcc"); A(f"v_cndmask_b32 v{TG3}, 0, v{TG0}, vcc")
    A(f"s_mul_i32 s{sQ2}, s2, 18"); A(f"s_and_b32 s{sF0}, s{sQ2}, 2"); A(f"s_andn2_b32 s{sQ2}, s{sQ2}, 3")
    A(f"s_lshl_b32 s{sQ2}, s{sQ2}, 2"); A(f"s_add_u32 s{sQ2}, s{sQ2}, {GP}")
    A(f"s_add_u32 s{sF1}, s{sQ2}, 36864"); A(f"s_add_u32 s{sF2}, s{sQ2}, {2*36864}"); A(f"s_add_u32 s{sHASH}, s{sQ2}, {3*36864}")

    def sum_slots(typ, dst):
        T = SV + 8
        for w in range(8):
            A(f"ds_read_b128 {r4(T+4*w)}, v{vK} offset:{S1 + w*3072 + typ*1024}")
        for w in range(1, 8):
            A(f"s_waitcnt lgkmcnt({7-w})")
            for v in range(4):
                A(f"v_add_f32 v{dst+v}, v{T+v if w == 1 else dst+v}, v{T+4*w+v}")
        for v in range(4): A(f"v_add_u32 v{dst+v}, {(TMASK+1)//2}, v{dst+v}")
        tag4(dst)
    A("s_barrier")
    if stlin:
        A(f"s_mul_i32 s{sC1}, s2, 3072"); A(f"s_add_u32 s{sC1}, s{sC1}, {QP}"); A(f"s_add_u32 s{sC2}, s{sC1}, 1024"); A(f"s_add_u32 s{sC3}, s{sC1}, 2048")
        A(f"v_mov_b32 v{QA}, v{vK}"); A(f"v_mov_b32 v{GA}, v{vK}")
    if stch:
        A(f"v_lshlrev_b32 v{QA}, {stch}, v{vT0}"); A(f"v_lshl_add_u32 v{QA}, v{vT1}, 4, v{QA}"); A(f"v_mov_b32 v{GA}, v{QA}")
        per = (1 << stch) // 256
        A(f"s_and_b32 s{sC1}, s2, {per-1}"); A(f"s_lshl_b32 s{sC1}, s{sC1}, 8")
        A(f"s_lshr_b32 s{sC2}, s2, {stch-8}"); A(f"s_mul_i32 s{sC2}, s{sC2}, {12 << stch}"); A(f"s_add_u32 s{sC1}, s{sC1}, s{sC2}")
        A(f"s_add_u32 s{sC2}, s{sC1}, {4 << stch}"); A(f"s_add_u32 s{sC3}, s{sC1}, {8 << stch}")
    def tst(r, va, so):
        if stmode is None: A(f"buffer_store_dwordx4 {r4(r)}, v{va}, {srd(WS)}, s{so} offen{stpol}")
        elif stmode == "dw":
            A(f"v_lshlrev_b32 v{SV}, 2, v0"); A(f"buffer_store_dword v{r}, v{SV}, {srd(WS)}, s{so} offen{stpol}")
        elif stmode == "l8":
            A(f"v_lshlrev_b32 v{SV}, 7, v0"); A("s_mov_b64 exec, 0xff"); A(f"buffer_store_dwordx4 {r4(r)}, v{SV}, {srd(WS)}, s{so} offen{stpol}"); A("s_mov_b64 exec, -1")
        elif stmode == "h64":
            A(f"v_and_b32 v{SV}, 3, v0"); A(f"v_lshlrev_b32 v{SV}, 4, v{SV}"); A(f"v_lshrrev_b32 v{SV+1}, 2, v0"); A(f"v_lshl_add_u32 v{SV}, v{SV+1}, 7, v{SV}")
            A("s_mov_b64 exec, 0xffffffff"); A(f"buffer_store_dwordx4 {r4(r)}, v{SV}, {srd(WS)}, s{so} offen{stpol}"); A("s_mov_b64 exec, -1")
        elif stmode == "half":
            A("s_mov_b64 exec, 0xffffffff"); A(f"buffer_store_dwordx4 {r4(r)}, v{va}, {srd(WS)}, s{so} offen{stpol}"); A("s_mov_b64 exec, -1")
        elif stmode == "atom":
            A(f"v_lshlrev_b32 v{SV}, 3, v0"); A(f"buffer_atomic_swap_x2 {r2(r)}, v{SV}, {srd(WS)}, s{so} offen{stpol}"); A(f"buffer_atomic_swap_x2 {r2(r+2)}, v{SV}, {srd(WS)}, s{so} offen offset:512{stpol}")
    sum_slots(0, ACC)
    if fakeq:
        A(f"s_and_b32 s{sT0}, s2, 3"); A(f"s_cmp_eq_u32 s{sT0}, 0"); A(f"s_cselect_b64 exec, {((1 << fakeq) - 1) if fakeq < 33 else -1}, 0")
        A(f"buffer_store_dwordx4 {r4(ACC)}, v{vK}, {srd(WS)}, s{sC1} offen{stpol}"); A("s_mov_b64 exec, -1")
    elif not nost and nst >= 1: tst(ACC, QA, sC1)
    sum_slots(1, D1)
    if not nost and nst >= 2 and not fakeg: tst(D1, GA, sC2)
    sum_slots(2, D2)
    if not nost and nst >= 3 and not fakeg: tst(D2, GA, sC3)
    stamp(3)
    T = SV + 8
    GT = 40
    if sx == "b1": A("s_endpgm")
    for _ in range(gdelay): A("s_sleep 127")
    if nogather: A("s_branch L_gotg")
    A("s_branch L_gather1")
    A("L_gather:")
    if gsleep: A(f"s_sleep {gsleep}")
    A("L_gather1:")
    nq = 1 if fakeq else 8
    if fakeq:
        A(f"v_lshlrev_b32 v{vA1}, 12, v{vT0}"); A(f"v_and_b32 v{SV}, 15, v0"); A(f"v_lshl_add_u32 v{vA1}, v{SV}, 4, v{vA1}")
        A(f"s_lshl_b32 s{sT2}, s{sHKV}, 14"); A(f"s_add_u32 s{sT2}, s{sT2}, {QP}")
    for rc in range(nq):
        A(f"buffer_load_dwordx4 {r4(T+4*rc)}, v{vA1}, {srd(WS)}, s{sT2 if rc < 4 else sT3} offen offset:{1024*(rc%4)}{ldq}")
    if not fakeg:
        for i, so in enumerate((sQ2, sF1, sF2, sHASH)):
            A(f"buffer_load_dwordx4 {r4(GT+4*i)}, v{vA2 if i < 3 else GV3}, {srd(WS)}, s{so} offen{ldq}")
    A(f"s_add_u32 s{sSPIN}, s{sSPIN}, 1"); A(f"s_cmp_gt_u32 s{sSPIN}, {spin}")
    A("s_waitcnt vmcnt(0)")
    untag_check([T + i for i in range(4*nq)] + ([] if fakeg else [GT + i for i in range(16)]), [vTAG] * (4*nq) + ([] if fakeg else [TG0] * 12 + [TG3] * 4), SV)
    A("s_cbranch_scc1 L_gotg")
    A("s_cbranch_vccnz L_gather")
    A("L_gotg:")
    stamp(7)
    for rc in range(1, 8):
        for v in range(4):
            A(f"v_add_f32 v{ACC+v}, v{T+v if rc == 1 else ACC+v}, v{T+4*rc+v}")
    A(f"v_cvt_pk_bf16_f32 v{ACC}, v{ACC}, v{ACC+1}"); A(f"v_cvt_pk_bf16_f32 v{ACC+1}, v{ACC+2}, v{ACC+3}")
    A(f"v_lshlrev_b32 v{vA1}, 3, v0")
    A(f"ds_write_b64 v{vA1}, {r2(ACC)} offset:{QL}")
    for v in range(4):
        A(f"v_add_f32 v{GT+v}, v{GT+v}, v{GT+4+v}"); A(f"v_add_f32 v{GT+8+v}, v{GT+8+v}, v{GT+12+v}")
    for v in range(4): A(f"v_add_f32 v{GT+v}, v{GT+v}, v{GT+8+v}")
    for v in range(4): A(f"v_mov_b32 v{GT+4+v}, v{GT+v}")
    A("s_nop 1")
    for v in range(4): A(f"v_permlane16_swap_b32 v{GT+v}, v{GT+4+v}")
    A("s_nop 1")
    for v in range(4): A(f"v_add_f32 v{GT+v}, v{GT+v}, v{GT+4+v}")
    for v in range(4): A(f"v_mov_b32 v{GT+4+v}, v{GT+v}")
    A("s_nop 1")
    for v in range(4): A(f"v_permlane32_swap_b32 v{GT+v}, v{GT+4+v}")
    A("s_nop 1")
    for v in range(8): bf16r(GT + v, GT + v)
    for v in range(4): A(f"v_mul_f32 v{GT+8+v}, s{sLOG2E}, v{GT+v}")
    for v in range(4): A(f"v_exp_f32 v{GT+8+v}, -v{GT+8+v}")
    for v in range(4): A(f"v_add_f32 v{GT+8+v}, 1.0, v{GT+8+v}")
    for v in range(4): A(f"v_rcp_f32 v{GT+8+v}, v{GT+8+v}")
    for v in range(4): A(f"v_mul_f32 v{GT+v}, v{GT+v}, v{GT+8+v}")
    for v in range(4): bf16r(GT + v, GT + v)
    for v in range(4): A(f"v_mul_f32 v{GT+v}, v{GT+v}, v{GT+4+v}")
    for v in range(4): A(f"v_cvt_pk_bf16_f32 v{GT+v}, v{GT+v}, v{GT+v}")
    A(f"v_bfe_u32 v{vA1}, v0, 3, 1"); A(f"v_mul_u32_u24 v{vA1}, 160, v{vA1}"); A(f"v_lshl_add_u32 v{vA1}, v{SV+1}, 4, v{vA1}")
    A(f"s_lshl_b32 s{sF0}, s{sF0}, 2"); A(f"v_subrev_u32 v{vA1}, s{sF0}, v{vA1}"); A(f"v_add_u32 v{vA1}, {HD+8}, v{vA1}")
    A("s_mov_b64 exec, 0xffff")
    A(f"ds_write_b64 v{vA1}, {r2(GT)}"); A(f"ds_write_b64 v{vA1}, {r2(GT+2)} offset:8")
    A("s_mov_b64 exec, -1")
    A(f"v_mov_b32 v{SV+2}, 0"); A(f"v_mov_b32 v{SV+3}, 1")
    A("s_waitcnt lgkmcnt(0)")
    A(f"ds_write_b32 v{SV+2}, v{SV+3} offset:{QF}")
    if sx == "gather": A("s_endpgm")
    stamp(5)
    late_addr()
    for nm, code in late_loads():
        for c in code: A(c)
    A(f"s_lshl_b32 s{sT0}, s{sSL}, 6"); A(f"v_lshlrev_b32 v{SV+20}, 2, v0"); A(f"v_add_u32 v{SV+20}, s{sT0}, v{SV+20}")
    A(f"buffer_load_dword v{SV+21}, v{SV+20}, {srd(X)}, 0 offen")
    tail_addr()
    A(f"v_and_b32 v{vA1}, 15, v0"); A(f"s_lshl_b32 s{sT1}, s{sHKV}, 4"); A(f"v_add_u32 v{vA1}, s{sT1}, v{vA1}")
    A(f"v_mul_u32_u24 v{vA1}, {REC}, v{vA1}")
    A(f"s_lshl_b32 s{sT2}, s{sJ}, 6"); A(f"v_lshl_add_u32 v{vA2}, v{vT0}, 4, v{vA1}")
    A(f"s_cmp_eq_u32 s{sB}, 1"); A(f"s_cselect_b64 s[{sSEL}:{sSEL+1}], -1, 0")
    A("s_mov_b32 s0, 0x01010101"); A("s_mov_b32 s1, 0x01010101")
    ML = 128
    FW = 80
    A(f"v_and_b32 v{SV+2}, 15, v0"); A(f"v_lshlrev_b32 v{SV+2}, 3, v{SV+2}")
    A("L_mlwait:")
    A(f"s_sleep {mlsleep}")
    A(f"ds_read_b32 v{SV+3}, v{SV+2} offset:{MW+4}")
    A(f"s_add_u32 s{sSPIN}, s{sSPIN}, 1"); A(f"s_cmp_gt_u32 s{sSPIN}, {spin*16}")
    A("s_waitcnt lgkmcnt(0)")
    A(f"v_cmp_eq_u32 vcc, -1, v{SV+3}")
    A("s_cbranch_scc1 L_mlgot")
    A("s_cbranch_vccnz L_mlwait")
    A("L_mlgot:")
    A(f"v_mov_b32 v{SV+2}, 0")
    for i in range(8): A(f"ds_read_b128 {r4(ML+4*i)}, v{SV+2} offset:{MW+16*i}")
    A("s_waitcnt lgkmcnt(0)")
    stamp(4)
    for h in range(2):
        b = ML + 16 * h; Mh = SV + 4 + 2 * h; Lh = Mh + 1
        A(f"v_max3_f32 v{Mh}, v{b}, v{b+2}, v{b+4}"); A(f"v_max3_f32 v{Mh}, v{Mh}, v{b+6}, v{b+8}")
        A(f"v_max3_f32 v{Mh}, v{Mh}, v{b+10}, v{b+12}"); A(f"v_max_f32 v{Mh}, v{Mh}, v{b+14}")
        for w in range(8): A(f"v_sub_f32 v{b+2*w}, v{b+2*w}, v{Mh}")
        for w in range(8): A(f"v_mul_f32 v{b+2*w}, s{sLOG2E}, v{b+2*w}")
        for w in range(8): A(f"v_exp_f32 v{b+2*w}, v{b+2*w}")
        A(f"v_mul_f32 v{Lh}, v{b}, v{b+1}")
        for w in range(1, 8): A(f"v_fmac_f32 v{Lh}, v{b+2*w}, v{b+2*w+1}")
    A(f"s_mov_b32 s{sQ2+1}, 0"); A(f"s_mov_b32 s{sQ2+2}, -1")
    for w in range(8): A(f"v_cndmask_b32 v{FW+w}, v{ML+2*w}, v{ML+16+2*w}, s[{sQ2+1}:{sQ2+2}]")
    tag4(SV + 4)
    A("s_mov_b64 exec, 1")
    A(f"buffer_store_dwordx4 {r4(SV+4)}, v{vV}, {srd(WS)}, 0 offen offset:1024{stml}")
    A("s_mov_b64 exec, -1")
    m, l = PL + 4, PL + 5
    M = TT + 1
    steps = ("quad_perm:[1,0,3,2]", "quad_perm:[2,3,0,1]", "row_half_mirror")
    def coef():
        A(f"v_cndmask_b32 v{m}, v{m}, v{PL+6}, s[{sSEL}:{sSEL+1}]"); A(f"v_cndmask_b32 v{l}, v{l}, v{PL+7}, s[{sSEL}:{sSEL+1}]")
        A("s_nop 0")
        A(f"v_max_f32_dpp v{M}, v{m}, v{m} {steps[0]} {DPPF}")
        for s_ in steps[1:]:
            A("s_nop 1"); A(f"v_max_f32_dpp v{M}, v{M}, v{M} {s_} {DPPF}")
        A(f"v_sub_f32 v{m}, v{m}, v{M}"); A(f"v_mul_f32 v{m}, s{sLOG2E}, v{m}"); A(f"v_exp_f32 v{m}, v{m}"); A("s_nop 0")
        A(f"v_mul_f32 v{l}, v{l}, v{m}")
        for s_ in steps:
            A("s_nop 1"); A(f"v_add_f32_dpp v{l}, v{l}, v{l} {s_} {DPPF}")
        A(f"v_rcp_f32 v{l}, v{l}"); A("s_nop 0")
        A(f"v_mul_f32 v{m}, v{m}, v{l}")
    A(f"buffer_load_dwordx4 {r4(PL+4)}, v{vA1}, {srd(WS)}, 0 offen offset:1024{ldml}")
    A("s_waitcnt vmcnt(5)")
    w2_mfmas()
    A("s_waitcnt vmcnt(0)")
    untag_check([PL + 4 + i for i in range(4)], [vTAG] * 4, TT + 1)
    A(f"s_mov_b64 s[{sQ2+1}:{sQ2+2}], vcc")
    A(f"v_mov_b32 v{SV+2}, 0"); A(f"v_mov_b32 v{SV+3}, 1")
    A("s_cbranch_vccnz L_nogo")
    A(f"ds_write_b32 v{SV+2}, v{SV+3} offset:{GO}")
    A("L_nogo:")
    coef()
    stamp(8)
    A("s_barrier")
    OT = 128
    for w in range(8):
        A(f"ds_read_b128 {r4(OT+4*w)}, v{vK} offset:{OS+w*1024}")
    for w in range(8):
        A(f"s_waitcnt lgkmcnt({7-w})")
        f = FW + (w & ~1); sel = w & 1
        for hlf in range(2):
            d = f"v[{OT+2*hlf}:{OT+2*hlf+1}]"; x = f"v[{OT+4*w+2*hlf}:{OT+4*w+2*hlf+1}]"
            if w == 0: A(f"v_pk_mul_f32 {d}, {x}, v[{f}:{f+1}] op_sel:[0,{sel}] op_sel_hi:[1,{sel}]")
            else: A(f"v_pk_fma_f32 {d}, {x}, v[{f}:{f+1}], {d} op_sel:[0,{sel},0] op_sel_hi:[1,{sel},1]")
    tag4(OT)
    A(f"buffer_store_dwordx4 {r4(OT)}, v{vV}, {srd(WS)}, 0 offen{sto}")
    stamp(6)
    A(f"s_cmp_eq_u64 s[{sQ2+1}:{sQ2+2}], 0"); A("s_cbranch_scc1 L_pollo")
    A("L_pollml:")
    if psleep: A(f"s_sleep {psleep}")
    A(f"buffer_load_dwordx4 {r4(PL+4)}, v{vA1}, {srd(WS)}, 0 offen offset:1024{ldml}")
    A(f"s_add_u32 s{sSPIN}, s{sSPIN}, 1"); A(f"s_cmp_gt_u32 s{sSPIN}, {spin}")
    A("s_waitcnt vmcnt(0)")
    untag_check([PL + 4 + i for i in range(4)], [vTAG] * 4, TT + 1)
    A("s_cbranch_scc1 L_gotml")
    A("s_cbranch_vccnz L_pollml")
    A("L_gotml:")
    A(f"ds_write_b32 v{SV+2}, v{SV+3} offset:{GO}")
    coef()
    A("L_pollo:")
    PB = 136
    for k in range(npo - 1):
        A(f"buffer_load_dwordx4 {r4(PB+4*k)}, v{vA2}, {srd(WS)}, s{sT2} offen{ldo}")
        if osleep: A(f"s_sleep {osleep}")
    A("L_po0:")
    if psleep: A(f"s_sleep {psleep}")
    for k in range(npo):
        kk = (k + npo - 1) % npo
        A(f"buffer_load_dwordx4 {r4(PB+4*kk)}, v{vA2}, {srd(WS)}, s{sT2} offen{ldo}")
        if k == 0: A(f"s_add_u32 s{sSPIN}, s{sSPIN}, 1"); A(f"s_cmp_gt_u32 s{sSPIN}, {spin}")
        A(f"s_waitcnt vmcnt({npo-1})")
        for v in range(4): A(f"v_xor_b32 v{PL+v}, v{vTAG}, v{PB+4*k+v}")
        A(f"v_or3_b32 v{TT+1}, v{PL}, v{PL+1}, v{PL+2}"); A(f"v_or_b32 v{TT+1}, v{TT+1}, v{PL+3}")
        A(f"v_and_b32 v{TT+1}, s{sTM}, v{TT+1}"); A(f"v_cmp_ne_u32 vcc, 0, v{TT+1}")
        if k < npo - 1: A("s_cbranch_vccz L_goto")
        else:
            A("s_cbranch_scc1 L_goto"); A("s_cbranch_vccnz L_po0")
    A("L_goto:")
    stamp(9)
    for v in range(4): A(f"v_mul_f32 v{PL+v}, v{PL+v}, v{m}")
    for s_ in steps:
        for r in (PL, PL + 1, PL + 2, PL + 3):
            A(f"v_add_f32_dpp v{r}, v{r}, v{r} {s_} {DPPF}")
    for v in range(4): A(f"v_cvt_pk_bf16_f32 v{PL+v}, v{PL+v}, v{PL+v}")
    A("s_mov_b64 exec, s[0:1]")
    A(f"ds_write_b128 v{vT1}, {r4(PL)} offset:{ZL}")
    A("s_mov_b64 exec, -1")
    A("s_waitcnt lgkmcnt(0)")
    A("s_barrier")
    stamp(13)

    A("L_tail:")
    for n in range(2):
        for rho in range(2):
            gemv_mfma(PL + 2 * n + rho, WL + 12 + 4 * n, D1 if rho == 0 else D2, False)
    A("s_nop 7")
    for v in range(4):
        A(f"v_add_f32_dpp v{D1+v}, v{D2+v}, v{D1+v} row_ror:8 {DPPF}")
    tag4(D1)
    A(f"s_mov_b64 exec, s[{sMASK}:{sMASK+1}]")
    A(f"buffer_store_dwordx4 {r4(D1)}, v{TT}, {srd(WS)}, s{sC2} offen{stf}")
    A("s_mov_b64 exec, -1")
    stamp(10)
    A(f"s_cmp_lg_u32 s{sCK}, 0"); A("s_cbranch_scc1 L_fin")
    A("s_cmp_ge_u32 s2, 252"); A("s_cbranch_scc1 L_fin")
    A("s_cmp_eq_u32 s3, 8"); A("s_cbranch_scc1 L_final")
    A(f"v_lshrrev_b32 v{TT}, 3, v0"); A(f"s_lshl_b32 s{sT0}, s3, 5"); A(f"v_add_u32 v{TT}, s{sT0}, v{TT}")
    A(f"v_mul_u32_u24 v{TT}, {REC}, v{TT}"); A(f"v_and_b32 v{TT+1}, 7, v0"); A(f"v_lshl_add_u32 v{TT}, v{TT+1}, 4, v{TT}")
    A(f"s_lshl_b32 s{sT0}, s{sSL}, 7"); A(f"s_add_u32 s{sT0}, s{sT0}, {FPO}")
    A(f"s_add_u32 s{sC1}, s{sT0}, {8*REC}"); A(f"s_add_u32 s{sC2}, s{sT0}, {16*REC}"); A(f"s_add_u32 s{sC3}, s{sT0}, {24*REC}")
    FB = FC - 16 * 0 + 16
    def fpoll(k):
        for q, so in enumerate((sT0, sC1, sC2, sC3)):
            A(f"buffer_load_dwordx4 {r4(FB+16*k+4*q)}, v{TT}, {srd(WS)}, s{so} offen{ldf}")
    for k in range(npf - 1):
        fpoll(k)
        if fsleep: A(f"s_sleep {fsleep}")
    A("L_pf0:")
    for k in range(npf):
        fpoll((k + npf - 1) % npf)
        if k == 0: A(f"s_add_u32 s{sSPIN}, s{sSPIN}, 1"); A(f"s_cmp_gt_u32 s{sSPIN}, {spin}")
        A(f"s_waitcnt vmcnt({4*(npf-1)})")
        for v in range(16): A(f"v_xor_b32 v{FC+v}, v{vTAG}, v{FB+16*k+v}")
        A(f"v_or3_b32 v{TT+1}, v{FC}, v{FC+1}, v{FC+2}")
        for i in range(3, 15, 2): A(f"v_or3_b32 v{TT+1}, v{TT+1}, v{FC+i}, v{FC+i+1}")
        A(f"v_or_b32 v{TT+1}, v{TT+1}, v{FC+15}")
        A(f"v_and_b32 v{TT+1}, s{sTM}, v{TT+1}"); A(f"v_cmp_ne_u32 vcc, 0, v{TT+1}")
        if k < npf - 1: A("s_cbranch_vccz L_gotf")
        else:
            A("s_cbranch_scc1 L_gotf"); A("s_cbranch_vccnz L_pf0")
    A("L_gotf:")
    stamp(9)
    for v in range(4):
        A(f"v_add_f32 v{FC+v}, v{FC+v}, v{FC+4+v}"); A(f"v_add_f32 v{FC+8+v}, v{FC+8+v}, v{FC+12+v}")
    for v in range(4):
        A(f"v_add_f32 v{FC+v}, v{FC+v}, v{FC+8+v}")
    a, b = FC + 4, FC + 5
    A("s_nop 0")
    A(f"v_add_f32_dpp v{a}, v{FC}, v{FC} row_ror:8 row_mask:0xf bank_mask:0x3")
    A(f"v_add_f32_dpp v{a}, v{FC+1}, v{FC+1} row_ror:8 row_mask:0xf bank_mask:0xc")
    A(f"v_add_f32_dpp v{b}, v{FC+2}, v{FC+2} row_ror:8 row_mask:0xf bank_mask:0x3")
    A(f"v_add_f32_dpp v{b}, v{FC+3}, v{FC+3} row_ror:8 row_mask:0xf bank_mask:0xc")
    A(f"v_and_b32 v{TT}, 7, v0"); A(f"v_lshlrev_b32 v{TT}, 4, v{TT}")
    A(f"v_permlane16_swap_b32 v{a}, v{b}")
    A(f"v_bfe_u32 v{TT+1}, v0, 3, 2"); A(f"v_lshl_add_u32 v{TT}, v{TT+1}, 2, v{TT}")
    A(f"v_add_f32 v{a}, v{a}, v{b}")
    A(f"s_lshl_b32 s{sT0}, s3, 7"); A(f"v_mov_b32 v{b}, v{a}"); A(f"v_add_u32 v{TT}, s{sT0}, v{TT}"); A("s_nop 0")
    A(f"v_permlane32_swap_b32 v{a}, v{b}"); A("s_nop 1")
    A(f"v_add_f32 v{a}, v{a}, v{b}")
    A(f"ds_write_b32 v{TT}, v{a} offset:{FS}")
    A("s_waitcnt lgkmcnt(0)")
    A("s_barrier")
    A("s_branch L_fin")
    A("L_final:")
    A(f"v_lshlrev_b32 v{TT}, 3, v0")
    A(f"v_lshlrev_b32 v{TT+2}, 16, v{SV+21}"); A(f"v_and_b32 v{TT+3}, 0xffff0000, v{SV+21}")
    A(f"v_mov_b32 v{TT+1}, s{sEP}"); A(f"v_mov_b32 v{SV}, {EP}")
    A(f"s_cmp_eq_u32 s2, 0"); A(f"s_cselect_b32 s{sT0}, 0, {HUGE}")
    A("s_mov_b64 exec, 0xffff")
    A("s_barrier")
    for w in range(8):
        A(f"ds_read_b64 {r2(80+2*w)}, v{TT} offset:{FS+128*w}")
    for w in range(8):
        A(f"s_waitcnt lgkmcnt({7-w})")
        A(f"v_add_f32 v{TT+2}, v{TT+2}, v{80+2*w}"); A(f"v_add_f32 v{TT+3}, v{TT+3}, v{81+2*w}")
    A(f"v_cvt_pk_bf16_f32 v{TT+2}, v{TT+2}, v{TT+3}")
    A(f"buffer_store_dword v{TT+2}, v{SV+20}, {srd(OUT)}, 0 offen{outsc}")
    A("s_mov_b64 exec, 1")
    A(f"buffer_store_dword v{TT+1}, v{SV}, {srd(WS)}, s{sT0} offen sc1")
    if hold:
        A(f"s_add_u32 s100, s100, {hold}")
        A("L_hold:"); A("s_memrealtime s[98:99]"); A("s_waitcnt lgkmcnt(0)"); A("s_sub_u32 s98, s98, s100"); A("s_cmp_lt_i32 s98, 0"); A("s_cbranch_scc1 L_hold")
    A("L_fin:")
    if stamps:
        stamp(11)
        A("s_mov_b64 exec, -1")
        A("s_waitcnt vmcnt(0) lgkmcnt(0)")
        A(f"s_mul_i32 s{sT0}, s2, 9"); A(f"s_add_u32 s{sT0}, s{sT0}, s3"); A(f"s_lshl_b32 s{sT0}, s{sT0}, 7"); A(f"s_add_u32 s{sT0}, s{sT0}, {STAMP}")
        for i in range(14):
            A(f"v_mov_b32 v{104+2*i}, s{stamp_reg(i)}"); A(f"v_mov_b32 v{105+2*i}, s{stamp_reg(i)+1}")
        A(f"v_mov_b32 v132, s{sSPIN}")
        A("s_getreg_b32 s76, hwreg(HW_REG_XCC_ID)"); A("v_mov_b32 v133, s76"); A("s_getreg_b32 s76, hwreg(HW_REG_HW_ID)"); A("v_mov_b32 v134, s76"); A("v_mov_b32 v135, 0")
        A("v_mov_b32 v100, 0")
        A("s_mov_b64 exec, 1")
        for i in range(8):
            A(f"buffer_store_dwordx4 {r4(104+4*i)}, v100, {srd(WS)}, s{sT0} offen offset:{16*i}")
    A("L_end:")
    A("s_endpgm")
    A('.section .rodata,"a"'); A(".p2align 6"); A(f".amdhsa_kernel {NAME}")
    A("  .amdhsa_next_free_vgpr 168"); A("  .amdhsa_next_free_sgpr 102"); A("  .amdhsa_accum_offset 168")
    A("  .amdhsa_group_segment_fixed_size 0"); A("  .amdhsa_kernarg_size 96"); A("  .amdhsa_user_sgpr_count 2")
    A("  .amdhsa_user_sgpr_kernarg_segment_ptr 1"); A("  .amdhsa_system_sgpr_workgroup_id_x 1")
    A(".end_amdhsa_kernel")
    return "\n".join(x for x in L if x is not None) + "\n"


if __name__ == "__main__":
    kw = eval("dict(%s)" % (sys.argv[2] if len(sys.argv) > 2 else ""))
    open(sys.argv[1], "w").write(gen(**kw))
```

```python
import sys
NAME = "parallel_sum__sliding_block_cached__glu_gated_swiglu__decode_kernel"

HEADER = """; Fused decode step: out = x + Attn(LN(x)) + SwiGLU(LN(x)), one launch, 256 workgroups x 9 waves.
"""

OS = 0
S1 = 0
FS = 8192
QL = 9216
HD = QL + 512
MW = HD + 320
ZL = MW + 128
TG = ZL + 128
QF = TG + 4
UN = QF + 4
NXT = UN + 4
FWL = UN + 8
CLM = FWL + 64
XN = 10752
assert CLM + 128 <= XN and FWL % 16 == 0
LDS_BYTES = XN + 4608
REC = 6144
FPO = 1536
EP = 1408
CNT = (7 << 18)
P1 = 3 << 19
P1B = 13312 * 4
STAMP = 2 << 20
WS_BYTES = 4 << 20
HUGE = 0x40000000
LOG2E = 0x3FB8AA3B
SCALE = 0x3DB504F3
TMASK = 0x3FF
ML_NAT = True
STAMP_NAMES = ["start", "karg", "Bt/B0", "B1", "qgot", "sm", "Vend", "s7", "s8", "gotO", "FPst", "end", "x/B4", "B5"]

X, K, V, SU, WO, W2, OUT, DBG, WS = [4 + 4 * i for i in range(9)]
SRD_INFO = {X: (0, 2304), K: (2, 1 << 28), V: (4, 1 << 28), WO: (8, 4096 * 1152),
            W2: (16, 4608 * 1152), OUT: (18, 2304), DBG: (20, 256), WS: (22, WS_BYTES)}
sPQ, sP1, sP3 = 40, 42, 44
sU, sRB = 46, 47
sHKV, sJ, sB, sS, sSL, sCK = 48, 49, 50, 51, 52, 53
sT0, sT1, sT2, sT3 = 54, 55, 56, 57
sHASH = 58
sUO, sUS = 59, 60
sOK = 60
sT16 = 62
sLOG2E = 63
sSPIN = 64
sTM = 65
sC1, sC2, sC3 = 66, 67, 68
sEP = 69
sPI, sPO, sNP, sWC = 46, 47, 60, 61
sCL, sCB, sKO, sM4 = 40, 42, 41, 44
sMASK = 70
sSEL = 72
KA = 76
def stamp_reg(i): return {0: 100, 1: 74}.get(i, KA + 2 * (i - 2))

vK, vV, vA1, vA2 = 1, 2, 3, 4
MK = 5
vT0, vT1, vT2 = 9, 10, 11
A0, A1 = 12, 16
ACC, D1, D2 = 20, 24, 28
SR = 32
QB = 36
KR = 40
VR = 104
def kreg(t): return KR + 4 * t
def vreg(t): return VR + 4 * t
XA = 32
S1D = 132
WL = 40
PL = 60
HV = 68
vTAG = 74
DK = [80, 88, 156]; DV = [84, 92, 160]
vOS, vMW, vIDX, vONE, vM, vL, vL2, vHM = 96, 97, 98, 99, 100, 101, 102, 103
TT = 76
FC = 104
SV = 104


def r4(b): return f"v[{b}:{b+3}]"
def r2(b): return f"v[{b}:{b+1}]"
def srd(b): return f"s[{b}:{b+3}]"
DPPF = "row_mask:0xf bank_mask:0xf"


def gen(depth=4, b2=11, pre=2, stamps=False, pol=" nt", spin=100000, prio=3, mlsleep=6, npo=1, npf=1, outsc="", dry=False,
        psleep=0, gsleep=0, ticket=False, earlyml=False, hold=0, latepos="end", wide=False, sx=None, ilv=False, NS=16, clead=4, look=2, lowprio=False, sprio=None):
    L = []
    A = L.append
    dyn = NS < 16
    POOL = 8 * (16 - NS)
    DK[2], DV[2] = (156, 160) if NS <= 13 else (160, 164)
    assert NS <= 14 or NS == 16
    assert not earlyml and not ticket and latepos == "end"

    def stamp(i):
        if stamps:
            r = stamp_reg(i)
            A(f"s_memrealtime s[{r}:{r+1}]")

    def srd_const(d):
        A(f"s_mov_b32 s{d+2}, {SRD_INFO[d][1]}"); A(f"s_mov_b32 s{d+3}, 0x00020000")

    def srd_ptr(d):
        o = KA + SRD_INFO[d][0]
        A(f"s_mov_b64 s[{d}:{d+1}], s[{o}:{o+1}]")

    def masks(tmp):
        A(f"v_and_b32 v{vT2}, 1, v0"); A(f"v_lshlrev_b32 v{vT2}, 4, v{vT2}")
        A(f"v_mov_b32 v{MK}, 0xffff"); A(f"v_lshlrev_b32 v{vT2}, v{vT2}, v{MK}")
        A(f"v_bfe_u32 v{tmp}, v0, 1, 2")
        for j in range(4):
            A(f"v_cmp_eq_u32 vcc, {j}, v{tmp}"); A("s_nop 1"); A(f"v_cndmask_b32 v{MK+j}, 0, v{vT2}, vcc")

    def ffn_ids():
        A(f"s_mul_i32 s{sSL}, s2, 9363"); A(f"s_lshr_b32 s{sSL}, s{sSL}, 16")
        A(f"s_mul_i32 s{sT0}, s{sSL}, 7"); A(f"s_sub_u32 s{sCK}, s2, s{sT0}")

    def unit_id(r):
        A(f"s_mul_i32 s{sT0}, s{sHKV}, 13"); A(f"s_add_u32 s{sT0}, s{sT0}, s{r}"); A(f"s_cmp_lt_u32 s{r}, 13"); A(f"s_cselect_b32 s{sU}, s{sT0}, 255")

    def tag4(r):
        for v in range(4): A(f"v_bfi_b32 v{r+v}, s{sTM}, v{vTAG}, v{r+v}")

    def untag_check(regs, tags, acc, mask):
        for r, t in zip(regs, tags): A(f"v_xor_b32 v{r}, v{t}, v{r}")
        A(f"v_or3_b32 v{acc}, v{regs[0]}, v{regs[1]}, v{regs[2]}")
        rest = regs[3:]
        while len(rest) >= 2:
            A(f"v_or3_b32 v{acc}, v{acc}, v{rest[0]}, v{rest[1]}"); rest = rest[2:]
        if rest: A(f"v_or_b32 v{acc}, v{acc}, v{rest[0]}")
        A(f"v_and_b32 v{acc}, {mask}, v{acc}")
        A(f"v_cmp_ne_u32 vcc, 0, v{acc}")

    def bf16r(dst, src):
        A(f"v_cvt_pk_bf16_f32 v{dst}, v{src}, v{src}"); A(f"v_and_b32 v{dst}, 0xffff0000, v{dst}")

    def allred32(r, t, op="v_add_f32"):
        for n in (1, 2, 4, 8):
            A("s_nop 1"); A(f"{op}_dpp v{r}, v{r}, v{r} row_ror:{n} {DPPF}")
        A(f"v_mov_b32 v{t}, v{r}"); A("s_nop 1"); A(f"v_permlane16_swap_b32 v{r}, v{t}"); A("s_nop 1"); A(f"{op} v{r}, v{r}, v{t}")

    def allred_banks_rows(r, t, op):
        for n in (4, 8):
            A("s_nop 1"); A(f"{op}_dpp v{r}, v{r}, v{r} row_ror:{n} {DPPF}")
        for sw in ("v_permlane16_swap_b32", "v_permlane32_swap_b32"):
            A(f"v_mov_b32 v{t}, v{r}"); A("s_nop 1"); A(f"{sw} v{r}, v{t}"); A("s_nop 1"); A(f"{op} v{r}, v{r}, v{t}")

    aflip = [0]
    def gemv_mfma(val, data, acc, first):
        a = A0 if aflip[0] == 0 else A1
        aflip[0] ^= 1
        for j in range(4):
            A(f"v_and_b32 v{a+j}, v{val}, v{MK+j}")
        A("s_nop 1")
        A(f"v_mfma_f32_16x16x32_bf16 {r4(acc)}, {r4(a)}, {r4(data)}, {'0' if first else r4(acc)}")

    def w2_mfmas():
        for n in range(3):
            for rho in range(2):
                gemv_mfma(HV + 2 * n + rho, WL + 4 * n, D1 if rho == 0 else D2, n == 0)

    def late_loads():
        return [("W0", [f"buffer_load_dwordx4 {r4(WL)}, v{vA2}, {srd(W2)}, 0 offen{pol}"]),
                ("W1", [f"buffer_load_dwordx4 {r4(WL+4)}, v{vA2}, {srd(W2)}, 0 offen offset:2304{pol}"]),
                ("W2", [f"buffer_load_dwordx4 {r4(WL+8)}, v{vA2}, {srd(W2)}, s{sC1} offen{pol}"]),
                ("W3", [f"buffer_load_dwordx4 {r4(WL+12)}, v{vA1}, {srd(WO)}, 0 offen{pol}"]),
                ("W4", [f"buffer_load_dwordx4 {r4(WL+16)}, v{vA1}, {srd(WO)}, 0 offen offset:2304{pol}"])]

    def late_addr():
        A(f"v_bfe_u32 v{vT2}, v0, 3, 1")
        A(f"v_lshl_add_u32 v{vA1}, v{vT0}, 2, v{vT2}")
        A(f"s_lshl_b32 s{sT1}, s2, 4"); A(f"v_add_u32 v{vA1}, s{sT1}, v{vA1}")
        A(f"v_mul_u32_u24 v{vA1}, 1152, v{vA1}")
        A(f"v_mad_u32_u24 v{vA2}, v{vT0}, 6, v{vT2}")
        A(f"s_mul_i32 s{sT1}, s2, 18"); A(f"v_add_u32 v{vA2}, s{sT1}, v{vA2}")
        A(f"v_mul_u32_u24 v{vA2}, 1152, v{vA2}")
        A(f"v_and_b32 v{vT2}, 7, v0"); A(f"v_lshlrev_b32 v{vT2}, 4, v{vT2}")
        A(f"s_lshl_b32 s{sT1}, s3, 7"); A(f"v_add_u32 v{vT2}, s{sT1}, v{vT2}")
        A(f"v_add_u32 v{vA1}, v{vA1}, v{vT2}"); A(f"v_add_u32 v{vA2}, v{vA2}, v{vT2}")
        A(f"v_cmp_eq_u32 vcc, 3, v{vT0}"); A(f"v_mov_b32 v{vT2}, {HUGE}"); A("s_nop 0")
        A(f"v_cndmask_b32 v{vA2}, v{vA2}, v{vT2}, vcc")
        A(f"s_mov_b32 s{sC1}, 4608")

    def tail_addr():
        A(f"v_lshrrev_b32 v{TT}, 1, v{vT0}"); A(f"v_mul_u32_u24 v{TT}, 2304, v{TT}")
        A(f"v_and_b32 v{TT+1}, 7, v0"); A(f"v_lshl_add_u32 v{TT}, v{TT+1}, 5, v{TT}")
        A(f"v_and_b32 v{TT+1}, 1, v{vT0}"); A(f"v_lshl_add_u32 v{TT}, v{TT+1}, 4, v{TT}")
        A(f"s_mul_i32 s{sC2}, s2, {REC}"); A(f"s_lshl_b32 s{sT1}, s3, 8"); A(f"s_add_u32 s{sC2}, s{sC2}, s{sT1}"); A(f"s_add_u32 s{sC2}, s{sC2}, {FPO}")
        A(f"v_bfe_u32 v{TT+1}, v0, 3, 1"); A(f"v_mul_u32_u24 v{TT+1}, 160, v{TT+1}"); A(f"v_mad_u32_u24 v{TT+1}, v{vT0}, 24, v{TT+1}")
        for i in range(3):
            A(f"ds_read_b64 {r2(HV+2*i)}, v{TT+1} offset:{HD+8+8*i}")
        A(f"v_lshrrev_b32 v{vT1}, 3, v0"); A(f"v_lshlrev_b32 v{vT1}, 4, v{vT1}")
        A(f"s_movk_i32 s{sTM}, {TMASK:#x}")
        A(f"s_and_b32 s{sT1}, s{sEP}, s{sTM}"); A(f"v_mov_b32 v{vTAG}, s{sT1}")

    A(HEADER.rstrip("\n"))
    A(f"; @launch grid=(256,1,1) block=(576,1,1) lds={LDS_BYTES}")
    A('.amdgcn_target "amdgcn-amd-amdhsa--gfx950"')
    A(".text"); A(f".globl {NAME}"); A(".p2align 8"); A(f".type {NAME},@function"); A(f"{NAME}:")
    stamp(0)
    if hold: A("s_memrealtime s[100:101]")
    A(f"s_load_dwordx16 s[{KA}:{KA+15}], s[0:1], 0")
    A(f"s_load_dwordx8 s[{KA+16}:{KA+23}], s[0:1], 64")
    A("v_lshrrev_b32 v1, 6, v0")
    A("s_cmp_ge_u32 s2, 256"); A("s_cbranch_scc1 L_end")
    A("v_readfirstlane_b32 s3, v1")
    A("v_and_b32 v0, 63, v0")
    A(f"s_lshr_b32 s{sHKV}, s2, 4"); A(f"s_and_b32 s{sJ}, s2, 15"); A(f"s_lshr_b32 s{sB}, s{sJ}, 3"); A(f"s_and_b32 s{sS}, s2, 7")
    A(f"v_lshrrev_b32 v{vT0}, 4, v0")
    A("s_cmp_eq_u32 s3, 8"); A("s_cbranch_scc1 L_service")

    srd_const(K)
    if sprio is not None:
        A(f"s_cmp_ge_u32 s3, 4"); A(f"s_cbranch_scc0 L_np"); A(f"s_setprio {sprio}"); A("L_np:")
    A(f"s_lshl_b32 s{sT0}, s{sB}, 4"); A(f"s_add_u32 s{sT0}, s{sT0}, s{sHKV}"); A(f"s_lshl_b32 s{sT0}, s{sT0}, 23")
    A(f"s_mul_i32 s{sT1}, s{sS}, {NS*8192}"); A(f"s_add_u32 s{sT0}, s{sT0}, s{sT1}")
    A(f"s_lshl_b32 s{sT1}, s3, 10"); A(f"s_add_u32 s{sT0}, s{sT0}, s{sT1}")
    A(f"s_add_u32 s{sT2}, s{sT0}, {7 << 20}")
    A(f"v_and_b32 v{vK}, 3, v0"); A(f"v_lshlrev_b32 v{vK}, 4, v{vK}")
    A(f"v_bfe_u32 v{vT1}, v0, 2, 2"); A(f"v_lshl_add_u32 v{vK}, v{vT1}, 8, v{vK}")
    A(f"v_lshl_add_u32 v{vK}, v{vT0}, 6, v{vK}"); A(f"v_add_u32 v{vK}, s{sT2}, v{vK}")
    A(f"s_lshl_b32 s{sT0}, s2, 3"); A(f"s_add_u32 s{sT0}, s{sT0}, s3"); A(f"s_mul_i32 s{sHASH}, s{sT0}, 0x9E3779B1")
    if dyn:
        A(f"s_mul_hi_u32 s{sHASH}, s{sHASH}, {NS}"); A(f"s_lshl_b32 s{sHASH}, s{sHASH}, 13")
    else:
        A(f"s_lshr_b32 s{sHASH}, s{sHASH}, 11"); A(f"s_and_b32 s{sHASH}, s{sHASH}, {15 << 13}")
    A("s_waitcnt lgkmcnt(0)")
    stamp(1)
    srd_ptr(K)

    def kvld(nm, t, reg, va, sr):
        if dyn:
            return (f"{nm}{t}", [f"buffer_load_dwordx4 {r4(reg)}, v{va}, {srd(sr)}, s{sHASH} offen{pol}",
                                 f"s_add_u32 s{sHASH}, s{sHASH}, 8192", f"s_cmp_eq_u32 s{sHASH}, {NS*8192}", f"s_cselect_b32 s{sHASH}, 0, s{sHASH}"])
        return (f"{nm}{t}", [f"s_xor_b32 s{sT0}, s{sHASH}, {t << 13}", f"buffer_load_dwordx4 {r4(reg)}, v{va}, {srd(sr)}, s{sT0} offen{pol}"])
    def kld(t): return kvld("K", t, kreg(t), vK, K)
    loads = [kld(t) for t in range(pre)]
    for k in range(9):
        c = [f"buffer_load_dwordx4 {r4(S1D+4*k)}, v{vA1}, {srd(SU)}, s{sUO} offen{pol}"]
        if k < 8: c.append(f"s_add_u32 s{sUO}, s{sUO}, s{sUS}")
        loads.append((f"U{k}", c))
    if ilv:
        us = loads[pre:]; loads = loads[:pre]; t = pre
        for i_, u_ in enumerate(us):
            loads.append(u_)
            if i_ < 8:
                for _ in range(ilv): loads.append(kld(t)); t += 1
        loads += [kld(t_) for t_ in range(t, NS)]
    else:
        loads += [kld(t) for t in range(pre, NS)]
    loads += [kvld("V", t, vreg(t), vV, V) for t in range(NS)]
    if not dyn: loads += late_loads()
    names = [n for n, _ in loads]

    def rest_of_prologue():
        A(f"v_lshlrev_b32 v{vV}, 4, v0"); A(f"v_add_u32 v{vV}, s{sT2}, v{vV}")
        for d in (V, WO, W2, WS): srd_const(d); srd_ptr(d)
        A(f"s_mov_b64 s[{sPQ}:{sPQ+1}], s[{KA+6}:{KA+7}]"); A(f"s_mov_b64 s[{sP1}:{sP1+1}], s[{KA+12}:{KA+13}]"); A(f"s_mov_b64 s[{sP3}:{sP3+1}], s[{KA+14}:{KA+15}]")
        A(f"s_mov_b32 s{sLOG2E}, {LOG2E:#x}"); A(f"s_mov_b32 s{sSPIN}, 0")
        A(f"s_mov_b32 s{sMASK}, 0x00ff00ff"); A(f"s_mov_b32 s{sMASK+1}, 0x00ff00ff")
        ffn_ids()
        masks(vT1)
        A(f"v_bfe_u32 v{vT2}, v0, 3, 1"); A(f"s_lshl_b32 s{sT1}, s3, 3")
        A(f"v_lshl_add_u32 v{vA1}, v{vT0}, 1, s{sT1}")
        A(f"v_mul_u32_u24 v{vA2}, 2304, v{vT2}"); A(f"v_lshl_add_u32 v{vA2}, v{vA1}, 2, v{vA2}")
        A(f"v_add_u32 v{vA1}, v{vA1}, v{vT2}")
        A(f"v_and_b32 v{vT1}, 7, v0"); A(f"v_lshlrev_b32 v{vT1}, 4, v{vT1}")
        A(f"v_mov_b32 v{vT2}, 0")
        if dry or not ticket:
            unit_id(sJ)
        else:
            A("s_barrier")
            A(f"ds_read_b32 v{vT2}, v{vT2} offset:{UN}")
            A("s_waitcnt lgkmcnt(0)")
            A(f"v_readfirstlane_b32 s{sU}, v{vT2}")
        stamp(2)
        A(f"s_mov_b32 s{SU+3}, 0x00020000")
        A(f"s_cmp_lt_u32 s{sU}, 136")
        A(f"s_cselect_b64 s[{SU}:{SU+1}], s[{sP1}:{sP1+1}], s[{sP3}:{sP3+1}]"); A(f"s_cselect_b32 s{sT1}, 64, 136")
        A(f"s_cmp_lt_u32 s{sU}, 64")
        A(f"s_cselect_b64 s[{SU}:{SU+1}], s[{sPQ}:{sPQ+1}], s[{SU}:{SU+1}]"); A(f"s_cselect_b32 s{sT1}, 0, s{sT1}")
        A(f"s_movk_i32 s{sRB}, 9216"); A(f"s_cselect_b32 s{sRB}, 8192, s{sRB}")
        A(f"s_mul_i32 s{SU+2}, s{sRB}, 576")
        A(f"s_cmp_lt_u32 s{sU}, 208"); A(f"s_cselect_b32 s{SU+2}, s{SU+2}, 0")
        if wide:
            A(f"s_sub_u32 s{sUO}, s{sU}, s{sT1}"); A(f"s_and_b32 s{sT1}, s{sUO}, 1"); A(f"s_lshr_b32 s{sUO}, s{sUO}, 1"); A(f"s_lshl_b32 s{sUO}, s{sUO}, 8")
            A(f"s_mul_i32 s{sT1}, s{sT1}, 288")
            A(f"s_lshl_b32 s{sT3}, s3, 2"); A(f"s_add_u32 s{sT3}, s{sT3}, s{sT1}"); A(f"v_add_u32 v{vA2}, s{sT3}, v{vT0}")
            A(f"v_bfe_u32 v{vT2}, v0, 3, 1"); A(f"v_mul_u32_u24 v{vT2}, 576, v{vT2}"); A(f"v_add_lshl_u32 v{vA2}, v{vA2}, v{vT2}, 2")
            A(f"s_mul_i32 s{sT1}, s{sT1}, s{sRB}"); A(f"s_add_u32 s{sUO}, s{sUO}, s{sT1}"); A(f"s_lshl_b32 s{sUS}, s{sRB}, 5")
            A(f"s_lshl_b32 s{sT1}, s3, 2"); A(f"v_add_u32 v{vA1}, s{sT1}, v{vT0}"); A(f"v_and_b32 v{vT1}, 15, v0"); A(f"v_lshlrev_b32 v{vT1}, 4, v{vT1}")
            A(f"v_mad_u32_u24 v{vA1}, v{vA1}, s{sRB}, v{vT1}")
        else:
            A(f"s_sub_u32 s{sUO}, s{sU}, s{sT1}"); A(f"s_lshl_b32 s{sUO}, s{sUO}, 7"); A(f"s_lshl_b32 s{sUS}, s{sRB}, 6")
            A(f"v_mad_u32_u24 v{vA1}, v{vA1}, s{sRB}, v{vT1}")

    def qk_block():
        A(f"v_bfe_u32 v{vT2}, v0, 1, 1"); A(f"v_lshlrev_b32 v{vT2}, 8, v{vT2}"); A(f"v_lshl_add_u32 v{vT2}, v{vT0}, 6, v{vT2}")
        A(f"v_bfe_u32 v{vT1}, v0, 2, 2"); A(f"v_lshl_add_u32 v{vT2}, v{vT1}, 4, v{vT2}")
        A(f"v_mov_b32 v{vT1}, 0")
        stamp(7)
        A("s_branch L_qwait1")
        A("L_qwait:")
        A("s_sleep 2")
        A("L_qwait1:")
        A(f"ds_read_b32 v{SR}, v{vT1} offset:{QF}")
        A(f"ds_read_b128 {r4(QB)}, v{vT2} offset:{QL}")
        A(f"s_add_u32 s{sSPIN}, s{sSPIN}, 1"); A(f"s_cmp_gt_u32 s{sSPIN}, {spin*16}")
        A("s_waitcnt lgkmcnt(0)")
        A(f"v_cmp_eq_u32 vcc, 0, v{SR}")
        if sx != "b1":
            A("s_cbranch_scc1 L_qgot")
            A("s_cbranch_vccnz L_qwait")
        A("L_qgot:")
        stamp(4)
        NSR = (NS + 3) // 4
        if NS % 4: A(f"v_mov_b32 v{SR+NSR-1}, 0xff800000")
        Ds = [A0, A1, D1, D2]
        def mf(t): A(f"v_mfma_f32_16x16x32_bf16 {r4(Ds[t%4])}, {r4(kreg(t))}, {r4(QB)}, 0")
        def ops(t):
            b = t & 3; S = SR + (t >> 2); D = Ds[t % 4]; bm = f"row_mask:0xf bank_mask:{1<<b:#x}"
            A(f"v_add_f32_dpp v{S}, v{D+((b+1)&3)}, v{D+b} row_ror:12 {bm}")
            A(f"v_add_f32_dpp v{S}, v{D+((b+2)&3)}, v{S} row_ror:8 {bm}")
            A(f"v_add_f32_dpp v{S}, v{D+((b+3)&3)}, v{S} row_ror:4 {bm}")
        for t in range(4): mf(t)
        A("s_nop 4")
        for t in range(NS):
            ops(t)
            if t + 4 < NS: mf(t + 4)
            elif t < NS - 1: A("s_nop 0")
        for p in range(0, NSR - 1, 2):
            a, b = SR + p, SR + p + 1
            A(f"v_cvt_pk_bf16_f32 v{b}, v{a}, v{b}"); A(f"v_lshlrev_b32 v{a}, 16, v{b}"); A(f"v_and_b32 v{b}, 0xffff0000, v{b}")
            A(f"v_mul_f32 v{a}, {SCALE:#x}, v{a}"); A(f"v_mul_f32 v{b}, {SCALE:#x}, v{b}")
            A(f"v_cvt_pk_bf16_f32 v{b}, v{a}, v{b}"); A(f"v_lshlrev_b32 v{a}, 16, v{b}"); A(f"v_and_b32 v{b}, 0xffff0000, v{b}")
        if NSR % 2:
            a = SR + NSR - 1
            bf16r(a, a); A(f"v_mul_f32 v{a}, {SCALE:#x}, v{a}"); bf16r(a, a)
        m = vM; l = vL
        A(f"v_max3_f32 v{m}, v{SR}, v{SR+1}, v{SR+2}")
        if NSR == 4: A(f"v_max_f32 v{m}, v{m}, v{SR+3}")
        allred_banks_rows(m, D1, "v_max_f32")
        A(f"v_mul_f32 v{vT2}, s{sLOG2E}, v{m}")
        for T in range(NSR):
            A(f"v_fma_f32 v{SR+T}, v{SR+T}, s{sLOG2E}, -v{vT2}")
        for T in range(NSR):
            A(f"v_exp_f32 v{SR+T}, v{SR+T}")
        A(f"s_lshl_b32 s{sT1}, s3, 3"); A(f"v_lshl_add_u32 v{vMW}, v0, 5, s{sT1}")
        A(f"v_add_f32 v{l}, v{SR}, v{SR+1}"); A(f"v_add_f32 v{l}, v{l}, v{SR+2}")
        if NSR == 4: A(f"v_add_f32 v{l}, v{l}, v{SR+3}")
        allred_banks_rows(l, D1, "v_add_f32")
        if not dyn: write_ml()
        for j in range(8): A(f"v_mov_b32 v{A0+j}, 0")
        A(f"v_and_b32 v{vHM}, 1, v0"); A(f"v_lshlrev_b32 v{vHM}, 4, v{vHM}"); A(f"v_mov_b32 v{D2+1}, 0xffff"); A(f"v_lshlrev_b32 v{vHM}, v{vHM}, v{D2+1}")
        for T in range(NSR):
            A(f"v_cvt_pk_bf16_f32 v{SR+T}, v{SR+T}, v{SR+T}")
        for T in range(NSR):
            A(f"v_and_b32 v{SR+T}, v{SR+T}, v{vHM}")
        A(f"v_and_b32 v{vOS}, 15, v0"); A(f"v_lshlrev_b32 v{vOS}, 5, v{vOS}"); A(f"v_lshl_add_u32 v{vOS}, v{vT0}, 3, v{vOS}")
        A(f"s_lshl_b32 s{sT1}, s3, 10"); A(f"v_add_u32 v{vOS}, s{sT1}, v{vOS}")
        A(f"v_mov_b32 v{vL2}, 0"); A(f"v_mov_b32 v{vONE}, 1"); A(f"v_mov_b32 v{vT2}, 0")
        tail_addr()
        stamp(5)

    def write_ml():
        A("s_mov_b64 exec, 5")
        A(f"ds_write_b64 v{vMW}, {r2(vM)} offset:{MW}")
        A("s_mov_b64 exec, -1")

    def after_b1():
        A(f"v_mov_b32 v{vT2}, 0"); A(f"ds_read_b32 v{vT2}, v{vT2} offset:{TG}")
        A("s_waitcnt lgkmcnt(0)")
        A(f"v_readfirstlane_b32 s{sEP}, v{vT2}")
        if dyn:
            A(f"s_mov_b32 s{sM4}, 0xf0f0f0f0"); A(f"s_mov_b32 s{sM4+1}, 0xf0f0f0f0")
        late_addr()

    def claim():
        A("s_mov_b64 exec, 1")
        A(f"ds_add_rtn_u32 v{vIDX}, v{vT2}, v{vONE} offset:{NXT}")
        A("s_mov_b64 exec, -1")

    def get_claim(tagname, endlabel):
        A("s_waitcnt lgkmcnt(0)")
        A(f"v_readfirstlane_b32 s{sCL}, v{vIDX}")
        A(f"s_lshr_b32 s{sT0}, s{sCL}, 3"); A(f"s_lshl_b32 s{sT0}, s{sT0}, 2"); A(f"v_mov_b32 v{vIDX}, s{sT0}")
        A(f"L_gc{tagname}:")
        A(f"ds_read_b32 v{D2+3}, v{vIDX} offset:{CLM}")
        A(f"s_add_u32 s{sSPIN}, s{sSPIN}, 1"); A(f"s_cmp_gt_u32 s{sSPIN}, {spin*16}"); A(f"s_cbranch_scc1 {endlabel}")
        A("s_waitcnt lgkmcnt(0)")
        A(f"v_readfirstlane_b32 s{sT0}, v{D2+3}")
        A(f"s_cmp_eq_u32 s{sT0}, -1"); A(f"s_cbranch_scc1 L_gc{tagname}")
        A(f"s_cmp_ge_u32 s{sT0}, {POOL}"); A(f"s_cbranch_scc1 {endlabel}")

    uid = [0]
    def sel3(sreg, emit):
        uid[0] += 1; u = uid[0]
        A(f"s_cmp_eq_u32 s{sreg}, 1"); A(f"s_cbranch_scc1 L_s{u}b"); A(f"s_cmp_eq_u32 s{sreg}, 2"); A(f"s_cbranch_scc1 L_s{u}c")
        emit(0); A(f"s_branch L_s{u}j")
        A(f"L_s{u}b:"); emit(1); A(f"s_branch L_s{u}j")
        A(f"L_s{u}c:"); emit(2)
        A(f"L_s{u}j:")

    def dyn_off():
        A(f"s_and_b32 s{sCL}, s{sCL}, 7"); A(f"s_lshl_b32 s{sT0}, s{sT0}, 3"); A(f"s_add_u32 s{sT0}, s{sT0}, s{sCL}"); A(f"s_lshl_b32 s{sT0}, s{sT0}, 10")

    def dyn_loads(p):
        A(f"buffer_load_dwordx4 {r4(DK[p])}, v{vK}, {srd(K)}, s{sT0} offen{pol}")
        A(f"buffer_load_dwordx4 {r4(DV[p])}, v{vV}, {srd(V)}, s{sT0} offen{pol}")

    def qk1():
        Xr, Y, Z = D2, D2 + 1, D2 + 2
        sel3(sPO, lambda p: A(f"v_mfma_f32_16x16x32_bf16 {r4(D1)}, {r4(DK[p])}, {r4(QB)}, 0"))
        A("s_nop 7")
        A(f"v_cndmask_b32 v{Xr}, v{D1}, v{D1+1}, s[{sM4}:{sM4+1}]"); A(f"v_cndmask_b32 v{Y}, v{D1+2}, v{D1+3}, s[{sM4}:{sM4+1}]")
        A(f"v_cndmask_b32 v{Xr}, v{Y}, v{Xr}, s[{sMASK}:{sMASK+1}]")
        for n in (4, 8):
            A("s_nop 1"); A(f"v_add_f32_dpp v{Xr}, v{Xr}, v{Xr} row_ror:{n} {DPPF}")
        bf16r(Xr, Xr); A(f"v_mul_f32 v{Xr}, {SCALE:#x}, v{Xr}"); bf16r(Xr, Xr)
        A(f"v_mov_b32 v{Y}, v{Xr}"); A(f"v_mov_b32 v{Z}, v{Xr}"); A("s_nop 1"); A(f"v_permlane16_swap_b32 v{Y}, v{Z}"); A("s_nop 1")
        A(f"v_max_f32 v{Y}, v{Y}, v{Z}"); A(f"v_mov_b32 v{Z}, v{Y}"); A("s_nop 1"); A(f"v_permlane32_swap_b32 v{Y}, v{Z}"); A("s_nop 1")
        A(f"v_max3_f32 v{Y}, v{Y}, v{Z}, v{vM}")
        A(f"v_sub_f32 v{Z}, v{vM}, v{Y}"); A(f"v_sub_f32 v{Xr}, v{Xr}, v{Y}")
        A(f"v_mul_f32 v{Z}, s{sLOG2E}, v{Z}"); A(f"v_mul_f32 v{Xr}, s{sLOG2E}, v{Xr}")
        A(f"v_exp_f32 v{Z}, v{Z}"); A(f"v_exp_f32 v{Xr}, v{Xr}")
        A(f"v_mov_b32 v{vM}, v{Y}")
        A(f"v_mul_f32 v{vL}, v{vL}, v{Z}"); A(f"v_fma_f32 v{vL2}, v{vL2}, v{Z}, v{Xr}")
        A(f"v_cvt_pk_bf16_f32 v{Xr}, v{Xr}, v{Xr}")
        for v in range(4):
            q = 0 if v < 2 else 2
            A(f"v_mul_f32_dpp v{ACC+v}, v{Z}, v{ACC+v} quad_perm:[{q},{q},{q},{q}] {DPPF}")
        A(f"v_and_b32 v{Xr}, v{Xr}, v{vHM}")
        A("s_nop 1")
        for j in range(4):
            A(f"v_mov_b32_dpp v{A0+j}, v{D2} quad_perm:[0,1,2,3] row_mask:0xf bank_mask:{1<<j:#x}")

    def pv1():
        sel3(sPO, lambda p: A(f"v_mfma_f32_16x16x32_bf16 {r4(ACC)}, {r4(A0)}, {r4(DV[p])}, {r4(ACC)}"))

    def fin_ml():
        Y = D2 + 1
        for sw in ("v_permlane16_swap_b32", "v_permlane32_swap_b32"):
            A(f"v_mov_b32 v{Y}, v{vL2}"); A("s_nop 1"); A(f"{sw} v{vL2}, v{Y}"); A("s_nop 1"); A(f"v_add_f32 v{vL2}, v{vL2}, v{Y}")
        A(f"v_add_f32 v{vL}, v{vL}, v{vL2}")
        write_ml()

    def pv(t):
        b = t & 3; P = SR + (t >> 2); a = A0 if t % 2 == 0 else A1
        for j in range(4):
            n = (4 * (j - b)) % 16
            ctl = "quad_perm:[0,1,2,3]" if n == 0 else f"row_ror:{n}"
            A(f"v_mov_b32_dpp v{a+j}, v{P} {ctl} row_mask:0xf bank_mask:{1<<j:#x}")
        A("s_nop 1")
        A(f"v_mfma_f32_16x16x32_bf16 {r4(ACC)}, {r4(a)}, {r4(vreg(t))}, {'0' if t == 0 else r4(ACC)}")

    state = {"qk": False, "pv": 0}

    def on_landed(nm):
        if dry:
            if nm == "U8": stamp(3); late_addr()
            return
        if nm[0] == "U":
            k = int(nm[1])
            if wide:
                if k == 0:
                    A("s_barrier")
                    for i in range(8): A(f"ds_read_b32 v{XA+i}, v{vA2} offset:{XN+128*i}")
                A(f"s_waitcnt lgkmcnt({min(k+8, 9) - k - 1})")
                gemv_mfma(XA + k % 8, S1D + 4 * k, D1, k == 0)
                if k == 0: A(f"ds_read_b32 v{XA}, v{vA2} offset:{XN+128*8}")
                if k == 8:
                    A(f"s_lshl_b32 s{sT1}, s3, 10"); A(f"v_lshl_add_u32 v{vT1}, v0, 4, s{sT1}")
                    A("s_nop 5")
                    A(f"ds_write_b128 v{vT1}, {r4(D1)} offset:{S1}")
                    A("s_waitcnt lgkmcnt(0)"); A("s_barrier")
                    stamp(3)
                    after_b1()
                return
            if k == 0:
                A("s_barrier")
                for i in range(4): A(f"ds_read_b64 {r2(XA+2*i)}, v{vA2} offset:{XN+256*i}")
            A(f"s_waitcnt lgkmcnt({min(k+4, 9) - k - 1})")
            x = XA + 2 * (k % 4)
            gemv_mfma(x, S1D + 4 * k, D1, k == 0)
            gemv_mfma(x + 1, S1D + 4 * k, D2, k == 0)
            if k + 4 < 9: A(f"ds_read_b64 {r2(x)}, v{vA2} offset:{XN+256*(k+4)}")
            if k == 8:
                A(f"v_and_b32 v{vT1}, 7, v0"); A(f"v_lshl_add_u32 v{vT1}, v{vT0}, 3, v{vT1}"); A(f"s_lshl_b32 s{sT1}, s3, 9")
                A(f"v_lshl_add_u32 v{vT1}, v{vT1}, 4, s{sT1}")
                A("s_nop 3")
                for v in range(4): A(f"v_add_f32_dpp v{D1+v}, v{D2+v}, v{D1+v} row_ror:8 {DPPF}")
                A(f"s_mov_b64 exec, s[{sMASK}:{sMASK+1}]")
                A(f"ds_write_b128 v{vT1}, {r4(D1)} offset:{S1}")
                A("s_mov_b64 exec, -1")
                A("s_waitcnt lgkmcnt(0)"); A("s_barrier")
                stamp(3)
                after_b1()
        elif nm[0] in "VW" and state["qk"]:
            t = max(int(n[1:]) for n in names[:names.index(nm)+1] if n[0] == "V")
            while state["pv"] <= t:
                pv(state["pv"]); state["pv"] += 1

    N = len(loads)
    landed = -1
    ib2 = names.index(f"V{b2}")
    lastK = max(i for i, n in enumerate(names) if n[0] == "K")
    assert names.index("U8") + depth < names.index("V7")
    assert b2 <= NS - 1
    for i, (nm, code) in enumerate(loads):
        if nm == "U0": rest_of_prologue()
        for c in code: A(c)
        if dyn and not dry and nm == f"V{NS-1-clead}" and i > ib2:
            claim()
        if i >= depth:
            if i - depth > landed:
                A(f"s_waitcnt vmcnt({depth})")
                landed = i - depth
            on_landed(names[landed])
        if i == ib2:
            if landed < lastK:
                landed = lastK; A(f"s_waitcnt vmcnt({i - landed})")
            if dry: stamp(7)
            else:
                qk_block()
                if dyn:
                    if names.index(f"V{NS-1-clead}") <= ib2: claim()
            state["qk"] = True
    iVl = names.index(f"V{NS-1}")
    def drain(extra, upto=None, frm=None):
        ld = landed if frm is None else frm
        while ld < (iVl if upto is None else upto):
            ld += 1
            if names[ld][0] == "V":
                A(f"s_waitcnt vmcnt({N-1-ld+extra})")
                on_landed(names[ld])
    if not dyn or dry:
        drain(0)
    else:
        LL = [c for _, code in late_loads() for c in code]
        A(f"s_mul_i32 s{sT0}, s{sS}, {NS*8192}"); A(f"s_lshl_b32 s{sT1}, s3, 10"); A(f"s_add_u32 s{sT0}, s{sT0}, s{sT1}")
        A(f"s_sub_u32 s{sT0}, {NS*65536}, s{sT0}")
        A(f"v_add_u32 v{vK}, s{sT0}, v{vK}"); A(f"v_add_u32 v{vV}, s{sT0}, v{vV}")
        A(f"s_mov_b32 s{sPO}, 0"); A(f"s_mov_b32 s{sPI}, 2"); A(f"s_mov_b32 s{sNP}, 2"); A(f"s_mov_b32 s{sWC}, 0")
        stamp(13)
        pv0 = state["pv"]
        get_claim("0", "L_end0")
        dyn_off(); claim(); dyn_loads(0)
        drain(2, upto=iVl - 2)
        get_claim("1", "L_e1")
        dyn_off(); claim(); dyn_loads(1)
        A("s_branch L_e1j")
        A("L_e1:")
        A(LL[0]); A(LL[1]); A(f"s_mov_b32 s{sNP}, 1"); A(f"s_mov_b32 s{sWC}, 1")
        A("L_e1j:")
        drain(4, frm=max(landed, iVl - 2))
        A("L_loop:")
        A(f"s_cmp_lg_u32 s{sWC}, 0"); A("s_cbranch_scc1 L_w")
        get_claim("L", "L_w")
        dyn_off(); claim()
        sel3(sPI, dyn_loads)
        A(f"s_add_u32 s{sPI}, s{sPI}, 1"); A(f"s_cmp_eq_u32 s{sPI}, 3"); A(f"s_cselect_b32 s{sPI}, 0, s{sPI}")
        A("s_branch L_proc")
        A("L_w:")
        A(f"s_sub_u32 s{sNP}, s{sNP}, 1")
        A(f"s_cmp_lg_u32 s{sWC}, 0"); A("s_cbranch_scc1 L_w2")
        A(LL[0]); A(LL[1]); A(f"s_mov_b32 s{sWC}, 1"); A("s_branch L_proc")
        A("L_w2:")
        A(LL[2]); A(LL[3])
        A("L_proc:")
        A("s_waitcnt vmcnt(5)")
        qk1()
        A(f"s_cmp_lg_u32 s{sNP}, 0"); A("s_cbranch_scc1 L_nofin")
        fin_ml()
        A("L_nofin:")
        A("s_waitcnt vmcnt(4)")
        pv1()
        A(f"s_add_u32 s{sPO}, s{sPO}, 1"); A(f"s_cmp_eq_u32 s{sPO}, 3"); A(f"s_cselect_b32 s{sPO}, 0, s{sPO}")
        A(f"s_cmp_lg_u32 s{sNP}, 0"); A("s_cbranch_scc1 L_loop")
        A(LL[4])
        A("s_branch L_vdone")
        A("L_end0:")
        for c in LL: A(c)
        write_ml()
        state["pv"] = pv0
        drain(5)
        A("L_vdone:")
    stamp(6)
    if dry or sx in ("b1", "gather", "svcw", "ml"):
        A("s_waitcnt vmcnt(0)"); stamp(8); A("s_branch L_fin")
    A("s_nop 7")
    A(f"ds_write2st64_b64 v{vOS}, {r2(ACC)}, {r2(ACC+2)} offset0:{OS//512} offset1:{OS//512+1}")
    A("s_waitcnt lgkmcnt(0)")
    A("s_barrier")
    stamp(12)
    if latepos == "end": A("s_waitcnt vmcnt(2)")
    w2_mfmas()
    A("s_waitcnt vmcnt(0)")
    stamp(8)
    if sx == "pub": A("s_branch L_fin")
    A("s_barrier")
    A(f"ds_read_b128 {r4(PL)}, v{vT1} offset:{ZL}")
    A("s_waitcnt lgkmcnt(0)")
    A("s_branch L_tail")

    svc0 = len(L)
    A("L_service:")
    if dry: A("s_endpgm")
    if prio: A(f"s_setprio {prio}")
    XS = SV + 8
    PA = 60
    srd_const(X); srd_const(WS)
    A(f"v_lshrrev_b32 v{vA1}, 5, v0"); A(f"v_mul_u32_u24 v{vA2}, 1152, v{vA1}")
    A(f"v_and_b32 v{vT2}, 31, v0"); A(f"v_mad_u32_u24 v{vA2}, v{vT2}, 36, v{vA2}")
    A(f"s_mov_b32 s{sU}, 1"); A(f"s_lshl_b32 s{sT3}, s{sHKV}, 4")
    A("s_waitcnt lgkmcnt(0)")
    stamp(1)
    if ticket:
        A(f"s_atomic_add s{sU}, s[{KA+20}:{KA+21}], s{sT3} glc")
    srd_ptr(X)
    A(f"buffer_load_dwordx4 {r4(XS)}, v{vA2}, {srd(X)}, 0 offen")
    A(f"buffer_load_dwordx4 {r4(XS+4)}, v{vA2}, {srd(X)}, 0 offen offset:16")
    A(f"buffer_load_dword v{XS+8}, v{vA2}, {srd(X)}, 0 offen offset:32")
    srd_ptr(WS)
    if not ticket: A(f"s_load_dword s{sEP}, s[{WS}:{WS+1}], {EP}")
    A(f"v_lshlrev_b32 v{vK}, 4, v0")
    A(f"s_mul_i32 s{sT0}, s2, {REC}"); A(f"v_add_u32 v{vV}, s{sT0}, v{vK}")
    A(f"v_mov_b32 v{SV+4}, 0"); A(f"v_lshlrev_b32 v{SV+5}, 2, v0")
    A(f"ds_write_b32 v{SV+4}, v{SV+4} offset:{QF}")
    A(f"v_mov_b32 v{SV+6}, -1"); A(f"v_and_b32 v{SV+5}, 124, v{SV+5}"); A(f"ds_write_b32 v{SV+5}, v{SV+6} offset:{MW}")
    if dyn:
        A(f"ds_write_b32 v{SV+5}, v{SV+6} offset:{CLM}"); A(f"ds_write_b32 v{SV+4}, v{SV+4} offset:{NXT}")
    for d in (WO, W2, OUT): srd_const(d); srd_ptr(d)
    if ticket:
        A("s_waitcnt lgkmcnt(0)")
        A(f"s_and_b32 s{sU}, s{sU}, 15")
        unit_id(sU)
        A(f"v_mov_b32 v{SV+5}, s{sU}")
        A(f"ds_write_b32 v{SV+4}, v{SV+5} offset:{UN}")
        A("s_waitcnt lgkmcnt(0)")
        A("s_barrier")
        A(f"s_load_dword s{sEP}, s[{WS}:{WS+1}], {EP}")
    else:
        unit_id(sJ)
    stamp(7)
    ffn_ids()
    A(f"s_mov_b32 s{sLOG2E}, {LOG2E:#x}"); A(f"s_mov_b32 s{sSPIN}, 0"); A(f"s_movk_i32 s{sTM}, {TMASK:#x}")
    A(f"s_mov_b32 s{sMASK}, 0x00ff00ff"); A(f"s_mov_b32 s{sMASK+1}, 0x00ff00ff")
    masks(SV + 5)
    A(f"v_lshlrev_b32 v{vA2}, 1, v{vA2}")
    U = 12
    A("s_waitcnt vmcnt(0)")
    stamp(12)
    for i in range(9):
        A(f"v_lshlrev_b32 v{U+2*i}, 16, v{XS+i}"); A(f"v_and_b32 v{U+2*i+1}, 0xffff0000, v{XS+i}")
    s = XS
    A(f"v_add_f32 v{s}, v{U}, v{U+1}"); A(f"v_add_f32 v{s+1}, v{U+2}, v{U+3}")
    for i in range(4, 18, 2):
        A(f"v_add_f32 v{s}, v{s}, v{U+i}"); A(f"v_add_f32 v{s+1}, v{s+1}, v{U+i+1}")
    A(f"v_add_f32 v{s}, v{s}, v{s+1}")
    allred32(s, s + 1)
    A(f"v_mul_f32 v{s}, {0x3AE38E39:#x}, v{s}")
    W = 40
    for i in range(18):
        A(f"v_sub_f32 v{W+i}, v{U+i}, v{s}")
    A(f"v_mul_f32 v{s+2}, v{W}, v{W}"); A(f"v_mul_f32 v{s+3}, v{W+1}, v{W+1}")
    for i in range(2, 18, 2):
        A(f"v_fmac_f32 v{s+2}, v{W+i}, v{W+i}"); A(f"v_fmac_f32 v{s+3}, v{W+i+1}, v{W+i+1}")
    A(f"v_add_f32 v{s+2}, v{s+2}, v{s+3}")
    allred32(s + 2, s + 3)
    A(f"v_mul_f32 v{s+2}, {0x3AE38E39:#x}, v{s+2}")
    bf16r(s + 2, s + 2)
    A(f"v_add_f32 v{s+2}, {0x3727C5AC:#x}, v{s+2}")
    bf16r(s + 2, s + 2)
    A(f"v_sqrt_f32 v{s+2}, v{s+2}")
    bf16r(s, s)
    bf16r(s + 2, s + 2)
    A(f"v_rcp_f32 v{s+2}, v{s+2}")
    for i in range(18):
        A(f"v_sub_f32 v{U+i}, v{U+i}, v{s}")
    for i in range(0, 18, 2):
        A(f"v_cvt_pk_bf16_f32 v{U+i+1}, v{U+i}, v{U+i+1}"); A(f"v_lshlrev_b32 v{U+i}, 16, v{U+i+1}"); A(f"v_and_b32 v{U+i+1}, 0xffff0000, v{U+i+1}")
        A(f"v_mul_f32 v{U+i}, v{U+i}, v{s+2}"); A(f"v_mul_f32 v{U+i+1}, v{U+i+1}, v{s+2}")
        A(f"v_cvt_pk_bf16_f32 v{U+i}, v{U+i}, v{U+i}"); A(f"v_cvt_pk_bf16_f32 v{U+i+1}, v{U+i+1}, v{U+i+1}")
        A(f"ds_write_b64 v{vA2}, {r2(U+i)} offset:{XN+4*i}")
    A("s_waitcnt lgkmcnt(0)")
    A("s_barrier")
    stamp(2)
    A(f"s_add_u32 s{sEP}, s{sEP}, 1"); A(f"s_and_b32 s{sT0}, s{sEP}, s{sTM}"); A(f"s_and_b32 s{sT16}, s{sEP}, 0xffff")
    A(f"v_mov_b32 v{vTAG}, s{sEP}")
    A(f"ds_write_b32 v{SV+4}, v{vTAG} offset:{TG}")
    A(f"v_mov_b32 v{vTAG}, s{sT0}")
    if dyn:
        A(f"s_lshl_b32 s{sT0}, s{sEP}, 10"); A(f"v_mov_b32 v{SV+5}, s{sT0}"); A(f"v_lshlrev_b32 v{SV+6}, 2, v0")
        A(f"s_lshr_b32 s{sT0}, s2, 3"); A(f"s_lshl_b32 s{sT0}, s{sT0}, 7"); A(f"s_add_u32 s{sT0}, s{sT0}, {CNT}")
        A(f"s_cmp_eq_u32 s{sS}, 0"); A(f"s_cselect_b32 s{sT0}, s{sT0}, {HUGE}")
        A("s_mov_b64 exec, 1")
        A(f"buffer_store_dword v{SV+5}, v{SV+6}, {srd(WS)}, s{sT0} offen sc1")
        A("s_mov_b64 exec, -1")
    TQ, TG0 = 62, 63
    T = SV + 8
    GT = 40
    A(f"v_and_b32 v{SV+1}, 7, v0"); A(f"v_bfe_u32 v{SV}, v0, 3, 1")
    if wide:
        A(f"v_mul_u32_u24 v{PA}, {P1B}, v{vA1}"); A(f"v_and_b32 v{SV+2}, 15, v0"); A(f"v_lshl_add_u32 v{PA}, v{SV+2}, 5, v{PA}")
        A(f"v_and_b32 v{SV+2}, 1, v{vT0}"); A(f"v_lshl_add_u32 v{PA}, v{SV+2}, 4, v{PA}")
        A(f"s_lshr_b32 s{sC1}, s{sU}, 1"); A(f"s_lshl_b32 s{sC1}, s{sC1}, 9"); A(f"s_and_b32 s{sT1}, s{sU}, 1"); A(f"s_mul_i32 s{sT1}, s{sT1}, {2*P1B}")
        A(f"s_add_u32 s{sC1}, s{sC1}, s{sT1}"); A(f"s_add_u32 s{sC1}, s{sC1}, {P1}")
    else:
        A(f"v_bfe_u32 v{PA}, v0, 4, 1"); A(f"v_mul_u32_u24 v{PA}, {P1B}, v{PA}")
        A(f"v_lshl_add_u32 v{PA}, v{SV+1}, 5, v{PA}")
        A(f"v_lshl_add_u32 v{PA}, v{SV}, 4, v{PA}")
        A(f"s_lshl_b32 s{sC1}, s{sU}, 8"); A(f"s_add_u32 s{sC1}, s{sC1}, {P1}")
    A(f"s_cmp_lt_u32 s{sU}, 208"); A(f"s_cselect_b32 s{sC1}, s{sC1}, {HUGE}")
    A(f"s_mul_i32 s{sT2}, s{sB}, {P1B}"); A(f"s_lshl_b32 s{sT3}, s{sHKV}, 10"); A(f"s_add_u32 s{sT2}, s{sT2}, s{sT3}"); A(f"s_add_u32 s{sT2}, s{sT2}, {P1}")
    A(f"s_add_u32 s{sC2}, s{sT2}, {2*P1B}")
    A(f"v_mul_u32_u24 v{vA2}, {P1B}, v{SV}"); A(f"v_mul_u32_u24 v{vA1}, 18432, v{vA1}"); A(f"v_add_u32 v{vA2}, v{vA2}, v{vA1}")
    A(f"v_lshl_add_u32 v{vA2}, v{SV+1}, 4, v{vA2}")
    if wide:
        A(f"v_mul_u32_u24 v{SV+2}, {2*P1B}, v{SV+2}"); A(f"v_add_u32 v{vA2}, v{vA2}, v{SV+2}")
        A(f"v_mov_b32 v{SV+2}, v{SV+1}"); A(f"v_mov_b32 v{TQ}, v{vTAG}"); A(f"s_mov_b32 s{sT1}, s{sTM}")
    else:
        A(f"v_and_b32 v{SV+2}, 23, v0"); A(f"v_mov_b32 v{TQ}, s{sT16}"); A(f"s_mov_b32 s{sT1}, 0xffff")
    A(f"v_mov_b32 v{SV+3}, {HUGE}")
    A(f"v_cmp_gt_u32 vcc, 5, v{SV+2}"); A("s_nop 1")
    A(f"v_cndmask_b32 v{vA2}, v{SV+3}, v{vA2}, vcc"); A(f"v_cndmask_b32 v{TG0}, 0, v{TQ}, vcc")
    A(f"s_mul_i32 s{sT3}, s2, 18"); A(f"s_and_b32 s{sC3}, s{sT3}, 2"); A(f"s_andn2_b32 s{sT3}, s{sT3}, 3")
    A(f"s_lshl_b32 s{sT3}, s{sT3}, 2"); A(f"s_add_u32 s{sT3}, s{sT3}, {P1 + 16384}")
    A("s_barrier")
    for w in range(8):
        A(f"ds_read_b128 {r4(T+4*w)}, v{vK} offset:{S1 + w*(1024 if wide else 512)}")
    for w in range(1, 8):
        A(f"s_waitcnt lgkmcnt({7-w})")
        for v in range(4):
            A(f"v_add_f32 v{ACC+v}, v{T+v if w == 1 else ACC+v}, v{T+4*w+v}")
    if wide:
        for v in range(4): A(f"v_add_u32 v{ACC+v}, {(TMASK+1)//2}, v{ACC+v}")
    else:
        for v in range(4): A(f"v_cvt_pk_bf16_f32 v{ACC+v}, v{ACC+v}, v{ACC+v}")
    for v in range(4): A(f"v_bfi_b32 v{ACC+v}, s{sT1}, v{TQ}, v{ACC+v}")
    if not wide: A("s_mov_b64 exec, 0xffffffff")
    A(f"buffer_store_dwordx4 {r4(ACC)}, v{PA}, {srd(WS)}, s{sC1} offen sc1")
    A("s_mov_b64 exec, -1")
    stamp(3)
    if sx == "b1": A("s_endpgm")
    A("s_branch L_gather1")
    A("L_gather:")
    if gsleep: A(f"s_sleep {gsleep}")
    A("L_gather1:")
    nq = 8 if wide else 4
    A(f"buffer_load_dwordx4 {r4(T)}, v{vK}, {srd(WS)}, s{sT2} offen sc1")
    if wide: A(f"buffer_load_dwordx4 {r4(T+4)}, v{vK}, {srd(WS)}, s{sC2} offen sc1")
    A(f"buffer_load_dwordx4 {r4(GT)}, v{vA2}, {srd(WS)}, s{sT3} offen sc1")
    A(f"s_add_u32 s{sSPIN}, s{sSPIN}, 1"); A(f"s_cmp_gt_u32 s{sSPIN}, {spin}")
    A("s_waitcnt vmcnt(0)")
    untag_check([T + i for i in range(nq)] + [GT + i for i in range(4)], [TQ] * nq + [TG0] * 4, SV, f"s{sT1}")
    A("s_cbranch_scc1 L_gotg")
    A("s_cbranch_vccnz L_gather")
    A("L_gotg:")
    if wide:
        for v in range(4): A(f"v_add_f32 v{T+v}, v{T+v}, v{T+4+v}")
        A(f"v_cvt_pk_bf16_f32 v{T}, v{T}, v{T+1}"); A(f"v_cvt_pk_bf16_f32 v{T+1}, v{T+2}, v{T+3}")
    else:
        A(f"v_lshrrev_b32 v{T}, 16, v{T}"); A(f"v_lshrrev_b32 v{T+2}, 16, v{T+2}")
        A(f"v_or_b32 v{T}, v{T}, v{T+1}"); A(f"v_or_b32 v{T+1}, v{T+2}, v{T+3}")
    A(f"v_lshlrev_b32 v{vA1}, 3, v0")
    A(f"ds_write_b64 v{vA1}, {r2(T)} offset:{QL}")
    if wide:
        for v in range(4): A(f"v_mov_b32 v{GT+4+v}, v{GT+v}")
        A("s_nop 1")
        for v in range(4): A(f"v_permlane16_swap_b32 v{GT+v}, v{GT+4+v}")
        A("s_nop 1")
        for v in range(4): A(f"v_add_f32 v{GT+v}, v{GT+v}, v{GT+4+v}")
        for v in range(4): bf16r(GT + v, GT + v)
    for v in range(4): A(f"v_mov_b32 v{GT+4+v}, v{GT+v}")
    A("s_nop 1")
    for v in range(4): A(f"v_permlane32_swap_b32 v{GT+v}, v{GT+4+v}")
    A("s_nop 1")
    for v in range(4): A(f"v_mul_f32 v{GT+8+v}, s{sLOG2E}, v{GT+v}")
    for v in range(4): A(f"v_exp_f32 v{GT+8+v}, -v{GT+8+v}")
    for v in range(4): A(f"v_add_f32 v{GT+8+v}, 1.0, v{GT+8+v}")
    for v in range(4): A(f"v_rcp_f32 v{GT+8+v}, v{GT+8+v}")
    for v in range(4): A(f"v_mul_f32 v{GT+v}, v{GT+v}, v{GT+8+v}")
    for v in range(4): bf16r(GT + v, GT + v)
    for v in range(4): A(f"v_mul_f32 v{GT+v}, v{GT+v}, v{GT+4+v}")
    for v in range(4): A(f"v_cvt_pk_bf16_f32 v{GT+v}, v{GT+v}, v{GT+v}")
    A(f"v_bfe_u32 v{vA1}, v0, 3, 1"); A(f"v_mul_u32_u24 v{vA1}, 160, v{vA1}"); A(f"v_lshl_add_u32 v{vA1}, v{SV+1}, 4, v{vA1}")
    A(f"s_lshl_b32 s{sC3}, s{sC3}, 2"); A(f"v_subrev_u32 v{vA1}, s{sC3}, v{vA1}"); A(f"v_add_u32 v{vA1}, {HD+8}, v{vA1}")
    A("s_mov_b64 exec, 0xffff")
    A(f"ds_write_b64 v{vA1}, {r2(GT)}"); A(f"ds_write_b64 v{vA1}, {r2(GT+2)} offset:8")
    A("s_mov_b64 exec, -1")
    A(f"v_mov_b32 v{SV+2}, 0"); A(f"v_mov_b32 v{SV+3}, 1")
    A("s_waitcnt lgkmcnt(0)")
    A(f"ds_write_b32 v{SV+2}, v{SV+3} offset:{QF}")
    stamp(5)
    if sx == "gather": A("s_endpgm")
    late_addr()
    for nm, code in late_loads():
        for c in code: A(c)
    A(f"s_lshl_b32 s{sT0}, s{sSL}, 6"); A(f"v_lshlrev_b32 v{SV+20}, 2, v0"); A(f"v_add_u32 v{SV+20}, s{sT0}, v{SV+20}")
    A(f"buffer_load_dword v{SV+21}, v{SV+20}, {srd(X)}, 0 offen")
    if sx == "svcw": A("s_endpgm")
    tail_addr()
    A(f"v_and_b32 v{vA1}, 15, v0"); A(f"s_lshl_b32 s{sT1}, s{sHKV}, 4"); A(f"v_add_u32 v{vA1}, s{sT1}, v{vA1}")
    A(f"v_mul_u32_u24 v{vA1}, {REC}, v{vA1}")
    A(f"s_mul_i32 s{sT2}, s{sJ}, {64 if earlyml else 80}"); A(f"v_lshl_add_u32 v{vA2}, v{vT0}, 4, v{vA1}")
    A(f"s_cmp_eq_u32 s{sB}, 1"); A(f"s_cselect_b64 s[{sSEL}:{sSEL+1}], -1, 0")
    if not earlyml:
        A(f"s_mul_i32 s{sT0}, s2, {REC}")
        A(f"v_lshrrev_b32 v{vV}, 2, v0"); A(f"v_mul_u32_u24 v{vV}, 80, v{vV}"); A(f"v_and_b32 v{SV+1}, 3, v0"); A(f"v_lshl_add_u32 v{vV}, v{SV+1}, 4, v{vV}")
        A(f"v_add_u32 v{vV}, s{sT0}, v{vV}")
        A(f"v_mul_u32_u24 v{SV+1}, 80, v0"); A(f"v_add_u32 v{SV+1}, s{sT0}, v{SV+1}")
    A("s_mov_b32 s0, 0x01010101"); A("s_mov_b32 s1, 0x01010101")
    FW = 80
    steps = ("quad_perm:[1,0,3,2]", "quad_perm:[2,3,0,1]", "row_half_mirror")
    A(f"v_and_b32 v{SV+2}, 15, v0"); A(f"v_lshlrev_b32 v{SV+3}, 2, v{SV+2}"); A(f"v_lshlrev_b32 v{SV+2}, 3, v{SV+2}")
    A(f"v_lshrrev_b32 v{SV}, 5, v0"); A(f"v_lshlrev_b32 v{SV}, 5, v{SV}")
    if dyn:
        sJN, sTH = 46, 47
        A(f"s_lshr_b32 s{sT1}, s2, 3"); A(f"s_lshl_b32 s{sT0}, s{sT1}, 7"); A(f"s_add_u32 s{sT0}, s{sT0}, {CNT}")
        A(f"s_add_u32 s{sCB}, s{WS}, s{sT0}"); A(f"s_addc_u32 s{sCB+1}, s{WS+1}, 0")
        A(f"s_mul_i32 s{sKO}, s{sT1}, 0x9E3779B1"); A(f"s_mul_hi_u32 s{sKO}, s{sKO}, {POOL}")
        A(f"s_lshl_b32 s{sUO}, s{sEP}, 10")
        A(f"s_mov_b32 s{sJN}, 0"); A(f"s_mov_b32 s{sTH}, 0")
        A(f"v_mov_b32 v{SV+8}, 0"); A(f"v_lshlrev_b32 v{SV+10}, 2, v0"); A(f"v_and_b32 v{SV+10}, 124, v{SV+10}")
    A("L_mlwait:")
    A(f"s_sleep {mlsleep}")
    A("L_mlw1:")
    A(f"ds_read_b64 {r2(SV+6)}, v{SV+2} offset:{MW}")
    if dyn: A(f"ds_read_b32 v{SV+9}, v{SV+8} offset:{NXT}")
    A(f"s_add_u32 s{sSPIN}, s{sSPIN}, 1"); A(f"s_cmp_gt_u32 s{sSPIN}, {spin*16}")
    A("s_waitcnt lgkmcnt(0)")
    A(f"v_cmp_eq_u32 vcc, -1, v{SV+7}")
    A(f"v_max_f32_dpp v{SV+4}, v{SV+6}, v{SV+6} {steps[0]} {DPPF}")
    A("s_cbranch_scc1 L_mlgot")
    if dyn:
        A("s_cbranch_vccz L_mlgot")
        A(f"v_readfirstlane_b32 s{sT0}, v{SV+9}")
        A(f"s_cmp_gt_u32 s{sT0}, s{sTH}"); A("s_cbranch_scc0 L_mlwait")
        A("L_clm:")
        A(f"s_mov_b32 s{sCL}, 1"); A(f"s_atomic_add s{sCL}, s[{sCB}:{sCB+1}], 0 glc")
        A(f"s_add_u32 s{sSPIN}, s{sSPIN}, 1"); A(f"s_cmp_gt_u32 s{sSPIN}, {spin*16}"); A("s_cbranch_scc1 L_mlgot")
        A("s_waitcnt lgkmcnt(0)")
        A(f"s_xor_b32 s{sT0}, s{sCL}, s{sUO}"); A(f"s_cmp_lt_u32 s{sT0}, 1024"); A("s_cbranch_scc0 L_clm")
        A(f"s_cmp_ge_u32 s{sT0}, {POOL}"); A("s_cbranch_scc1 L_clend")
        A(f"s_add_u32 s{sT0}, s{sT0}, s{sKO}"); A(f"s_sub_u32 s{sT1}, s{sT0}, {POOL}"); A(f"s_cselect_b32 s{sT0}, s{sT0}, s{sT1}")
        A(f"v_mov_b32 v{SV+9}, s{sT0}"); A(f"v_mov_b32 v{SV+11}, s{sJN}")
        A(f"ds_write_b32 v{SV+11}, v{SV+9} offset:{CLM}")
        A(f"s_add_u32 s{sJN}, s{sJN}, 4"); A(f"s_lshl_b32 s{sTH}, s{sJN}, 1"); A(f"s_sub_u32 s{sTH}, s{sTH}, {look}")
        A(f"s_cmp_lt_u32 s{sJN}, 112"); A("s_cbranch_scc1 L_mlw1")
        A("L_clend:")
        A(f"v_cmp_le_u32 vcc, s{sJN}, v{SV+10}"); A(f"v_mov_b32 v{SV+9}, 255"); A(f"s_mov_b32 s{sTH}, -1")
        A(f"s_and_saveexec_b64 s[{sOK}:{sOK+1}], vcc")
        A(f"ds_write_b32 v{SV+10}, v{SV+9} offset:{CLM}")
        A("s_mov_b64 exec, -1")
        A("s_branch L_mlw1")
    else:
        A("s_cbranch_vccnz L_mlwait")
    A("L_mlgot:")
    A("s_nop 0")
    A(f"v_max_f32_dpp v{SV+4}, v{SV+4}, v{SV+4} {steps[1]} {DPPF}"); A("s_nop 1")
    A(f"v_max_f32_dpp v{SV+4}, v{SV+4}, v{SV+4} {steps[2]} {DPPF}")
    A(f"v_sub_f32 v{SV+6}, v{SV+6}, v{SV+4}"); A(f"v_mul_f32 v{SV+6}, s{sLOG2E}, v{SV+6}"); A(f"v_exp_f32 v{SV+6}, v{SV+6}"); A("s_nop 0")
    A(f"ds_write_b32 v{SV+3}, v{SV+6} offset:{FWL}")
    A(f"v_mul_f32 v{SV+5}, v{SV+7}, v{SV+6}")
    A(f"ds_read_b128 {r4(FW)}, v{SV} offset:{FWL}"); A(f"ds_read_b128 {r4(FW+4)}, v{SV} offset:{FWL+16}")
    for s_ in steps:
        A(f"v_add_f32_dpp v{SV+5}, v{SV+5}, v{SV+5} {s_} {DPPF}"); A("s_nop 1")
    tag4(SV + 4)
    stamp(4)
    m, l = PL + 4, PL + 5
    M = TT + 1
    stamp(8)
    if sx == "ml": A("s_endpgm")
    A("s_barrier")
    OT = 128
    for w in range(8):
        A(f"ds_read_b128 {r4(OT+4*w)}, v{vK} offset:{OS+w*1024}")
    if not earlyml:
        A("s_mov_b64 exec, 0xffff")
        A(f"buffer_store_dwordx4 {r4(SV+4)}, v{SV+1}, {srd(WS)}, 0 offen offset:64 sc1")
        A("s_mov_b64 exec, -1")
    for w in range(8):
        A(f"s_waitcnt lgkmcnt({7-w})")
        f = FW + (w & ~1); sel = w & 1
        for hlf in range(2):
            d = f"v[{OT+2*hlf}:{OT+2*hlf+1}]"; x = f"v[{OT+4*w+2*hlf}:{OT+4*w+2*hlf+1}]"
            if w == 0: A(f"v_pk_mul_f32 {d}, {x}, v[{f}:{f+1}] op_sel:[0,{sel}] op_sel_hi:[1,{sel}]")
            else: A(f"v_pk_fma_f32 {d}, {x}, v[{f}:{f+1}], {d} op_sel:[0,{sel},0] op_sel_hi:[1,{sel},1]")
    tag4(OT)
    A(f"buffer_store_dwordx4 {r4(OT)}, v{vV}, {srd(WS)}, 0 offen sc1")
    stamp(6)
    if sx == "pub": A("s_endpgm")
    if earlyml:
        A(f"s_cmp_eq_u64 s[{sOK}:{sOK+1}], 0"); A("s_cbranch_scc1 L_pollo")
        A("L_pollml:")
        if psleep: A(f"s_sleep {psleep}")
        A(f"buffer_load_dwordx4 {r4(PL+4)}, v{vA1}, {srd(WS)}, 0 offen offset:1024 sc1")
        A(f"s_add_u32 s{sSPIN}, s{sSPIN}, 1"); A(f"s_cmp_gt_u32 s{sSPIN}, {spin}")
        A("s_waitcnt vmcnt(0)")
        untag_check([PL + 4 + i for i in range(4)], [vTAG] * 4, TT + 1, f"s{sTM}")
        A("s_cbranch_scc1 L_gotml")
        A("s_cbranch_vccnz L_pollml")
        A("L_gotml:")
        coef()
        A("L_pollo:")
        PB = 136
        for k in range(npo - 1):
            A(f"buffer_load_dwordx4 {r4(PB+4*k)}, v{vA2}, {srd(WS)}, s{sT2} offen sc1")
        A("L_po0:")
        for k in range(npo):
            kk = (k + npo - 1) % npo
            A(f"buffer_load_dwordx4 {r4(PB+4*kk)}, v{vA2}, {srd(WS)}, s{sT2} offen sc1")
            if k == 0: A(f"s_add_u32 s{sSPIN}, s{sSPIN}, 1"); A(f"s_cmp_gt_u32 s{sSPIN}, {spin}")
            A(f"s_waitcnt vmcnt({npo-1})")
            for v in range(4): A(f"v_xor_b32 v{PL+v}, v{vTAG}, v{PB+4*k+v}")
            A(f"v_or3_b32 v{TT+1}, v{PL}, v{PL+1}, v{PL+2}"); A(f"v_or_b32 v{TT+1}, v{TT+1}, v{PL+3}")
            A(f"v_and_b32 v{TT+1}, s{sTM}, v{TT+1}"); A(f"v_cmp_ne_u32 vcc, 0, v{TT+1}")
            if k < npo - 1: A("s_cbranch_vccz L_goto")
            else:
                A("s_cbranch_scc1 L_goto"); A("s_cbranch_vccnz L_po0")
        A("L_goto:")
        stamp(9)
        for v in range(4): A(f"v_mul_f32 v{PL+v}, v{PL+v}, v{m}")
        for s_ in steps:
            for r in (PL, PL + 1, PL + 2, PL + 3):
                A(f"v_add_f32_dpp v{r}, v{r}, v{r} {s_} {DPPF}")
    else:
        A(f"buffer_load_dwordx4 {r4(PL)}, v{vA2}, {srd(WS)}, s{sT2} offen sc1")
        A(f"buffer_load_dwordx4 {r4(PL+4)}, v{vA1}, {srd(WS)}, s{sT2} offen offset:64 sc1")
        A("s_waitcnt vmcnt(7)")
        w2_mfmas()
        A("s_branch L_pollo1")
        A("L_pollo:")
        A(f"buffer_load_dwordx4 {r4(PL)}, v{vA2}, {srd(WS)}, s{sT2} offen sc1")
        A(f"buffer_load_dwordx4 {r4(PL+4)}, v{vA1}, {srd(WS)}, s{sT2} offen offset:64 sc1")
        A("L_pollo1:")
        if psleep: A(f"s_sleep {psleep}")
        A(f"s_add_u32 s{sSPIN}, s{sSPIN}, 1"); A(f"s_cmp_gt_u32 s{sSPIN}, {spin}")
        A("s_waitcnt vmcnt(0)")
        untag_check([PL + 4 + i for i in range(4)] + [PL + i for i in range(4)], [vTAG] * 8, TT + 1, f"s{sTM}")
        A(f"v_max_f32_dpp v{M}, v{m}, v{m} {steps[0]} {DPPF}")
        A("s_cbranch_scc1 L_goto")
        A("s_cbranch_vccnz L_pollo")
        A("L_goto:")
        stamp(9)
        for s_ in steps[1:]:
            A(f"v_max_f32_dpp v{M}, v{M}, v{M} {s_} {DPPF}"); A("s_nop 1")
        A(f"v_sub_f32 v{m}, v{m}, v{M}"); A(f"v_mul_f32 v{m}, s{sLOG2E}, v{m}"); A(f"v_exp_f32 v{m}, v{m}"); A("s_nop 0")
        A(f"v_mul_f32 v{l}, v{l}, v{m}")
        for v in range(4): A(f"v_mul_f32 v{PL+v}, v{PL+v}, v{m}")
        for s_ in steps:
            for r in (l, PL, PL + 1, PL + 2, PL + 3):
                A(f"v_add_f32_dpp v{r}, v{r}, v{r} {s_} {DPPF}")
            if s_ == steps[2]: pass
        A(f"v_rcp_f32 v{l}, v{l}"); A("s_nop 0")
        for v in range(4): A(f"v_mul_f32 v{PL+v}, v{PL+v}, v{l}")
    for v in range(4): A(f"v_cvt_pk_bf16_f32 v{PL+v}, v{PL+v}, v{PL+v}")
    A("s_mov_b64 exec, s[0:1]")
    A(f"ds_write_b128 v{vT1}, {r4(PL)} offset:{ZL}")
    A("s_mov_b64 exec, -1")
    A("s_waitcnt lgkmcnt(0)")
    A("s_barrier")
    stamp(13)

    if lowprio:
        out = []
        seen_b4 = False
        for ln in L[svc0:]:
            if ln is None: continue
            if ln.startswith("s_setprio"): continue
            if ln.startswith("buffer_") and not seen_b4:
                out += ["s_setprio 3", ln, "s_setprio 0"]
            else:
                out.append(ln)
            if ln == "L_mlgot:":
                out.append("s_setprio 3"); seen_b4 = True
        L[svc0:] = out
    A("L_tail:")
    for n in range(2):
        for rho in range(2):
            gemv_mfma(PL + 2 * n + rho, WL + 12 + 4 * n, D1 if rho == 0 else D2, False)
    A("s_nop 7")
    for v in range(4):
        A(f"v_add_f32_dpp v{D1+v}, v{D2+v}, v{D1+v} row_ror:8 {DPPF}")
    tag4(D1)
    A(f"s_mov_b64 exec, s[{sMASK}:{sMASK+1}]")
    A(f"buffer_store_dwordx4 {r4(D1)}, v{TT}, {srd(WS)}, s{sC2} offen sc1")
    A("s_mov_b64 exec, -1")
    stamp(10)
    A(f"s_cmp_lg_u32 s{sCK}, 0"); A("s_cbranch_scc1 L_fin")
    A("s_cmp_ge_u32 s2, 252"); A("s_cbranch_scc1 L_fin")
    A("s_cmp_eq_u32 s3, 8"); A("s_cbranch_scc1 L_final")
    A(f"v_lshrrev_b32 v{TT}, 3, v0"); A(f"s_lshl_b32 s{sT0}, s3, 5"); A(f"v_add_u32 v{TT}, s{sT0}, v{TT}")
    A(f"v_mul_u32_u24 v{TT}, {REC}, v{TT}"); A(f"v_and_b32 v{TT+1}, 7, v0"); A(f"v_lshl_add_u32 v{TT}, v{TT+1}, 4, v{TT}")
    A(f"s_lshl_b32 s{sT0}, s{sSL}, 7"); A(f"s_add_u32 s{sT0}, s{sT0}, {FPO}")
    A(f"s_add_u32 s{sC1}, s{sT0}, {8*REC}"); A(f"s_add_u32 s{sC2}, s{sT0}, {16*REC}"); A(f"s_add_u32 s{sC3}, s{sT0}, {24*REC}")
    FB = FC + 16
    def fpoll(k):
        for q, so in enumerate((sT0, sC1, sC2, sC3)):
            A(f"buffer_load_dwordx4 {r4(FB+16*k+4*q)}, v{TT}, {srd(WS)}, s{so} offen sc1")
    for k in range(npf - 1): fpoll(k)
    A("L_pf0:")
    for k in range(npf):
        fpoll((k + npf - 1) % npf)
        if k == 0: A(f"s_add_u32 s{sSPIN}, s{sSPIN}, 1"); A(f"s_cmp_gt_u32 s{sSPIN}, {spin}")
        A(f"s_waitcnt vmcnt({4*(npf-1)})")
        for v in range(16): A(f"v_xor_b32 v{FC+v}, v{vTAG}, v{FB+16*k+v}")
        A(f"v_or3_b32 v{TT+1}, v{FC}, v{FC+1}, v{FC+2}")
        for i in range(3, 15, 2): A(f"v_or3_b32 v{TT+1}, v{TT+1}, v{FC+i}, v{FC+i+1}")
        A(f"v_or_b32 v{TT+1}, v{TT+1}, v{FC+15}")
        A(f"v_and_b32 v{TT+1}, s{sTM}, v{TT+1}"); A(f"v_cmp_ne_u32 vcc, 0, v{TT+1}")
        if k < npf - 1: A("s_cbranch_vccz L_gotf")
        else:
            A("s_cbranch_scc1 L_gotf"); A("s_cbranch_vccnz L_pf0")
    A("L_gotf:")
    stamp(9)
    for v in range(4):
        A(f"v_add_f32 v{FC+v}, v{FC+v}, v{FC+4+v}"); A(f"v_add_f32 v{FC+8+v}, v{FC+8+v}, v{FC+12+v}")
    for v in range(4):
        A(f"v_add_f32 v{FC+v}, v{FC+v}, v{FC+8+v}")
    a, b = FC + 4, FC + 5
    A("s_nop 0")
    A(f"v_add_f32_dpp v{a}, v{FC}, v{FC} row_ror:8 row_mask:0xf bank_mask:0x3")
    A(f"v_add_f32_dpp v{a}, v{FC+1}, v{FC+1} row_ror:8 row_mask:0xf bank_mask:0xc")
    A(f"v_add_f32_dpp v{b}, v{FC+2}, v{FC+2} row_ror:8 row_mask:0xf bank_mask:0x3")
    A(f"v_add_f32_dpp v{b}, v{FC+3}, v{FC+3} row_ror:8 row_mask:0xf bank_mask:0xc")
    A(f"v_and_b32 v{TT}, 7, v0"); A(f"v_lshlrev_b32 v{TT}, 4, v{TT}")
    A(f"v_permlane16_swap_b32 v{a}, v{b}")
    A(f"v_bfe_u32 v{TT+1}, v0, 3, 2"); A(f"v_lshl_add_u32 v{TT}, v{TT+1}, 2, v{TT}")
    A(f"v_add_f32 v{a}, v{a}, v{b}")
    A(f"s_lshl_b32 s{sT0}, s3, 7"); A(f"v_mov_b32 v{b}, v{a}"); A(f"v_add_u32 v{TT}, s{sT0}, v{TT}"); A("s_nop 0")
    A(f"v_permlane32_swap_b32 v{a}, v{b}"); A("s_nop 1")
    A(f"v_add_f32 v{a}, v{a}, v{b}")
    A(f"ds_write_b32 v{TT}, v{a} offset:{FS}")
    A("s_waitcnt lgkmcnt(0)")
    A("s_barrier")
    A("s_branch L_fin")
    A("L_final:")
    A(f"v_lshlrev_b32 v{TT}, 3, v0")
    A(f"v_lshlrev_b32 v{TT+2}, 16, v{SV+21}"); A(f"v_and_b32 v{TT+3}, 0xffff0000, v{SV+21}")
    A(f"v_mov_b32 v{TT+1}, s{sEP}"); A(f"v_mov_b32 v{SV}, {EP}")
    A(f"s_cmp_eq_u32 s2, 0"); A(f"s_cselect_b32 s{sT0}, 0, {HUGE}")
    A("s_mov_b64 exec, 0xffff")
    A("s_barrier")
    for w in range(8):
        A(f"ds_read_b64 {r2(80+2*w)}, v{TT} offset:{FS+128*w}")
    for w in range(8):
        A(f"s_waitcnt lgkmcnt({7-w})")
        A(f"v_add_f32 v{TT+2}, v{TT+2}, v{80+2*w}"); A(f"v_add_f32 v{TT+3}, v{TT+3}, v{81+2*w}")
    A(f"v_cvt_pk_bf16_f32 v{TT+2}, v{TT+2}, v{TT+3}")
    A(f"buffer_store_dword v{TT+2}, v{SV+20}, {srd(OUT)}, 0 offen{outsc}")
    A("s_mov_b64 exec, 1")
    A(f"buffer_store_dword v{TT+1}, v{SV}, {srd(WS)}, s{sT0} offen sc1")
    if hold:
        A(f"s_add_u32 s100, s100, {hold}")
        A("L_hold:"); A("s_memrealtime s[98:99]"); A("s_waitcnt lgkmcnt(0)"); A("s_sub_u32 s98, s98, s100"); A("s_cmp_lt_i32 s98, 0"); A("s_cbranch_scc1 L_hold")
    A("L_fin:")
    if stamps:
        stamp(11)
        A("s_mov_b64 exec, -1")
        A("s_waitcnt vmcnt(0) lgkmcnt(0)")
        A(f"s_mul_i32 s{sT0}, s2, 9"); A(f"s_add_u32 s{sT0}, s{sT0}, s3"); A(f"s_lshl_b32 s{sT0}, s{sT0}, 7"); A(f"s_add_u32 s{sT0}, s{sT0}, {STAMP}")
        for i in range(14):
            A(f"v_mov_b32 v{104+2*i}, s{stamp_reg(i)}"); A(f"v_mov_b32 v{105+2*i}, s{stamp_reg(i)+1}")
        A(f"v_mov_b32 v132, s{sSPIN}")
        A("s_getreg_b32 s76, hwreg(HW_REG_XCC_ID)"); A("v_mov_b32 v133, s76"); A(f"v_mov_b32 v134, s{sU}"); A("v_mov_b32 v135, 0")
        A("v_mov_b32 v100, 0")
        A("s_mov_b64 exec, 1")
        for i in range(8):
            A(f"buffer_store_dwordx4 {r4(104+4*i)}, v100, {srd(WS)}, s{sT0} offen offset:{16*i}")
    A("L_end:")
    A("s_endpgm")
    A('.section .rodata,"a"'); A(".p2align 6"); A(f".amdhsa_kernel {NAME}")
    A("  .amdhsa_next_free_vgpr 168"); A("  .amdhsa_next_free_sgpr 102"); A("  .amdhsa_accum_offset 168")
    A("  .amdhsa_group_segment_fixed_size 0"); A("  .amdhsa_kernarg_size 96"); A("  .amdhsa_user_sgpr_count 2")
    A("  .amdhsa_user_sgpr_kernarg_segment_ptr 1"); A("  .amdhsa_system_sgpr_workgroup_id_x 1")
    A(".end_amdhsa_kernel")
    return "\n".join(x for x in L if x is not None) + "\n"


if __name__ == "__main__":
    kw = eval("dict(%s)" % (sys.argv[2] if len(sys.argv) > 2 else ""))
    open(sys.argv[1], "w").write(gen(**kw))
```

```python
import sys
NAME = "parallel_sum__sliding_block_cached__glu_gated_swiglu__decode_kernel"

HEADER = """; Fused decode step: out = x + Attn(LN(x)) + SwiGLU(LN(x)), one launch, 256 workgroups x 9 waves.
"""

OS = 0
S1 = 0
FS = 8192
QL = 9216
HD = QL + 512
MW = HD + 320
ZL = MW + 128
TG = ZL + 128
QF = TG + 4
UN = QF + 4
NXT = UN + 4
FWL = UN + 8
CLM = FWL + 64
XN = 10752
assert CLM + 128 <= XN and FWL % 16 == 0
LDS_BYTES = XN + 4608
REC = 6144
FPO = 1536
EP = 1408
SAFE = (7 << 18) + 8192
CNT = (7 << 18)
P1 = 3 << 19
P1B = 13312 * 4
STAMP = 9 << 18
WS_BYTES = 4 << 20
HUGE = 0x40000000
LOG2E = 0x3FB8AA3B
SCALE = 0x3DB504F3
TMASK = 0x3FF
ML_NAT = True
STAMP_NAMES = ["start", "karg", "Bt/B0", "B1", "qgot", "sm", "Vend", "s7", "s8", "gotO", "FPst", "end", "x/B4", "B5"]

X, K, V, SU, WO, W2, OUT, DBG, WS = [4 + 4 * i for i in range(9)]
SRD_INFO = {X: (0, 2304), K: (2, 1 << 28), V: (4, 1 << 28), WO: (8, 4096 * 1152),
            W2: (16, 4608 * 1152), OUT: (18, 2304), DBG: (20, 256), WS: (22, WS_BYTES)}
sPQ, sP1, sP3 = 40, 42, 44
sU, sRB = 46, 47
sHKV, sJ, sB, sS, sSL, sCK = 48, 49, 50, 51, 52, 53
sT0, sT1, sT2, sT3 = 54, 55, 56, 57
sHASH = 58
sUO, sUS = 59, 60
sOK = 60
sT16 = 62
sLOG2E = 63
sSPIN = 64
sTM = 65
sC1, sC2, sC3 = 66, 67, 68
sEP = 69
sPI, sPO, sNP, sWC = 46, 47, 60, 61
sCL, sCB, sKO, sM4 = 40, 42, 41, 44
sMASK = 70
sSEL = 72
KA = 76
def stamp_reg(i): return {0: 100, 1: 74}.get(i, KA + 2 * (i - 2))

vK, vV, vA1, vA2 = 1, 2, 3, 4
MK = 5
vT0, vT1, vT2 = 9, 10, 11
A0, A1 = 12, 16
ACC, D1, D2 = 20, 24, 28
SR = 32
QB = 36
KR = 40
VR = 104
def kreg(t): return KR + 4 * t
def vreg(t): return VR + 4 * t
XA = 32
S1D = 132
WL = 40
PL = 60
HV = 68
vTAG = 74
DK = [80, 88, 156]; DV = [84, 92, 160]
vOS, vMW, vIDX, vONE, vM, vL, vL2, vHM = 96, 97, 98, 99, 100, 101, 102, 103
TT = 76
FC = 104
SV = 104


def r4(b): return f"v[{b}:{b+3}]"
def r2(b): return f"v[{b}:{b+1}]"
def srd(b): return f"s[{b}:{b+3}]"
DPPF = "row_mask:0xf bank_mask:0xf"


def gen(depth=4, b2=11, pre=2, stamps=False, pol=" nt", spin=100000, prio=3, mlsleep=6, npo=1, npf=1, outsc="", dry=False,
        psleep=0, gsleep=0, ticket=False, earlyml=False, hold=0, latepos="end", wide=False, sx=None, ilv=False, NS=16, clead=4, look=2, lowprio=False, sprio=None, sprio_off=None, after=None, nw_before=0, urot=False, xg=True, fast=True, tmo=40):
    L = []
    A = L.append
    dyn = NS < 16
    POOL = 8 * (16 - NS)
    DK[2], DV[2] = (156, 160) if NS <= 13 else (160, 164)
    assert NS <= 14 or NS == 16
    assert not earlyml and not ticket and latepos == "end"

    def stamp(i):
        if stamps:
            r = stamp_reg(i)
            A(f"s_memrealtime s[{r}:{r+1}]")

    def srd_const(d):
        A(f"s_mov_b32 s{d+2}, {SRD_INFO[d][1]}"); A(f"s_mov_b32 s{d+3}, 0x00020000")

    def srd_ptr(d):
        o = KA + SRD_INFO[d][0]
        A(f"s_mov_b64 s[{d}:{d+1}], s[{o}:{o+1}]")

    def masks(tmp):
        A(f"v_and_b32 v{vT2}, 1, v0"); A(f"v_lshlrev_b32 v{vT2}, 4, v{vT2}")
        A(f"v_mov_b32 v{MK}, 0xffff"); A(f"v_lshlrev_b32 v{vT2}, v{vT2}, v{MK}")
        A(f"v_bfe_u32 v{tmp}, v0, 1, 2")
        for j in range(4):
            A(f"v_cmp_eq_u32 vcc, {j}, v{tmp}"); A("s_nop 1"); A(f"v_cndmask_b32 v{MK+j}, 0, v{vT2}, vcc")

    def ffn_ids():
        A(f"s_mul_i32 s{sSL}, s2, 9363"); A(f"s_lshr_b32 s{sSL}, s{sSL}, 16")
        A(f"s_mul_i32 s{sT0}, s{sSL}, 7"); A(f"s_sub_u32 s{sCK}, s2, s{sT0}")

    def unit_id(r):
        A(f"s_mul_i32 s{sT0}, s{sHKV}, 13"); A(f"s_add_u32 s{sT0}, s{sT0}, s{r}"); A(f"s_cmp_lt_u32 s{r}, 13"); A(f"s_cselect_b32 s{sU}, s{sT0}, 255")

    def tag4(r):
        for v in range(4): A(f"v_bfi_b32 v{r+v}, s{sTM}, v{vTAG}, v{r+v}")

    def untag_check(regs, tags, acc, mask):
        for r, t in zip(regs, tags): A(f"v_xor_b32 v{r}, v{t}, v{r}")
        A(f"v_or3_b32 v{acc}, v{regs[0]}, v{regs[1]}, v{regs[2]}")
        rest = regs[3:]
        while len(rest) >= 2:
            A(f"v_or3_b32 v{acc}, v{acc}, v{rest[0]}, v{rest[1]}"); rest = rest[2:]
        if rest: A(f"v_or_b32 v{acc}, v{acc}, v{rest[0]}")
        A(f"v_and_b32 v{acc}, {mask}, v{acc}")
        A(f"v_cmp_ne_u32 vcc, 0, v{acc}")

    def bf16r(dst, src):
        A(f"v_cvt_pk_bf16_f32 v{dst}, v{src}, v{src}"); A(f"v_and_b32 v{dst}, 0xffff0000, v{dst}")

    def allred32(r, t, op="v_add_f32"):
        for n in (1, 2, 4, 8):
            A("s_nop 1"); A(f"{op}_dpp v{r}, v{r}, v{r} row_ror:{n} {DPPF}")
        A(f"v_mov_b32 v{t}, v{r}"); A("s_nop 1"); A(f"v_permlane16_swap_b32 v{r}, v{t}"); A("s_nop 1"); A(f"{op} v{r}, v{r}, v{t}")

    def allred_banks_rows(r, t, op):
        for n in (4, 8):
            A("s_nop 1"); A(f"{op}_dpp v{r}, v{r}, v{r} row_ror:{n} {DPPF}")
        for sw in ("v_permlane16_swap_b32", "v_permlane32_swap_b32"):
            A(f"v_mov_b32 v{t}, v{r}"); A("s_nop 1"); A(f"{sw} v{r}, v{t}"); A("s_nop 1"); A(f"{op} v{r}, v{r}, v{t}")

    aflip = [0]
    def gemv_mfma(val, data, acc, first):
        a = A0 if aflip[0] == 0 else A1
        aflip[0] ^= 1
        for j in range(4):
            A(f"v_and_b32 v{a+j}, v{val}, v{MK+j}")
        A("s_nop 1")
        A(f"v_mfma_f32_16x16x32_bf16 {r4(acc)}, {r4(a)}, {r4(data)}, {'0' if first else r4(acc)}")

    def w2_mfmas():
        for n in range(3):
            for rho in range(2):
                gemv_mfma(HV + 2 * n + rho, WL + 4 * n, D1 if rho == 0 else D2, n == 0)

    def late_loads():
        return [("W0", [f"buffer_load_dwordx4 {r4(WL)}, v{vA2}, {srd(W2)}, 0 offen{pol}"]),
                ("W1", [f"buffer_load_dwordx4 {r4(WL+4)}, v{vA2}, {srd(W2)}, 0 offen offset:2304{pol}"]),
                ("W2", [f"buffer_load_dwordx4 {r4(WL+8)}, v{vA2}, {srd(W2)}, s{sC1} offen{pol}"]),
                ("W3", [f"buffer_load_dwordx4 {r4(WL+12)}, v{vA1}, {srd(WO)}, 0 offen{pol}"]),
                ("W4", [f"buffer_load_dwordx4 {r4(WL+16)}, v{vA1}, {srd(WO)}, 0 offen offset:2304{pol}"])]

    def late_addr():
        A(f"v_bfe_u32 v{vT2}, v0, 3, 1")
        A(f"v_lshl_add_u32 v{vA1}, v{vT0}, 2, v{vT2}")
        A(f"s_lshl_b32 s{sT1}, s2, 4"); A(f"v_add_u32 v{vA1}, s{sT1}, v{vA1}")
        A(f"v_mul_u32_u24 v{vA1}, 1152, v{vA1}")
        A(f"v_mad_u32_u24 v{vA2}, v{vT0}, 6, v{vT2}")
        A(f"s_mul_i32 s{sT1}, s2, 18"); A(f"v_add_u32 v{vA2}, s{sT1}, v{vA2}")
        A(f"v_mul_u32_u24 v{vA2}, 1152, v{vA2}")
        A(f"v_and_b32 v{vT2}, 7, v0"); A(f"v_lshlrev_b32 v{vT2}, 4, v{vT2}")
        A(f"s_lshl_b32 s{sT1}, s3, 7"); A(f"v_add_u32 v{vT2}, s{sT1}, v{vT2}")
        A(f"v_add_u32 v{vA1}, v{vA1}, v{vT2}"); A(f"v_add_u32 v{vA2}, v{vA2}, v{vT2}")
        A(f"v_cmp_eq_u32 vcc, 3, v{vT0}"); A(f"v_mov_b32 v{vT2}, {HUGE}"); A("s_nop 0")
        A(f"v_cndmask_b32 v{vA2}, v{vA2}, v{vT2}, vcc")
        A(f"s_mov_b32 s{sC1}, 4608")

    def tail_addr():
        A(f"v_lshrrev_b32 v{TT}, 1, v{vT0}"); A(f"v_mul_u32_u24 v{TT}, 2304, v{TT}")
        A(f"v_and_b32 v{TT+1}, 7, v0"); A(f"v_lshl_add_u32 v{TT}, v{TT+1}, 5, v{TT}")
        A(f"v_and_b32 v{TT+1}, 1, v{vT0}"); A(f"v_lshl_add_u32 v{TT}, v{TT+1}, 4, v{TT}")
        A(f"s_mul_i32 s{sC2}, s2, {REC}"); A(f"s_lshl_b32 s{sT1}, s3, 8"); A(f"s_add_u32 s{sC2}, s{sC2}, s{sT1}"); A(f"s_add_u32 s{sC2}, s{sC2}, {FPO}")
        A(f"v_bfe_u32 v{TT+1}, v0, 3, 1"); A(f"v_mul_u32_u24 v{TT+1}, 160, v{TT+1}"); A(f"v_mad_u32_u24 v{TT+1}, v{vT0}, 24, v{TT+1}")
        for i in range(3):
            A(f"ds_read_b64 {r2(HV+2*i)}, v{TT+1} offset:{HD+8+8*i}")
        A(f"v_lshrrev_b32 v{vT1}, 3, v0"); A(f"v_lshlrev_b32 v{vT1}, 4, v{vT1}")
        A(f"s_movk_i32 s{sTM}, {TMASK:#x}")
        A(f"s_and_b32 s{sT1}, s{sEP}, s{sTM}"); A(f"v_mov_b32 v{vTAG}, s{sT1}")

    A(HEADER.rstrip("\n"))
    A(f"; @launch grid=(256,1,1) block=(576,1,1) lds={LDS_BYTES}")
    A('.amdgcn_target "amdgcn-amd-amdhsa--gfx950"')
    A(".text"); A(f".globl {NAME}"); A(".p2align 8"); A(f".type {NAME},@function"); A(f"{NAME}:")
    stamp(0)
    if hold: A("s_memrealtime s[100:101]")
    A(f"s_load_dwordx16 s[{KA}:{KA+15}], s[0:1], 0")
    A(f"s_load_dwordx8 s[{KA+16}:{KA+23}], s[0:1], 64")
    A("v_lshrrev_b32 v1, 6, v0")
    A("s_cmp_ge_u32 s2, 256"); A("s_cbranch_scc1 L_end")
    A("v_readfirstlane_b32 s3, v1")
    A("v_and_b32 v0, 63, v0")
    if xg:
        A(f"s_and_b32 s{sT0}, s2, 7"); A(f"s_lshl_b32 s{sT0}, s{sT0}, 5"); A("s_lshr_b32 s2, s2, 3"); A(f"s_add_u32 s2, s2, s{sT0}")
    A(f"s_lshr_b32 s{sHKV}, s2, 4"); A(f"s_and_b32 s{sJ}, s2, 15"); A(f"s_lshr_b32 s{sB}, s{sJ}, 3"); A(f"s_and_b32 s{sS}, s2, 7")
    A(f"v_lshrrev_b32 v{vT0}, 4, v0")
    A("s_cmp_eq_u32 s3, 8"); A("s_cbranch_scc1 L_service")

    srd_const(K)
    if sprio is not None:
        A(f"s_cmp_ge_u32 s3, 4"); A(f"s_cbranch_scc0 L_np"); A(f"s_setprio {sprio}"); A("L_np:")
    A(f"s_lshl_b32 s{sT0}, s{sB}, 4"); A(f"s_add_u32 s{sT0}, s{sT0}, s{sHKV}"); A(f"s_lshl_b32 s{sT0}, s{sT0}, 23")
    A(f"s_mul_i32 s{sT1}, s{sS}, {NS*8192}"); A(f"s_add_u32 s{sT0}, s{sT0}, s{sT1}")
    A(f"s_lshl_b32 s{sT1}, s3, 10"); A(f"s_add_u32 s{sT0}, s{sT0}, s{sT1}")
    A(f"s_add_u32 s{sT2}, s{sT0}, {7 << 20}")
    A(f"v_and_b32 v{vK}, 3, v0"); A(f"v_lshlrev_b32 v{vK}, 4, v{vK}")
    A(f"v_bfe_u32 v{vT1}, v0, 2, 2"); A(f"v_lshl_add_u32 v{vK}, v{vT1}, 8, v{vK}")
    A(f"v_lshl_add_u32 v{vK}, v{vT0}, 6, v{vK}"); A(f"v_add_u32 v{vK}, s{sT2}, v{vK}")
    A(f"s_lshl_b32 s{sT0}, s2, 3"); A(f"s_add_u32 s{sT0}, s{sT0}, s3"); A(f"s_mul_i32 s{sHASH}, s{sT0}, 0x9E3779B1")
    if dyn:
        A(f"s_mul_hi_u32 s{sHASH}, s{sHASH}, {NS}"); A(f"s_lshl_b32 s{sHASH}, s{sHASH}, 13")
    else:
        A(f"s_lshr_b32 s{sHASH}, s{sHASH}, 11"); A(f"s_and_b32 s{sHASH}, s{sHASH}, {15 << 13}")
    A("s_waitcnt lgkmcnt(0)")
    stamp(1)
    srd_ptr(K)

    def kvld(nm, t, reg, va, sr):
        if dyn:
            return (f"{nm}{t}", [f"buffer_load_dwordx4 {r4(reg)}, v{va}, {srd(sr)}, s{sHASH} offen{pol}",
                                 f"s_add_u32 s{sHASH}, s{sHASH}, 8192", f"s_cmp_eq_u32 s{sHASH}, {NS*8192}", f"s_cselect_b32 s{sHASH}, 0, s{sHASH}"])
        return (f"{nm}{t}", [f"s_xor_b32 s{sT0}, s{sHASH}, {t << 13}", f"buffer_load_dwordx4 {r4(reg)}, v{va}, {srd(sr)}, s{sT0} offen{pol}"])
    def kld(t): return kvld("K", t, kreg(t), vK, K)
    loads = [kld(t) for t in range(pre)]
    for k in range(9):
        c = [f"buffer_load_dwordx4 {r4(S1D+4*k)}, v{vA1}, {srd(SU)}, s{sUO} offen{pol}"]
        if k < 8:
            c.append(f"s_add_u32 s{sUO}, s{sUO}, s{sUS}")
            if urot: c += [f"s_cmp_eq_u32 s{sUO}, s{sC3}", f"s_cselect_b32 s{sUO}, s{sC2}, s{sUO}"]
        loads.append((f"U{k}", c))
    if ilv:
        us = loads[pre:]; loads = loads[:pre]; t = pre
        for i_, u_ in enumerate(us):
            loads.append(u_)
            if i_ < 8:
                for _ in range(ilv): loads.append(kld(t)); t += 1
        loads += [kld(t_) for t_ in range(t, NS)]
    else:
        loads += [kld(t) for t in range(pre, NS)]
    loads += [kvld("V", t, vreg(t), vV, V) for t in range(NS)]
    if not dyn:
        loads += late_loads() if after is None else late_loads()[:nw_before]
    names = [n for n, _ in loads]

    def rest_of_prologue():
        A(f"v_lshlrev_b32 v{vV}, 4, v0"); A(f"v_add_u32 v{vV}, s{sT2}, v{vV}")
        for d in (V, WO, W2, WS): srd_const(d); srd_ptr(d)
        A(f"s_mov_b64 s[{sPQ}:{sPQ+1}], s[{KA+6}:{KA+7}]"); A(f"s_mov_b64 s[{sP1}:{sP1+1}], s[{KA+12}:{KA+13}]"); A(f"s_mov_b64 s[{sP3}:{sP3+1}], s[{KA+14}:{KA+15}]")
        A(f"s_mov_b32 s{sLOG2E}, {LOG2E:#x}"); A(f"s_mov_b32 s{sSPIN}, 0")
        A(f"s_mov_b32 s{sMASK}, 0x00ff00ff"); A(f"s_mov_b32 s{sMASK+1}, 0x00ff00ff")
        ffn_ids()
        masks(vT1)
        A(f"v_bfe_u32 v{vT2}, v0, 3, 1"); A(f"s_lshl_b32 s{sT1}, s3, 3")
        A(f"v_lshl_add_u32 v{vA1}, v{vT0}, 1, s{sT1}")
        A(f"v_mul_u32_u24 v{vA2}, 2304, v{vT2}"); A(f"v_lshl_add_u32 v{vA2}, v{vA1}, 2, v{vA2}")
        A(f"v_add_u32 v{vA1}, v{vA1}, v{vT2}")
        A(f"v_and_b32 v{vT1}, 7, v0"); A(f"v_lshlrev_b32 v{vT1}, 4, v{vT1}")
        A(f"v_mov_b32 v{vT2}, 0")
        if dry or not ticket:
            unit_id(sJ)
        else:
            A("s_barrier")
            A(f"ds_read_b32 v{vT2}, v{vT2} offset:{UN}")
            A("s_waitcnt lgkmcnt(0)")
            A(f"v_readfirstlane_b32 s{sU}, v{vT2}")
        stamp(2)
        A(f"s_mov_b32 s{SU+3}, 0x00020000")
        A(f"s_cmp_lt_u32 s{sU}, 136")
        A(f"s_cselect_b64 s[{SU}:{SU+1}], s[{sP1}:{sP1+1}], s[{sP3}:{sP3+1}]"); A(f"s_cselect_b32 s{sT1}, 64, 136")
        A(f"s_cmp_lt_u32 s{sU}, 64")
        A(f"s_cselect_b64 s[{SU}:{SU+1}], s[{sPQ}:{sPQ+1}], s[{SU}:{SU+1}]"); A(f"s_cselect_b32 s{sT1}, 0, s{sT1}")
        A(f"s_movk_i32 s{sRB}, 9216"); A(f"s_cselect_b32 s{sRB}, 8192, s{sRB}")
        A(f"s_mul_i32 s{SU+2}, s{sRB}, 576")
        A(f"s_cmp_lt_u32 s{sU}, 208"); A(f"s_cselect_b32 s{SU+2}, s{SU+2}, 0")
        if wide:
            A(f"s_sub_u32 s{sUO}, s{sU}, s{sT1}"); A(f"s_and_b32 s{sT1}, s{sUO}, 1"); A(f"s_lshr_b32 s{sUO}, s{sUO}, 1"); A(f"s_lshl_b32 s{sUO}, s{sUO}, 8")
            A(f"s_mul_i32 s{sT1}, s{sT1}, 288")
            A(f"s_lshl_b32 s{sT3}, s3, 2"); A(f"s_add_u32 s{sT3}, s{sT3}, s{sT1}"); A(f"v_add_u32 v{vA2}, s{sT3}, v{vT0}")
            A(f"v_bfe_u32 v{vT2}, v0, 3, 1"); A(f"v_mul_u32_u24 v{vT2}, 576, v{vT2}"); A(f"v_add_lshl_u32 v{vA2}, v{vA2}, v{vT2}, 2")
            A(f"s_mul_i32 s{sT1}, s{sT1}, s{sRB}"); A(f"s_add_u32 s{sUO}, s{sUO}, s{sT1}"); A(f"s_lshl_b32 s{sUS}, s{sRB}, 5")
            A(f"s_lshl_b32 s{sT1}, s3, 2"); A(f"v_add_u32 v{vA1}, s{sT1}, v{vT0}"); A(f"v_and_b32 v{vT1}, 15, v0"); A(f"v_lshlrev_b32 v{vT1}, 4, v{vT1}")
            A(f"v_mad_u32_u24 v{vA1}, v{vA1}, s{sRB}, v{vT1}")
            if urot:
                A(f"s_mov_b32 s{sC2}, s{sUO}"); A(f"s_mul_i32 s{sC3}, s{sUS}, 9"); A(f"s_add_u32 s{sC3}, s{sC3}, s{sUO}")
                A(f"s_mul_i32 s{sC1}, s2, 0x9E3779B1"); A(f"s_mul_hi_u32 s{sC1}, s{sC1}, 9")
                A(f"s_mul_i32 s{sT1}, s{sC1}, s{sUS}"); A(f"s_add_u32 s{sUO}, s{sUO}, s{sT1}")
                A(f"s_lshl_b32 s{sC1}, s{sC1}, 7")
        else:
            A(f"s_sub_u32 s{sUO}, s{sU}, s{sT1}"); A(f"s_lshl_b32 s{sUO}, s{sUO}, 7"); A(f"s_lshl_b32 s{sUS}, s{sRB}, 6")
            A(f"v_mad_u32_u24 v{vA1}, v{vA1}, s{sRB}, v{vT1}")

    def qk_block():
        A(f"v_bfe_u32 v{vT2}, v0, 1, 1"); A(f"v_lshlrev_b32 v{vT2}, 8, v{vT2}"); A(f"v_lshl_add_u32 v{vT2}, v{vT0}, 6, v{vT2}")
        A(f"v_bfe_u32 v{vT1}, v0, 2, 2"); A(f"v_lshl_add_u32 v{vT2}, v{vT1}, 4, v{vT2}")
        A(f"v_mov_b32 v{vT1}, 0")
        stamp(7)
        A("s_branch L_qwait1")
        A("L_qwait:")
        A("s_sleep 2")
        A("L_qwait1:")
        A(f"ds_read_b32 v{SR}, v{vT1} offset:{QF}")
        A(f"ds_read_b128 {r4(QB)}, v{vT2} offset:{QL}")
        A(f"s_add_u32 s{sSPIN}, s{sSPIN}, 1"); A(f"s_cmp_gt_u32 s{sSPIN}, {spin*16}")
        A("s_waitcnt lgkmcnt(0)")
        A(f"v_cmp_eq_u32 vcc, 0, v{SR}")
        if sx != "b1":
            A("s_cbranch_scc1 L_qgot")
            A("s_cbranch_vccnz L_qwait")
        A("L_qgot:")
        stamp(4)
        NSR = (NS + 3) // 4
        if NS % 4: A(f"v_mov_b32 v{SR+NSR-1}, 0xff800000")
        Ds = [A0, A1, D1, D2]
        def mf(t): A(f"v_mfma_f32_16x16x32_bf16 {r4(Ds[t%4])}, {r4(kreg(t))}, {r4(QB)}, 0")
        def ops(t):
            b = t & 3; S = SR + (t >> 2); D = Ds[t % 4]; bm = f"row_mask:0xf bank_mask:{1<<b:#x}"
            A(f"v_add_f32_dpp v{S}, v{D+((b+1)&3)}, v{D+b} row_ror:12 {bm}")
            A(f"v_add_f32_dpp v{S}, v{D+((b+2)&3)}, v{S} row_ror:8 {bm}")
            A(f"v_add_f32_dpp v{S}, v{D+((b+3)&3)}, v{S} row_ror:4 {bm}")
        for t in range(4): mf(t)
        A("s_nop 4")
        for t in range(NS):
            ops(t)
            if t + 4 < NS: mf(t + 4)
            elif t < NS - 1: A("s_nop 0")
        for p in range(0, NSR - 1, 2):
            a, b = SR + p, SR + p + 1
            A(f"v_cvt_pk_bf16_f32 v{b}, v{a}, v{b}"); A(f"v_lshlrev_b32 v{a}, 16, v{b}"); A(f"v_and_b32 v{b}, 0xffff0000, v{b}")
            A(f"v_mul_f32 v{a}, {SCALE:#x}, v{a}"); A(f"v_mul_f32 v{b}, {SCALE:#x}, v{b}")
            A(f"v_cvt_pk_bf16_f32 v{b}, v{a}, v{b}"); A(f"v_lshlrev_b32 v{a}, 16, v{b}"); A(f"v_and_b32 v{b}, 0xffff0000, v{b}")
        if NSR % 2:
            a = SR + NSR - 1
            bf16r(a, a); A(f"v_mul_f32 v{a}, {SCALE:#x}, v{a}"); bf16r(a, a)
        m = vM; l = vL
        A(f"v_max3_f32 v{m}, v{SR}, v{SR+1}, v{SR+2}")
        if NSR == 4: A(f"v_max_f32 v{m}, v{m}, v{SR+3}")
        allred_banks_rows(m, D1, "v_max_f32")
        A(f"v_mul_f32 v{vT2}, s{sLOG2E}, v{m}")
        for T in range(NSR):
            A(f"v_fma_f32 v{SR+T}, v{SR+T}, s{sLOG2E}, -v{vT2}")
        for T in range(NSR):
            A(f"v_exp_f32 v{SR+T}, v{SR+T}")
        A(f"s_lshl_b32 s{sT1}, s3, 3"); A(f"v_lshl_add_u32 v{vMW}, v0, 5, s{sT1}")
        A(f"v_add_f32 v{l}, v{SR}, v{SR+1}"); A(f"v_add_f32 v{l}, v{l}, v{SR+2}")
        if NSR == 4: A(f"v_add_f32 v{l}, v{l}, v{SR+3}")
        allred_banks_rows(l, D1, "v_add_f32")
        if not dyn: write_ml()
        for j in range(8): A(f"v_mov_b32 v{A0+j}, 0")
        A(f"v_and_b32 v{vHM}, 1, v0"); A(f"v_lshlrev_b32 v{vHM}, 4, v{vHM}"); A(f"v_mov_b32 v{D2+1}, 0xffff"); A(f"v_lshlrev_b32 v{vHM}, v{vHM}, v{D2+1}")
        for T in range(NSR):
            A(f"v_cvt_pk_bf16_f32 v{SR+T}, v{SR+T}, v{SR+T}")
        for T in range(NSR):
            A(f"v_and_b32 v{SR+T}, v{SR+T}, v{vHM}")
        A(f"v_and_b32 v{vOS}, 15, v0"); A(f"v_lshlrev_b32 v{vOS}, 5, v{vOS}"); A(f"v_lshl_add_u32 v{vOS}, v{vT0}, 3, v{vOS}")
        A(f"s_lshl_b32 s{sT1}, s3, 10"); A(f"v_add_u32 v{vOS}, s{sT1}, v{vOS}")
        A(f"v_mov_b32 v{vL2}, 0"); A(f"v_mov_b32 v{vONE}, 1"); A(f"v_mov_b32 v{vT2}, 0")
        tail_addr()
        stamp(5)

    def write_ml():
        A("s_mov_b64 exec, 5")
        A(f"ds_write_b64 v{vMW}, {r2(vM)} offset:{MW}")
        A("s_mov_b64 exec, -1")

    def after_b1():
        A(f"v_mov_b32 v{vT2}, 0"); A(f"ds_read_b32 v{vT2}, v{vT2} offset:{TG}")
        A("s_waitcnt lgkmcnt(0)")
        A(f"v_readfirstlane_b32 s{sEP}, v{vT2}")
        if dyn:
            A(f"s_mov_b32 s{sM4}, 0xf0f0f0f0"); A(f"s_mov_b32 s{sM4+1}, 0xf0f0f0f0")
        late_addr()

    def claim():
        A("s_mov_b64 exec, 1")
        A(f"ds_add_rtn_u32 v{vIDX}, v{vT2}, v{vONE} offset:{NXT}")
        A("s_mov_b64 exec, -1")

    def get_claim(tagname, endlabel):
        A("s_waitcnt lgkmcnt(0)")
        A(f"v_readfirstlane_b32 s{sCL}, v{vIDX}")
        A(f"s_lshr_b32 s{sT0}, s{sCL}, 3"); A(f"s_lshl_b32 s{sT0}, s{sT0}, 2"); A(f"v_mov_b32 v{vIDX}, s{sT0}")
        A(f"L_gc{tagname}:")
        A(f"ds_read_b32 v{D2+3}, v{vIDX} offset:{CLM}")
        A(f"s_add_u32 s{sSPIN}, s{sSPIN}, 1"); A(f"s_cmp_gt_u32 s{sSPIN}, {spin*16}"); A(f"s_cbranch_scc1 {endlabel}")
        A("s_waitcnt lgkmcnt(0)")
        A(f"v_readfirstlane_b32 s{sT0}, v{D2+3}")
        A(f"s_cmp_eq_u32 s{sT0}, -1"); A(f"s_cbranch_scc1 L_gc{tagname}")
        A(f"s_cmp_ge_u32 s{sT0}, {POOL}"); A(f"s_cbranch_scc1 {endlabel}")

    uid = [0]
    def sel3(sreg, emit):
        uid[0] += 1; u = uid[0]
        A(f"s_cmp_eq_u32 s{sreg}, 1"); A(f"s_cbranch_scc1 L_s{u}b"); A(f"s_cmp_eq_u32 s{sreg}, 2"); A(f"s_cbranch_scc1 L_s{u}c")
        emit(0); A(f"s_branch L_s{u}j")
        A(f"L_s{u}b:"); emit(1); A(f"s_branch L_s{u}j")
        A(f"L_s{u}c:"); emit(2)
        A(f"L_s{u}j:")

    def dyn_off():
        A(f"s_and_b32 s{sCL}, s{sCL}, 7"); A(f"s_lshl_b32 s{sT0}, s{sT0}, 3"); A(f"s_add_u32 s{sT0}, s{sT0}, s{sCL}"); A(f"s_lshl_b32 s{sT0}, s{sT0}, 10")

    def dyn_loads(p):
        A(f"buffer_load_dwordx4 {r4(DK[p])}, v{vK}, {srd(K)}, s{sT0} offen{pol}")
        A(f"buffer_load_dwordx4 {r4(DV[p])}, v{vV}, {srd(V)}, s{sT0} offen{pol}")

    def qk1():
        Xr, Y, Z = D2, D2 + 1, D2 + 2
        sel3(sPO, lambda p: A(f"v_mfma_f32_16x16x32_bf16 {r4(D1)}, {r4(DK[p])}, {r4(QB)}, 0"))
        A("s_nop 7")
        A(f"v_cndmask_b32 v{Xr}, v{D1}, v{D1+1}, s[{sM4}:{sM4+1}]"); A(f"v_cndmask_b32 v{Y}, v{D1+2}, v{D1+3}, s[{sM4}:{sM4+1}]")
        A(f"v_cndmask_b32 v{Xr}, v{Y}, v{Xr}, s[{sMASK}:{sMASK+1}]")
        for n in (4, 8):
            A("s_nop 1"); A(f"v_add_f32_dpp v{Xr}, v{Xr}, v{Xr} row_ror:{n} {DPPF}")
        bf16r(Xr, Xr); A(f"v_mul_f32 v{Xr}, {SCALE:#x}, v{Xr}"); bf16r(Xr, Xr)
        A(f"v_mov_b32 v{Y}, v{Xr}"); A(f"v_mov_b32 v{Z}, v{Xr}"); A("s_nop 1"); A(f"v_permlane16_swap_b32 v{Y}, v{Z}"); A("s_nop 1")
        A(f"v_max_f32 v{Y}, v{Y}, v{Z}"); A(f"v_mov_b32 v{Z}, v{Y}"); A("s_nop 1"); A(f"v_permlane32_swap_b32 v{Y}, v{Z}"); A("s_nop 1")
        A(f"v_max3_f32 v{Y}, v{Y}, v{Z}, v{vM}")
        A(f"v_sub_f32 v{Z}, v{vM}, v{Y}"); A(f"v_sub_f32 v{Xr}, v{Xr}, v{Y}")
        A(f"v_mul_f32 v{Z}, s{sLOG2E}, v{Z}"); A(f"v_mul_f32 v{Xr}, s{sLOG2E}, v{Xr}")
        A(f"v_exp_f32 v{Z}, v{Z}"); A(f"v_exp_f32 v{Xr}, v{Xr}")
        A(f"v_mov_b32 v{vM}, v{Y}")
        A(f"v_mul_f32 v{vL}, v{vL}, v{Z}"); A(f"v_fma_f32 v{vL2}, v{vL2}, v{Z}, v{Xr}")
        A(f"v_cvt_pk_bf16_f32 v{Xr}, v{Xr}, v{Xr}")
        for v in range(4):
            q = 0 if v < 2 else 2
            A(f"v_mul_f32_dpp v{ACC+v}, v{Z}, v{ACC+v} quad_perm:[{q},{q},{q},{q}] {DPPF}")
        A(f"v_and_b32 v{Xr}, v{Xr}, v{vHM}")
        A("s_nop 1")
        for j in range(4):
            A(f"v_mov_b32_dpp v{A0+j}, v{D2} quad_perm:[0,1,2,3] row_mask:0xf bank_mask:{1<<j:#x}")

    def pv1():
        sel3(sPO, lambda p: A(f"v_mfma_f32_16x16x32_bf16 {r4(ACC)}, {r4(A0)}, {r4(DV[p])}, {r4(ACC)}"))

    def fin_ml():
        Y = D2 + 1
        for sw in ("v_permlane16_swap_b32", "v_permlane32_swap_b32"):
            A(f"v_mov_b32 v{Y}, v{vL2}"); A("s_nop 1"); A(f"{sw} v{vL2}, v{Y}"); A("s_nop 1"); A(f"v_add_f32 v{vL2}, v{vL2}, v{Y}")
        A(f"v_add_f32 v{vL}, v{vL}, v{vL2}")
        write_ml()

    def pv(t):
        b = t & 3; P = SR + (t >> 2); a = A0 if t % 2 == 0 else A1
        for j in range(4):
            n = (4 * (j - b)) % 16
            ctl = "quad_perm:[0,1,2,3]" if n == 0 else f"row_ror:{n}"
            A(f"v_mov_b32_dpp v{a+j}, v{P} {ctl} row_mask:0xf bank_mask:{1<<j:#x}")
        A("s_nop 1")
        A(f"v_mfma_f32_16x16x32_bf16 {r4(ACC)}, {r4(a)}, {r4(vreg(t))}, {'0' if t == 0 else r4(ACC)}")

    state = {"qk": False, "pv": 0}

    def on_landed(nm):
        if dry:
            if nm == "U8": stamp(3); late_addr()
            return
        if nm[0] == "U":
            k = int(nm[1])
            if wide:
                if k == 0:
                    A("s_barrier")
                    if urot:
                        for i in range(9):
                            r_ = XA + i if i < 8 else vT2
                            A(f"v_add_u32 v{r_}, s{sC1}, v{vA2}")
                            if i < 8:
                                A(f"ds_read_b32 v{r_}, v{r_} offset:{XN}")
                                A(f"s_add_u32 s{sC1}, s{sC1}, 128"); A(f"s_cmp_eq_u32 s{sC1}, 1152"); A(f"s_cselect_b32 s{sC1}, 0, s{sC1}")
                    else:
                        for i in range(8): A(f"ds_read_b32 v{XA+i}, v{vA2} offset:{XN+128*i}")
                A(f"s_waitcnt lgkmcnt({min(k+8, 9) - k - 1})")
                gemv_mfma(XA + k % 8, S1D + 4 * k, D1, k == 0)
                if k == 0:
                    if urot: A(f"ds_read_b32 v{XA}, v{vT2} offset:{XN}")
                    else: A(f"ds_read_b32 v{XA}, v{vA2} offset:{XN+128*8}")
                if k == 8:
                    A(f"s_lshl_b32 s{sT1}, s3, 10"); A(f"v_lshl_add_u32 v{vT1}, v0, 4, s{sT1}")
                    A("s_nop 5")
                    A(f"ds_write_b128 v{vT1}, {r4(D1)} offset:{S1}")
                    A("s_waitcnt lgkmcnt(0)"); A("s_barrier")
                    stamp(3)
                    after_b1()
                return
            if k == 0:
                A("s_barrier")
                for i in range(4): A(f"ds_read_b64 {r2(XA+2*i)}, v{vA2} offset:{XN+256*i}")
            A(f"s_waitcnt lgkmcnt({min(k+4, 9) - k - 1})")
            x = XA + 2 * (k % 4)
            gemv_mfma(x, S1D + 4 * k, D1, k == 0)
            gemv_mfma(x + 1, S1D + 4 * k, D2, k == 0)
            if k + 4 < 9: A(f"ds_read_b64 {r2(x)}, v{vA2} offset:{XN+256*(k+4)}")
            if k == 8:
                A(f"v_and_b32 v{vT1}, 7, v0"); A(f"v_lshl_add_u32 v{vT1}, v{vT0}, 3, v{vT1}"); A(f"s_lshl_b32 s{sT1}, s3, 9")
                A(f"v_lshl_add_u32 v{vT1}, v{vT1}, 4, s{sT1}")
                A("s_nop 3")
                for v in range(4): A(f"v_add_f32_dpp v{D1+v}, v{D2+v}, v{D1+v} row_ror:8 {DPPF}")
                A(f"s_mov_b64 exec, s[{sMASK}:{sMASK+1}]")
                A(f"ds_write_b128 v{vT1}, {r4(D1)} offset:{S1}")
                A("s_mov_b64 exec, -1")
                A("s_waitcnt lgkmcnt(0)"); A("s_barrier")
                stamp(3)
                after_b1()
        elif nm[0] in "VW" and state["qk"]:
            t = max(int(n[1:]) for n in names[:names.index(nm)+1] if n[0] == "V")
            while state["pv"] <= t:
                pv(state["pv"]); state["pv"] += 1

    N = len(loads)
    landed = -1
    ib2 = names.index(f"V{b2}")
    lastK = max(i for i, n in enumerate(names) if n[0] == "K")
    assert names.index("U8") + depth < names.index("V7")
    assert b2 <= NS - 1
    for i, (nm, code) in enumerate(loads):
        if nm == "U0": rest_of_prologue()
        if nm == sprio_off: A("s_setprio 0")
        for c in code: A(c)
        if dyn and not dry and nm == f"V{NS-1-clead}" and i > ib2:
            claim()
        if i >= depth:
            if i - depth > landed:
                A(f"s_waitcnt vmcnt({depth})")
                landed = i - depth
            on_landed(names[landed])
        if i == ib2:
            if landed < lastK:
                landed = lastK; A(f"s_waitcnt vmcnt({i - landed})")
            if dry: stamp(7)
            else:
                qk_block()
                if dyn:
                    if names.index(f"V{NS-1-clead}") <= ib2: claim()
            state["qk"] = True
    iVl = names.index(f"V{NS-1}")
    def drain(extra, upto=None, frm=None):
        ld = landed if frm is None else frm
        while ld < (iVl if upto is None else upto):
            ld += 1
            if names[ld][0] == "V":
                A(f"s_waitcnt vmcnt({N-1-ld+extra})")
                on_landed(names[ld])
    if not dyn or dry:
        drain(0)
    else:
        LL = [c for _, code in late_loads() for c in code]
        A(f"s_mul_i32 s{sT0}, s{sS}, {NS*8192}"); A(f"s_lshl_b32 s{sT1}, s3, 10"); A(f"s_add_u32 s{sT0}, s{sT0}, s{sT1}")
        A(f"s_sub_u32 s{sT0}, {NS*65536}, s{sT0}")
        A(f"v_add_u32 v{vK}, s{sT0}, v{vK}"); A(f"v_add_u32 v{vV}, s{sT0}, v{vV}")
        A(f"s_mov_b32 s{sPO}, 0"); A(f"s_mov_b32 s{sPI}, 2"); A(f"s_mov_b32 s{sNP}, 2"); A(f"s_mov_b32 s{sWC}, 0")
        stamp(13)
        pv0 = state["pv"]
        get_claim("0", "L_end0")
        dyn_off(); claim(); dyn_loads(0)
        drain(2, upto=iVl - 2)
        get_claim("1", "L_e1")
        dyn_off(); claim(); dyn_loads(1)
        A("s_branch L_e1j")
        A("L_e1:")
        A(LL[0]); A(LL[1]); A(f"s_mov_b32 s{sNP}, 1"); A(f"s_mov_b32 s{sWC}, 1")
        A("L_e1j:")
        drain(4, frm=max(landed, iVl - 2))
        A("L_loop:")
        A(f"s_cmp_lg_u32 s{sWC}, 0"); A("s_cbranch_scc1 L_w")
        get_claim("L", "L_w")
        dyn_off(); claim()
        sel3(sPI, dyn_loads)
        A(f"s_add_u32 s{sPI}, s{sPI}, 1"); A(f"s_cmp_eq_u32 s{sPI}, 3"); A(f"s_cselect_b32 s{sPI}, 0, s{sPI}")
        A("s_branch L_proc")
        A("L_w:")
        A(f"s_sub_u32 s{sNP}, s{sNP}, 1")
        A(f"s_cmp_lg_u32 s{sWC}, 0"); A("s_cbranch_scc1 L_w2")
        A(LL[0]); A(LL[1]); A(f"s_mov_b32 s{sWC}, 1"); A("s_branch L_proc")
        A("L_w2:")
        A(LL[2]); A(LL[3])
        A("L_proc:")
        A("s_waitcnt vmcnt(5)")
        qk1()
        A(f"s_cmp_lg_u32 s{sNP}, 0"); A("s_cbranch_scc1 L_nofin")
        fin_ml()
        A("L_nofin:")
        A("s_waitcnt vmcnt(4)")
        pv1()
        A(f"s_add_u32 s{sPO}, s{sPO}, 1"); A(f"s_cmp_eq_u32 s{sPO}, 3"); A(f"s_cselect_b32 s{sPO}, 0, s{sPO}")
        A(f"s_cmp_lg_u32 s{sNP}, 0"); A("s_cbranch_scc1 L_loop")
        A(LL[4])
        A("s_branch L_vdone")
        A("L_end0:")
        for c in LL: A(c)
        write_ml()
        state["pv"] = pv0
        drain(5)
        A("L_vdone:")
    stamp(6)
    if dry or sx in ("b1", "gather", "svcw", "ml"):
        A("s_waitcnt vmcnt(0)"); stamp(8); A("s_branch L_fin")
    A("s_nop 7")
    A(f"ds_write2st64_b64 v{vOS}, {r2(ACC)}, {r2(ACC+2)} offset0:{OS//512} offset1:{OS//512+1}")
    A("s_waitcnt lgkmcnt(0)")
    A("s_barrier")
    stamp(12)
    if after is not None:
        if after: A(f"s_sleep {after}")
        for _, code in late_loads()[nw_before:]:
            for c in code: A(c)
    if latepos == "end": A("s_waitcnt vmcnt(2)")
    w2_mfmas()
    A("s_waitcnt vmcnt(0)")
    stamp(8)
    if sx == "pub": A("s_branch L_fin")
    A("s_barrier")
    A(f"ds_read_b128 {r4(PL)}, v{vT1} offset:{ZL}")
    A("s_waitcnt lgkmcnt(0)")
    A("s_branch L_tail")

    svc0 = len(L)
    A("L_service:")
    if dry: A("s_endpgm")
    if prio: A(f"s_setprio {prio}")
    XS = SV + 8
    PA = 60
    srd_const(X); srd_const(WS)
    A(f"v_lshrrev_b32 v{vA1}, 5, v0"); A(f"v_mul_u32_u24 v{vA2}, 1152, v{vA1}")
    A(f"v_and_b32 v{vT2}, 31, v0"); A(f"v_mad_u32_u24 v{vA2}, v{vT2}, 36, v{vA2}")
    A(f"s_mov_b32 s{sU}, 1"); A(f"s_lshl_b32 s{sT3}, s{sHKV}, 4")
    A("s_waitcnt lgkmcnt(0)")
    stamp(1)
    if ticket:
        A(f"s_atomic_add s{sU}, s[{KA+20}:{KA+21}], s{sT3} glc")
    srd_ptr(X)
    A(f"buffer_load_dwordx4 {r4(XS)}, v{vA2}, {srd(X)}, 0 offen")
    A(f"buffer_load_dwordx4 {r4(XS+4)}, v{vA2}, {srd(X)}, 0 offen offset:16")
    A(f"buffer_load_dword v{XS+8}, v{vA2}, {srd(X)}, 0 offen offset:32")
    srd_ptr(WS)
    if not ticket: A(f"s_load_dword s{sEP}, s[{WS}:{WS+1}], {EP}")
    A(f"v_lshlrev_b32 v{vK}, 4, v0")
    A(f"s_mul_i32 s{sT0}, s2, {REC}"); A(f"v_add_u32 v{vV}, s{sT0}, v{vK}")
    A(f"v_mov_b32 v{SV+4}, 0"); A(f"v_lshlrev_b32 v{SV+5}, 2, v0")
    A(f"ds_write_b32 v{SV+4}, v{SV+4} offset:{QF}")
    A(f"v_mov_b32 v{SV+6}, -1"); A(f"v_and_b32 v{SV+5}, 124, v{SV+5}"); A(f"ds_write_b32 v{SV+5}, v{SV+6} offset:{MW}")
    if dyn:
        A(f"ds_write_b32 v{SV+5}, v{SV+6} offset:{CLM}"); A(f"ds_write_b32 v{SV+4}, v{SV+4} offset:{NXT}")
    for d in (WO, W2, OUT): srd_const(d); srd_ptr(d)
    if ticket:
        A("s_waitcnt lgkmcnt(0)")
        A(f"s_and_b32 s{sU}, s{sU}, 15")
        unit_id(sU)
        A(f"v_mov_b32 v{SV+5}, s{sU}")
        A(f"ds_write_b32 v{SV+4}, v{SV+5} offset:{UN}")
        A("s_waitcnt lgkmcnt(0)")
        A("s_barrier")
        A(f"s_load_dword s{sEP}, s[{WS}:{WS+1}], {EP}")
    else:
        unit_id(sJ)
    stamp(7)
    ffn_ids()
    A(f"s_mov_b32 s{sLOG2E}, {LOG2E:#x}"); A(f"s_mov_b32 s{sSPIN}, 0"); A(f"s_movk_i32 s{sTM}, {TMASK:#x}")
    A(f"s_mov_b32 s{sMASK}, 0x00ff00ff"); A(f"s_mov_b32 s{sMASK+1}, 0x00ff00ff")
    masks(SV + 5)
    A(f"v_lshlrev_b32 v{vA2}, 1, v{vA2}")
    U = 12
    A("s_waitcnt vmcnt(0)")
    stamp(12)
    for i in range(9):
        A(f"v_lshlrev_b32 v{U+2*i}, 16, v{XS+i}"); A(f"v_and_b32 v{U+2*i+1}, 0xffff0000, v{XS+i}")
    s = XS
    A(f"v_add_f32 v{s}, v{U}, v{U+1}"); A(f"v_add_f32 v{s+1}, v{U+2}, v{U+3}")
    for i in range(4, 18, 2):
        A(f"v_add_f32 v{s}, v{s}, v{U+i}"); A(f"v_add_f32 v{s+1}, v{s+1}, v{U+i+1}")
    A(f"v_add_f32 v{s}, v{s}, v{s+1}")
    allred32(s, s + 1)
    A(f"v_mul_f32 v{s}, {0x3AE38E39:#x}, v{s}")
    W = 40
    for i in range(18):
        A(f"v_sub_f32 v{W+i}, v{U+i}, v{s}")
    A(f"v_mul_f32 v{s+2}, v{W}, v{W}"); A(f"v_mul_f32 v{s+3}, v{W+1}, v{W+1}")
    for i in range(2, 18, 2):
        A(f"v_fmac_f32 v{s+2}, v{W+i}, v{W+i}"); A(f"v_fmac_f32 v{s+3}, v{W+i+1}, v{W+i+1}")
    A(f"v_add_f32 v{s+2}, v{s+2}, v{s+3}")
    allred32(s + 2, s + 3)
    A(f"v_mul_f32 v{s+2}, {0x3AE38E39:#x}, v{s+2}")
    bf16r(s + 2, s + 2)
    A(f"v_add_f32 v{s+2}, {0x3727C5AC:#x}, v{s+2}")
    bf16r(s + 2, s + 2)
    A(f"v_sqrt_f32 v{s+2}, v{s+2}")
    bf16r(s, s)
    bf16r(s + 2, s + 2)
    A(f"v_rcp_f32 v{s+2}, v{s+2}")
    for i in range(18):
        A(f"v_sub_f32 v{U+i}, v{U+i}, v{s}")
    for i in range(0, 18, 2):
        A(f"v_cvt_pk_bf16_f32 v{U+i+1}, v{U+i}, v{U+i+1}"); A(f"v_lshlrev_b32 v{U+i}, 16, v{U+i+1}"); A(f"v_and_b32 v{U+i+1}, 0xffff0000, v{U+i+1}")
        A(f"v_mul_f32 v{U+i}, v{U+i}, v{s+2}"); A(f"v_mul_f32 v{U+i+1}, v{U+i+1}, v{s+2}")
        A(f"v_cvt_pk_bf16_f32 v{U+i}, v{U+i}, v{U+i}"); A(f"v_cvt_pk_bf16_f32 v{U+i+1}, v{U+i+1}, v{U+i+1}")
        A(f"ds_write_b64 v{vA2}, {r2(U+i)} offset:{XN+4*i}")
    A("s_waitcnt lgkmcnt(0)")
    A("s_barrier")
    stamp(2)
    A(f"s_add_u32 s{sEP}, s{sEP}, 1"); A(f"s_and_b32 s{sT0}, s{sEP}, s{sTM}"); A(f"s_and_b32 s{sT16}, s{sEP}, 0xffff")
    A(f"v_mov_b32 v{vTAG}, s{sEP}")
    A(f"ds_write_b32 v{SV+4}, v{vTAG} offset:{TG}")
    A(f"v_mov_b32 v{vTAG}, s{sT0}")
    if dyn:
        A(f"s_lshl_b32 s{sT0}, s{sEP}, 10"); A(f"v_mov_b32 v{SV+5}, s{sT0}"); A(f"v_lshlrev_b32 v{SV+6}, 2, v0")
        A(f"s_lshr_b32 s{sT0}, s2, 3"); A(f"s_lshl_b32 s{sT0}, s{sT0}, 7"); A(f"s_add_u32 s{sT0}, s{sT0}, {CNT}")
        A(f"s_cmp_eq_u32 s{sS}, 0"); A(f"s_cselect_b32 s{sT0}, s{sT0}, {HUGE}")
        A("s_mov_b64 exec, 1")
        A(f"buffer_store_dword v{SV+5}, v{SV+6}, {srd(WS)}, s{sT0} offen sc1")
        A("s_mov_b64 exec, -1")
    TQ, TG0 = 62, 63
    T = SV + 8
    GT = 40
    A(f"v_and_b32 v{SV+1}, 7, v0"); A(f"v_bfe_u32 v{SV}, v0, 3, 1")
    if wide:
        A(f"v_mul_u32_u24 v{PA}, {P1B}, v{vA1}"); A(f"v_and_b32 v{SV+2}, 15, v0"); A(f"v_lshl_add_u32 v{PA}, v{SV+2}, 5, v{PA}")
        A(f"v_and_b32 v{SV+2}, 1, v{vT0}"); A(f"v_lshl_add_u32 v{PA}, v{SV+2}, 4, v{PA}")
        A(f"s_lshr_b32 s{sC1}, s{sU}, 1"); A(f"s_lshl_b32 s{sC1}, s{sC1}, 9"); A(f"s_and_b32 s{sT1}, s{sU}, 1"); A(f"s_mul_i32 s{sT1}, s{sT1}, {2*P1B}")
        A(f"s_add_u32 s{sC1}, s{sC1}, s{sT1}"); A(f"s_add_u32 s{sC1}, s{sC1}, {P1}")
    else:
        A(f"v_bfe_u32 v{PA}, v0, 4, 1"); A(f"v_mul_u32_u24 v{PA}, {P1B}, v{PA}")
        A(f"v_lshl_add_u32 v{PA}, v{SV+1}, 5, v{PA}")
        A(f"v_lshl_add_u32 v{PA}, v{SV}, 4, v{PA}")
        A(f"s_lshl_b32 s{sC1}, s{sU}, 8"); A(f"s_add_u32 s{sC1}, s{sC1}, {P1}")
    A(f"s_cmp_lt_u32 s{sU}, 208"); A(f"s_cselect_b32 s{sC1}, s{sC1}, {HUGE}")
    A(f"s_mul_i32 s{sT2}, s{sB}, {P1B}"); A(f"s_lshl_b32 s{sT3}, s{sHKV}, 10"); A(f"s_add_u32 s{sT2}, s{sT2}, s{sT3}"); A(f"s_add_u32 s{sT2}, s{sT2}, {P1}")
    A(f"s_add_u32 s{sC2}, s{sT2}, {2*P1B}")
    A(f"v_mul_u32_u24 v{vA2}, {P1B}, v{SV}"); A(f"v_mul_u32_u24 v{vA1}, 18432, v{vA1}"); A(f"v_add_u32 v{vA2}, v{vA2}, v{vA1}")
    A(f"v_lshl_add_u32 v{vA2}, v{SV+1}, 4, v{vA2}")
    if wide:
        A(f"v_mul_u32_u24 v{SV+2}, {2*P1B}, v{SV+2}"); A(f"v_add_u32 v{vA2}, v{vA2}, v{SV+2}")
        A(f"v_mov_b32 v{SV+2}, v{SV+1}"); A(f"v_mov_b32 v{TQ}, v{vTAG}"); A(f"s_mov_b32 s{sT1}, s{sTM}")
    else:
        A(f"v_and_b32 v{SV+2}, 23, v0"); A(f"v_mov_b32 v{TQ}, s{sT16}"); A(f"s_mov_b32 s{sT1}, 0xffff")
    A(f"v_mov_b32 v{SV+3}, {HUGE}")
    A(f"v_cmp_gt_u32 vcc, 5, v{SV+2}"); A("s_nop 1")
    A(f"v_cndmask_b32 v{vA2}, v{SV+3}, v{vA2}, vcc"); A(f"v_cndmask_b32 v{TG0}, 0, v{TQ}, vcc")
    A(f"s_mul_i32 s{sT3}, s2, 18"); A(f"s_and_b32 s{sC3}, s{sT3}, 2"); A(f"s_andn2_b32 s{sT3}, s{sT3}, 3")
    A(f"s_lshl_b32 s{sT3}, s{sT3}, 2"); A(f"s_add_u32 s{sT3}, s{sT3}, {P1 + 16384}")
    A("s_barrier")
    for w in range(8):
        A(f"ds_read_b128 {r4(T+4*w)}, v{vK} offset:{S1 + w*(1024 if wide else 512)}")
    for w in range(1, 8):
        A(f"s_waitcnt lgkmcnt({7-w})")
        for v in range(4):
            A(f"v_add_f32 v{ACC+v}, v{T+v if w == 1 else ACC+v}, v{T+4*w+v}")
    if wide:
        for v in range(4): A(f"v_add_u32 v{ACC+v}, {(TMASK+1)//2}, v{ACC+v}")
    else:
        for v in range(4): A(f"v_cvt_pk_bf16_f32 v{ACC+v}, v{ACC+v}, v{ACC+v}")
    for v in range(4): A(f"v_bfi_b32 v{ACC+v}, s{sT1}, v{TQ}, v{ACC+v}")
    if not wide: A("s_mov_b64 exec, 0xffffffff")
    A(f"buffer_store_dwordx4 {r4(ACC)}, v{PA}, {srd(WS)}, s{sC1} offen sc1")
    A("s_mov_b64 exec, -1")
    stamp(3)
    if sx == "b1": A("s_endpgm")
    A("s_branch L_gather1")
    A("L_gather:")
    if gsleep: A(f"s_sleep {gsleep}")
    A("L_gather1:")
    nq = 8 if wide else 4
    A(f"buffer_load_dwordx4 {r4(T)}, v{vK}, {srd(WS)}, s{sT2} offen sc1")
    if wide: A(f"buffer_load_dwordx4 {r4(T+4)}, v{vK}, {srd(WS)}, s{sC2} offen sc1")
    A(f"buffer_load_dwordx4 {r4(GT)}, v{vA2}, {srd(WS)}, s{sT3} offen sc1")
    A(f"s_add_u32 s{sSPIN}, s{sSPIN}, 1"); A(f"s_cmp_gt_u32 s{sSPIN}, {spin}")
    A("s_waitcnt vmcnt(0)")
    untag_check([T + i for i in range(nq)] + [GT + i for i in range(4)], [TQ] * nq + [TG0] * 4, SV, f"s{sT1}")
    A("s_cbranch_scc1 L_gotg")
    A("s_cbranch_vccnz L_gather")
    A("L_gotg:")
    if wide:
        for v in range(4): A(f"v_add_f32 v{T+v}, v{T+v}, v{T+4+v}")
        A(f"v_cvt_pk_bf16_f32 v{T}, v{T}, v{T+1}"); A(f"v_cvt_pk_bf16_f32 v{T+1}, v{T+2}, v{T+3}")
    else:
        A(f"v_lshrrev_b32 v{T}, 16, v{T}"); A(f"v_lshrrev_b32 v{T+2}, 16, v{T+2}")
        A(f"v_or_b32 v{T}, v{T}, v{T+1}"); A(f"v_or_b32 v{T+1}, v{T+2}, v{T+3}")
    A(f"v_lshlrev_b32 v{vA1}, 3, v0")
    A(f"ds_write_b64 v{vA1}, {r2(T)} offset:{QL}")
    if wide:
        for v in range(4): A(f"v_mov_b32 v{GT+4+v}, v{GT+v}")
        A("s_nop 1")
        for v in range(4): A(f"v_permlane16_swap_b32 v{GT+v}, v{GT+4+v}")
        A("s_nop 1")
        for v in range(4): A(f"v_add_f32 v{GT+v}, v{GT+v}, v{GT+4+v}")
        for v in range(4): bf16r(GT + v, GT + v)
    for v in range(4): A(f"v_mov_b32 v{GT+4+v}, v{GT+v}")
    A("s_nop 1")
    for v in range(4): A(f"v_permlane32_swap_b32 v{GT+v}, v{GT+4+v}")
    A("s_nop 1")
    for v in range(4): A(f"v_mul_f32 v{GT+8+v}, s{sLOG2E}, v{GT+v}")
    for v in range(4): A(f"v_exp_f32 v{GT+8+v}, -v{GT+8+v}")
    for v in range(4): A(f"v_add_f32 v{GT+8+v}, 1.0, v{GT+8+v}")
    for v in range(4): A(f"v_rcp_f32 v{GT+8+v}, v{GT+8+v}")
    for v in range(4): A(f"v_mul_f32 v{GT+v}, v{GT+v}, v{GT+8+v}")
    for v in range(4): bf16r(GT + v, GT + v)
    for v in range(4): A(f"v_mul_f32 v{GT+v}, v{GT+v}, v{GT+4+v}")
    for v in range(4): A(f"v_cvt_pk_bf16_f32 v{GT+v}, v{GT+v}, v{GT+v}")
    A(f"v_bfe_u32 v{vA1}, v0, 3, 1"); A(f"v_mul_u32_u24 v{vA1}, 160, v{vA1}"); A(f"v_lshl_add_u32 v{vA1}, v{SV+1}, 4, v{vA1}")
    A(f"s_lshl_b32 s{sC3}, s{sC3}, 2"); A(f"v_subrev_u32 v{vA1}, s{sC3}, v{vA1}"); A(f"v_add_u32 v{vA1}, {HD+8}, v{vA1}")
    A("s_mov_b64 exec, 0xffff")
    A(f"ds_write_b64 v{vA1}, {r2(GT)}"); A(f"ds_write_b64 v{vA1}, {r2(GT+2)} offset:8")
    A("s_mov_b64 exec, -1")
    A(f"v_mov_b32 v{SV+2}, 0"); A(f"v_mov_b32 v{SV+3}, 1")
    A("s_waitcnt lgkmcnt(0)")
    A(f"ds_write_b32 v{SV+2}, v{SV+3} offset:{QF}")
    stamp(5)
    if sx == "gather": A("s_endpgm")
    late_addr()
    for nm, code in late_loads():
        for c in code: A(c)
    A(f"s_lshl_b32 s{sT0}, s{sSL}, 6"); A(f"v_lshlrev_b32 v{SV+20}, 2, v0"); A(f"v_add_u32 v{SV+20}, s{sT0}, v{SV+20}")
    A(f"buffer_load_dword v{SV+21}, v{SV+20}, {srd(X)}, 0 offen")
    if sx == "svcw": A("s_endpgm")
    tail_addr()
    A(f"v_and_b32 v{vA1}, 15, v0"); A(f"s_lshl_b32 s{sT1}, s{sHKV}, 4"); A(f"v_add_u32 v{vA1}, s{sT1}, v{vA1}")
    A(f"v_mul_u32_u24 v{vA1}, {REC}, v{vA1}")
    A(f"s_mul_i32 s{sT2}, s{sJ}, {64 if earlyml else 80}"); A(f"v_lshl_add_u32 v{vA2}, v{vT0}, 4, v{vA1}")
    A(f"s_cmp_eq_u32 s{sB}, 1"); A(f"s_cselect_b64 s[{sSEL}:{sSEL+1}], -1, 0")
    if not earlyml:
        A(f"s_mul_i32 s{sT0}, s2, {REC}")
        A(f"v_lshrrev_b32 v{vV}, 2, v0"); A(f"v_mul_u32_u24 v{vV}, 80, v{vV}"); A(f"v_and_b32 v{SV+1}, 3, v0"); A(f"v_lshl_add_u32 v{vV}, v{SV+1}, 4, v{vV}")
        A(f"v_add_u32 v{vV}, s{sT0}, v{vV}")
        A(f"v_mul_u32_u24 v{SV+1}, 80, v0"); A(f"v_add_u32 v{SV+1}, s{sT0}, v{SV+1}")
    A("s_mov_b32 s0, 0x01010101"); A("s_mov_b32 s1, 0x01010101")
    FW = 80
    steps = ("quad_perm:[1,0,3,2]", "quad_perm:[2,3,0,1]", "row_half_mirror")
    A(f"v_and_b32 v{SV+2}, 15, v0"); A(f"v_lshlrev_b32 v{SV+3}, 2, v{SV+2}"); A(f"v_lshlrev_b32 v{SV+2}, 3, v{SV+2}")
    A(f"v_lshrrev_b32 v{SV}, 5, v0"); A(f"v_lshlrev_b32 v{SV}, 5, v{SV}")
    if dyn:
        sJN, sTH = 46, 47
        A(f"s_lshr_b32 s{sT1}, s2, 3"); A(f"s_lshl_b32 s{sT0}, s{sT1}, 7"); A(f"s_add_u32 s{sT0}, s{sT0}, {CNT}")
        A(f"s_add_u32 s{sCB}, s{WS}, s{sT0}"); A(f"s_addc_u32 s{sCB+1}, s{WS+1}, 0")
        A(f"s_mul_i32 s{sKO}, s{sT1}, 0x9E3779B1"); A(f"s_mul_hi_u32 s{sKO}, s{sKO}, {POOL}")
        A(f"s_lshl_b32 s{sUO}, s{sEP}, 10")
        A(f"s_mov_b32 s{sJN}, 0"); A(f"s_mov_b32 s{sTH}, 0")
        A(f"v_mov_b32 v{SV+8}, 0"); A(f"v_lshlrev_b32 v{SV+10}, 2, v0"); A(f"v_and_b32 v{SV+10}, 124, v{SV+10}")
    A("L_mlwait:")
    A(f"s_sleep {mlsleep}")
    A("L_mlw1:")
    A(f"ds_read_b64 {r2(SV+6)}, v{SV+2} offset:{MW}")
    if dyn: A(f"ds_read_b32 v{SV+9}, v{SV+8} offset:{NXT}")
    A(f"s_add_u32 s{sSPIN}, s{sSPIN}, 1"); A(f"s_cmp_gt_u32 s{sSPIN}, {spin*16}")
    A("s_waitcnt lgkmcnt(0)")
    A(f"v_cmp_eq_u32 vcc, -1, v{SV+7}")
    A(f"v_max_f32_dpp v{SV+4}, v{SV+6}, v{SV+6} {steps[0]} {DPPF}")
    A("s_cbranch_scc1 L_mlgot")
    if dyn:
        A("s_cbranch_vccz L_mlgot")
        A(f"v_readfirstlane_b32 s{sT0}, v{SV+9}")
        A(f"s_cmp_gt_u32 s{sT0}, s{sTH}"); A("s_cbranch_scc0 L_mlwait")
        A("L_clm:")
        A(f"s_mov_b32 s{sCL}, 1"); A(f"s_atomic_add s{sCL}, s[{sCB}:{sCB+1}], 0 glc")
        A(f"s_add_u32 s{sSPIN}, s{sSPIN}, 1"); A(f"s_cmp_gt_u32 s{sSPIN}, {spin*16}"); A("s_cbranch_scc1 L_mlgot")
        A("s_waitcnt lgkmcnt(0)")
        A(f"s_xor_b32 s{sT0}, s{sCL}, s{sUO}"); A(f"s_cmp_lt_u32 s{sT0}, 1024"); A("s_cbranch_scc0 L_clm")
        A(f"s_cmp_ge_u32 s{sT0}, {POOL}"); A("s_cbranch_scc1 L_clend")
        A(f"s_add_u32 s{sT0}, s{sT0}, s{sKO}"); A(f"s_sub_u32 s{sT1}, s{sT0}, {POOL}"); A(f"s_cselect_b32 s{sT0}, s{sT0}, s{sT1}")
        A(f"v_mov_b32 v{SV+9}, s{sT0}"); A(f"v_mov_b32 v{SV+11}, s{sJN}")
        A(f"ds_write_b32 v{SV+11}, v{SV+9} offset:{CLM}")
        A(f"s_add_u32 s{sJN}, s{sJN}, 4"); A(f"s_lshl_b32 s{sTH}, s{sJN}, 1"); A(f"s_sub_u32 s{sTH}, s{sTH}, {look}")
        A(f"s_cmp_lt_u32 s{sJN}, 112"); A("s_cbranch_scc1 L_mlw1")
        A("L_clend:")
        A(f"v_cmp_le_u32 vcc, s{sJN}, v{SV+10}"); A(f"v_mov_b32 v{SV+9}, 255"); A(f"s_mov_b32 s{sTH}, -1")
        A(f"s_and_saveexec_b64 s[{sOK}:{sOK+1}], vcc")
        A(f"ds_write_b32 v{SV+10}, v{SV+9} offset:{CLM}")
        A("s_mov_b64 exec, -1")
        A("s_branch L_mlw1")
    else:
        A("s_cbranch_vccnz L_mlwait")
    A("L_mlgot:")
    A("s_nop 0")
    A(f"v_max_f32_dpp v{SV+4}, v{SV+4}, v{SV+4} {steps[1]} {DPPF}"); A("s_nop 1")
    A(f"v_max_f32_dpp v{SV+4}, v{SV+4}, v{SV+4} {steps[2]} {DPPF}")
    A(f"v_sub_f32 v{SV+6}, v{SV+6}, v{SV+4}"); A(f"v_mul_f32 v{SV+6}, s{sLOG2E}, v{SV+6}"); A(f"v_exp_f32 v{SV+6}, v{SV+6}"); A("s_nop 0")
    A(f"ds_write_b32 v{SV+3}, v{SV+6} offset:{FWL}")
    A(f"v_mul_f32 v{SV+5}, v{SV+7}, v{SV+6}")
    A(f"ds_read_b128 {r4(FW)}, v{SV} offset:{FWL}"); A(f"ds_read_b128 {r4(FW+4)}, v{SV} offset:{FWL+16}")
    for s_ in steps:
        A(f"v_add_f32_dpp v{SV+5}, v{SV+5}, v{SV+5} {s_} {DPPF}"); A("s_nop 1")
    if fast:
        A(f"s_getreg_b32 s{sC3}, hwreg(HW_REG_XCC_ID)"); A(f"s_lshl_b32 s{sC3}, s{sC3}, 16"); A(f"v_mov_b32 v{SV+6}, s{sC3}")
    tag4(SV + 4)
    stamp(4)
    m, l = PL + 4, PL + 5
    M = TT + 1
    stamp(8)
    if sx == "ml": A("s_endpgm")
    A("s_barrier")
    OT = 128
    for w in range(8):
        A(f"ds_read_b128 {r4(OT+4*w)}, v{vK} offset:{OS+w*1024}")
    if not earlyml:
        A("s_mov_b64 exec, 0xffff")
        A(f"buffer_store_dwordx4 {r4(SV+4)}, v{SV+1}, {srd(WS)}, 0 offen offset:64{'' if fast else ' sc1'}")
        A("s_mov_b64 exec, -1")
    for w in range(8):
        A(f"s_waitcnt lgkmcnt({7-w})")
        f = FW + (w & ~1); sel = w & 1
        for hlf in range(2):
            d = f"v[{OT+2*hlf}:{OT+2*hlf+1}]"; x = f"v[{OT+4*w+2*hlf}:{OT+4*w+2*hlf+1}]"
            if w == 0: A(f"v_pk_mul_f32 {d}, {x}, v[{f}:{f+1}] op_sel:[0,{sel}] op_sel_hi:[1,{sel}]")
            else: A(f"v_pk_fma_f32 {d}, {x}, v[{f}:{f+1}], {d} op_sel:[0,{sel},0] op_sel_hi:[1,{sel},1]")
    tag4(OT)
    A(f"buffer_store_dwordx4 {r4(OT)}, v{vV}, {srd(WS)}, 0 offen{'' if fast else ' sc1'}")
    stamp(6)
    if sx == "pub": A("s_endpgm")
    if earlyml:
        A(f"s_cmp_eq_u64 s[{sOK}:{sOK+1}], 0"); A("s_cbranch_scc1 L_pollo")
        A("L_pollml:")
        if psleep: A(f"s_sleep {psleep}")
        A(f"buffer_load_dwordx4 {r4(PL+4)}, v{vA1}, {srd(WS)}, 0 offen offset:1024 sc1")
        A(f"s_add_u32 s{sSPIN}, s{sSPIN}, 1"); A(f"s_cmp_gt_u32 s{sSPIN}, {spin}")
        A("s_waitcnt vmcnt(0)")
        untag_check([PL + 4 + i for i in range(4)], [vTAG] * 4, TT + 1, f"s{sTM}")
        A("s_cbranch_scc1 L_gotml")
        A("s_cbranch_vccnz L_pollml")
        A("L_gotml:")
        coef()
        A("L_pollo:")
        PB = 136
        for k in range(npo - 1):
            A(f"buffer_load_dwordx4 {r4(PB+4*k)}, v{vA2}, {srd(WS)}, s{sT2} offen sc1")
        A("L_po0:")
        for k in range(npo):
            kk = (k + npo - 1) % npo
            A(f"buffer_load_dwordx4 {r4(PB+4*kk)}, v{vA2}, {srd(WS)}, s{sT2} offen sc1")
            if k == 0: A(f"s_add_u32 s{sSPIN}, s{sSPIN}, 1"); A(f"s_cmp_gt_u32 s{sSPIN}, {spin}")
            A(f"s_waitcnt vmcnt({npo-1})")
            for v in range(4): A(f"v_xor_b32 v{PL+v}, v{vTAG}, v{PB+4*k+v}")
            A(f"v_or3_b32 v{TT+1}, v{PL}, v{PL+1}, v{PL+2}"); A(f"v_or_b32 v{TT+1}, v{TT+1}, v{PL+3}")
            A(f"v_and_b32 v{TT+1}, s{sTM}, v{TT+1}"); A(f"v_cmp_ne_u32 vcc, 0, v{TT+1}")
            if k < npo - 1: A("s_cbranch_vccz L_goto")
            else:
                A("s_cbranch_scc1 L_goto"); A("s_cbranch_vccnz L_po0")
        A("L_goto:")
        stamp(9)
        for v in range(4): A(f"v_mul_f32 v{PL+v}, v{PL+v}, v{m}")
        for s_ in steps:
            for r in (PL, PL + 1, PL + 2, PL + 3):
                A(f"v_add_f32_dpp v{r}, v{r}, v{r} {s_} {DPPF}")
    else:
        def safe_store():
            A(f"s_mul_i32 s{sT0}, s2, {REC}"); A(f"s_mul_i32 s{sT1}, s2, 1280"); A(f"s_add_u32 s{sT1}, s{sT1}, {SAFE}"); A(f"s_sub_u32 s{sT1}, s{sT1}, s{sT0}")
            A(f"buffer_store_dwordx4 {r4(OT)}, v{vV}, {srd(WS)}, s{sT1} offen sc1")
            A("s_mov_b64 exec, 0xffff")
            A(f"buffer_store_dwordx4 {r4(SV+4)}, v{SV+1}, {srd(WS)}, s{sT1} offen offset:64 sc1")
            A("s_mov_b64 exec, -1")
            A(f"s_mov_b32 s{sT0}, 1")
        A(f"buffer_load_dwordx4 {r4(PL)}, v{vA2}, {srd(WS)}, s{sT2} offen sc1")
        A(f"buffer_load_dwordx4 {r4(PL+4)}, v{vA1}, {srd(WS)}, s{sT2} offen offset:64 sc1")
        A(f"s_mov_b32 s{sT0}, 0"); A(f"s_add_u32 s{sT3}, s{sSPIN}, {tmo if fast else spin}")
        A("s_waitcnt vmcnt(7)")
        w2_mfmas()
        A("s_branch L_pollo1")
        A("L_pollo:")
        A(f"buffer_load_dwordx4 {r4(PL)}, v{vA2}, {srd(WS)}, s{sT2} offen sc1")
        A(f"buffer_load_dwordx4 {r4(PL+4)}, v{vA1}, {srd(WS)}, s{sT2} offen offset:64 sc1")
        A("L_pollo1:")
        if psleep: A(f"s_sleep {psleep}")
        A(f"s_add_u32 s{sSPIN}, s{sSPIN}, 1"); A(f"s_cmp_gt_u32 s{sSPIN}, s{sT3}")
        A("s_waitcnt vmcnt(0)")
        untag_check([PL + 4 + i for i in range(4)] + [PL + i for i in range(4)], [vTAG] * 8, TT + 1, f"s{sTM}")
        A(f"v_max_f32_dpp v{M}, v{m}, v{m} {steps[0]} {DPPF}")
        if fast:
            A("s_cbranch_vccnz L_oretry")
            A(f"v_cmp_ne_u32 vcc, s{sC3}, v{PL+6}")
            A("s_cbranch_vccz L_goto")
            A(f"s_cmp_lg_u32 s{sT0}, 0"); A("s_cbranch_scc1 L_goto")
            safe_store()
            A("s_branch L_goto")
            A("L_oretry:")
            A("s_cbranch_scc1 L_otmo")
            A(f"s_cmp_eq_u32 s{sT0}, 0"); A("s_cbranch_scc1 L_pollo")
            A("L_oswap:")
            A(f"v_swap_b32 v{vA1}, v{SV+12}"); A(f"v_swap_b32 v{vA2}, v{SV+13}")
            A(f"s_mov_b32 s{sT1}, s{sT2}"); A(f"s_mov_b32 s{sT2}, s{sC1}"); A(f"s_mov_b32 s{sC1}, s{sT1}")
            A("s_branch L_pollo")
            A("L_otmo:")
            A(f"s_cmp_lg_u32 s{sT0}, 0"); A("s_cbranch_scc1 L_goto")
            safe_store()
            A(f"v_and_b32 v{SV+12}, 15, v0"); A(f"s_lshl_b32 s{sT1}, s{sHKV}, 4"); A(f"v_add_u32 v{SV+12}, s{sT1}, v{SV+12}")
            A(f"v_mul_u32_u24 v{SV+12}, 1280, v{SV+12}"); A(f"v_lshl_add_u32 v{SV+13}, v{vT0}, 4, v{SV+12}")
            A(f"s_add_u32 s{sC1}, s{sT2}, {SAFE}"); A(f"s_add_u32 s{sT3}, s{sSPIN}, {spin}")
            A("s_branch L_oswap")
        else:
            A("s_cbranch_scc1 L_goto")
            A("s_cbranch_vccnz L_pollo")
        A("L_goto:")
        stamp(9)
        for s_ in steps[1:]:
            A(f"v_max_f32_dpp v{M}, v{M}, v{M} {s_} {DPPF}"); A("s_nop 1")
        A(f"v_sub_f32 v{m}, v{m}, v{M}"); A(f"v_mul_f32 v{m}, s{sLOG2E}, v{m}"); A(f"v_exp_f32 v{m}, v{m}"); A("s_nop 0")
        A(f"v_mul_f32 v{l}, v{l}, v{m}")
        for v in range(4): A(f"v_mul_f32 v{PL+v}, v{PL+v}, v{m}")
        for s_ in steps:
            for r in (l, PL, PL + 1, PL + 2, PL + 3):
                A(f"v_add_f32_dpp v{r}, v{r}, v{r} {s_} {DPPF}")
            if s_ == steps[2]: pass
        A(f"v_rcp_f32 v{l}, v{l}"); A("s_nop 0")
        for v in range(4): A(f"v_mul_f32 v{PL+v}, v{PL+v}, v{l}")
    for v in range(4): A(f"v_cvt_pk_bf16_f32 v{PL+v}, v{PL+v}, v{PL+v}")
    A("s_mov_b64 exec, s[0:1]")
    A(f"ds_write_b128 v{vT1}, {r4(PL)} offset:{ZL}")
    A("s_mov_b64 exec, -1")
    A("s_waitcnt lgkmcnt(0)")
    A("s_barrier")
    stamp(13)

    if lowprio:
        out = []
        seen_b4 = False
        for ln in L[svc0:]:
            if ln is None: continue
            if ln.startswith("s_setprio"): continue
            if ln.startswith("buffer_") and not seen_b4:
                out += ["s_setprio 3", ln, "s_setprio 0"]
            else:
                out.append(ln)
            if ln == "L_mlgot:":
                out.append("s_setprio 3"); seen_b4 = True
        L[svc0:] = out
    A("L_tail:")
    for n in range(2):
        for rho in range(2):
            gemv_mfma(PL + 2 * n + rho, WL + 12 + 4 * n, D1 if rho == 0 else D2, False)
    A("s_nop 7")
    for v in range(4):
        A(f"v_add_f32_dpp v{D1+v}, v{D2+v}, v{D1+v} row_ror:8 {DPPF}")
    tag4(D1)
    A(f"s_mov_b64 exec, s[{sMASK}:{sMASK+1}]")
    A(f"buffer_store_dwordx4 {r4(D1)}, v{TT}, {srd(WS)}, s{sC2} offen sc1")
    A("s_mov_b64 exec, -1")
    stamp(10)
    A(f"s_cmp_lg_u32 s{sCK}, 0"); A("s_cbranch_scc1 L_fin")
    A("s_cmp_ge_u32 s2, 252"); A("s_cbranch_scc1 L_fin")
    A("s_cmp_eq_u32 s3, 8"); A("s_cbranch_scc1 L_final")
    A(f"v_lshrrev_b32 v{TT}, 3, v0"); A(f"s_lshl_b32 s{sT0}, s3, 5"); A(f"v_add_u32 v{TT}, s{sT0}, v{TT}")
    A(f"v_mul_u32_u24 v{TT}, {REC}, v{TT}"); A(f"v_and_b32 v{TT+1}, 7, v0"); A(f"v_lshl_add_u32 v{TT}, v{TT+1}, 4, v{TT}")
    A(f"s_lshl_b32 s{sT0}, s{sSL}, 7"); A(f"s_add_u32 s{sT0}, s{sT0}, {FPO}")
    A(f"s_add_u32 s{sC1}, s{sT0}, {8*REC}"); A(f"s_add_u32 s{sC2}, s{sT0}, {16*REC}"); A(f"s_add_u32 s{sC3}, s{sT0}, {24*REC}")
    FB = FC + 16
    def fpoll(k):
        for q, so in enumerate((sT0, sC1, sC2, sC3)):
            A(f"buffer_load_dwordx4 {r4(FB+16*k+4*q)}, v{TT}, {srd(WS)}, s{so} offen sc1")
    for k in range(npf - 1): fpoll(k)
    A("L_pf0:")
    for k in range(npf):
        fpoll((k + npf - 1) % npf)
        if k == 0: A(f"s_add_u32 s{sSPIN}, s{sSPIN}, 1"); A(f"s_cmp_gt_u32 s{sSPIN}, {spin}")
        A(f"s_waitcnt vmcnt({4*(npf-1)})")
        for v in range(16): A(f"v_xor_b32 v{FC+v}, v{vTAG}, v{FB+16*k+v}")
        A(f"v_or3_b32 v{TT+1}, v{FC}, v{FC+1}, v{FC+2}")
        for i in range(3, 15, 2): A(f"v_or3_b32 v{TT+1}, v{TT+1}, v{FC+i}, v{FC+i+1}")
        A(f"v_or_b32 v{TT+1}, v{TT+1}, v{FC+15}")
        A(f"v_and_b32 v{TT+1}, s{sTM}, v{TT+1}"); A(f"v_cmp_ne_u32 vcc, 0, v{TT+1}")
        if k < npf - 1: A("s_cbranch_vccz L_gotf")
        else:
            A("s_cbranch_scc1 L_gotf"); A("s_cbranch_vccnz L_pf0")
    A("L_gotf:")
    stamp(9)
    for v in range(4):
        A(f"v_add_f32 v{FC+v}, v{FC+v}, v{FC+4+v}"); A(f"v_add_f32 v{FC+8+v}, v{FC+8+v}, v{FC+12+v}")
    for v in range(4):
        A(f"v_add_f32 v{FC+v}, v{FC+v}, v{FC+8+v}")
    a, b = FC + 4, FC + 5
    A("s_nop 0")
    A(f"v_add_f32_dpp v{a}, v{FC}, v{FC} row_ror:8 row_mask:0xf bank_mask:0x3")
    A(f"v_add_f32_dpp v{a}, v{FC+1}, v{FC+1} row_ror:8 row_mask:0xf bank_mask:0xc")
    A(f"v_add_f32_dpp v{b}, v{FC+2}, v{FC+2} row_ror:8 row_mask:0xf bank_mask:0x3")
    A(f"v_add_f32_dpp v{b}, v{FC+3}, v{FC+3} row_ror:8 row_mask:0xf bank_mask:0xc")
    A(f"v_and_b32 v{TT}, 7, v0"); A(f"v_lshlrev_b32 v{TT}, 4, v{TT}")
    A(f"v_permlane16_swap_b32 v{a}, v{b}")
    A(f"v_bfe_u32 v{TT+1}, v0, 3, 2"); A(f"v_lshl_add_u32 v{TT}, v{TT+1}, 2, v{TT}")
    A(f"v_add_f32 v{a}, v{a}, v{b}")
    A(f"s_lshl_b32 s{sT0}, s3, 7"); A(f"v_mov_b32 v{b}, v{a}"); A(f"v_add_u32 v{TT}, s{sT0}, v{TT}"); A("s_nop 0")
    A(f"v_permlane32_swap_b32 v{a}, v{b}"); A("s_nop 1")
    A(f"v_add_f32 v{a}, v{a}, v{b}")
    A(f"ds_write_b32 v{TT}, v{a} offset:{FS}")
    A("s_waitcnt lgkmcnt(0)")
    A("s_barrier")
    A("s_branch L_fin")
    A("L_final:")
    A(f"v_lshlrev_b32 v{TT}, 3, v0")
    A(f"v_lshlrev_b32 v{TT+2}, 16, v{SV+21}"); A(f"v_and_b32 v{TT+3}, 0xffff0000, v{SV+21}")
    A(f"v_mov_b32 v{TT+1}, s{sEP}"); A(f"v_mov_b32 v{SV}, {EP}")
    A(f"s_cmp_eq_u32 s2, 0"); A(f"s_cselect_b32 s{sT0}, 0, {HUGE}")
    A("s_mov_b64 exec, 0xffff")
    A("s_barrier")
    for w in range(8):
        A(f"ds_read_b64 {r2(80+2*w)}, v{TT} offset:{FS+128*w}")
    for w in range(8):
        A(f"s_waitcnt lgkmcnt({7-w})")
        A(f"v_add_f32 v{TT+2}, v{TT+2}, v{80+2*w}"); A(f"v_add_f32 v{TT+3}, v{TT+3}, v{81+2*w}")
    A(f"v_cvt_pk_bf16_f32 v{TT+2}, v{TT+2}, v{TT+3}")
    A(f"buffer_store_dword v{TT+2}, v{SV+20}, {srd(OUT)}, 0 offen{outsc}")
    A("s_mov_b64 exec, 1")
    A(f"buffer_store_dword v{TT+1}, v{SV}, {srd(WS)}, s{sT0} offen sc1")
    if hold:
        A(f"s_add_u32 s100, s100, {hold}")
        A("L_hold:"); A("s_memrealtime s[98:99]"); A("s_waitcnt lgkmcnt(0)"); A("s_sub_u32 s98, s98, s100"); A("s_cmp_lt_i32 s98, 0"); A("s_cbranch_scc1 L_hold")
    A("L_fin:")
    if stamps:
        stamp(11)
        A("s_mov_b64 exec, -1")
        A("s_waitcnt vmcnt(0) lgkmcnt(0)")
        A(f"s_mul_i32 s{sT0}, s2, 9"); A(f"s_add_u32 s{sT0}, s{sT0}, s3"); A(f"s_lshl_b32 s{sT0}, s{sT0}, 7"); A(f"s_add_u32 s{sT0}, s{sT0}, {STAMP}")
        for i in range(14):
            A(f"v_mov_b32 v{104+2*i}, s{stamp_reg(i)}"); A(f"v_mov_b32 v{105+2*i}, s{stamp_reg(i)+1}")
        A(f"v_mov_b32 v132, s{sSPIN}")
        A("s_getreg_b32 s76, hwreg(HW_REG_XCC_ID)"); A("v_mov_b32 v133, s76"); A(f"v_mov_b32 v134, s{sU}"); A("v_mov_b32 v135, 0")
        A("v_mov_b32 v100, 0")
        A("s_mov_b64 exec, 1")
        for i in range(8):
            A(f"buffer_store_dwordx4 {r4(104+4*i)}, v100, {srd(WS)}, s{sT0} offen offset:{16*i}")
    A("L_end:")
    A("s_endpgm")
    A('.section .rodata,"a"'); A(".p2align 6"); A(f".amdhsa_kernel {NAME}")
    A("  .amdhsa_next_free_vgpr 168"); A("  .amdhsa_next_free_sgpr 102"); A("  .amdhsa_accum_offset 168")
    A("  .amdhsa_group_segment_fixed_size 0"); A("  .amdhsa_kernarg_size 96"); A("  .amdhsa_user_sgpr_count 2")
    A("  .amdhsa_user_sgpr_kernarg_segment_ptr 1"); A("  .amdhsa_system_sgpr_workgroup_id_x 1")
    A(".end_amdhsa_kernel")
    return "\n".join(x for x in L if x is not None) + "\n"


if __name__ == "__main__":
    kw = eval("dict(%s)" % (sys.argv[2] if len(sys.argv) > 2 else ""))
    open(sys.argv[1], "w").write(gen(**kw))
```

```python
import sys
NAME = "parallel_sum__sliding_block_cached__glu_gated_swiglu__decode_kernel"

HEADER = """; Fused decode step: out = x + Attn(LN(x)) + SwiGLU(LN(x)); one launch, 256 workgroups x 9 waves.
;
;
"""

OS = 0
S1 = 0
FS = 8192
QL = 9216
HD = QL + 512
MW = HD + 256
ZL = MW + 128
FWL = ZL + 128
TG = FWL + 64
QF = TG + 4
XN = 10368
assert QF + 4 <= XN
LDS_BYTES = XN + 4608
REC = 6144
FPO = 1536
EP = 1408
P1 = 3 << 19
P1B = 13312 * 4
P1P = 2 * P1B
STAMP = 2 << 20
SAFE = 4 << 20
SAFO = 1 << 18
WS_BYTES = 68 << 20
HUGE = 0x40000000
LOG2E = 0x3FB8AA3B
SCALE = 0x3DB504F3
TMASK = 0x3FF
STAMP_NAMES = ["start", "karg", "Bt/B0", "B1", "qgot", "sm", "Vend", "s7", "s8", "gotO", "FPst", "end", "x/B4", "B5"]

X, K, V, SU, WO, W2, OUT, WS = [4 + 4 * i for i in range(8)]
SRD_INFO = {X: (0, 2304), K: (2, 1 << 28), V: (4, 1 << 28), WO: (8, 4096 * 1152),
            W2: (16, 4608 * 1152), OUT: (18, 2304), WS: (22, WS_BYTES)}
sPS, sSP, sPM = 36, 37, 38
sSF = 40
sPC = 42
sU, sRB = 46, 47
sHKV, sJ, sB, sS, sSL, sCK = 48, 49, 50, 51, 52, 53
sT0, sT1, sT2, sT3 = 54, 55, 56, 57
sHASH = 58
sUO, sUS = 59, 60
sTB = 62
sLOG2E = 63
sSPIN = 64
sTM = 65
sC1, sC2, sC3 = 66, 67, 68
sEP = 69
sMASK = 70
sROW, sNSL = 74, 75
KA = 76
def stamp_reg(i): return {0: 100, 1: 72}.get(i, KA + 2 * (i - 2))

vK, vV, vA1, vA2 = 1, 2, 3, 4
MK = 5
vT0, vT1, vT2 = 9, 10, 11
A0, A1 = 12, 16
ACC, D1, D2 = 20, 24, 28
SR = 32
QB = 36
KR = 40
VR = 104
def kreg(t): return KR + 4 * t
def vreg(t): return VR + 4 * t
XA = 32
S1D = 132
WL = 40
PL = 60
HV = 68
vTAG = 74
vA3 = 75
TT = 76
vOS = 80
FC = 104
SV = 104


def r4(b): return f"v[{b}:{b+3}]"
def r2(b): return f"v[{b}:{b+1}]"
def srd(b): return f"s[{b}:{b+3}]"
DPPF = "row_mask:0xf bank_mask:0xf"
STEPS = ("quad_perm:[1,0,3,2]", "quad_perm:[2,3,0,1]", "row_half_mirror")


def unit_table(split):
    tab = []
    for hkv in range(16):
        ns = 4 + (hkv & 1); g0 = 9 * (hkv >> 1) + 4 * (hkv & 1)
        units = [4 * hkv + i for i in range(4)] + [64 + g0 + i for i in range(ns)] + [136 + g0 + i for i in range(ns)]
        cls = lambda u: (u - (0 if u < 64 else 64 if u < 136 else 136)) & 7
        nfree = 16 - len(units)
        order = sorted(units, key=lambda u: 0 if cls(u) == 3 else 1)
        nsp = {"c3": sum(cls(u) == 3 for u in units), "all": nfree, "none": 0}[split]
        assert nsp <= nfree
        sp = order[:nsp]
        ent = []
        for u in units:
            if u in sp: ent.append(u | (0x01f << 8))
            else: ent.append(u | (0x1ff << 8) | (1 << 18))
        for u in sp: ent.append(u | (0x1e0 << 8) | (1 << 17))
        while len(ent) < 16: ent.append(255)
        tab += ent[0::2] + ent[1::2]
    return tab


def gen(depth=4, b2=12, pre=2, nwb=2, stamps=False, pol=" nt", spin=100000, mlsleep=4, tmo=40, gtmo=12, split="all",
        xg=True, dry=False, outsc="", hold=0):
    L = []
    A = L.append

    def stamp(i):
        if stamps:
            r = stamp_reg(i)
            A(f"s_memrealtime s[{r}:{r+1}]")

    def srd_const(d):
        A(f"s_mov_b32 s{d+2}, {SRD_INFO[d][1]}"); A(f"s_mov_b32 s{d+3}, 0x00020000")

    def srd_ptr(d):
        o = KA + SRD_INFO[d][0]
        A(f"s_mov_b64 s[{d}:{d+1}], s[{o}:{o+1}]")

    def consts():
        A(f"s_mov_b32 s{sLOG2E}, {LOG2E:#x}"); A(f"s_mov_b32 s{sSPIN}, 0"); A(f"s_movk_i32 s{sTM}, {TMASK:#x}")
        A(f"s_mov_b32 s{sMASK}, 0x00ff00ff"); A(f"s_mov_b32 s{sMASK+1}, 0x00ff00ff")
        A(f"s_mul_i32 s{sSL}, s2, 9363"); A(f"s_lshr_b32 s{sSL}, s{sSL}, 16")
        A(f"s_mul_i32 s{sT0}, s{sSL}, 7"); A(f"s_sub_u32 s{sCK}, s2, s{sT0}")

    def masks(tmp):
        A(f"v_and_b32 v{vT2}, 1, v0"); A(f"v_lshlrev_b32 v{vT2}, 4, v{vT2}")
        A(f"v_mov_b32 v{MK}, 0xffff"); A(f"v_lshlrev_b32 v{vT2}, v{vT2}, v{MK}")
        A(f"v_bfe_u32 v{tmp}, v0, 1, 2")
        for j in range(4):
            A(f"v_cmp_eq_u32 vcc, {j}, v{tmp}"); A("s_nop 1"); A(f"v_cndmask_b32 v{MK+j}, 0, v{vT2}, vcc")

    def table_load(tag):
        A(f"s_getpc_b64 s[{sPC}:{sPC+1}]")
        A(f"L_pc{tag}:")
        A(f"s_lshl_b32 s{sPC+2}, s2, 2"); A(f"s_add_u32 s{sPC+2}, s{sPC+2}, L_tab-L_pc{tag}")
        A(f"s_load_dword s{sTB}, s[{sPC}:{sPC+1}], s{sPC+2}")

    def group_ids():
        A(f"s_and_b32 s{sT0}, s{sHKV}, 1"); A(f"s_add_u32 s{sNSL}, s{sT0}, 4")
        A(f"s_lshr_b32 s{sT1}, s{sHKV}, 1"); A(f"s_mul_i32 s{sT1}, s{sT1}, 9"); A(f"s_lshl2_add_u32 s{sT1}, s{sT0}, s{sT1}")
        A(f"s_mul_i32 s{sROW}, s{sNSL}, s{sJ}"); A(f"s_lshl4_add_u32 s{sROW}, s{sT1}, s{sROW}"); A(f"s_lshl_b32 s{sROW}, s{sROW}, 2")

    def tag4(r):
        for v in range(4): A(f"v_bfi_b32 v{r+v}, s{sTM}, v{vTAG}, v{r+v}")

    def untag_check(dst, src, tags, acc):
        for d, r, t in zip(dst, src, tags): A(f"v_xor_b32 v{d}, v{t}, v{r}")
        A(f"v_or3_b32 v{acc}, v{dst[0]}, v{dst[1]}, v{dst[2]}")
        rest = dst[3:]
        while len(rest) >= 2:
            A(f"v_or3_b32 v{acc}, v{acc}, v{rest[0]}, v{rest[1]}"); rest = rest[2:]
        if rest: A(f"v_or_b32 v{acc}, v{acc}, v{rest[0]}")
        A(f"v_and_b32 v{acc}, s{sTM}, v{acc}")
        A(f"v_cmp_ne_u32 vcc, 0, v{acc}")

    def bf16r(dst, src):
        A(f"v_cvt_pk_bf16_f32 v{dst}, v{src}, v{src}"); A(f"v_and_b32 v{dst}, 0xffff0000, v{dst}")

    def swap_red(r, t, op, sw):
        A(f"v_mov_b32 v{t}, v{r}"); A("s_nop 1"); A(f"{sw} v{r}, v{t}"); A("s_nop 1"); A(f"{op} v{r}, v{r}, v{t}")

    def allred32(r, t, op="v_add_f32"):
        for n in (1, 2, 4, 8):
            A("s_nop 1"); A(f"{op}_dpp v{r}, v{r}, v{r} row_ror:{n} {DPPF}")
        swap_red(r, t, op, "v_permlane16_swap_b32")

    def allred_banks_rows(r, t, op):
        for n in (4, 8):
            A("s_nop 1"); A(f"{op}_dpp v{r}, v{r}, v{r} row_ror:{n} {DPPF}")
        swap_red(r, t, op, "v_permlane16_swap_b32"); swap_red(r, t, op, "v_permlane32_swap_b32")

    aflip = [0]
    def gemv_mfma(val, data, acc, first):
        a = A0 if aflip[0] == 0 else A1
        aflip[0] ^= 1
        for j in range(4):
            A(f"v_and_b32 v{a+j}, v{val}, v{MK+j}")
        A("s_nop 1")
        A(f"v_mfma_f32_16x16x32_bf16 {r4(acc)}, {r4(a)}, {r4(data)}, {'0' if first else r4(acc)}")

    def w2_mfmas():
        for n in range(3):
            for rho in range(2):
                gemv_mfma(HV + 2 * n + rho, WL + 4 * n, D1 if rho == 0 else D2, n == 0)

    LATE = [f"buffer_load_dwordx4 {r4(WL)}, v{vA2}, {srd(W2)}, 0 offen{pol}",
            f"buffer_load_dwordx4 {r4(WL+4)}, v{vA2}, {srd(W2)}, s{sC1} offen{pol}",
            f"buffer_load_dwordx4 {r4(WL+8)}, v{vA3}, {srd(W2)}, 0 offen{pol}",
            f"buffer_load_dwordx4 {r4(WL+12)}, v{vA1}, {srd(WO)}, 0 offen{pol}",
            f"buffer_load_dwordx4 {r4(WL+16)}, v{vA1}, {srd(WO)}, 0 offen offset:2304{pol}"]

    def late_addr():
        A(f"v_bfe_u32 v{vT2}, v0, 3, 1")
        A(f"v_lshl_add_u32 v{vA1}, v{vT0}, 2, v{vT2}")
        A(f"s_lshl_b32 s{sT1}, s2, 4"); A(f"v_add_u32 v{vA1}, s{sT1}, v{vA1}")
        A(f"v_mul_u32_u24 v{vA1}, 1152, v{vA1}")
        A(f"v_lshl_add_u32 v{vA2}, v{vT0}, 1, v{vT2}")
        A(f"v_add_u32 v{vA2}, s{sROW}, v{vA2}")
        A(f"v_mul_u32_u24 v{vA2}, 1152, v{vA2}")
        A(f"v_and_b32 v{vT2}, 7, v0"); A(f"v_lshlrev_b32 v{vT2}, 4, v{vT2}")
        A(f"s_lshl_b32 s{sT1}, s3, 7"); A(f"v_add_u32 v{vT2}, s{sT1}, v{vT2}")
        A(f"v_add_u32 v{vA1}, v{vA1}, v{vT2}"); A(f"v_add_u32 v{vA2}, v{vA2}, v{vT2}")
        A(f"s_movk_i32 s{sC1}, 9216")

    def tail_addr():
        A(f"s_sub_u32 s{sT1}, s{sNSL}, 4"); A(f"s_lshl_b32 s{sT1}, s{sT1}, 1")
        A(f"v_add_u32 v{vA3}, {16*1152}, v{vA2}")
        A(f"v_cmp_gt_u32 vcc, s{sT1}, v{vT0}"); A(f"v_mov_b32 v{TT}, {HUGE}"); A("s_nop 0")
        A(f"v_cndmask_b32 v{vA3}, v{TT}, v{vA3}, vcc")
        A(f"v_lshrrev_b32 v{TT}, 1, v{vT0}"); A(f"v_mul_u32_u24 v{TT}, 2304, v{TT}")
        A(f"v_and_b32 v{TT+1}, 7, v0"); A(f"v_lshl_add_u32 v{TT}, v{TT+1}, 5, v{TT}")
        A(f"v_and_b32 v{TT+1}, 1, v{vT0}"); A(f"v_lshl_add_u32 v{TT}, v{TT+1}, 4, v{TT}")
        A(f"s_mul_i32 s{sC2}, s2, {REC}"); A(f"s_lshl_b32 s{sT1}, s3, 8"); A(f"s_add_u32 s{sC2}, s{sC2}, s{sT1}"); A(f"s_add_u32 s{sC2}, s{sC2}, {FPO}")
        A(f"v_bfe_u32 v{TT+1}, v0, 3, 1"); A(f"v_lshlrev_b32 v{TT+1}, 7, v{TT+1}"); A(f"v_lshl_add_u32 v{TT+1}, v{vT0}, 3, v{TT+1}")
        for i in range(3):
            A(f"ds_read_b64 {r2(HV+2*i)}, v{TT+1} offset:{HD+32*i}")
        A(f"v_lshrrev_b32 v{vT1}, 3, v0"); A(f"v_lshlrev_b32 v{vT1}, 4, v{vT1}")
        A(f"s_and_b32 s{sT1}, s{sEP}, s{sTM}"); A(f"v_mov_b32 v{vTAG}, s{sT1}")

    A(HEADER.rstrip("\n"))
    A(f"; @launch grid=(256,1,1) block=(576,1,1) lds={LDS_BYTES}")
    A('.amdgcn_target "amdgcn-amd-amdhsa--gfx950"')
    A(".text"); A(f".globl {NAME}"); A(".p2align 8"); A(f".type {NAME},@function"); A(f"{NAME}:")
    stamp(0)
    if hold: A("s_memrealtime s[100:101]")
    A(f"s_load_dwordx16 s[{KA}:{KA+15}], s[0:1], 0")
    A(f"s_load_dwordx8 s[{KA+16}:{KA+23}], s[0:1], 64")
    A("v_lshrrev_b32 v1, 6, v0")
    A("s_cmp_ge_u32 s2, 256"); A("s_cbranch_scc1 L_end")
    A("v_readfirstlane_b32 s3, v1")
    A("v_and_b32 v0, 63, v0")
    if xg:
        A(f"s_and_b32 s{sT0}, s2, 7"); A(f"s_lshl_b32 s{sT0}, s{sT0}, 5"); A("s_lshr_b32 s2, s2, 3"); A(f"s_add_u32 s2, s2, s{sT0}")
    A(f"s_lshr_b32 s{sHKV}, s2, 4"); A(f"s_and_b32 s{sJ}, s2, 15"); A(f"s_lshr_b32 s{sB}, s{sJ}, 3"); A(f"s_and_b32 s{sS}, s2, 7")
    A(f"v_lshrrev_b32 v{vT0}, 4, v0")
    A("s_cmp_eq_u32 s3, 8"); A("s_cbranch_scc1 L_service")

    srd_const(K)
    A(f"s_lshl4_add_u32 s{sT0}, s{sB}, s{sHKV}"); A(f"s_lshl_b32 s{sT0}, s{sT0}, 6"); A(f"s_add_u32 s{sT0}, s{sT0}, s{sS}")
    A(f"s_lshl_b32 s{sT0}, s{sT0}, 7"); A(f"s_add_u32 s{sT0}, s{sT0}, s3"); A(f"s_addk_i32 s{sT0}, {7 << 10}"); A(f"s_lshl_b32 s{sT2}, s{sT0}, 10")
    A(f"v_and_b32 v{vK}, 3, v0"); A(f"v_lshl_add_u32 v{vK}, v{vK}, 4, s{sT2}")
    A(f"v_bfe_u32 v{vT1}, v0, 2, 2"); A(f"v_lshl_add_u32 v{vK}, v{vT1}, 8, v{vK}")
    A(f"v_lshl_add_u32 v{vK}, v{vT0}, 6, v{vK}")
    A(f"s_lshl3_add_u32 s{sT0}, s2, s3"); A(f"s_mul_i32 s{sHASH}, s{sT0}, 0x9E3779B1")
    A(f"s_bfe_u32 s{sHASH}, s{sHASH}, 0x40018"); A(f"s_lshl_b32 s{sHASH}, s{sHASH}, 13")
    A("s_waitcnt lgkmcnt(0)")
    stamp(1)
    srd_ptr(K)

    def kvld(nm, t, reg, va, sr):
        return (f"{nm}{t}", [f"s_xor_b32 s{sT0}, s{sHASH}, {t << 13}", f"buffer_load_dwordx4 {r4(reg)}, v{va}, {srd(sr)}, s{sT0} offen{pol}"])
    loads = [kvld("K", t, kreg(t), vK, K) for t in range(pre)]
    for k in range(9):
        c = [f"s_bitcmp1_b32 s{sTB}, {8+k}", f"s_cselect_b32 s{sT0}, s{sUO}, {HUGE}",
             f"buffer_load_dwordx4 {r4(S1D+4*k)}, v{vA1}, {srd(SU)}, s{sT0} offen{pol}"]
        if k < 8: c.append(f"s_add_u32 s{sUO}, s{sUO}, s{sUS}")
        loads.append((f"U{k}", c))
    loads += [kvld("K", t, kreg(t), vK, K) for t in range(pre, 16)]
    loads += [kvld("V", t, vreg(t), vV, V) for t in range(16)]
    loads += [(f"W{i}", [LATE[i]]) for i in range(5 if dry else nwb)]
    names = [n for n, _ in loads]

    def rest_of_prologue():
        A(f"v_lshl_add_u32 v{vV}, v0, 4, s{sT2}")
        for d in (V, WO, W2, WS): srd_const(d); srd_ptr(d)
        consts()
        group_ids()
        masks(vT1)
        A(f"v_bfe_u32 v{vT2}, v0, 3, 1"); A(f"s_lshl_b32 s{sT1}, s3, 3")
        A(f"v_lshl_add_u32 v{vA1}, v{vT0}, 1, s{sT1}")
        A(f"v_mul_u32_u24 v{vA2}, 2304, v{vT2}"); A(f"v_lshl_add_u32 v{vA2}, v{vA1}, 2, v{vA2}")
        A(f"v_add_u32 v{vA1}, v{vA1}, v{vT2}")
        A(f"v_and_b32 v{vT1}, 7, v0"); A(f"v_lshlrev_b32 v{vT1}, 4, v{vT1}")
        A(f"s_mov_b32 s{SU+3}, 0x00020000")
        A("s_waitcnt lgkmcnt(0)")
        A(f"s_and_b32 s{sU}, s{sTB}, 255")
        A(f"s_cmp_lt_u32 s{sU}, 136")
        A(f"s_cselect_b64 s[{SU}:{SU+1}], s[{KA+12}:{KA+13}], s[{KA+14}:{KA+15}]"); A(f"s_cselect_b32 s{sT1}, 64, 136")
        A(f"s_cmp_lt_u32 s{sU}, 64")
        A(f"s_cselect_b64 s[{SU}:{SU+1}], s[{KA+6}:{KA+7}], s[{SU}:{SU+1}]"); A(f"s_cselect_b32 s{sT1}, 0, s{sT1}")
        A(f"s_movk_i32 s{sRB}, 9216"); A(f"s_cselect_b32 s{sRB}, 8192, s{sRB}")
        A(f"s_mul_i32 s{SU+2}, s{sRB}, 576")
        A(f"s_sub_u32 s{sUO}, s{sU}, s{sT1}"); A(f"s_lshl_b32 s{sUO}, s{sUO}, 7"); A(f"s_lshl_b32 s{sUS}, s{sRB}, 6")
        A(f"v_mad_u32_u24 v{vA1}, v{vA1}, s{sRB}, v{vT1}")
        stamp(2)

    def qk_block():
        A(f"v_bfe_u32 v{vT2}, v0, 1, 1"); A(f"v_lshlrev_b32 v{vT2}, 8, v{vT2}"); A(f"v_lshl_add_u32 v{vT2}, v{vT0}, 6, v{vT2}")
        A(f"v_bfe_u32 v{vT1}, v0, 2, 2"); A(f"v_lshl_add_u32 v{vT2}, v{vT1}, 4, v{vT2}")
        A(f"v_mov_b32 v{vT1}, 0")
        stamp(7)
        A("s_branch L_qwait1")
        A("L_qwait:")
        A("s_sleep 2")
        A("L_qwait1:")
        A(f"ds_read_b32 v{SR}, v{vT1} offset:{QF}")
        A(f"ds_read_b128 {r4(QB)}, v{vT2} offset:{QL}")
        A(f"s_add_u32 s{sSPIN}, s{sSPIN}, 1"); A(f"s_cmp_gt_u32 s{sSPIN}, {spin*16}")
        A("s_waitcnt lgkmcnt(0)")
        A(f"v_cmp_eq_u32 vcc, 0, v{SR}")
        A("s_cbranch_scc1 L_qgot")
        A("s_cbranch_vccnz L_qwait")
        A("L_qgot:")
        stamp(4)
        Ds = [A0, A1, D1, D2]
        def mf(t): A(f"v_mfma_f32_16x16x32_bf16 {r4(Ds[t%4])}, {r4(kreg(t))}, {r4(QB)}, 0")
        def ops(t):
            b = t & 3; S = SR + (t >> 2); D = Ds[t % 4]; bm = f"row_mask:0xf bank_mask:{1<<b:#x}"
            A(f"v_add_f32_dpp v{S}, v{D+((b+1)&3)}, v{D+b} row_ror:12 {bm}")
            A(f"v_add_f32_dpp v{S}, v{D+((b+2)&3)}, v{S} row_ror:8 {bm}")
            A(f"v_add_f32_dpp v{S}, v{D+((b+3)&3)}, v{S} row_ror:4 {bm}")
        for t in range(4): mf(t)
        A("s_nop 4")
        for t in range(16):
            ops(t)
            if t + 4 < 16: mf(t + 4)
            elif t < 15: A("s_nop 0")
        for p in (0, 2):
            a, b = SR + p, SR + p + 1
            A(f"v_cvt_pk_bf16_f32 v{b}, v{a}, v{b}"); A(f"v_lshlrev_b32 v{a}, 16, v{b}"); A(f"v_and_b32 v{b}, 0xffff0000, v{b}")
            A(f"v_mul_f32 v{a}, {SCALE:#x}, v{a}"); A(f"v_mul_f32 v{b}, {SCALE:#x}, v{b}")
            A(f"v_cvt_pk_bf16_f32 v{b}, v{a}, v{b}"); A(f"v_lshlrev_b32 v{a}, 16, v{b}"); A(f"v_and_b32 v{b}, 0xffff0000, v{b}")
        m = D1; l = D1 + 1
        A(f"v_max3_f32 v{m}, v{SR}, v{SR+1}, v{SR+2}"); A(f"v_max_f32 v{m}, v{m}, v{SR+3}")
        allred_banks_rows(m, D2, "v_max_f32")
        A(f"v_mul_f32 v{vT2}, s{sLOG2E}, v{m}")
        for T in range(4): A(f"v_fma_f32 v{SR+T}, v{SR+T}, s{sLOG2E}, -v{vT2}")
        for T in range(4): A(f"v_exp_f32 v{SR+T}, v{SR+T}")
        A(f"s_lshl_b32 s{sT1}, s3, 3"); A(f"v_lshl_add_u32 v{QB}, v0, 5, s{sT1}")
        A(f"v_add_f32 v{l}, v{SR}, v{SR+1}"); A(f"v_add_f32 v{D2}, v{SR+2}, v{SR+3}"); A(f"v_add_f32 v{l}, v{l}, v{D2}")
        allred_banks_rows(l, D2, "v_add_f32")
        A("s_mov_b64 exec, 5")
        A(f"ds_write_b64 v{QB}, {r2(m)} offset:{MW}")
        A("s_mov_b64 exec, -1")
        for j in range(8): A(f"v_mov_b32 v{A0+j}, 0")
        A(f"v_and_b32 v{D2}, 1, v0"); A(f"v_lshlrev_b32 v{D2}, 4, v{D2}"); A(f"v_mov_b32 v{D2+1}, 0xffff"); A(f"v_lshlrev_b32 v{D2}, v{D2}, v{D2+1}")
        for T in range(4): A(f"v_cvt_pk_bf16_f32 v{SR+T}, v{SR+T}, v{SR+T}")
        for T in range(4): A(f"v_and_b32 v{SR+T}, v{SR+T}, v{D2}")
        A(f"v_and_b32 v{vOS}, 15, v0"); A(f"v_lshlrev_b32 v{vOS}, 5, v{vOS}"); A(f"v_lshl_add_u32 v{vOS}, v{vT0}, 3, v{vOS}")
        A(f"s_lshl_b32 s{sT1}, s3, 10"); A(f"v_add_u32 v{vOS}, s{sT1}, v{vOS}")
        tail_addr()
        stamp(5)

    def pv(t):
        b = t & 3; P = SR + (t >> 2); a = A0 if t % 2 == 0 else A1
        for j in range(4):
            n = (4 * (j - b)) % 16
            ctl = "quad_perm:[0,1,2,3]" if n == 0 else f"row_ror:{n}"
            A(f"v_mov_b32_dpp v{a+j}, v{P} {ctl} row_mask:0xf bank_mask:{1<<j:#x}")
        A("s_nop 1")
        A(f"v_mfma_f32_16x16x32_bf16 {r4(ACC)}, {r4(a)}, {r4(vreg(t))}, {'0' if t == 0 else r4(ACC)}")

    state = {"qk": False, "pv": 0}

    def on_landed(nm):
        if dry:
            if nm == "U8": stamp(3); late_addr()
            if nm == "V0": tail_addr()
            return
        if nm[0] == "U":
            k = int(nm[1])
            if k == 0:
                A("s_barrier")
                for i in range(4): A(f"ds_read_b64 {r2(XA+2*i)}, v{vA2} offset:{XN+256*i}")
            A(f"s_waitcnt lgkmcnt({min(k+4, 9) - k - 1})")
            x = XA + 2 * (k % 4)
            gemv_mfma(x, S1D + 4 * k, D1, k == 0)
            gemv_mfma(x + 1, S1D + 4 * k, D2, k == 0)
            if k + 4 < 9: A(f"ds_read_b64 {r2(x)}, v{vA2} offset:{XN+256*(k+4)}")
            if k == 8:
                A(f"v_and_b32 v{vT1}, 7, v0"); A(f"v_lshl_add_u32 v{vT1}, v{vT0}, 3, v{vT1}"); A(f"s_lshl_b32 s{sT1}, s3, 9")
                A(f"v_lshl_add_u32 v{vT1}, v{vT1}, 4, s{sT1}")
                A(f"v_mov_b32 v{vT2}, 0"); A(f"ds_read_b32 v{vT2}, v{vT2} offset:{TG}")
                A("s_nop 1")
                for v in range(4): A(f"v_add_f32_dpp v{D1+v}, v{D2+v}, v{D1+v} row_ror:8 {DPPF}")
                A(f"s_mov_b64 exec, s[{sMASK}:{sMASK+1}]")
                A(f"ds_write_b128 v{vT1}, {r4(D1)} offset:{S1}")
                A("s_mov_b64 exec, -1")
                A("s_waitcnt lgkmcnt(0)"); A("s_barrier")
                stamp(3)
                A(f"v_readfirstlane_b32 s{sEP}, v{vT2}")
                late_addr()
        elif nm[0] in "VW" and state["qk"]:
            t = max(int(n[1:]) for n in names[:names.index(nm)+1] if n[0] == "V")
            while state["pv"] <= t:
                pv(state["pv"]); state["pv"] += 1

    N = len(loads)
    landed = -1
    ib2 = names.index(f"V{b2}")
    assert pre >= 2 and names.index("U8") + depth < names.index("V7") and ib2 - depth >= names.index("K15")
    for i, (nm, code) in enumerate(loads):
        if nm == "U0": rest_of_prologue()
        if i == 1: table_load("a")
        for c in code: A(c)
        if i >= depth:
            A(f"s_waitcnt vmcnt({depth})")
            landed = i - depth
            on_landed(names[landed])
        if i == ib2:
            if dry: stamp(7)
            else: qk_block()
            state["qk"] = True
    while landed < names.index("V15"):
        landed += 1
        A(f"s_waitcnt vmcnt({N-1-landed})")
        on_landed(names[landed])
    stamp(6)
    if dry:
        A("s_waitcnt vmcnt(0)"); stamp(8); A("s_branch L_fin")
    A("s_nop 7")
    A(f"ds_write2st64_b64 v{vOS}, {r2(ACC)}, {r2(ACC+2)} offset0:{OS//512} offset1:{OS//512+1}")
    A("s_waitcnt lgkmcnt(0)")
    A("s_barrier")
    stamp(12)
    if nwb < 5:
        A("s_barrier")
        for c in LATE[nwb:]: A(c)
    A("s_waitcnt vmcnt(2)")
    w2_mfmas()
    A("s_waitcnt vmcnt(0)")
    stamp(8)
    A("s_barrier")
    A(f"ds_read_b128 {r4(PL)}, v{vT1} offset:{ZL}")
    A("s_waitcnt lgkmcnt(0)")
    A("s_branch L_tail")

    A("L_service:")
    if dry: A("s_endpgm")
    def vm(ins):
        A("s_setprio 3")
        for x in ins: A(x)
        A("s_setprio 0")
    XS = SV + 8
    PA, PD, TG0 = 100, 96, 63
    srd_const(X); srd_const(WS)
    A(f"v_lshrrev_b32 v{vA1}, 5, v0"); A(f"v_mul_u32_u24 v{vA2}, 1152, v{vA1}")
    A(f"v_and_b32 v{vT2}, 31, v0"); A(f"v_mad_u32_u24 v{vA2}, v{vT2}, 36, v{vA2}")
    A("s_setprio 3")
    A("s_waitcnt lgkmcnt(0)")
    stamp(1)
    srd_ptr(X)
    A(f"buffer_load_dwordx4 {r4(XS)}, v{vA2}, {srd(X)}, 0 offen")
    A(f"buffer_load_dwordx4 {r4(XS+4)}, v{vA2}, {srd(X)}, 0 offen offset:16")
    A(f"buffer_load_dword v{XS+8}, v{vA2}, {srd(X)}, 0 offen offset:32")
    A("s_setprio 0")
    srd_ptr(WS)
    A(f"s_load_dword s{sEP}, s[{WS}:{WS+1}], {EP}")
    table_load("b")
    A(f"v_lshlrev_b32 v{vK}, 4, v0")
    A(f"v_mov_b32 v{SV+4}, 0"); A(f"v_lshlrev_b32 v{SV+5}, 2, v0")
    A(f"ds_write_b32 v{SV+4}, v{SV+4} offset:{QF}")
    A(f"v_mov_b32 v{SV+6}, -1"); A(f"v_and_b32 v{SV+5}, 124, v{SV+5}"); A(f"ds_write_b32 v{SV+5}, v{SV+6} offset:{MW}")
    for d in (WO, W2, OUT): srd_const(d); srd_ptr(d)
    consts()
    group_ids()
    masks(SV + 5)
    A(f"v_lshlrev_b32 v{vA2}, 1, v{vA2}")
    U = 12
    A("s_waitcnt vmcnt(0)")
    stamp(12)
    for i in range(9):
        A(f"v_lshlrev_b32 v{U+2*i}, 16, v{XS+i}"); A(f"v_and_b32 v{U+2*i+1}, 0xffff0000, v{XS+i}")
    s = XS
    A(f"v_add_f32 v{s}, v{U}, v{U+1}"); A(f"v_add_f32 v{s+1}, v{U+2}, v{U+3}")
    for i in range(4, 18, 2):
        A(f"v_add_f32 v{s}, v{s}, v{U+i}"); A(f"v_add_f32 v{s+1}, v{s+1}, v{U+i+1}")
    A(f"v_add_f32 v{s}, v{s}, v{s+1}")
    allred32(s, s + 1)
    A(f"v_mul_f32 v{s}, {0x3AE38E39:#x}, v{s}")
    W = 40
    for i in range(18):
        A(f"v_sub_f32 v{W+i}, v{U+i}, v{s}")
    A(f"v_mul_f32 v{s+2}, v{W}, v{W}"); A(f"v_mul_f32 v{s+3}, v{W+1}, v{W+1}")
    for i in range(2, 18, 2):
        A(f"v_fmac_f32 v{s+2}, v{W+i}, v{W+i}"); A(f"v_fmac_f32 v{s+3}, v{W+i+1}, v{W+i+1}")
    A(f"v_add_f32 v{s+2}, v{s+2}, v{s+3}")
    allred32(s + 2, s + 3)
    A(f"v_mul_f32 v{s+2}, {0x3AE38E39:#x}, v{s+2}")
    bf16r(s + 2, s + 2)
    A(f"v_add_f32 v{s+2}, {0x3727C5AC:#x}, v{s+2}")
    bf16r(s + 2, s + 2)
    A(f"v_sqrt_f32 v{s+2}, v{s+2}")
    bf16r(s, s)
    bf16r(s + 2, s + 2)
    A(f"v_rcp_f32 v{s+2}, v{s+2}")
    for i in range(18):
        A(f"v_sub_f32 v{U+i}, v{U+i}, v{s}")
    for i in range(0, 18, 2):
        A(f"v_cvt_pk_bf16_f32 v{U+i+1}, v{U+i}, v{U+i+1}"); A(f"v_lshlrev_b32 v{U+i}, 16, v{U+i+1}"); A(f"v_and_b32 v{U+i+1}, 0xffff0000, v{U+i+1}")
        A(f"v_mul_f32 v{U+i}, v{U+i}, v{s+2}"); A(f"v_mul_f32 v{U+i+1}, v{U+i+1}, v{s+2}")
        A(f"v_cvt_pk_bf16_f32 v{U+i}, v{U+i}, v{U+i}"); A(f"v_cvt_pk_bf16_f32 v{U+i+1}, v{U+i+1}, v{U+i+1}")
        A(f"ds_write_b64 v{vA2}, {r2(U+i)} offset:{XN+4*i}")
    A("s_waitcnt lgkmcnt(0)")
    A(f"s_add_u32 s{sEP}, s{sEP}, 1")
    A(f"v_mov_b32 v{vTAG}, s{sEP}")
    A(f"ds_write_b32 v{SV+4}, v{vTAG} offset:{TG}")
    A("s_waitcnt lgkmcnt(0)")
    A("s_barrier")
    stamp(2)
    A(f"s_and_b32 s{sT0}, s{sEP}, s{sTM}"); A(f"v_mov_b32 v{vTAG}, s{sT0}")
    A(f"s_bfe_u32 s{sSF}, s{sEP}, 0x6000a"); A(f"s_lshl_b32 s{sSF}, s{sSF}, 20"); A(f"s_add_u32 s{sSF}, s{sSF}, {SAFE}")
    T = SV + 8
    GT = 40
    A(f"s_and_b32 s{sU}, s{sTB}, 255")
    A(f"v_and_b32 v{SV+1}, 7, v0"); A(f"v_bfe_u32 v{SV}, v0, 3, 1")
    A(f"v_bfe_u32 v{PA}, v0, 4, 1"); A(f"v_mul_u32_u24 v{SV+2}, {P1P}, v{PA}"); A(f"v_mul_u32_u24 v{PA}, {P1B}, v{PA}")
    A(f"v_lshl_add_u32 v{PA}, v{SV+1}, 5, v{PA}")
    A(f"v_lshl_add_u32 v{PA}, v{SV}, 4, v{PA}")
    A(f"s_bfe_u32 s{sT0}, s{sTB}, 0x10011"); A(f"v_xor_b32 v{SV+3}, s{sT0}, v{vA1}"); A(f"v_mul_u32_u24 v{SV+3}, {P1P}, v{SV+3}"); A(f"v_add_u32 v{PA}, v{PA}, v{SV+3}")
    A(f"s_mov_b32 s{sPM}, -1"); A(f"s_bitcmp1_b32 s{sTB}, 18"); A(f"s_cselect_b32 s{sPM+1}, -1, 0")
    A(f"s_lshl_b32 s{sPS}, s{sU}, 8"); A(f"s_add_u32 s{sPS}, s{sPS}, {P1}")
    A(f"s_cmp_lt_u32 s{sU}, 208"); A(f"s_cselect_b32 s{sPS}, s{sPS}, {HUGE}")
    A(f"s_mul_i32 s{sT2}, s{sB}, {P1B}"); A(f"s_lshl_b32 s{sT3}, s{sHKV}, 10"); A(f"s_add_u32 s{sT2}, s{sT2}, s{sT3}"); A(f"s_add_u32 s{sT2}, s{sT2}, {P1}")
    A(f"s_add_u32 s{sC2}, s{sT2}, {P1P}")
    A(f"v_mul_u32_u24 v{vA2}, {P1B}, v{SV}"); A(f"v_mul_u32_u24 v{vA1}, 18432, v{vA1}"); A(f"v_add3_u32 v{vA2}, v{vA2}, v{vA1}, v{SV+2}")
    A(f"v_lshl_add_u32 v{vA2}, v{SV+1}, 4, v{vA2}")
    A(f"v_mov_b32 v{SV+3}, {HUGE}")
    A(f"v_cmp_gt_u32 vcc, s{sNSL}, v{SV+1}"); A("s_nop 1")
    A(f"v_cndmask_b32 v{vA2}, v{SV+3}, v{vA2}, vcc"); A(f"v_cndmask_b32 v{TG0}, 0, v{vTAG}, vcc")
    A(f"s_lshl_b32 s{sT3}, s{sROW}, 2"); A(f"s_add_u32 s{sT3}, s{sT3}, {P1 + 16384}")
    A(f"s_mov_b32 s{sSP}, 0"); A(f"s_mov_b32 s{sC1}, 0"); A(f"s_sub_u32 s{sC3}, s{sSF}, {P1}")
    for v in range(4): A(f"v_mov_b32 v{PD+v}, 0")
    A("s_barrier")
    A("s_mov_b64 exec, 0xffffffff")
    for w in range(8):
        A(f"ds_read_b128 {r4(T+4*w)}, v{vK} offset:{S1 + w*512}")
    for w in range(1, 8):
        A(f"s_waitcnt lgkmcnt({7-w})")
        for v in range(4):
            A(f"v_add_f32 v{PD+v}, v{T+v if w == 1 else PD+v}, v{T+4*w+v}")
    for v in range(4): A(f"v_add_u32 v{PD+v}, {(TMASK+1)//2}, v{PD+v}")
    A("s_mov_b64 exec, -1")
    tag4(PD)
    A(f"s_mov_b64 exec, s[{sPM}:{sPM+1}]")
    vm([f"buffer_store_dwordx4 {r4(PD)}, v{PA}, {srd(WS)}, s{sPS} offen"])
    A("s_mov_b64 exec, -1")
    def safe_p1(tag):
        A(f"s_cmp_lg_u32 s{sSP}, 0"); A(f"s_cbranch_scc1 L_sp{tag}")
        A(f"s_add_u32 s{sPS}, s{sPS}, s{sSF}"); A(f"s_sub_u32 s{sPS}, s{sPS}, {P1}"); A(f"s_mov_b32 s{sSP}, 1")
        A(f"s_mov_b64 exec, s[{sPM}:{sPM+1}]")
        vm([f"buffer_store_dwordx4 {r4(PD)}, v{PA}, {srd(WS)}, s{sPS} offen sc1"])
        A("s_mov_b64 exec, -1")
        A(f"L_sp{tag}:")
    stamp(3)
    A("L_gather:")
    vm([f"buffer_load_dwordx4 {r4(T)}, v{vK}, {srd(WS)}, s{sT2} offen sc1",
        f"buffer_load_dwordx4 {r4(T+4)}, v{vK}, {srd(WS)}, s{sC2} offen sc1",
        f"buffer_load_dwordx4 {r4(GT)}, v{vA2}, {srd(WS)}, s{sT3} offen sc1"])
    A(f"s_add_u32 s{sSPIN}, s{sSPIN}, 1")
    A("s_waitcnt vmcnt(0)")
    rg = [T + i for i in range(8)] + [GT + i for i in range(4)]
    untag_check(rg, rg, [vTAG] * 8 + [TG0] * 4, SV)
    A("s_cbranch_vccz L_gotg")
    A(f"s_cmp_lt_u32 s{sSPIN}, {gtmo}"); A("s_cbranch_scc1 L_gather")
    safe_p1("g")
    for r_ in (sT2, sC2, sT3): A(f"s_sub_u32 s{r_}, s{r_}, s{sC1}")
    A(f"s_xor_b32 s{sC1}, s{sC1}, s{sC3}")
    for r_ in (sT2, sC2, sT3): A(f"s_add_u32 s{r_}, s{r_}, s{sC1}")
    A(f"s_cmp_lt_u32 s{sSPIN}, {spin}"); A("s_cbranch_scc1 L_gather")
    A("L_gotg:")
    for v in range(4): A(f"v_add_f32 v{T+v}, v{T+v}, v{T+4+v}")
    A(f"v_cvt_pk_bf16_f32 v{T}, v{T}, v{T+1}"); A(f"v_cvt_pk_bf16_f32 v{T+1}, v{T+2}, v{T+3}")
    A(f"v_lshlrev_b32 v{vA1}, 3, v0")
    A(f"ds_write_b64 v{vA1}, {r2(T)} offset:{QL}")
    for v in range(4): A(f"v_mov_b32 v{GT+4+v}, v{GT+v}")
    A("s_nop 1")
    for v in range(4): A(f"v_permlane16_swap_b32 v{GT+v}, v{GT+4+v}")
    A("s_nop 1")
    for v in range(4): A(f"v_add_f32 v{GT+v}, v{GT+v}, v{GT+4+v}")
    for v in range(4): bf16r(GT + v, GT + v)
    for v in range(4): A(f"v_mov_b32 v{GT+4+v}, v{GT+v}")
    A("s_nop 1")
    for v in range(4): A(f"v_permlane32_swap_b32 v{GT+v}, v{GT+4+v}")
    A("s_nop 1")
    for v in range(4): A(f"v_mul_f32 v{GT+8+v}, s{sLOG2E}, v{GT+v}")
    for v in range(4): A(f"v_exp_f32 v{GT+8+v}, -v{GT+8+v}")
    for v in range(4): A(f"v_add_f32 v{GT+8+v}, 1.0, v{GT+8+v}")
    for v in range(4): A(f"v_rcp_f32 v{GT+8+v}, v{GT+8+v}")
    for v in range(4): A(f"v_mul_f32 v{GT+v}, v{GT+v}, v{GT+8+v}")
    for v in range(4): bf16r(GT + v, GT + v)
    for v in range(4): A(f"v_mul_f32 v{GT+v}, v{GT+v}, v{GT+4+v}")
    for v in range(4): A(f"v_cvt_pk_bf16_f32 v{GT+v}, v{GT+v}, v{GT+v}")
    A("s_mov_b64 exec, 0xffff")
    A(f"ds_write_b128 v{vK}, {r4(GT)} offset:{HD}")
    A("s_mov_b64 exec, -1")
    A(f"v_mov_b32 v{SV+3}, 1")
    A("s_waitcnt lgkmcnt(0)")
    A(f"ds_write_b32 v{SV+4}, v{SV+3} offset:{QF}")
    stamp(5)
    late_addr(); tail_addr()
    A(f"s_lshl_b32 s{sT0}, s{sSL}, 6"); A(f"v_lshl_add_u32 v{SV+20}, v0, 2, s{sT0}")
    vm(LATE + [f"buffer_load_dword v{SV+21}, v{SV+20}, {srd(X)}, 0 offen"])
    A(f"v_and_b32 v{vA1}, 15, v0"); A(f"s_lshl_b32 s{sT1}, s{sHKV}, 4"); A(f"v_add_u32 v{SV+12}, s{sT1}, v{vA1}")
    A(f"v_mul_u32_u24 v{vA1}, {REC}, v{SV+12}")
    A(f"s_mul_i32 s{sT2}, s{sJ}, 80"); A(f"v_lshl_add_u32 v{vA2}, v{vT0}, 4, v{vA1}")
    A(f"s_mul_i32 s{sPC}, s2, {REC}")
    A(f"v_lshrrev_b32 v{vV}, 2, v0"); A(f"v_mul_u32_u24 v{vV}, 80, v{vV}"); A(f"v_and_b32 v{SV+1}, 3, v0"); A(f"v_lshl_add_u32 v{vV}, v{SV+1}, 4, v{vV}")
    A(f"v_mul_u32_u24 v{SV+1}, 80, v0")
    A("s_mov_b32 s0, 0x01010101"); A("s_mov_b32 s1, 0x01010101")
    A(f"s_getreg_b32 s{sC3}, hwreg(HW_REG_XCC_ID)"); A(f"s_lshl_b32 s{sC3}, s{sC3}, 16")
    FW = 80
    A(f"v_and_b32 v{SV+2}, 15, v0"); A(f"v_lshlrev_b32 v{SV+3}, 2, v{SV+2}"); A(f"v_lshlrev_b32 v{SV+2}, 3, v{SV+2}")
    A(f"v_lshrrev_b32 v{SV}, 5, v0"); A(f"v_lshlrev_b32 v{SV}, 5, v{SV}")
    A("L_mlwait:")
    A(f"s_sleep {mlsleep}")
    A(f"ds_read_b64 {r2(SV+6)}, v{SV+2} offset:{MW}")
    A(f"s_add_u32 s{sSPIN}, s{sSPIN}, 1"); A(f"s_cmp_gt_u32 s{sSPIN}, {spin*16}")
    A("s_waitcnt lgkmcnt(0)")
    A(f"v_cmp_eq_u32 vcc, -1, v{SV+7}")
    A(f"v_max_f32_dpp v{SV+4}, v{SV+6}, v{SV+6} {STEPS[0]} {DPPF}")
    A("s_cbranch_scc1 L_mlgot")
    A("s_cbranch_vccnz L_mlwait")
    A("L_mlgot:")
    A("s_setprio 3")
    A(f"v_max_f32_dpp v{SV+4}, v{SV+4}, v{SV+4} {STEPS[1]} {DPPF}"); A("s_nop 1")
    A(f"v_max_f32_dpp v{SV+4}, v{SV+4}, v{SV+4} {STEPS[2]} {DPPF}")
    A(f"v_sub_f32 v{SV+6}, v{SV+6}, v{SV+4}"); A(f"v_mul_f32 v{SV+6}, s{sLOG2E}, v{SV+6}"); A(f"v_exp_f32 v{SV+6}, v{SV+6}"); A("s_nop 0")
    A(f"ds_write_b32 v{SV+3}, v{SV+6} offset:{FWL}")
    A(f"v_mul_f32 v{SV+5}, v{SV+7}, v{SV+6}")
    A(f"ds_read_b128 {r4(FW)}, v{SV} offset:{FWL}"); A(f"ds_read_b128 {r4(FW+4)}, v{SV} offset:{FWL+16}")
    for s_ in STEPS:
        A(f"v_add_f32_dpp v{SV+5}, v{SV+5}, v{SV+5} {s_} {DPPF}"); A("s_nop 1")
    A(f"v_mov_b32 v{SV+6}, s{sC3}")
    tag4(SV + 4)
    A(f"s_mov_b32 s{sT0}, 0"); A(f"s_add_u32 s{sT3}, s{sSPIN}, {tmo}")
    stamp(4)
    A("s_barrier")
    OT = 128
    for w in range(8):
        A(f"ds_read_b128 {r4(OT+4*w)}, v{vK} offset:{OS+w*1024}")
    A("s_mov_b64 exec, 0xffff")
    A(f"buffer_store_dwordx4 {r4(SV+4)}, v{SV+1}, {srd(WS)}, s{sPC} offen offset:64")
    A("s_mov_b64 exec, -1")
    for w in range(8):
        A(f"s_waitcnt lgkmcnt({7-w})")
        f = FW + (w & ~1); sel = w & 1
        for hlf in range(2):
            d = f"v[{OT+2*hlf}:{OT+2*hlf+1}]"; x = f"v[{OT+4*w+2*hlf}:{OT+4*w+2*hlf+1}]"
            if w == 0: A(f"v_pk_mul_f32 {d}, {x}, v[{f}:{f+1}] op_sel:[0,{sel}] op_sel_hi:[1,{sel}]")
            else: A(f"v_pk_fma_f32 {d}, {x}, v[{f}:{f+1}], {d} op_sel:[0,{sel},0] op_sel_hi:[1,{sel},1]")
    tag4(OT)
    A(f"buffer_store_dwordx4 {r4(OT)}, v{vV}, {srd(WS)}, s{sPC} offen")
    POLL = [f"buffer_load_dwordx4 {r4(PL)}, v{vA2}, {srd(WS)}, s{sT2} offen sc1",
            f"buffer_load_dwordx4 {r4(PL+4)}, v{vA1}, {srd(WS)}, s{sT2} offen offset:64 sc1"]
    for c in POLL: A(c)
    if nwb < 5: A("s_barrier")
    stamp(6)
    A("s_waitcnt vmcnt(7)")
    w2_mfmas()
    A("s_branch L_pollo1")
    def safe_o():
        A(f"s_mul_i32 s{sT1}, s2, 1280"); A(f"s_add_u32 s{sT1}, s{sT1}, s{sSF}"); A(f"s_add_u32 s{sT1}, s{sT1}, {SAFO}")
        A(f"buffer_store_dwordx4 {r4(OT)}, v{vV}, {srd(WS)}, s{sT1} offen sc1")
        A("s_mov_b64 exec, 0xffff")
        A(f"buffer_store_dwordx4 {r4(SV+4)}, v{SV+1}, {srd(WS)}, s{sT1} offen offset:64 sc1")
        A("s_mov_b64 exec, -1")
        A(f"s_mov_b32 s{sT0}, 1")
    m, l, M = PL + 4, PL + 5, TT + 1
    A("L_otmo:")
    A(f"s_cmp_lg_u32 s{sT0}, 0"); A("s_cbranch_scc1 L_goto")
    safe_p1("o")
    A("s_setprio 3")
    safe_o()
    A(f"v_mul_u32_u24 v{SV+12}, 1280, v{SV+12}"); A(f"v_lshl_add_u32 v{SV+13}, v{vT0}, 4, v{SV+12}")
    A(f"s_add_u32 s{sC1}, s{sT2}, s{sSF}"); A(f"s_add_u32 s{sC1}, s{sC1}, {SAFO}"); A(f"s_add_u32 s{sT3}, s{sSPIN}, {spin}")
    A("s_branch L_oswap")
    A("L_oretry:")
    A("s_cbranch_scc1 L_otmo")
    A(f"s_cmp_eq_u32 s{sT0}, 0"); A("s_cbranch_scc1 L_pollo")
    A("L_oswap:")
    A(f"v_swap_b32 v{vA1}, v{SV+12}"); A(f"v_swap_b32 v{vA2}, v{SV+13}")
    A(f"s_mov_b32 s{sT1}, s{sT2}"); A(f"s_mov_b32 s{sT2}, s{sC1}"); A(f"s_mov_b32 s{sC1}, s{sT1}")
    A("L_pollo:")
    for c in POLL: A(c)
    A("L_pollo1:")
    A(f"s_add_u32 s{sSPIN}, s{sSPIN}, 1"); A(f"s_cmp_gt_u32 s{sSPIN}, s{sT3}")
    A("s_waitcnt vmcnt(0)")
    rg = [PL + 4 + i for i in range(4)] + [PL + i for i in range(4)]
    untag_check(rg, rg, [vTAG] * 8, TT + 1)
    A(f"v_max_f32_dpp v{M}, v{m}, v{m} {STEPS[0]} {DPPF}")
    A("s_cbranch_vccnz L_oretry")
    A(f"v_cmp_ne_u32 vcc, s{sC3}, v{PL+6}")
    A("s_cbranch_vccz L_goto")
    A(f"s_cmp_lg_u32 s{sT0}, 0"); A("s_cbranch_scc1 L_goto")
    safe_o()
    A("L_goto:")
    stamp(9)
    A(f"v_max_f32_dpp v{M}, v{M}, v{M} {STEPS[1]} {DPPF}"); A("s_nop 1")
    A(f"v_max_f32_dpp v{M}, v{M}, v{M} {STEPS[2]} {DPPF}")
    A(f"v_sub_f32 v{m}, v{m}, v{M}"); A(f"v_mul_f32 v{m}, s{sLOG2E}, v{m}"); A(f"v_exp_f32 v{m}, v{m}"); A("s_nop 0")
    A(f"v_mul_f32 v{l}, v{l}, v{m}")
    for v in range(4): A(f"v_mul_f32 v{PL+v}, v{PL+v}, v{m}")
    for s_ in STEPS:
        for r in (l, PL, PL + 1, PL + 2, PL + 3):
            A(f"v_add_f32_dpp v{r}, v{r}, v{r} {s_} {DPPF}")
        if s_ == STEPS[2]: pass
    A(f"v_rcp_f32 v{l}, v{l}"); A("s_mov_b64 exec, s[0:1]")
    for v in range(4): A(f"v_mul_f32 v{PL+v}, v{PL+v}, v{l}")
    for v in range(4): A(f"v_cvt_pk_bf16_f32 v{PL+v}, v{PL+v}, v{PL+v}")
    A(f"ds_write_b128 v{vT1}, {r4(PL)} offset:{ZL}")
    A("s_mov_b64 exec, -1")
    A("s_waitcnt lgkmcnt(0)")
    A("s_barrier")
    stamp(13)
    A(f"ds_read_b128 {r4(PL)}, v{vT1} offset:{ZL}")
    A("s_waitcnt lgkmcnt(0)")

    A("L_tail:")
    for n in range(2):
        for rho in range(2):
            gemv_mfma(PL + 2 * n + rho, WL + 12 + 4 * n, D1 if rho == 0 else D2, False)
    A(f"s_cmp_lg_u32 s{sCK}, 0"); A(f"s_cselect_b32 s{sT0}, 1, 0"); A("s_cmp_ge_u32 s2, 252"); A(f"s_cselect_b32 s{sT0}, 1, s{sT0}")
    A("s_nop 3")
    for v in range(4):
        A(f"v_add_f32_dpp v{D1+v}, v{D2+v}, v{D1+v} row_ror:8 {DPPF}")
    tag4(D1)
    A(f"s_mov_b64 exec, s[{sMASK}:{sMASK+1}]")
    A(f"buffer_store_dwordx4 {r4(D1)}, v{TT}, {srd(WS)}, s{sC2} offen sc1")
    A("s_mov_b64 exec, -1")
    stamp(10)
    A(f"s_cmp_lg_u32 s{sT0}, 0"); A("s_cbranch_scc1 L_fin")
    A("s_cmp_eq_u32 s3, 8"); A("s_cbranch_scc1 L_final")
    A(f"v_lshrrev_b32 v{TT}, 3, v0"); A(f"s_lshl_b32 s{sT0}, s3, 5"); A(f"v_add_u32 v{TT}, s{sT0}, v{TT}")
    A(f"v_mul_u32_u24 v{TT}, {REC}, v{TT}"); A(f"v_and_b32 v{TT+1}, 7, v0"); A(f"v_lshl_add_u32 v{TT}, v{TT+1}, 4, v{TT}")
    A(f"s_lshl_b32 s{sT0}, s{sSL}, 7"); A(f"s_add_u32 s{sT0}, s{sT0}, {FPO}")
    A(f"s_add_u32 s{sC1}, s{sT0}, {8*REC}"); A(f"s_add_u32 s{sC2}, s{sT0}, {16*REC}"); A(f"s_add_u32 s{sC3}, s{sT0}, {24*REC}")
    A(f"s_add_u32 s{sT3}, s{sSPIN}, {spin}")
    A(f"v_bfe_u32 v{TT+2}, v0, 3, 2"); A(f"v_lshlrev_b32 v{TT+2}, 2, v{TT+2}"); A(f"v_lshl_add_u32 v{TT+2}, v{TT+1}, 4, v{TT+2}")
    A(f"s_lshl_b32 s{sT1}, s3, 7"); A(f"v_add_u32 v{TT+2}, s{sT1}, v{TT+2}")
    A("L_pollf:")
    for q, so in enumerate((sT0, sC1, sC2, sC3)):
        A(f"buffer_load_dwordx4 {r4(FC+4*q)}, v{TT}, {srd(WS)}, s{so} offen sc1")
    A(f"s_add_u32 s{sSPIN}, s{sSPIN}, 1"); A(f"s_cmp_gt_u32 s{sSPIN}, s{sT3}")
    A("s_waitcnt vmcnt(0)")
    rg = [FC + i for i in range(16)]
    untag_check(rg, rg, [vTAG] * 16, TT + 1)
    A("s_cbranch_scc1 L_gotf")
    A("s_cbranch_vccnz L_pollf")
    A("L_gotf:")
    stamp(9)
    for hlf in range(2):
        A(f"v_pk_add_f32 {r2(FC+2*hlf)}, {r2(FC+2*hlf)}, {r2(FC+4+2*hlf)}"); A(f"v_pk_add_f32 {r2(FC+8+2*hlf)}, {r2(FC+8+2*hlf)}, {r2(FC+12+2*hlf)}")
    for hlf in range(2):
        A(f"v_pk_add_f32 {r2(FC+2*hlf)}, {r2(FC+2*hlf)}, {r2(FC+8+2*hlf)}")
    a, b = FC + 4, FC + 5
    A("s_nop 0")
    A(f"v_add_f32_dpp v{a}, v{FC}, v{FC} row_ror:8 row_mask:0xf bank_mask:0x3")
    A(f"v_add_f32_dpp v{a}, v{FC+1}, v{FC+1} row_ror:8 row_mask:0xf bank_mask:0xc")
    A(f"v_add_f32_dpp v{b}, v{FC+2}, v{FC+2} row_ror:8 row_mask:0xf bank_mask:0x3")
    A(f"v_add_f32_dpp v{b}, v{FC+3}, v{FC+3} row_ror:8 row_mask:0xf bank_mask:0xc")
    A("s_nop 1")
    A(f"v_permlane16_swap_b32 v{a}, v{b}")
    A("s_nop 1")
    A(f"v_add_f32 v{a}, v{a}, v{b}")
    swap_red(a, b, "v_add_f32", "v_permlane32_swap_b32")
    A(f"ds_write_b32 v{TT+2}, v{a} offset:{FS}")
    A("s_waitcnt lgkmcnt(0)")
    A("s_barrier")
    A("s_branch L_fin")
    A("L_final:")
    A(f"v_lshlrev_b32 v{TT}, 3, v0")
    A(f"v_lshlrev_b32 v{TT+2}, 16, v{SV+21}"); A(f"v_and_b32 v{TT+3}, 0xffff0000, v{SV+21}")
    A(f"v_mov_b32 v{TT+1}, s{sEP}"); A(f"v_mov_b32 v{SV}, {EP}")
    A(f"s_cmp_eq_u32 s2, 0"); A(f"s_cselect_b32 s{sT0}, 0, {HUGE}")
    A("s_mov_b64 exec, 0xffff")
    A("s_barrier")
    for w in range(8):
        A(f"ds_read_b64 {r2(80+2*w)}, v{TT} offset:{FS+128*w}")
    for w in range(8):
        A(f"s_waitcnt lgkmcnt({7-w})")
        A(f"v_pk_add_f32 {r2(TT+2)}, {r2(TT+2)}, {r2(80+2*w)}")
    A(f"v_cvt_pk_bf16_f32 v{TT+2}, v{TT+2}, v{TT+3}")
    A(f"buffer_store_dword v{TT+2}, v{SV+20}, {srd(OUT)}, 0 offen{outsc}")
    A("s_mov_b64 exec, 1")
    A(f"buffer_store_dword v{TT+1}, v{SV}, {srd(WS)}, s{sT0} offen sc1")
    if hold:
        A(f"s_add_u32 s100, s100, {hold}")
        A("L_hold:"); A("s_memrealtime s[98:99]"); A("s_waitcnt lgkmcnt(0)"); A("s_sub_u32 s98, s98, s100"); A("s_cmp_lt_i32 s98, 0"); A("s_cbranch_scc1 L_hold")
    A("L_fin:")
    if stamps:
        stamp(11)
        A("s_mov_b64 exec, -1")
        A("s_waitcnt vmcnt(0) lgkmcnt(0)")
        A(f"s_mul_i32 s{sT0}, s2, 9"); A(f"s_add_u32 s{sT0}, s{sT0}, s3"); A(f"s_lshl_b32 s{sT0}, s{sT0}, 7"); A(f"s_add_u32 s{sT0}, s{sT0}, {STAMP}")
        for i in range(14):
            A(f"v_mov_b32 v{104+2*i}, s{stamp_reg(i)}"); A(f"v_mov_b32 v{105+2*i}, s{stamp_reg(i)+1}")
        A(f"v_mov_b32 v132, s{sSPIN}")
        A("s_getreg_b32 s76, hwreg(HW_REG_XCC_ID)"); A("v_mov_b32 v133, s76"); A("v_mov_b32 v134, 0"); A("v_mov_b32 v135, 0")
        A("v_mov_b32 v100, 0")
        A("s_mov_b64 exec, 1")
        for i in range(8):
            A(f"buffer_store_dwordx4 {r4(104+4*i)}, v100, {srd(WS)}, s{sT0} offen offset:{16*i}")
    A("L_end:")
    A("s_endpgm")
    A(".p2align 6")
    A(".type L_tab,@object"); A(".size L_tab, 1024")
    A("L_tab:")
    tb = unit_table(split)
    for i in range(0, 256, 8): A(".long " + ", ".join(f"{x:#x}" for x in tb[i:i+8]))
    A('.section .rodata,"a"'); A(".p2align 6"); A(f".amdhsa_kernel {NAME}")
    A("  .amdhsa_next_free_vgpr 168"); A("  .amdhsa_next_free_sgpr 102"); A("  .amdhsa_accum_offset 168")
    A("  .amdhsa_group_segment_fixed_size 0"); A("  .amdhsa_kernarg_size 96"); A("  .amdhsa_user_sgpr_count 2")
    A("  .amdhsa_user_sgpr_kernarg_segment_ptr 1"); A("  .amdhsa_system_sgpr_workgroup_id_x 1")
    A(".end_amdhsa_kernel")
    return "\n".join(L) + "\n"


if __name__ == "__main__":
    kw = eval("dict(%s)" % (sys.argv[2] if len(sys.argv) > 2 else ""))
    open(sys.argv[1], "w").write(gen(**kw))
```

```python
import sys
NAME = "parallel_sum__sliding_block_cached__glu_gated_swiglu__decode_kernel"

HEADER = """; Fused decode step: out = x + Attn(LN(x)) + SwiGLU(LN(x)); one launch, 256 workgroups x 9 waves.
;
;
"""

OS = 0
S1 = 0
FS = 8192
QL = 9216
HD = QL + 512
MW = HD + 256
ZL = MW + 128
FWL = ZL + 128
TG = FWL + 64
QF = TG + 4
XN = 10368
assert QF + 4 <= XN
LDS_BYTES = XN + 4608
REC = 6144
FPO = 1536
EP = 1408
P1 = 3 << 19
P1B = 13312 * 4
P1P = 2 * P1B
HINT = (7 << 18) + (1 << 16)
STAMP = 2 << 20
SAFE = 4 << 20
SAFO = 1 << 18
WS_BYTES = 68 << 20
HUGE = 0x40000000
LOG2E = 0x3FB8AA3B
SCALE = 0x3DB504F3
TMASK = 0x3FF
STAMP_NAMES = ["start", "karg", "Bt/B0", "B1", "qgot", "sm", "Vend", "s7", "s8", "gotO", "FPst", "end", "x/B4", "B5"]

X, K, V, SU, WO, W2, OUT, WS = [4 + 4 * i for i in range(8)]
SRD_INFO = {X: (0, 2304), K: (2, 1 << 28), V: (4, 1 << 28), WO: (8, 4096 * 1152),
            W2: (16, 4608 * 1152), OUT: (18, 2304), WS: (22, WS_BYTES)}
sPS, sSP, sPM = 36, 37, 38
sSF = 40
sPC = 42
sU, sRB = 46, 47
sHKV, sJ, sB, sS, sSL, sCK = 48, 49, 50, 51, 52, 53
sT0, sT1, sT2, sT3 = 54, 55, 56, 57
sHASH = 58
sUO, sUS = 59, 60
sTB = 62
sLOG2E = 63
sSPIN = 64
sTM = 65
sC1, sC2, sC3 = 66, 67, 68
sEP = 69
sMASK = 70
sROW, sNSL = 74, 75
KA = 76
def stamp_reg(i): return {0: 100, 1: 72}.get(i, KA + 2 * (i - 2))

vK, vV, vA1, vA2 = 1, 2, 3, 4
MK = 5
vT0, vT1, vT2 = 9, 10, 11
A0, A1 = 12, 16
ACC, D1, D2 = 20, 24, 28
SR = 32
QB = 36
KR = 40
VR = 104
def kreg(t): return KR + 4 * t
def vreg(t): return VR + 4 * t
XA = 32
S1D = 132
WL = 40
PL = 60
HV = 68
vTAG = 74
vA3 = 75
TT = 76
vOS = 80
FC = 104
SV = 104


def r4(b): return f"v[{b}:{b+3}]"
def r2(b): return f"v[{b}:{b+1}]"
def srd(b): return f"s[{b}:{b+3}]"
DPPF = "row_mask:0xf bank_mask:0xf"
STEPS = ("quad_perm:[1,0,3,2]", "quad_perm:[2,3,0,1]", "row_half_mirror")


def unit_table(split):
    tab = []
    for hkv in range(16):
        ns = 4 + (hkv & 1); g0 = 9 * (hkv >> 1) + 4 * (hkv & 1)
        units = [4 * hkv + i for i in range(4)] + [64 + g0 + i for i in range(ns)] + [136 + g0 + i for i in range(ns)]
        cls = lambda u: (u - (0 if u < 64 else 64 if u < 136 else 136)) & 7
        nfree = 16 - len(units)
        order = sorted(units, key=lambda u: 0 if cls(u) == 3 else 1)
        nsp = {"c3": sum(cls(u) == 3 for u in units), "all": nfree, "none": 0}[split]
        assert nsp <= nfree
        sp = order[:nsp]
        ent = []
        for u in units:
            if u in sp: ent.append(u | (0x01f << 8))
            else: ent.append(u | (0x1ff << 8) | (1 << 18))
        for u in sp: ent.append(u | (0x1e0 << 8) | (1 << 17))
        while len(ent) < 16: ent.append(255)
        tab += ent[0::2] + ent[1::2]
    return tab


def gen(depth=4, b2=12, pre=2, nwb=2, stamps=False, pol=" nt", spin=100000, mlsleep=4, tmo=40, gtmo=12, split="all",
        xg=True, dry=False, outsc="", hold=0, clean="", tb=(13, 14, 15, 16), hwg=False, wsh=10, ssh=17, npf=1, sel=False, hint="b5", hsc=False):
    L = []
    A = L.append

    def stamp(i):
        if stamps:
            r = stamp_reg(i)
            A(f"s_memrealtime s[{r}:{r+1}]")

    def srd_const(d):
        A(f"s_mov_b32 s{d+2}, {SRD_INFO[d][1]}"); A(f"s_mov_b32 s{d+3}, 0x00020000")

    def srd_ptr(d):
        o = KA + SRD_INFO[d][0]
        A(f"s_mov_b64 s[{d}:{d+1}], s[{o}:{o+1}]")

    def consts():
        A(f"s_mov_b32 s{sLOG2E}, {LOG2E:#x}"); A(f"s_mov_b32 s{sSPIN}, 0"); A(f"s_movk_i32 s{sTM}, {TMASK:#x}")
        A(f"s_mov_b32 s{sMASK}, 0x00ff00ff"); A(f"s_mov_b32 s{sMASK+1}, 0x00ff00ff")
        A(f"s_mul_i32 s{sSL}, s2, 9363"); A(f"s_lshr_b32 s{sSL}, s{sSL}, 16")
        A(f"s_mul_i32 s{sT0}, s{sSL}, 7"); A(f"s_sub_u32 s{sCK}, s2, s{sT0}")

    def masks(tmp):
        A(f"v_and_b32 v{vT2}, 1, v0"); A(f"v_lshlrev_b32 v{vT2}, 4, v{vT2}")
        A(f"v_mov_b32 v{MK}, 0xffff"); A(f"v_lshlrev_b32 v{vT2}, v{vT2}, v{MK}")
        A(f"v_bfe_u32 v{tmp}, v0, 1, 2")
        for j in range(4):
            A(f"v_cmp_eq_u32 vcc, {j}, v{tmp}"); A("s_nop 1"); A(f"v_cndmask_b32 v{MK+j}, 0, v{vT2}, vcc")

    def table_load(tag):
        A(f"s_getpc_b64 s[{sPC}:{sPC+1}]")
        A(f"L_pc{tag}:")
        A(f"s_lshl_b32 s{sPC+2}, s2, 2"); A(f"s_add_u32 s{sPC+2}, s{sPC+2}, L_tab-L_pc{tag}")
        A(f"s_load_dword s{sTB}, s[{sPC}:{sPC+1}], s{sPC+2}")

    def group_ids():
        A(f"s_and_b32 s{sT0}, s{sHKV}, 1"); A(f"s_add_u32 s{sNSL}, s{sT0}, 4")
        A(f"s_lshr_b32 s{sT1}, s{sHKV}, 1"); A(f"s_mul_i32 s{sT1}, s{sT1}, 9"); A(f"s_lshl2_add_u32 s{sT1}, s{sT0}, s{sT1}")
        A(f"s_mul_i32 s{sROW}, s{sNSL}, s{sJ}"); A(f"s_lshl4_add_u32 s{sROW}, s{sT1}, s{sROW}"); A(f"s_lshl_b32 s{sROW}, s{sROW}, 2")

    def tag4(r):
        for v in range(4): A(f"v_bfi_b32 v{r+v}, s{sTM}, v{vTAG}, v{r+v}")

    def untag_check(dst, src, tags, acc):
        for d, r, t in zip(dst, src, tags): A(f"v_xor_b32 v{d}, v{t}, v{r}")
        A(f"v_or3_b32 v{acc}, v{dst[0]}, v{dst[1]}, v{dst[2]}")
        rest = dst[3:]
        while len(rest) >= 2:
            A(f"v_or3_b32 v{acc}, v{acc}, v{rest[0]}, v{rest[1]}"); rest = rest[2:]
        if rest: A(f"v_or_b32 v{acc}, v{acc}, v{rest[0]}")
        A(f"v_and_b32 v{acc}, s{sTM}, v{acc}")
        A(f"v_cmp_ne_u32 vcc, 0, v{acc}")

    def bf16r(dst, src):
        A(f"v_cvt_pk_bf16_f32 v{dst}, v{src}, v{src}"); A(f"v_and_b32 v{dst}, 0xffff0000, v{dst}")

    def swap_red(r, t, op, sw):
        A(f"v_mov_b32 v{t}, v{r}"); A("s_nop 1"); A(f"{sw} v{r}, v{t}"); A("s_nop 1"); A(f"{op} v{r}, v{r}, v{t}")

    def allred32(r, t, op="v_add_f32"):
        for n in (1, 2, 4, 8):
            A("s_nop 1"); A(f"{op}_dpp v{r}, v{r}, v{r} row_ror:{n} {DPPF}")
        swap_red(r, t, op, "v_permlane16_swap_b32")

    def allred_banks_rows(r, t, op):
        for n in (4, 8):
            A("s_nop 1"); A(f"{op}_dpp v{r}, v{r}, v{r} row_ror:{n} {DPPF}")
        swap_red(r, t, op, "v_permlane16_swap_b32"); swap_red(r, t, op, "v_permlane32_swap_b32")

    aflip = [0]
    def gemv_mfma(val, data, acc, first):
        a = A0 if aflip[0] == 0 else A1
        aflip[0] ^= 1
        for j in range(4):
            A(f"v_and_b32 v{a+j}, v{val}, v{MK+j}")
        A("s_nop 1")
        A(f"v_mfma_f32_16x16x32_bf16 {r4(acc)}, {r4(a)}, {r4(data)}, {'0' if first else r4(acc)}")

    def w2_mfmas():
        for n in range(3):
            for rho in range(2):
                gemv_mfma(HV + 2 * n + rho, WL + 4 * n, D1 if rho == 0 else D2, n == 0)

    LATE = [f"buffer_load_dwordx4 {r4(WL)}, v{vA2}, {srd(W2)}, 0 offen{pol}",
            f"buffer_load_dwordx4 {r4(WL+4)}, v{vA2}, {srd(W2)}, s{sC1} offen{pol}",
            f"buffer_load_dwordx4 {r4(WL+8)}, v{vA3}, {srd(W2)}, 0 offen{pol}",
            f"buffer_load_dwordx4 {r4(WL+12)}, v{vA1}, {srd(WO)}, 0 offen{pol}",
            f"buffer_load_dwordx4 {r4(WL+16)}, v{vA1}, {srd(WO)}, 0 offen offset:2304{pol}"]

    def late_addr():
        A(f"v_bfe_u32 v{vT2}, v0, 3, 1")
        A(f"v_lshl_add_u32 v{vA1}, v{vT0}, 2, v{vT2}")
        A(f"s_lshl_b32 s{sT1}, s2, 4"); A(f"v_add_u32 v{vA1}, s{sT1}, v{vA1}")
        A(f"v_mul_u32_u24 v{vA1}, 1152, v{vA1}")
        A(f"v_lshl_add_u32 v{vA2}, v{vT0}, 1, v{vT2}")
        A(f"v_add_u32 v{vA2}, s{sROW}, v{vA2}")
        A(f"v_mul_u32_u24 v{vA2}, 1152, v{vA2}")
        A(f"v_and_b32 v{vT2}, 7, v0"); A(f"v_lshlrev_b32 v{vT2}, 4, v{vT2}")
        A(f"s_lshl_b32 s{sT1}, s3, 7"); A(f"v_add_u32 v{vT2}, s{sT1}, v{vT2}")
        A(f"v_add_u32 v{vA1}, v{vA1}, v{vT2}"); A(f"v_add_u32 v{vA2}, v{vA2}, v{vT2}")
        A(f"s_movk_i32 s{sC1}, 9216")

    def tail_addr():
        A(f"s_sub_u32 s{sT1}, s{sNSL}, 4"); A(f"s_lshl_b32 s{sT1}, s{sT1}, 1")
        A(f"v_add_u32 v{vA3}, {16*1152}, v{vA2}")
        A(f"v_cmp_gt_u32 vcc, s{sT1}, v{vT0}"); A(f"v_mov_b32 v{TT}, {HUGE}"); A("s_nop 0")
        A(f"v_cndmask_b32 v{vA3}, v{TT}, v{vA3}, vcc")
        A(f"v_lshrrev_b32 v{TT}, 1, v{vT0}"); A(f"v_mul_u32_u24 v{TT}, 2304, v{TT}")
        A(f"v_and_b32 v{TT+1}, 7, v0"); A(f"v_lshl_add_u32 v{TT}, v{TT+1}, 5, v{TT}")
        A(f"v_and_b32 v{TT+1}, 1, v{vT0}"); A(f"v_lshl_add_u32 v{TT}, v{TT+1}, 4, v{TT}")
        A(f"s_mul_i32 s{sC2}, s2, {REC}"); A(f"s_lshl_b32 s{sT1}, s3, 8"); A(f"s_add_u32 s{sC2}, s{sC2}, s{sT1}"); A(f"s_add_u32 s{sC2}, s{sC2}, {FPO}")
        A(f"v_bfe_u32 v{TT+1}, v0, 3, 1"); A(f"v_lshlrev_b32 v{TT+1}, 7, v{TT+1}"); A(f"v_lshl_add_u32 v{TT+1}, v{vT0}, 3, v{TT+1}")
        for i in range(3):
            A(f"ds_read_b64 {r2(HV+2*i)}, v{TT+1} offset:{HD+32*i}")
        A(f"v_lshrrev_b32 v{vT1}, 3, v0"); A(f"v_lshlrev_b32 v{vT1}, 4, v{vT1}")
        A(f"s_and_b32 s{sT1}, s{sEP}, s{sTM}"); A(f"v_mov_b32 v{vTAG}, s{sT1}")

    A(HEADER.rstrip("\n"))
    A(f"; @launch grid=(256,1,1) block=(576,1,1) lds={LDS_BYTES}")
    A('.amdgcn_target "amdgcn-amd-amdhsa--gfx950"')
    A(".text"); A(f".globl {NAME}"); A(".p2align 8"); A(f".type {NAME},@function"); A(f"{NAME}:")
    stamp(0)
    if hold: A("s_memrealtime s[100:101]")
    A(f"s_load_dwordx16 s[{KA}:{KA+15}], s[0:1], 0")
    A(f"s_load_dwordx8 s[{KA+16}:{KA+23}], s[0:1], 64")
    A("v_lshrrev_b32 v1, 6, v0")
    A("s_cmp_ge_u32 s2, 256"); A("s_cbranch_scc1 L_end")
    A("v_readfirstlane_b32 s3, v1")
    A("v_and_b32 v0, 63, v0")
    if xg:
        A(f"s_and_b32 s{sT0}, s2, 7"); A(f"s_lshl_b32 s{sT0}, s{sT0}, 5"); A("s_lshr_b32 s2, s2, 3"); A(f"s_add_u32 s2, s2, s{sT0}")
    A(f"s_lshr_b32 s{sHKV}, s2, 4"); A(f"s_and_b32 s{sJ}, s2, 15"); A(f"s_lshr_b32 s{sB}, s{sJ}, 3"); A(f"s_and_b32 s{sS}, s2, 7")
    A(f"v_lshrrev_b32 v{vT0}, 4, v0")
    A("s_cmp_eq_u32 s3, 8"); A("s_cbranch_scc1 L_service")

    srd_const(K)
    if (wsh, ssh) == (10, 17):
        A(f"s_lshl4_add_u32 s{sT0}, s{sB}, s{sHKV}"); A(f"s_lshl_b32 s{sT0}, s{sT0}, 6"); A(f"s_add_u32 s{sT0}, s{sT0}, s{sS}")
        A(f"s_lshl_b32 s{sT0}, s{sT0}, 7"); A(f"s_add_u32 s{sT0}, s{sT0}, s3"); A(f"s_addk_i32 s{sT0}, {7 << 10}"); A(f"s_lshl_b32 s{sT2}, s{sT0}, 10")
    else:
        A(f"s_lshl4_add_u32 s{sT0}, s{sB}, s{sHKV}"); A(f"s_lshl_b32 s{sT0}, s{sT0}, 23"); A(f"s_add_u32 s{sT0}, s{sT0}, {7 << 20}")
        A(f"s_lshl_b32 s{sT1}, s{sS}, {ssh}"); A(f"s_add_u32 s{sT0}, s{sT0}, s{sT1}"); A(f"s_lshl_b32 s{sT1}, s3, {wsh}"); A(f"s_add_u32 s{sT2}, s{sT0}, s{sT1}")
    A(f"v_and_b32 v{vK}, 3, v0"); A(f"v_lshl_add_u32 v{vK}, v{vK}, 4, s{sT2}")
    A(f"v_bfe_u32 v{vT1}, v0, 2, 2"); A(f"v_lshl_add_u32 v{vK}, v{vT1}, 8, v{vK}")
    A(f"v_lshl_add_u32 v{vK}, v{vT0}, 6, v{vK}")
    if hwg: A(f"s_mul_i32 s{sHASH}, s2, 0x9E3779B1")
    else: A(f"s_lshl3_add_u32 s{sT0}, s2, s3"); A(f"s_mul_i32 s{sHASH}, s{sT0}, 0x9E3779B1")
    if sorted(tb) == [13, 14, 15, 16]:
        A(f"s_bfe_u32 s{sHASH}, s{sHASH}, 0x40018"); A(f"s_lshl_b32 s{sHASH}, s{sHASH}, 13")
    else:
        A(f"s_lshr_b32 s{sHASH}, s{sHASH}, 11"); A(f"s_and_b32 s{sHASH}, s{sHASH}, {sum(1 << x for x in tb)}")
    A("s_waitcnt lgkmcnt(0)")
    stamp(1)
    srd_ptr(K)

    def kvld(nm, t, reg, va, sr):
        return (f"{nm}{t}", [f"s_xor_b32 s{sT0}, s{sHASH}, {sum(((t >> i) & 1) << tb[i] for i in range(4))}", f"buffer_load_dwordx4 {r4(reg)}, v{va}, {srd(sr)}, s{sT0} offen{pol}"])
    loads = [kvld("K", t, kreg(t), vK, K) for t in range(pre)]
    for k in range(9):
        c = [f"s_bitcmp1_b32 s{sTB}, {8+k}", f"s_cselect_b32 s{sT0}, s{sUO}, {HUGE}",
             f"buffer_load_dwordx4 {r4(S1D+4*k)}, v{vA1}, {srd(SU)}, s{sT0} offen{pol}"]
        if k < 8: c.append(f"s_add_u32 s{sUO}, s{sUO}, s{sUS}")
        loads.append((f"U{k}", c))
    loads += [kvld("K", t, kreg(t), vK, K) for t in range(pre, 16)]
    loads += [kvld("V", t, vreg(t), vV, V) for t in range(16)]
    loads += [(f"W{i}", [LATE[i]]) for i in range(5 if dry else nwb)]
    names = [n for n, _ in loads]

    def rest_of_prologue():
        A(f"v_lshl_add_u32 v{vV}, v0, 4, s{sT2}")
        for d in (V, WO, W2, WS): srd_const(d); srd_ptr(d)
        consts()
        group_ids()
        masks(vT1)
        A(f"v_bfe_u32 v{vT2}, v0, 3, 1"); A(f"s_lshl_b32 s{sT1}, s3, 3")
        A(f"v_lshl_add_u32 v{vA1}, v{vT0}, 1, s{sT1}")
        A(f"v_mul_u32_u24 v{vA2}, 2304, v{vT2}"); A(f"v_lshl_add_u32 v{vA2}, v{vA1}, 2, v{vA2}")
        A(f"v_add_u32 v{vA1}, v{vA1}, v{vT2}")
        A(f"v_and_b32 v{vT1}, 7, v0"); A(f"v_lshlrev_b32 v{vT1}, 4, v{vT1}")
        A(f"s_mov_b32 s{SU+3}, 0x00020000")
        A("s_waitcnt lgkmcnt(0)")
        A(f"s_and_b32 s{sU}, s{sTB}, 255")
        A(f"s_cmp_lt_u32 s{sU}, 136")
        A(f"s_cselect_b64 s[{SU}:{SU+1}], s[{KA+12}:{KA+13}], s[{KA+14}:{KA+15}]"); A(f"s_cselect_b32 s{sT1}, 64, 136")
        A(f"s_cmp_lt_u32 s{sU}, 64")
        A(f"s_cselect_b64 s[{SU}:{SU+1}], s[{KA+6}:{KA+7}], s[{SU}:{SU+1}]"); A(f"s_cselect_b32 s{sT1}, 0, s{sT1}")
        A(f"s_movk_i32 s{sRB}, 9216"); A(f"s_cselect_b32 s{sRB}, 8192, s{sRB}")
        A(f"s_mul_i32 s{SU+2}, s{sRB}, 576")
        A(f"s_sub_u32 s{sUO}, s{sU}, s{sT1}"); A(f"s_lshl_b32 s{sUO}, s{sUO}, 7"); A(f"s_lshl_b32 s{sUS}, s{sRB}, 6")
        A(f"v_mad_u32_u24 v{vA1}, v{vA1}, s{sRB}, v{vT1}")
        stamp(2)

    def qk_block():
        A(f"v_bfe_u32 v{vT2}, v0, 1, 1"); A(f"v_lshlrev_b32 v{vT2}, 8, v{vT2}"); A(f"v_lshl_add_u32 v{vT2}, v{vT0}, 6, v{vT2}")
        A(f"v_bfe_u32 v{vT1}, v0, 2, 2"); A(f"v_lshl_add_u32 v{vT2}, v{vT1}, 4, v{vT2}")
        A(f"v_mov_b32 v{vT1}, 0")
        stamp(7)
        A("s_branch L_qwait1")
        A("L_qwait:")
        A("s_sleep 2")
        A("L_qwait1:")
        A(f"ds_read_b32 v{SR}, v{vT1} offset:{QF}")
        A(f"ds_read_b128 {r4(QB)}, v{vT2} offset:{QL}")
        A(f"s_add_u32 s{sSPIN}, s{sSPIN}, 1"); A(f"s_cmp_gt_u32 s{sSPIN}, {spin*16}")
        A("s_waitcnt lgkmcnt(0)")
        A(f"v_cmp_eq_u32 vcc, 0, v{SR}")
        A("s_cbranch_scc1 L_qgot")
        A("s_cbranch_vccnz L_qwait")
        A("L_qgot:")
        stamp(4)
        Ds = [A0, A1, D1, D2]
        def mf(t): A(f"v_mfma_f32_16x16x32_bf16 {r4(Ds[t%4])}, {r4(kreg(t))}, {r4(QB)}, 0")
        def ops(t):
            b = t & 3; S = SR + (t >> 2); D = Ds[t % 4]; bm = f"row_mask:0xf bank_mask:{1<<b:#x}"
            A(f"v_add_f32_dpp v{S}, v{D+((b+1)&3)}, v{D+b} row_ror:12 {bm}")
            A(f"v_add_f32_dpp v{S}, v{D+((b+2)&3)}, v{S} row_ror:8 {bm}")
            A(f"v_add_f32_dpp v{S}, v{D+((b+3)&3)}, v{S} row_ror:4 {bm}")
        for t in range(4): mf(t)
        A("s_nop 4")
        for t in range(16):
            ops(t)
            if t + 4 < 16: mf(t + 4)
            elif t < 15: A("s_nop 0")
        for p in (0, 2):
            a, b = SR + p, SR + p + 1
            A(f"v_cvt_pk_bf16_f32 v{b}, v{a}, v{b}"); A(f"v_lshlrev_b32 v{a}, 16, v{b}"); A(f"v_and_b32 v{b}, 0xffff0000, v{b}")
            A(f"v_mul_f32 v{a}, {SCALE:#x}, v{a}"); A(f"v_mul_f32 v{b}, {SCALE:#x}, v{b}")
            A(f"v_cvt_pk_bf16_f32 v{b}, v{a}, v{b}"); A(f"v_lshlrev_b32 v{a}, 16, v{b}"); A(f"v_and_b32 v{b}, 0xffff0000, v{b}")
        m = D1; l = D1 + 1
        A(f"v_max3_f32 v{m}, v{SR}, v{SR+1}, v{SR+2}"); A(f"v_max_f32 v{m}, v{m}, v{SR+3}")
        allred_banks_rows(m, D2, "v_max_f32")
        A(f"v_mul_f32 v{vT2}, s{sLOG2E}, v{m}")
        for T in range(4): A(f"v_fma_f32 v{SR+T}, v{SR+T}, s{sLOG2E}, -v{vT2}")
        for T in range(4): A(f"v_exp_f32 v{SR+T}, v{SR+T}")
        A(f"s_lshl_b32 s{sT1}, s3, 3"); A(f"v_lshl_add_u32 v{QB}, v0, 5, s{sT1}")
        A(f"v_add_f32 v{l}, v{SR}, v{SR+1}"); A(f"v_add_f32 v{D2}, v{SR+2}, v{SR+3}"); A(f"v_add_f32 v{l}, v{l}, v{D2}")
        allred_banks_rows(l, D2, "v_add_f32")
        A("s_mov_b64 exec, 5")
        A(f"ds_write_b64 v{QB}, {r2(m)} offset:{MW}")
        A("s_mov_b64 exec, -1")
        for j in range(8): A(f"v_mov_b32 v{A0+j}, 0")
        A(f"v_and_b32 v{D2}, 1, v0"); A(f"v_lshlrev_b32 v{D2}, 4, v{D2}"); A(f"v_mov_b32 v{D2+1}, 0xffff"); A(f"v_lshlrev_b32 v{D2}, v{D2}, v{D2+1}")
        for T in range(4): A(f"v_cvt_pk_bf16_f32 v{SR+T}, v{SR+T}, v{SR+T}")
        for T in range(4): A(f"v_and_b32 v{SR+T}, v{SR+T}, v{D2}")
        A(f"v_and_b32 v{vOS}, 15, v0"); A(f"v_lshlrev_b32 v{vOS}, 5, v{vOS}"); A(f"v_lshl_add_u32 v{vOS}, v{vT0}, 3, v{vOS}")
        A(f"s_lshl_b32 s{sT1}, s3, 10"); A(f"v_add_u32 v{vOS}, s{sT1}, v{vOS}")
        tail_addr()
        stamp(5)

    def pv(t):
        b = t & 3; P = SR + (t >> 2); a = A0 if t % 2 == 0 else A1
        for j in range(4):
            n = (4 * (j - b)) % 16
            ctl = "quad_perm:[0,1,2,3]" if n == 0 else f"row_ror:{n}"
            A(f"v_mov_b32_dpp v{a+j}, v{P} {ctl} row_mask:0xf bank_mask:{1<<j:#x}")
        A("s_nop 1")
        A(f"v_mfma_f32_16x16x32_bf16 {r4(ACC)}, {r4(a)}, {r4(vreg(t))}, {'0' if t == 0 else r4(ACC)}")

    state = {"qk": False, "pv": 0}

    def on_landed(nm):
        if dry:
            if nm == "U8": stamp(3); late_addr()
            if nm == "V0": tail_addr()
            return
        if nm[0] == "U":
            k = int(nm[1])
            if k == 0:
                A("s_barrier")
                for i in range(4): A(f"ds_read_b64 {r2(XA+2*i)}, v{vA2} offset:{XN+256*i}")
            A(f"s_waitcnt lgkmcnt({min(k+4, 9) - k - 1})")
            x = XA + 2 * (k % 4)
            gemv_mfma(x, S1D + 4 * k, D1, k == 0)
            gemv_mfma(x + 1, S1D + 4 * k, D2, k == 0)
            if k + 4 < 9: A(f"ds_read_b64 {r2(x)}, v{vA2} offset:{XN+256*(k+4)}")
            if k == 8:
                A(f"v_and_b32 v{vT1}, 7, v0"); A(f"v_lshl_add_u32 v{vT1}, v{vT0}, 3, v{vT1}"); A(f"s_lshl_b32 s{sT1}, s3, 9")
                A(f"v_lshl_add_u32 v{vT1}, v{vT1}, 4, s{sT1}")
                A(f"v_mov_b32 v{vT2}, 0"); A(f"ds_read_b32 v{vT2}, v{vT2} offset:{TG}")
                A("s_nop 1")
                for v in range(4): A(f"v_add_f32_dpp v{D1+v}, v{D2+v}, v{D1+v} row_ror:8 {DPPF}")
                A(f"s_mov_b64 exec, s[{sMASK}:{sMASK+1}]")
                A(f"ds_write_b128 v{vT1}, {r4(D1)} offset:{S1}")
                A("s_mov_b64 exec, -1")
                A("s_waitcnt lgkmcnt(0)"); A("s_barrier")
                stamp(3)
                A(f"v_readfirstlane_b32 s{sEP}, v{vT2}")
                late_addr()
        elif nm[0] in "VW" and state["qk"]:
            t = max(int(n[1:]) for n in names[:names.index(nm)+1] if n[0] == "V")
            while state["pv"] <= t:
                pv(state["pv"]); state["pv"] += 1

    N = len(loads)
    landed = -1
    ib2 = names.index(f"V{b2}")
    assert pre >= 2 and names.index("U8") + depth < names.index("V7") and ib2 - depth >= names.index("K15")
    for i, (nm, code) in enumerate(loads):
        if nm == "U0": rest_of_prologue()
        if i == 1: table_load("a")
        for c in code: A(c)
        if i >= depth:
            A(f"s_waitcnt vmcnt({depth})")
            landed = i - depth
            on_landed(names[landed])
        if i == ib2:
            if dry: stamp(7)
            else: qk_block()
            state["qk"] = True
    while landed < names.index("V15"):
        landed += 1
        A(f"s_waitcnt vmcnt({N-1-landed})")
        on_landed(names[landed])
    stamp(6)
    if dry:
        A("s_waitcnt vmcnt(0)"); stamp(8); A("s_branch L_fin")
    A("s_nop 7")
    A(f"ds_write2st64_b64 v{vOS}, {r2(ACC)}, {r2(ACC+2)} offset0:{OS//512} offset1:{OS//512+1}")
    A("s_waitcnt lgkmcnt(0)")
    A("s_barrier")
    stamp(12)
    if nwb < 5:
        A("s_barrier")
        for c in LATE[nwb:]: A(c)
    A("s_waitcnt vmcnt(2)")
    w2_mfmas()
    A("s_waitcnt vmcnt(0)")
    stamp(8)
    A("s_barrier")
    A(f"ds_read_b128 {r4(PL)}, v{vT1} offset:{ZL}")
    A("s_waitcnt lgkmcnt(0)")
    A("s_branch L_tail")

    A("L_service:")
    if dry: A("s_endpgm")
    def vm(ins):
        A("s_setprio 3")
        for x in ins: A(x)
        A("s_setprio 0")
    XS = SV + 8
    PA, PD, TG0 = 100, 96, 63
    srd_const(X); srd_const(WS)
    A(f"v_lshrrev_b32 v{vA1}, 5, v0"); A(f"v_mul_u32_u24 v{vA2}, 1152, v{vA1}")
    A(f"v_and_b32 v{vT2}, 31, v0"); A(f"v_mad_u32_u24 v{vA2}, v{vT2}, 36, v{vA2}")
    A("s_setprio 3")
    A("s_waitcnt lgkmcnt(0)")
    stamp(1)
    srd_ptr(X)
    A(f"buffer_load_dwordx4 {r4(XS)}, v{vA2}, {srd(X)}, 0 offen")
    A(f"buffer_load_dwordx4 {r4(XS+4)}, v{vA2}, {srd(X)}, 0 offen offset:16")
    A(f"buffer_load_dword v{XS+8}, v{vA2}, {srd(X)}, 0 offen offset:32")
    A("s_setprio 0")
    srd_ptr(WS)
    A(f"s_load_dword s{sEP}, s[{WS}:{WS+1}], {EP}")
    table_load("b")
    A(f"v_lshlrev_b32 v{vK}, 4, v0")
    A(f"v_mov_b32 v{SV+4}, 0"); A(f"v_lshlrev_b32 v{SV+5}, 2, v0")
    A(f"ds_write_b32 v{SV+4}, v{SV+4} offset:{QF}")
    A(f"v_mov_b32 v{SV+6}, -1"); A(f"v_and_b32 v{SV+5}, 124, v{SV+5}"); A(f"ds_write_b32 v{SV+5}, v{SV+6} offset:{MW}")
    for d in (WO, W2, OUT): srd_const(d); srd_ptr(d)
    consts()
    group_ids()
    masks(SV + 5)
    A(f"v_lshlrev_b32 v{vA2}, 1, v{vA2}")
    U = 12
    A("s_waitcnt vmcnt(0)")
    stamp(12)
    for i in range(9):
        A(f"v_lshlrev_b32 v{U+2*i}, 16, v{XS+i}"); A(f"v_and_b32 v{U+2*i+1}, 0xffff0000, v{XS+i}")
    s = XS
    A(f"v_add_f32 v{s}, v{U}, v{U+1}"); A(f"v_add_f32 v{s+1}, v{U+2}, v{U+3}")
    for i in range(4, 18, 2):
        A(f"v_add_f32 v{s}, v{s}, v{U+i}"); A(f"v_add_f32 v{s+1}, v{s+1}, v{U+i+1}")
    A(f"v_add_f32 v{s}, v{s}, v{s+1}")
    allred32(s, s + 1)
    A(f"v_mul_f32 v{s}, {0x3AE38E39:#x}, v{s}")
    W = 40
    for i in range(18):
        A(f"v_sub_f32 v{W+i}, v{U+i}, v{s}")
    A(f"v_mul_f32 v{s+2}, v{W}, v{W}"); A(f"v_mul_f32 v{s+3}, v{W+1}, v{W+1}")
    for i in range(2, 18, 2):
        A(f"v_fmac_f32 v{s+2}, v{W+i}, v{W+i}"); A(f"v_fmac_f32 v{s+3}, v{W+i+1}, v{W+i+1}")
    A(f"v_add_f32 v{s+2}, v{s+2}, v{s+3}")
    allred32(s + 2, s + 3)
    A(f"v_mul_f32 v{s+2}, {0x3AE38E39:#x}, v{s+2}")
    bf16r(s + 2, s + 2)
    A(f"v_add_f32 v{s+2}, {0x3727C5AC:#x}, v{s+2}")
    bf16r(s + 2, s + 2)
    A(f"v_sqrt_f32 v{s+2}, v{s+2}")
    bf16r(s, s)
    bf16r(s + 2, s + 2)
    A(f"v_rcp_f32 v{s+2}, v{s+2}")
    for i in range(18):
        A(f"v_sub_f32 v{U+i}, v{U+i}, v{s}")
    for i in range(0, 18, 2):
        A(f"v_cvt_pk_bf16_f32 v{U+i+1}, v{U+i}, v{U+i+1}"); A(f"v_lshlrev_b32 v{U+i}, 16, v{U+i+1}"); A(f"v_and_b32 v{U+i+1}, 0xffff0000, v{U+i+1}")
        A(f"v_mul_f32 v{U+i}, v{U+i}, v{s+2}"); A(f"v_mul_f32 v{U+i+1}, v{U+i+1}, v{s+2}")
        A(f"v_cvt_pk_bf16_f32 v{U+i}, v{U+i}, v{U+i}"); A(f"v_cvt_pk_bf16_f32 v{U+i+1}, v{U+i+1}, v{U+i+1}")
        A(f"ds_write_b64 v{vA2}, {r2(U+i)} offset:{XN+4*i}")
    A("s_waitcnt lgkmcnt(0)")
    A(f"s_add_u32 s{sEP}, s{sEP}, 1")
    A(f"v_mov_b32 v{vTAG}, s{sEP}")
    A(f"ds_write_b32 v{SV+4}, v{vTAG} offset:{TG}")
    A("s_waitcnt lgkmcnt(0)")
    A("s_barrier")
    stamp(2)
    A(f"s_and_b32 s{sT0}, s{sEP}, s{sTM}"); A(f"v_mov_b32 v{vTAG}, s{sT0}")
    A(f"s_bfe_u32 s{sSF}, s{sEP}, 0x6000a"); A(f"s_lshl_b32 s{sSF}, s{sSF}, 20"); A(f"s_add_u32 s{sSF}, s{sSF}, {SAFE}")
    T = SV + 8
    GT = 40
    A(f"s_and_b32 s{sU}, s{sTB}, 255")
    A(f"v_and_b32 v{SV+1}, 7, v0"); A(f"v_bfe_u32 v{SV}, v0, 3, 1")
    A(f"v_bfe_u32 v{PA}, v0, 4, 1"); A(f"v_mul_u32_u24 v{SV+2}, {P1P}, v{PA}"); A(f"v_mul_u32_u24 v{PA}, {P1B}, v{PA}")
    A(f"v_lshl_add_u32 v{PA}, v{SV+1}, 5, v{PA}")
    A(f"v_lshl_add_u32 v{PA}, v{SV}, 4, v{PA}")
    A(f"s_bfe_u32 s{sT0}, s{sTB}, 0x10011"); A(f"v_xor_b32 v{SV+3}, s{sT0}, v{vA1}"); A(f"v_mul_u32_u24 v{SV+3}, {P1P}, v{SV+3}"); A(f"v_add_u32 v{PA}, v{PA}, v{SV+3}")
    A(f"s_mov_b32 s{sPM}, -1"); A(f"s_bitcmp1_b32 s{sTB}, 18"); A(f"s_cselect_b32 s{sPM+1}, -1, 0")
    A(f"s_lshl_b32 s{sPS}, s{sU}, 8"); A(f"s_add_u32 s{sPS}, s{sPS}, {P1}")
    A(f"s_cmp_lt_u32 s{sU}, 208"); A(f"s_cselect_b32 s{sPS}, s{sPS}, {HUGE}")
    A(f"s_mul_i32 s{sT2}, s{sB}, {P1B}"); A(f"s_lshl_b32 s{sT3}, s{sHKV}, 10"); A(f"s_add_u32 s{sT2}, s{sT2}, s{sT3}"); A(f"s_add_u32 s{sT2}, s{sT2}, {P1}")
    A(f"s_add_u32 s{sC2}, s{sT2}, {P1P}")
    A(f"v_mul_u32_u24 v{vA2}, {P1B}, v{SV}"); A(f"v_mul_u32_u24 v{vA1}, 18432, v{vA1}"); A(f"v_add3_u32 v{vA2}, v{vA2}, v{vA1}, v{SV+2}")
    A(f"v_lshl_add_u32 v{vA2}, v{SV+1}, 4, v{vA2}")
    A(f"v_mov_b32 v{SV+3}, {HUGE}")
    A(f"v_cmp_gt_u32 vcc, s{sNSL}, v{SV+1}"); A("s_nop 1")
    A(f"v_cndmask_b32 v{vA2}, v{SV+3}, v{vA2}, vcc"); A(f"v_cndmask_b32 v{TG0}, 0, v{vTAG}, vcc")
    A(f"s_lshl_b32 s{sT3}, s{sROW}, 2"); A(f"s_add_u32 s{sT3}, s{sT3}, {P1 + 16384}")
    A(f"s_mov_b32 s{sSP}, 0"); A(f"s_mov_b32 s{sC1}, 0"); A(f"s_sub_u32 s{sC3}, s{sSF}, {P1}")
    for v in range(4): A(f"v_mov_b32 v{PD+v}, 0")
    A("s_barrier")
    A("s_mov_b64 exec, 0xffffffff")
    for w in range(8):
        A(f"ds_read_b128 {r4(T+4*w)}, v{vK} offset:{S1 + w*512}")
    for w in range(1, 8):
        A(f"s_waitcnt lgkmcnt({7-w})")
        for v in range(4):
            A(f"v_add_f32 v{PD+v}, v{T+v if w == 1 else PD+v}, v{T+4*w+v}")
    for v in range(4): A(f"v_add_u32 v{PD+v}, {(TMASK+1)//2}, v{PD+v}")
    A("s_mov_b64 exec, -1")
    tag4(PD)
    A(f"s_mov_b64 exec, s[{sPM}:{sPM+1}]")
    vm([f"buffer_store_dwordx4 {r4(PD)}, v{PA}, {srd(WS)}, s{sPS} offen"])
    A("s_mov_b64 exec, -1")
    def safe_p1(tag):
        A(f"s_cmp_lg_u32 s{sSP}, 0"); A(f"s_cbranch_scc1 L_sp{tag}")
        A(f"s_add_u32 s{sPS}, s{sPS}, s{sSF}"); A(f"s_sub_u32 s{sPS}, s{sPS}, {P1}"); A(f"s_mov_b32 s{sSP}, 1")
        A(f"s_mov_b64 exec, s[{sPM}:{sPM+1}]")
        vm([f"buffer_store_dwordx4 {r4(PD)}, v{PA}, {srd(WS)}, s{sPS} offen sc1"])
        A("s_mov_b64 exec, -1")
        A(f"L_sp{tag}:")
    stamp(3)
    A("L_gather:")
    vm([f"buffer_load_dwordx4 {r4(T)}, v{vK}, {srd(WS)}, s{sT2} offen sc1",
        f"buffer_load_dwordx4 {r4(T+4)}, v{vK}, {srd(WS)}, s{sC2} offen sc1",
        f"buffer_load_dwordx4 {r4(GT)}, v{vA2}, {srd(WS)}, s{sT3} offen sc1"])
    A(f"s_add_u32 s{sSPIN}, s{sSPIN}, 1")
    A("s_waitcnt vmcnt(0)")
    rg = [T + i for i in range(8)] + [GT + i for i in range(4)]
    untag_check(rg, rg, [vTAG] * 8 + [TG0] * 4, SV)
    A("s_cbranch_vccz L_gotg")
    A(f"s_cmp_lt_u32 s{sSPIN}, {gtmo}"); A("s_cbranch_scc1 L_gather")
    safe_p1("g")
    for r_ in (sT2, sC2, sT3): A(f"s_sub_u32 s{r_}, s{r_}, s{sC1}")
    A(f"s_xor_b32 s{sC1}, s{sC1}, s{sC3}")
    for r_ in (sT2, sC2, sT3): A(f"s_add_u32 s{r_}, s{r_}, s{sC1}")
    A(f"s_cmp_lt_u32 s{sSPIN}, {spin}"); A("s_cbranch_scc1 L_gather")
    A("L_gotg:")
    for v in range(4): A(f"v_add_f32 v{T+v}, v{T+v}, v{T+4+v}")
    A(f"v_cvt_pk_bf16_f32 v{T}, v{T}, v{T+1}"); A(f"v_cvt_pk_bf16_f32 v{T+1}, v{T+2}, v{T+3}")
    A(f"v_lshlrev_b32 v{vA1}, 3, v0")
    A(f"ds_write_b64 v{vA1}, {r2(T)} offset:{QL}")
    for v in range(4): A(f"v_mov_b32 v{GT+4+v}, v{GT+v}")
    A("s_nop 1")
    for v in range(4): A(f"v_permlane16_swap_b32 v{GT+v}, v{GT+4+v}")
    A("s_nop 1")
    for v in range(4): A(f"v_add_f32 v{GT+v}, v{GT+v}, v{GT+4+v}")
    for v in range(4): bf16r(GT + v, GT + v)
    for v in range(4): A(f"v_mov_b32 v{GT+4+v}, v{GT+v}")
    A("s_nop 1")
    for v in range(4): A(f"v_permlane32_swap_b32 v{GT+v}, v{GT+4+v}")
    A("s_nop 1")
    for v in range(4): A(f"v_mul_f32 v{GT+8+v}, s{sLOG2E}, v{GT+v}")
    for v in range(4): A(f"v_exp_f32 v{GT+8+v}, -v{GT+8+v}")
    for v in range(4): A(f"v_add_f32 v{GT+8+v}, 1.0, v{GT+8+v}")
    for v in range(4): A(f"v_rcp_f32 v{GT+8+v}, v{GT+8+v}")
    for v in range(4): A(f"v_mul_f32 v{GT+v}, v{GT+v}, v{GT+8+v}")
    for v in range(4): bf16r(GT + v, GT + v)
    for v in range(4): A(f"v_mul_f32 v{GT+v}, v{GT+v}, v{GT+4+v}")
    for v in range(4): A(f"v_cvt_pk_bf16_f32 v{GT+v}, v{GT+v}, v{GT+v}")
    A("s_mov_b64 exec, 0xffff")
    A(f"ds_write_b128 v{vK}, {r4(GT)} offset:{HD}")
    A("s_mov_b64 exec, -1")
    A(f"v_mov_b32 v{SV+3}, 1")
    A("s_waitcnt lgkmcnt(0)")
    A(f"ds_write_b32 v{SV+4}, v{SV+3} offset:{QF}")
    stamp(5)
    late_addr(); tail_addr()
    A(f"s_lshl_b32 s{sT0}, s{sSL}, 6"); A(f"v_lshl_add_u32 v{SV+20}, v0, 2, s{sT0}")
    vm(LATE + [f"buffer_load_dword v{SV+21}, v{SV+20}, {srd(X)}, 0 offen"])
    A(f"v_and_b32 v{vA1}, 15, v0"); A(f"s_lshl_b32 s{sT1}, s{sHKV}, 4"); A(f"v_add_u32 v{SV+12}, s{sT1}, v{vA1}")
    A(f"v_mul_u32_u24 v{vA1}, {REC}, v{SV+12}")
    A(f"s_mul_i32 s{sT2}, s{sJ}, 80"); A(f"v_lshl_add_u32 v{vA2}, v{vT0}, 4, v{vA1}")
    A(f"s_mul_i32 s{sPC}, s2, {REC}")
    A(f"v_lshrrev_b32 v{vV}, 2, v0"); A(f"v_mul_u32_u24 v{vV}, 80, v{vV}"); A(f"v_and_b32 v{SV+1}, 3, v0"); A(f"v_lshl_add_u32 v{vV}, v{SV+1}, 4, v{vV}")
    A(f"v_mul_u32_u24 v{SV+1}, 80, v0")
    A("s_mov_b32 s0, 0x01010101"); A("s_mov_b32 s1, 0x01010101")
    A(f"v_lshl_add_u32 v{SV+14}, v0, 4, s{sJ}"); A(f"v_cmp_gt_u32 vcc, 36, v{SV+14}"); A(f"v_lshlrev_b32 v{SV+14}, 10, v{SV+14}")
    A(f"s_lshr_b32 s{sT0}, s{sHKV}, 1"); A(f"s_lshl_b32 s{sT0}, s{sT0}, 7"); A(f"s_and_b32 s{sT1}, s{sHKV}, 1"); A(f"s_lshl2_add_u32 s{sT0}, s{sT1}, s{sT0}")
    A(f"s_add_u32 s{sUO}, s{sT0}, {HINT}"); A(f"s_mov_b64 s[{sUS}:{sUS+1}], vcc")
    A(f"s_getreg_b32 s{sC3}, hwreg(HW_REG_XCC_ID)"); A(f"s_lshl_b32 s{sC3}, s{sC3}, 16")
    FW = 80
    A(f"v_and_b32 v{SV+2}, 15, v0"); A(f"v_lshlrev_b32 v{SV+3}, 2, v{SV+2}"); A(f"v_lshlrev_b32 v{SV+2}, 3, v{SV+2}")
    A(f"v_lshrrev_b32 v{SV}, 5, v0"); A(f"v_lshlrev_b32 v{SV}, 5, v{SV}")
    A("L_mlwait:")
    A(f"s_sleep {mlsleep}")
    A(f"ds_read_b64 {r2(SV+6)}, v{SV+2} offset:{MW}")
    A(f"s_add_u32 s{sSPIN}, s{sSPIN}, 1"); A(f"s_cmp_gt_u32 s{sSPIN}, {spin*16}")
    A("s_waitcnt lgkmcnt(0)")
    A(f"v_cmp_eq_u32 vcc, -1, v{SV+7}")
    A(f"v_max_f32_dpp v{SV+4}, v{SV+6}, v{SV+6} {STEPS[0]} {DPPF}")
    A("s_cbranch_scc1 L_mlgot")
    A("s_cbranch_vccnz L_mlwait")
    A("L_mlgot:")
    A("s_setprio 3")
    A(f"v_max_f32_dpp v{SV+4}, v{SV+4}, v{SV+4} {STEPS[1]} {DPPF}"); A("s_nop 1")
    A(f"v_max_f32_dpp v{SV+4}, v{SV+4}, v{SV+4} {STEPS[2]} {DPPF}")
    A(f"v_sub_f32 v{SV+6}, v{SV+6}, v{SV+4}"); A(f"v_mul_f32 v{SV+6}, s{sLOG2E}, v{SV+6}"); A(f"v_exp_f32 v{SV+6}, v{SV+6}"); A("s_nop 0")
    A(f"ds_write_b32 v{SV+3}, v{SV+6} offset:{FWL}")
    A(f"v_mul_f32 v{SV+5}, v{SV+7}, v{SV+6}")
    A(f"ds_read_b128 {r4(FW)}, v{SV} offset:{FWL}"); A(f"ds_read_b128 {r4(FW+4)}, v{SV} offset:{FWL+16}")
    for s_ in STEPS:
        A(f"v_add_f32_dpp v{SV+5}, v{SV+5}, v{SV+5} {s_} {DPPF}"); A("s_nop 1")
    A(f"v_mov_b32 v{SV+6}, s{sC3}")
    tag4(SV + 4)
    A(f"s_mov_b32 s{sT0}, 0"); A(f"s_add_u32 s{sT3}, s{sSPIN}, {tmo}")
    stamp(4)
    A("s_barrier")
    OT = 128
    for w in range(8):
        A(f"ds_read_b128 {r4(OT+4*w)}, v{vK} offset:{OS+w*1024}")
    A("s_mov_b64 exec, 0xffff")
    A(f"buffer_store_dwordx4 {r4(SV+4)}, v{SV+1}, {srd(WS)}, s{sPC} offen offset:64")
    A("s_mov_b64 exec, -1")
    for w in range(8):
        A(f"s_waitcnt lgkmcnt({7-w})")
        f = FW + (w & ~1); sel = w & 1
        for hlf in range(2):
            d = f"v[{OT+2*hlf}:{OT+2*hlf+1}]"; x = f"v[{OT+4*w+2*hlf}:{OT+4*w+2*hlf+1}]"
            if w == 0: A(f"v_pk_mul_f32 {d}, {x}, v[{f}:{f+1}] op_sel:[0,{sel}] op_sel_hi:[1,{sel}]")
            else: A(f"v_pk_fma_f32 {d}, {x}, v[{f}:{f+1}], {d} op_sel:[0,{sel},0] op_sel_hi:[1,{sel},1]")
    tag4(OT)
    A(f"buffer_store_dwordx4 {r4(OT)}, v{vV}, {srd(WS)}, s{sPC} offen")
    POLL = [f"buffer_load_dwordx4 {r4(PL)}, v{vA2}, {srd(WS)}, s{sT2} offen sc1",
            f"buffer_load_dwordx4 {r4(PL+4)}, v{vA1}, {srd(WS)}, s{sT2} offen offset:64 sc1"]
    for c in POLL: A(c)
    if nwb < 5: A("s_barrier")
    stamp(6)
    A("s_waitcnt vmcnt(7)")
    w2_mfmas()
    A("s_branch L_pollo1")
    def safe_o():
        A(f"s_mul_i32 s{sT1}, s2, 1280"); A(f"s_add_u32 s{sT1}, s{sT1}, s{sSF}"); A(f"s_add_u32 s{sT1}, s{sT1}, {SAFO}")
        A(f"buffer_store_dwordx4 {r4(OT)}, v{vV}, {srd(WS)}, s{sT1} offen sc1")
        A("s_mov_b64 exec, 0xffff")
        A(f"buffer_store_dwordx4 {r4(SV+4)}, v{SV+1}, {srd(WS)}, s{sT1} offen offset:64 sc1")
        A("s_mov_b64 exec, -1")
        A(f"s_mov_b32 s{sT0}, 1")
    m, l, M = PL + 4, PL + 5, TT + 1
    A("L_otmo:")
    A(f"s_cmp_lg_u32 s{sT0}, 0"); A("s_cbranch_scc1 L_goto")
    safe_p1("o")
    A("s_setprio 3")
    safe_o()
    A(f"v_mul_u32_u24 v{SV+12}, 1280, v{SV+12}"); A(f"v_lshl_add_u32 v{SV+13}, v{vT0}, 4, v{SV+12}")
    A(f"s_add_u32 s{sC1}, s{sT2}, s{sSF}"); A(f"s_add_u32 s{sC1}, s{sC1}, {SAFO}"); A(f"s_add_u32 s{sT3}, s{sSPIN}, {spin}")
    A("s_branch L_oswap")
    A("L_oretry:")
    A("s_cbranch_scc1 L_otmo")
    A(f"s_cmp_eq_u32 s{sT0}, 0"); A("s_cbranch_scc1 L_pollo")
    A("L_oswap:")
    A(f"v_swap_b32 v{vA1}, v{SV+12}"); A(f"v_swap_b32 v{vA2}, v{SV+13}")
    A(f"s_mov_b32 s{sT1}, s{sT2}"); A(f"s_mov_b32 s{sT2}, s{sC1}"); A(f"s_mov_b32 s{sC1}, s{sT1}")
    A("L_pollo:")
    for c in POLL: A(c)
    A("L_pollo1:")
    A(f"s_add_u32 s{sSPIN}, s{sSPIN}, 1"); A(f"s_cmp_gt_u32 s{sSPIN}, s{sT3}")
    A("s_waitcnt vmcnt(0)")
    rg = [PL + 4 + i for i in range(4)] + [PL + i for i in range(4)]
    untag_check(rg, rg, [vTAG] * 8, TT + 1)
    A(f"v_max_f32_dpp v{M}, v{m}, v{m} {STEPS[0]} {DPPF}")
    A("s_cbranch_vccnz L_oretry")
    A(f"v_cmp_ne_u32 vcc, s{sC3}, v{PL+6}")
    A("s_cbranch_vccz L_goto")
    A(f"s_cmp_lg_u32 s{sT0}, 0"); A("s_cbranch_scc1 L_goto")
    safe_o()
    A("L_goto:")
    if hint == "goto": A(f"s_mov_b64 exec, s[{sUS}:{sUS+1}]"); A(f"buffer_store_dword v{vTAG}, v{SV+14}, {srd(WS)}, s{sUO} offen sc1"); A("s_mov_b64 exec, -1")
    stamp(9)
    A(f"v_max_f32_dpp v{M}, v{M}, v{M} {STEPS[1]} {DPPF}"); A("s_nop 1")
    A(f"v_max_f32_dpp v{M}, v{M}, v{M} {STEPS[2]} {DPPF}")
    A(f"v_sub_f32 v{m}, v{m}, v{M}"); A(f"v_mul_f32 v{m}, s{sLOG2E}, v{m}"); A(f"v_exp_f32 v{m}, v{m}"); A("s_nop 0")
    A(f"v_mul_f32 v{l}, v{l}, v{m}")
    for v in range(4): A(f"v_mul_f32 v{PL+v}, v{PL+v}, v{m}")
    for s_ in STEPS:
        for r in (l, PL, PL + 1, PL + 2, PL + 3):
            A(f"v_add_f32_dpp v{r}, v{r}, v{r} {s_} {DPPF}")
        if s_ == STEPS[2]: pass
    A(f"v_rcp_f32 v{l}, v{l}"); A("s_mov_b64 exec, s[0:1]")
    for v in range(4): A(f"v_mul_f32 v{PL+v}, v{PL+v}, v{l}")
    for v in range(4): A(f"v_cvt_pk_bf16_f32 v{PL+v}, v{PL+v}, v{PL+v}")
    A(f"ds_write_b128 v{vT1}, {r4(PL)} offset:{ZL}")
    A("s_mov_b64 exec, -1")
    A("s_waitcnt lgkmcnt(0)")
    if hint == "z": A(f"s_mov_b64 exec, s[{sUS}:{sUS+1}]"); A(f"buffer_store_dword v{vTAG}, v{SV+14}, {srd(WS)}, s{sUO} offen sc1"); A("s_mov_b64 exec, -1")
    A("s_barrier")
    stamp(13)
    A(f"ds_read_b128 {r4(PL)}, v{vT1} offset:{ZL}")
    if hint == "b5": A(f"s_mov_b64 exec, s[{sUS}:{sUS+1}]"); A(f"buffer_store_dword v{vTAG}, v{SV+14}, {srd(WS)}, s{sUO} offen sc1"); A("s_mov_b64 exec, -1")
    A("s_waitcnt lgkmcnt(0)")

    A("L_tail:")
    for n in range(2):
        for rho in range(2):
            gemv_mfma(PL + 2 * n + rho, WL + 12 + 4 * n, D1 if rho == 0 else D2, False)
    A(f"s_cmp_lg_u32 s{sCK}, 0"); A(f"s_cselect_b32 s{sT0}, 1, 0"); A("s_cmp_ge_u32 s2, 252"); A(f"s_cselect_b32 s{sT0}, 1, s{sT0}")
    A("s_nop 3")
    for v in range(4):
        A(f"v_add_f32_dpp v{D1+v}, v{D2+v}, v{D1+v} row_ror:8 {DPPF}")
    tag4(D1)
    A(f"s_mov_b64 exec, s[{sMASK}:{sMASK+1}]")
    A(f"buffer_store_dwordx4 {r4(D1)}, v{TT}, {srd(WS)}, s{sC2} offen sc1")
    A("s_mov_b64 exec, -1")
    stamp(10)
    if hint == "fp":
        A("s_cmp_lg_u32 s3, 8"); A("s_cbranch_scc1 L_nh")
        A(f"s_mov_b64 exec, s[{sUS}:{sUS+1}]"); A(f"buffer_store_dword v{vTAG}, v{SV+14}, {srd(WS)}, s{sUO} offen sc1"); A("s_mov_b64 exec, -1")
        A("L_nh:")
    if clean:
        A("s_cmp_lg_u32 s3, 8"); A("s_cbranch_scc1 L_nocl")
        if "o" in clean:
            A(f"buffer_store_dwordx4 {r4(128)}, v{vV}, {srd(WS)}, s{sPC} offen sc1")
            A("s_mov_b64 exec, 0xffff")
            A(f"buffer_store_dwordx4 {r4(SV+4)}, v{SV+1}, {srd(WS)}, s{sPC} offen offset:64 sc1")
        if "p" in clean:
            A(f"s_mov_b64 exec, s[{sPM}:{sPM+1}]")
            A(f"buffer_store_dwordx4 {r4(96)}, v100, {srd(WS)}, s{sPS} offen sc1")
        A("s_mov_b64 exec, -1")
        A("L_nocl:")
    A(f"s_cmp_lg_u32 s{sT0}, 0"); A("s_cbranch_scc1 L_fin")
    A("s_cmp_eq_u32 s3, 8"); A("s_cbranch_scc1 L_final")
    A(f"v_lshrrev_b32 v{TT}, 3, v0"); A(f"s_lshl_b32 s{sT0}, s3, 5"); A(f"v_add_u32 v{TT}, s{sT0}, v{TT}")
    A(f"v_mul_u32_u24 v{TT}, {REC}, v{TT}"); A(f"v_and_b32 v{TT+1}, 7, v0"); A(f"v_lshl_add_u32 v{TT}, v{TT+1}, 4, v{TT}")
    A(f"s_lshl_b32 s{sT0}, s{sSL}, 7"); A(f"s_add_u32 s{sT0}, s{sT0}, {FPO}")
    A(f"s_add_u32 s{sC1}, s{sT0}, {8*REC}"); A(f"s_add_u32 s{sC2}, s{sT0}, {16*REC}"); A(f"s_add_u32 s{sC3}, s{sT0}, {24*REC}")
    A(f"s_add_u32 s{sT3}, s{sSPIN}, {spin}")
    A(f"v_bfe_u32 v{TT+2}, v0, 3, 2"); A(f"v_lshlrev_b32 v{TT+2}, 2, v{TT+2}"); A(f"v_lshl_add_u32 v{TT+2}, v{TT+1}, 4, v{TT+2}")
    A(f"s_lshl_b32 s{sT1}, s3, 7"); A(f"v_add_u32 v{TT+2}, s{sT1}, v{TT+2}")
    SO = (sT0, sC1, sC2, sC3)
    if hint:
        A(f"s_lshl3_add_u32 s{sT1}, s{sSL}, s3"); A(f"s_lshl_b32 s{sT1}, s{sT1}, 7"); A(f"s_add_u32 s{sT1}, s{sT1}, {HINT}")
        if hsc:
            A(f"s_and_b32 s{sT2}, s{sEP}, s{sTM}")
            A("L_hint:")
            A(f"s_load_dwordx2 s[{sUS}:{sUS+1}], s[{WS}:{WS+1}], s{sT1} glc")
            A(f"s_add_u32 s{sSPIN}, s{sSPIN}, 1"); A(f"s_cmp_gt_u32 s{sSPIN}, s{sT3}"); A("s_cbranch_scc1 L_hok")
            A("s_waitcnt lgkmcnt(0)")
            A(f"s_cmp_lg_u32 s{sUS}, s{sT2}"); A("s_cbranch_scc1 L_hint")
            A(f"s_cmp_lg_u32 s{sUS+1}, s{sT2}"); A("s_cbranch_scc1 L_hint")
            A("L_hok:")
        else:
            A(f"v_mov_b32 v{TT+3}, 0")
            A("s_mov_b64 exec, 1")
            A("L_hint:")
            A(f"buffer_load_dwordx2 {r2(FC)}, v{TT+3}, {srd(WS)}, s{sT1} offen sc1")
            A(f"s_add_u32 s{sSPIN}, s{sSPIN}, 1"); A(f"s_cmp_gt_u32 s{sSPIN}, s{sT3}")
            A("s_waitcnt vmcnt(0)")
            A(f"v_xor_b32 v{FC}, v{vTAG}, v{FC}"); A(f"v_xor_b32 v{FC+1}, v{vTAG}, v{FC+1}"); A(f"v_or_b32 v{FC}, v{FC}, v{FC+1}")
            A(f"v_cmp_ne_u32 vcc, 0, v{FC}")
            A("s_cbranch_scc1 L_hok")
            A("s_cbranch_vccnz L_hint")
            A("L_hok:")
            A("s_mov_b64 exec, -1")
        stamp(7)
    if sel:
        FB = FC + 16
        for q in range(4): A(f"buffer_load_dwordx4 {r4(FB+4*q)}, v{TT}, {srd(WS)}, s{SO[q]} offen sc1")
        for hf in range(2):
            d = [FC + 8 * hf + i for i in range(8)]
            bufs = [FB + 8 * hf, FB + 16 + 8 * hf]
            def iss(bb):
                for q in range(2): A(f"buffer_load_dwordx4 {r4(bb+4*q)}, v{TT}, {srd(WS)}, s{SO[2*hf+q]} offen sc1")
            if hf == 0:
                A("s_waitcnt vmcnt(2)")
            else:
                A(f"s_waitcnt vmcnt(0)")
            untag_check(d, [bufs[0] + i for i in range(8)], [vTAG] * 8, TT + 1)
            A(f"s_cbranch_vccz L_h{hf}ok")
            iss(bufs[0])
            A(f"L_h{hf}:")
            for k in range(2):
                iss(bufs[1 - k])
                if k == 0: A(f"s_add_u32 s{sSPIN}, s{sSPIN}, 1"); A(f"s_cmp_gt_u32 s{sSPIN}, s{sT3}")
                A("s_waitcnt vmcnt(2)")
                untag_check(d, [bufs[k] + i for i in range(8)], [vTAG] * 8, TT + 1)
                if k == 0: A(f"s_cbranch_vccz L_h{hf}ok")
                else: A(f"s_cbranch_scc1 L_h{hf}ok"); A(f"s_cbranch_vccnz L_h{hf}")
            A(f"L_h{hf}ok:")
    else:
        FB = FC + 16
        def fpoll(k):
            for q in range(4): A(f"buffer_load_dwordx4 {r4(FB+16*k+4*q)}, v{TT}, {srd(WS)}, s{SO[q]} offen sc1")
        for k in range(npf - 1): fpoll(k)
        A("L_pollf:")
        for k in range(npf):
            fpoll((k + npf - 1) % npf)
            if k == 0: A(f"s_add_u32 s{sSPIN}, s{sSPIN}, 1"); A(f"s_cmp_gt_u32 s{sSPIN}, s{sT3}")
            A(f"s_waitcnt vmcnt({4*(npf-1)})")
            untag_check([FC + i for i in range(16)], [FB + 16 * k + i for i in range(16)], [vTAG] * 16, TT + 1)
            if k < npf - 1: A("s_cbranch_vccz L_gotf")
            else: A("s_cbranch_scc1 L_gotf"); A("s_cbranch_vccnz L_pollf")
    A("L_gotf:")
    stamp(9)
    for hlf in range(2):
        A(f"v_pk_add_f32 {r2(FC+2*hlf)}, {r2(FC+2*hlf)}, {r2(FC+4+2*hlf)}"); A(f"v_pk_add_f32 {r2(FC+8+2*hlf)}, {r2(FC+8+2*hlf)}, {r2(FC+12+2*hlf)}")
    for hlf in range(2):
        A(f"v_pk_add_f32 {r2(FC+2*hlf)}, {r2(FC+2*hlf)}, {r2(FC+8+2*hlf)}")
    a, b = FC + 4, FC + 5
    A("s_nop 0")
    A(f"v_add_f32_dpp v{a}, v{FC}, v{FC} row_ror:8 row_mask:0xf bank_mask:0x3")
    A(f"v_add_f32_dpp v{a}, v{FC+1}, v{FC+1} row_ror:8 row_mask:0xf bank_mask:0xc")
    A(f"v_add_f32_dpp v{b}, v{FC+2}, v{FC+2} row_ror:8 row_mask:0xf bank_mask:0x3")
    A(f"v_add_f32_dpp v{b}, v{FC+3}, v{FC+3} row_ror:8 row_mask:0xf bank_mask:0xc")
    A("s_nop 1")
    A(f"v_permlane16_swap_b32 v{a}, v{b}")
    A("s_nop 1")
    A(f"v_add_f32 v{a}, v{a}, v{b}")
    swap_red(a, b, "v_add_f32", "v_permlane32_swap_b32")
    A(f"ds_write_b32 v{TT+2}, v{a} offset:{FS}")
    A("s_waitcnt lgkmcnt(0)")
    A("s_barrier")
    A("s_branch L_fin")
    A("L_final:")
    A(f"v_lshlrev_b32 v{TT}, 3, v0")
    A(f"v_lshlrev_b32 v{TT+2}, 16, v{SV+21}"); A(f"v_and_b32 v{TT+3}, 0xffff0000, v{SV+21}")
    A(f"v_mov_b32 v{TT+1}, s{sEP}"); A(f"v_mov_b32 v{SV}, {EP}")
    A(f"s_cmp_eq_u32 s2, 0"); A(f"s_cselect_b32 s{sT0}, 0, {HUGE}")
    A("s_mov_b64 exec, 0xffff")
    A("s_barrier")
    for w in range(8):
        A(f"ds_read_b64 {r2(80+2*w)}, v{TT} offset:{FS+128*w}")
    for w in range(8):
        A(f"s_waitcnt lgkmcnt({7-w})")
        A(f"v_pk_add_f32 {r2(TT+2)}, {r2(TT+2)}, {r2(80+2*w)}")
    A(f"v_cvt_pk_bf16_f32 v{TT+2}, v{TT+2}, v{TT+3}")
    A(f"buffer_store_dword v{TT+2}, v{SV+20}, {srd(OUT)}, 0 offen{outsc}")
    A("s_mov_b64 exec, 1")
    A(f"buffer_store_dword v{TT+1}, v{SV}, {srd(WS)}, s{sT0} offen sc1")
    if hold:
        A(f"s_add_u32 s100, s100, {hold}")
        A("L_hold:"); A("s_memrealtime s[98:99]"); A("s_waitcnt lgkmcnt(0)"); A("s_sub_u32 s98, s98, s100"); A("s_cmp_lt_i32 s98, 0"); A("s_cbranch_scc1 L_hold")
    A("L_fin:")
    if stamps:
        stamp(11)
        A("s_mov_b64 exec, -1")
        A("s_waitcnt vmcnt(0) lgkmcnt(0)")
        A(f"s_mul_i32 s{sT0}, s2, 9"); A(f"s_add_u32 s{sT0}, s{sT0}, s3"); A(f"s_lshl_b32 s{sT0}, s{sT0}, 7"); A(f"s_add_u32 s{sT0}, s{sT0}, {STAMP}")
        for i in range(14):
            A(f"v_mov_b32 v{104+2*i}, s{stamp_reg(i)}"); A(f"v_mov_b32 v{105+2*i}, s{stamp_reg(i)+1}")
        A(f"v_mov_b32 v132, s{sSPIN}")
        A("s_getreg_b32 s76, hwreg(HW_REG_XCC_ID)"); A("v_mov_b32 v133, s76"); A("v_mov_b32 v134, 0"); A("v_mov_b32 v135, 0")
        A("v_mov_b32 v100, 0")
        A("s_mov_b64 exec, 1")
        for i in range(8):
            A(f"buffer_store_dwordx4 {r4(104+4*i)}, v100, {srd(WS)}, s{sT0} offen offset:{16*i}")
    A("L_end:")
    A("s_endpgm")
    A(".p2align 6")
    A(".type L_tab,@object"); A(".size L_tab, 1024")
    A("L_tab:")
    tb = unit_table(split)
    for i in range(0, 256, 8): A(".long " + ", ".join(f"{x:#x}" for x in tb[i:i+8]))
    A('.section .rodata,"a"'); A(".p2align 6"); A(f".amdhsa_kernel {NAME}")
    A("  .amdhsa_next_free_vgpr 168"); A("  .amdhsa_next_free_sgpr 102"); A("  .amdhsa_accum_offset 168")
    A("  .amdhsa_group_segment_fixed_size 0"); A("  .amdhsa_kernarg_size 96"); A("  .amdhsa_user_sgpr_count 2")
    A("  .amdhsa_user_sgpr_kernarg_segment_ptr 1"); A("  .amdhsa_system_sgpr_workgroup_id_x 1")
    A(".end_amdhsa_kernel")
    return "\n".join(L) + "\n"


if __name__ == "__main__":
    kw = eval("dict(%s)" % (sys.argv[2] if len(sys.argv) > 2 else ""))
    open(sys.argv[1], "w").write(gen(**kw))
```

```python
import sys
NAME = "parallel_sum__sliding_block_cached__glu_gated_swiglu__decode_kernel"

HEADER = """; Fused decode step: out = x + Attn(LN(x)) + SwiGLU(LN(x)); one launch, 256 workgroups x 9 waves.
;
;
"""

OS = 0
S1 = 0
FS = 8192
QL = 9216
HD = QL + 512
MW = HD + 256
ZL = MW + 128
FWL = ZL + 128
TG = FWL + 64
QF = TG + 4
XN = 10368
assert QF + 4 <= XN
LDS_BYTES = XN + 4608
REC = 6144
FPO = 1536
EP = 1408
P1 = 3 << 19
P1B = 13312 * 4
P1P = 2 * P1B
HINT = (7 << 18) + (1 << 16)
STAMP = 2 << 20
SAFE = 4 << 20
SAFO = 1 << 18
WS_BYTES = 68 << 20
HUGE = 0x40000000
LOG2E = 0x3FB8AA3B
SCALE = 0x3DB504F3
TMASK = 0x3FF
STAMP_NAMES = ["start", "karg", "Bt/B0", "B1", "qgot", "sm", "Vend", "s7", "s8", "gotO", "FPst", "end", "x/B4", "B5"]

X, K, V, SU, WO, W2, OUT, WS = [4 + 4 * i for i in range(8)]
SRD_INFO = {X: (0, 2304), K: (2, 1 << 28), V: (4, 1 << 28), WO: (8, 4096 * 1152),
            W2: (16, 4608 * 1152), OUT: (18, 2304), WS: (22, WS_BYTES)}
sPS, sSP, sPM = 36, 37, 38
sSF = 40
sPC = 42
sU, sRB = 46, 47
sHKV, sJ, sB, sS, sSL, sCK = 48, 49, 50, 51, 52, 53
sT0, sT1, sT2, sT3 = 54, 55, 56, 57
sHASH = 58
sUO, sUS = 59, 60
sTB = 62
sLOG2E = 63
sSPIN = 64
sTM = 65
sC1, sC2, sC3 = 66, 67, 68
sEP = 69
sMASK = 70
sWARM = 45
sROW, sNSL = 74, 75
KA = 76
def stamp_reg(i): return {0: 100, 1: 72}.get(i, KA + 2 * (i - 2))

vK, vV, vA1, vA2 = 1, 2, 3, 4
MK = 5
vT0, vT1, vT2 = 9, 10, 11
A0, A1 = 12, 16
ACC, D1, D2 = 20, 24, 28
SR = 32
QB = 36
KR = 40
VR = 104
def kreg(t): return KR + 4 * t
def vreg(t): return VR + 4 * t
XA = 32
S1D = 132
WL = 40
PL = 60
HV = 68
vTAG = 74
vA3 = 75
TT = 76
vOS = 80
FC = 104
SV = 104


def r4(b): return f"v[{b}:{b+3}]"
def r2(b): return f"v[{b}:{b+1}]"
def srd(b): return f"s[{b}:{b+3}]"
DPPF = "row_mask:0xf bank_mask:0xf"
STEPS = ("quad_perm:[1,0,3,2]", "quad_perm:[2,3,0,1]", "row_half_mirror")


def unit_table(split):
    tab = []
    for hkv in range(16):
        ns = 4 + (hkv & 1); g0 = 9 * (hkv >> 1) + 4 * (hkv & 1)
        units = [4 * hkv + i for i in range(4)] + [64 + g0 + i for i in range(ns)] + [136 + g0 + i for i in range(ns)]
        cls = lambda u: (u - (0 if u < 64 else 64 if u < 136 else 136)) & 7
        nfree = 16 - len(units)
        order = sorted(units, key=lambda u: 0 if cls(u) == 3 else 1)
        nsp = {"c3": sum(cls(u) == 3 for u in units), "all": nfree, "none": 0}[split]
        assert nsp <= nfree
        sp = order[:nsp]
        ent = []
        for u in units:
            if u in sp: ent.append(u | (0x01f << 8))
            else: ent.append(u | (0x1ff << 8) | (1 << 18))
        for u in sp: ent.append(u | (0x1e0 << 8) | (1 << 17))
        while len(ent) < 16: ent.append(255)
        tab += ent[0::2] + ent[1::2]
    return tab


def gen(depth=4, b2=11, pre=2, nwb=2, stamps=False, pol=" nt", spin=100000, mlsleep=4, tmo=40, gtmo=12, split="all",
        xg=True, dry=False, outsc="", hold=0, clean="", tb=(13, 14, 15, 16), hwg=False, wsh=10, ssh=17, npf=1, sel=False, hint="b5", hsc=False, warm=True, pf=False):
    L = []
    A = L.append

    def stamp(i):
        if stamps:
            r = stamp_reg(i)
            A(f"s_memrealtime s[{r}:{r+1}]")

    def srd_const(d):
        A(f"s_mov_b32 s{d+2}, {SRD_INFO[d][1]}"); A(f"s_mov_b32 s{d+3}, 0x00020000")

    def srd_ptr(d):
        o = KA + SRD_INFO[d][0]
        A(f"s_mov_b64 s[{d}:{d+1}], s[{o}:{o+1}]")

    def consts():
        A(f"s_mov_b32 s{sLOG2E}, {LOG2E:#x}"); A(f"s_mov_b32 s{sSPIN}, 0"); A(f"s_movk_i32 s{sTM}, {TMASK:#x}")
        A(f"s_mov_b32 s{sMASK}, 0x00ff00ff"); A(f"s_mov_b32 s{sMASK+1}, 0x00ff00ff")
        A(f"s_mul_i32 s{sSL}, s2, 9363"); A(f"s_lshr_b32 s{sSL}, s{sSL}, 16")
        A(f"s_mul_i32 s{sT0}, s{sSL}, 7"); A(f"s_sub_u32 s{sCK}, s2, s{sT0}")
        A("s_cmp_ge_u32 s2, 252"); A(f"s_cselect_b32 s{sCK}, 1, s{sCK}")

    def masks(tmp):
        A(f"v_and_b32 v{vT2}, 1, v0"); A(f"v_lshlrev_b32 v{vT2}, 4, v{vT2}")
        A(f"v_mov_b32 v{MK}, 0xffff"); A(f"v_lshlrev_b32 v{vT2}, v{vT2}, v{MK}")
        A(f"v_bfe_u32 v{tmp}, v0, 1, 2")
        for j in range(4):
            A(f"v_cmp_eq_u32 vcc, {j}, v{tmp}"); A("s_nop 1"); A(f"v_cndmask_b32 v{MK+j}, 0, v{vT2}, vcc")

    def table_load(tag):
        A(f"s_getpc_b64 s[{sPC}:{sPC+1}]")
        A(f"L_pc{tag}:")
        A(f"s_lshl_b32 s{sPC+2}, s2, 2"); A(f"s_add_u32 s{sPC+2}, s{sPC+2}, L_tab-L_pc{tag}")
        A(f"s_load_dword s{sTB}, s[{sPC}:{sPC+1}], s{sPC+2}")

    def group_ids():
        A(f"s_and_b32 s{sT0}, s{sHKV}, 1"); A(f"s_add_u32 s{sNSL}, s{sT0}, 4")
        A(f"s_lshr_b32 s{sT1}, s{sHKV}, 1"); A(f"s_mul_i32 s{sT1}, s{sT1}, 9"); A(f"s_lshl2_add_u32 s{sT1}, s{sT0}, s{sT1}")
        A(f"s_mul_i32 s{sROW}, s{sNSL}, s{sJ}"); A(f"s_lshl4_add_u32 s{sROW}, s{sT1}, s{sROW}"); A(f"s_lshl_b32 s{sROW}, s{sROW}, 2")

    def tag4(r):
        for v in range(4): A(f"v_bfi_b32 v{r+v}, s{sTM}, v{vTAG}, v{r+v}")

    def untag_check(dst, src, tags, acc):
        for d, r, t in zip(dst, src, tags): A(f"v_xor_b32 v{d}, v{t}, v{r}")
        A(f"v_or3_b32 v{acc}, v{dst[0]}, v{dst[1]}, v{dst[2]}")
        rest = dst[3:]
        while len(rest) >= 2:
            A(f"v_or3_b32 v{acc}, v{acc}, v{rest[0]}, v{rest[1]}"); rest = rest[2:]
        if rest: A(f"v_or_b32 v{acc}, v{acc}, v{rest[0]}")
        A(f"v_and_b32 v{acc}, s{sTM}, v{acc}")
        A(f"v_cmp_ne_u32 vcc, 0, v{acc}")

    def bf16r(dst, src):
        A(f"v_cvt_pk_bf16_f32 v{dst}, v{src}, v{src}"); A(f"v_and_b32 v{dst}, 0xffff0000, v{dst}")

    def swap_red(r, t, op, sw):
        A(f"v_mov_b32 v{t}, v{r}"); A("s_nop 1"); A(f"{sw} v{r}, v{t}"); A("s_nop 1"); A(f"{op} v{r}, v{r}, v{t}")

    def allred32(r, t, op="v_add_f32"):
        for n in (1, 2, 4, 8):
            A("s_nop 1"); A(f"{op}_dpp v{r}, v{r}, v{r} row_ror:{n} {DPPF}")
        swap_red(r, t, op, "v_permlane16_swap_b32")

    def allred_banks_rows(r, t, op):
        for n in (4, 8):
            A("s_nop 1"); A(f"{op}_dpp v{r}, v{r}, v{r} row_ror:{n} {DPPF}")
        swap_red(r, t, op, "v_permlane16_swap_b32"); swap_red(r, t, op, "v_permlane32_swap_b32")

    aflip = [0]
    def gemv_mfma(val, data, acc, first):
        a = A0 if aflip[0] == 0 else A1
        aflip[0] ^= 1
        for j in range(4):
            A(f"v_and_b32 v{a+j}, v{val}, v{MK+j}")
        A("s_nop 1")
        A(f"v_mfma_f32_16x16x32_bf16 {r4(acc)}, {r4(a)}, {r4(data)}, {'0' if first else r4(acc)}")

    def w2_mfmas():
        for n in range(3):
            for rho in range(2):
                gemv_mfma(HV + 2 * n + rho, WL + 4 * n, D1 if rho == 0 else D2, n == 0)

    LATE = [f"buffer_load_dwordx4 {r4(WL)}, v{vA2}, {srd(W2)}, 0 offen{pol}",
            f"buffer_load_dwordx4 {r4(WL+4)}, v{vA2}, {srd(W2)}, s{sC1} offen{pol}",
            f"buffer_load_dwordx4 {r4(WL+8)}, v{vA3}, {srd(W2)}, 0 offen{pol}",
            f"buffer_load_dwordx4 {r4(WL+12)}, v{vA1}, {srd(WO)}, 0 offen{pol}",
            f"buffer_load_dwordx4 {r4(WL+16)}, v{vA1}, {srd(WO)}, 0 offen offset:2304{pol}"]

    def late_addr():
        A(f"v_bfe_u32 v{vT2}, v0, 3, 1")
        A(f"v_lshl_add_u32 v{vA1}, v{vT0}, 2, v{vT2}")
        A(f"s_lshl_b32 s{sT1}, s2, 4"); A(f"v_add_u32 v{vA1}, s{sT1}, v{vA1}")
        A(f"v_mul_u32_u24 v{vA1}, 1152, v{vA1}")
        A(f"v_lshl_add_u32 v{vA2}, v{vT0}, 1, v{vT2}")
        A(f"v_add_u32 v{vA2}, s{sROW}, v{vA2}")
        A(f"v_mul_u32_u24 v{vA2}, 1152, v{vA2}")
        A(f"v_and_b32 v{vT2}, 7, v0"); A(f"v_lshlrev_b32 v{vT2}, 4, v{vT2}")
        A(f"s_lshl_b32 s{sT1}, s3, 7"); A(f"v_add_u32 v{vT2}, s{sT1}, v{vT2}")
        A(f"v_add_u32 v{vA1}, v{vA1}, v{vT2}"); A(f"v_add_u32 v{vA2}, v{vA2}, v{vT2}")
        A(f"s_movk_i32 s{sC1}, 9216")

    def tail_addr():
        A(f"s_sub_u32 s{sT1}, s{sNSL}, 4"); A(f"s_lshl_b32 s{sT1}, s{sT1}, 1")
        A(f"v_add_u32 v{vA3}, {16*1152}, v{vA2}")
        A(f"v_cmp_gt_u32 vcc, s{sT1}, v{vT0}"); A(f"v_mov_b32 v{TT}, {HUGE}"); A("s_nop 0")
        A(f"v_cndmask_b32 v{vA3}, v{TT}, v{vA3}, vcc")
        A(f"v_lshrrev_b32 v{TT}, 1, v{vT0}"); A(f"v_mul_u32_u24 v{TT}, 2304, v{TT}")
        A(f"v_and_b32 v{TT+1}, 7, v0"); A(f"v_lshl_add_u32 v{TT}, v{TT+1}, 5, v{TT}")
        A(f"v_and_b32 v{TT+1}, 1, v{vT0}"); A(f"v_lshl_add_u32 v{TT}, v{TT+1}, 4, v{TT}")
        A(f"s_mul_i32 s{sC2}, s2, {REC}"); A(f"s_lshl_b32 s{sT1}, s3, 8"); A(f"s_add_u32 s{sC2}, s{sC2}, s{sT1}"); A(f"s_add_u32 s{sC2}, s{sC2}, {FPO}")
        A(f"v_bfe_u32 v{TT+1}, v0, 3, 1"); A(f"v_lshlrev_b32 v{TT+1}, 7, v{TT+1}"); A(f"v_lshl_add_u32 v{TT+1}, v{vT0}, 3, v{TT+1}")
        for i in range(3):
            A(f"ds_read_b64 {r2(HV+2*i)}, v{TT+1} offset:{HD+32*i}")
        A(f"v_lshrrev_b32 v{vT1}, 3, v0"); A(f"v_lshlrev_b32 v{vT1}, 4, v{vT1}")
        A(f"s_and_b32 s{sT1}, s{sEP}, s{sTM}"); A(f"v_mov_b32 v{vTAG}, s{sT1}")

    A(HEADER.rstrip("\n"))
    A(f"; @launch grid=(256,1,1) block=(576,1,1) lds={LDS_BYTES}")
    A('.amdgcn_target "amdgcn-amd-amdhsa--gfx950"')
    A(".text"); A(f".globl {NAME}"); A(".p2align 8"); A(f".type {NAME},@function"); A(f"{NAME}:")
    stamp(0)
    if hold: A("s_memrealtime s[100:101]")
    A(f"s_load_dwordx16 s[{KA}:{KA+15}], s[0:1], 0")
    A(f"s_load_dwordx8 s[{KA+16}:{KA+23}], s[0:1], 64")
    A("v_lshrrev_b32 v1, 6, v0")
    A("s_cmp_ge_u32 s2, 256"); A("s_cbranch_scc1 L_end")
    A("v_readfirstlane_b32 s3, v1")
    A("v_and_b32 v0, 63, v0")
    if xg:
        A(f"s_and_b32 s{sT0}, s2, 7"); A(f"s_lshl_b32 s{sT0}, s{sT0}, 5"); A("s_lshr_b32 s2, s2, 3"); A(f"s_add_u32 s2, s2, s{sT0}")
    A(f"s_lshr_b32 s{sHKV}, s2, 4"); A(f"s_and_b32 s{sJ}, s2, 15"); A(f"s_lshr_b32 s{sB}, s{sJ}, 3"); A(f"s_and_b32 s{sS}, s2, 7")
    A(f"v_lshrrev_b32 v{vT0}, 4, v0")
    A("s_cmp_eq_u32 s3, 8"); A("s_cbranch_scc1 L_service")

    srd_const(K)
    if (wsh, ssh) == (10, 17):
        A(f"s_lshl4_add_u32 s{sT0}, s{sB}, s{sHKV}"); A(f"s_lshl_b32 s{sT0}, s{sT0}, 6"); A(f"s_add_u32 s{sT0}, s{sT0}, s{sS}")
        A(f"s_lshl_b32 s{sT0}, s{sT0}, 7"); A(f"s_add_u32 s{sT0}, s{sT0}, s3"); A(f"s_addk_i32 s{sT0}, {7 << 10}"); A(f"s_lshl_b32 s{sT2}, s{sT0}, 10")
    else:
        A(f"s_lshl4_add_u32 s{sT0}, s{sB}, s{sHKV}"); A(f"s_lshl_b32 s{sT0}, s{sT0}, 23"); A(f"s_add_u32 s{sT0}, s{sT0}, {7 << 20}")
        A(f"s_lshl_b32 s{sT1}, s{sS}, {ssh}"); A(f"s_add_u32 s{sT0}, s{sT0}, s{sT1}"); A(f"s_lshl_b32 s{sT1}, s3, {wsh}"); A(f"s_add_u32 s{sT2}, s{sT0}, s{sT1}")
    A(f"v_and_b32 v{vK}, 3, v0"); A(f"v_lshl_add_u32 v{vK}, v{vK}, 4, s{sT2}")
    A(f"v_bfe_u32 v{vT1}, v0, 2, 2"); A(f"v_lshl_add_u32 v{vK}, v{vT1}, 8, v{vK}")
    A(f"v_lshl_add_u32 v{vK}, v{vT0}, 6, v{vK}")
    if hwg: A(f"s_mul_i32 s{sHASH}, s2, 0x9E3779B1")
    else: A(f"s_lshl3_add_u32 s{sT0}, s2, s3"); A(f"s_mul_i32 s{sHASH}, s{sT0}, 0x9E3779B1")
    if sorted(tb) == [13, 14, 15, 16]:
        A(f"s_bfe_u32 s{sHASH}, s{sHASH}, 0x40018"); A(f"s_lshl_b32 s{sHASH}, s{sHASH}, 13")
    else:
        A(f"s_lshr_b32 s{sHASH}, s{sHASH}, 11"); A(f"s_and_b32 s{sHASH}, s{sHASH}, {sum(1 << x for x in tb)}")
    A("s_waitcnt lgkmcnt(0)")
    stamp(1)
    srd_ptr(K)

    def kvld(nm, t, reg, va, sr):
        return (f"{nm}{t}", [f"s_xor_b32 s{sT0}, s{sHASH}, {sum(((t >> i) & 1) << tb[i] for i in range(4))}", f"buffer_load_dwordx4 {r4(reg)}, v{va}, {srd(sr)}, s{sT0} offen{pol}"])
    loads = [kvld("K", t, kreg(t), vK, K) for t in range(pre)]
    for k in range(9):
        c = [f"s_bitcmp1_b32 s{sTB}, {8+k}", f"s_cselect_b32 s{sT0}, s{sUO}, {HUGE}",
             f"buffer_load_dwordx4 {r4(S1D+4*k)}, v{vA1}, {srd(SU)}, s{sT0} offen{pol}"]
        if k < 8: c.append(f"s_add_u32 s{sUO}, s{sUO}, s{sUS}")
        loads.append((f"U{k}", c))
    loads += [kvld("K", t, kreg(t), vK, K) for t in range(pre, 16)]
    loads += [kvld("V", t, vreg(t), vV, V) for t in range(16)]
    loads += [(f"W{i}", [LATE[i]]) for i in range(5 if dry else nwb)]
    names = [n for n, _ in loads]

    def rest_of_prologue():
        A(f"v_lshl_add_u32 v{vV}, v0, 4, s{sT2}")
        for d in (V, WO, W2, WS): srd_const(d); srd_ptr(d)
        consts()
        group_ids()
        masks(vT1)
        A(f"v_bfe_u32 v{vT2}, v0, 3, 1"); A(f"s_lshl_b32 s{sT1}, s3, 3")
        A(f"v_lshl_add_u32 v{vA1}, v{vT0}, 1, s{sT1}")
        A(f"v_mul_u32_u24 v{vA2}, 2304, v{vT2}"); A(f"v_lshl_add_u32 v{vA2}, v{vA1}, 2, v{vA2}")
        A(f"v_add_u32 v{vA1}, v{vA1}, v{vT2}")
        A(f"v_and_b32 v{vT1}, 7, v0"); A(f"v_lshlrev_b32 v{vT1}, 4, v{vT1}")
        A(f"s_mov_b32 s{SU+3}, 0x00020000")
        A("s_waitcnt lgkmcnt(0)")
        A(f"s_and_b32 s{sU}, s{sTB}, 255")
        A(f"s_cmp_lt_u32 s{sU}, 136")
        A(f"s_cselect_b64 s[{SU}:{SU+1}], s[{KA+12}:{KA+13}], s[{KA+14}:{KA+15}]"); A(f"s_cselect_b32 s{sT1}, 64, 136")
        A(f"s_cmp_lt_u32 s{sU}, 64")
        A(f"s_cselect_b64 s[{SU}:{SU+1}], s[{KA+6}:{KA+7}], s[{SU}:{SU+1}]"); A(f"s_cselect_b32 s{sT1}, 0, s{sT1}")
        A(f"s_movk_i32 s{sRB}, 9216"); A(f"s_cselect_b32 s{sRB}, 8192, s{sRB}")
        A(f"s_mul_i32 s{SU+2}, s{sRB}, 576")
        A(f"s_sub_u32 s{sUO}, s{sU}, s{sT1}"); A(f"s_lshl_b32 s{sUO}, s{sUO}, 7"); A(f"s_lshl_b32 s{sUS}, s{sRB}, 6")
        A(f"v_mad_u32_u24 v{vA1}, v{vA1}, s{sRB}, v{vT1}")
        stamp(2)

    def qk_block():
        A(f"v_bfe_u32 v{vT2}, v0, 1, 1"); A(f"v_lshlrev_b32 v{vT2}, 8, v{vT2}"); A(f"v_lshl_add_u32 v{vT2}, v{vT0}, 6, v{vT2}")
        A(f"v_bfe_u32 v{vT1}, v0, 2, 2"); A(f"v_lshl_add_u32 v{vT2}, v{vT1}, 4, v{vT2}")
        A(f"v_mov_b32 v{vT1}, 0")
        stamp(7)
        A("s_branch L_qwait1")
        A("L_qwait:")
        A("s_sleep 2")
        A("L_qwait1:")
        A(f"ds_read_b32 v{SR}, v{vT1} offset:{QF}")
        A(f"ds_read_b128 {r4(QB)}, v{vT2} offset:{QL}")
        A(f"s_add_u32 s{sSPIN}, s{sSPIN}, 1"); A(f"s_cmp_gt_u32 s{sSPIN}, {spin*16}")
        A("s_waitcnt lgkmcnt(0)")
        A(f"v_cmp_eq_u32 vcc, 0, v{SR}")
        A("s_cbranch_scc1 L_qgot")
        A("s_cbranch_vccnz L_qwait")
        A("L_qgot:")
        stamp(4)
        Ds = [A0, A1, D1, D2]
        def mf(t): A(f"v_mfma_f32_16x16x32_bf16 {r4(Ds[t%4])}, {r4(kreg(t))}, {r4(QB)}, 0")
        def ops(t):
            b = t & 3; S = SR + (t >> 2); D = Ds[t % 4]; bm = f"row_mask:0xf bank_mask:{1<<b:#x}"
            A(f"v_add_f32_dpp v{S}, v{D+((b+1)&3)}, v{D+b} row_ror:12 {bm}")
            A(f"v_add_f32_dpp v{S}, v{D+((b+2)&3)}, v{S} row_ror:8 {bm}")
            A(f"v_add_f32_dpp v{S}, v{D+((b+3)&3)}, v{S} row_ror:4 {bm}")
        for t in range(4): mf(t)
        A("s_nop 4")
        for t in range(16):
            ops(t)
            if t + 4 < 16: mf(t + 4)
            elif t < 15: A("s_nop 0")
        for p in (0, 2):
            a, b = SR + p, SR + p + 1
            A(f"v_cvt_pk_bf16_f32 v{b}, v{a}, v{b}"); A(f"v_lshlrev_b32 v{a}, 16, v{b}"); A(f"v_and_b32 v{b}, 0xffff0000, v{b}")
            A(f"v_mul_f32 v{a}, {SCALE:#x}, v{a}"); A(f"v_mul_f32 v{b}, {SCALE:#x}, v{b}")
            A(f"v_cvt_pk_bf16_f32 v{b}, v{a}, v{b}"); A(f"v_lshlrev_b32 v{a}, 16, v{b}"); A(f"v_and_b32 v{b}, 0xffff0000, v{b}")
        m = D1; l = D1 + 1
        A(f"v_max3_f32 v{m}, v{SR}, v{SR+1}, v{SR+2}"); A(f"v_max_f32 v{m}, v{m}, v{SR+3}")
        allred_banks_rows(m, D2, "v_max_f32")
        A(f"v_mul_f32 v{vT2}, s{sLOG2E}, v{m}")
        for T in range(4): A(f"v_fma_f32 v{SR+T}, v{SR+T}, s{sLOG2E}, -v{vT2}")
        for T in range(4): A(f"v_exp_f32 v{SR+T}, v{SR+T}")
        A(f"s_lshl_b32 s{sT1}, s3, 3"); A(f"v_lshl_add_u32 v{QB}, v0, 5, s{sT1}")
        A(f"v_add_f32 v{l}, v{SR}, v{SR+1}"); A(f"v_add_f32 v{D2}, v{SR+2}, v{SR+3}"); A(f"v_add_f32 v{l}, v{l}, v{D2}")
        allred_banks_rows(l, D2, "v_add_f32")
        A("s_mov_b64 exec, 5")
        A(f"ds_write_b64 v{QB}, {r2(m)} offset:{MW}")
        A("s_mov_b64 exec, -1")
        for j in range(8): A(f"v_mov_b32 v{A0+j}, 0")
        A(f"v_and_b32 v{D2}, 1, v0"); A(f"v_lshlrev_b32 v{D2}, 4, v{D2}"); A(f"v_mov_b32 v{D2+1}, 0xffff"); A(f"v_lshlrev_b32 v{D2}, v{D2}, v{D2+1}")
        for T in range(4): A(f"v_cvt_pk_bf16_f32 v{SR+T}, v{SR+T}, v{SR+T}")
        for T in range(4): A(f"v_and_b32 v{SR+T}, v{SR+T}, v{D2}")
        A(f"v_and_b32 v{vOS}, 15, v0"); A(f"v_lshlrev_b32 v{vOS}, 5, v{vOS}"); A(f"v_lshl_add_u32 v{vOS}, v{vT0}, 3, v{vOS}")
        A(f"s_lshl_b32 s{sT1}, s3, 10"); A(f"v_add_u32 v{vOS}, s{sT1}, v{vOS}")
        tail_addr()
        stamp(5)

    def pv(t):
        b = t & 3; P = SR + (t >> 2); a = A0 if t % 2 == 0 else A1
        for j in range(4):
            n = (4 * (j - b)) % 16
            ctl = "quad_perm:[0,1,2,3]" if n == 0 else f"row_ror:{n}"
            A(f"v_mov_b32_dpp v{a+j}, v{P} {ctl} row_mask:0xf bank_mask:{1<<j:#x}")
        A("s_nop 1")
        A(f"v_mfma_f32_16x16x32_bf16 {r4(ACC)}, {r4(a)}, {r4(vreg(t))}, {'0' if t == 0 else r4(ACC)}")

    state = {"qk": False, "pv": 0}

    def on_landed(nm):
        if dry:
            if nm == "U8": stamp(3); late_addr()
            if nm == "V0": tail_addr()
            return
        if nm[0] == "U":
            k = int(nm[1])
            if k == 0:
                A("s_barrier")
                for i in range(4): A(f"ds_read_b64 {r2(XA+2*i)}, v{vA2} offset:{XN+256*i}")
            A(f"s_waitcnt lgkmcnt({min(k+4, 9) - k - 1})")
            x = XA + 2 * (k % 4)
            gemv_mfma(x, S1D + 4 * k, D1, k == 0)
            gemv_mfma(x + 1, S1D + 4 * k, D2, k == 0)
            if k + 4 < 9: A(f"ds_read_b64 {r2(x)}, v{vA2} offset:{XN+256*(k+4)}")
            if k == 8:
                A(f"v_and_b32 v{vT1}, 7, v0"); A(f"v_lshl_add_u32 v{vT1}, v{vT0}, 3, v{vT1}"); A(f"s_lshl_b32 s{sT1}, s3, 9")
                A(f"v_lshl_add_u32 v{vT1}, v{vT1}, 4, s{sT1}")
                A(f"v_mov_b32 v{vT2}, 0"); A(f"ds_read_b32 v{vT2}, v{vT2} offset:{TG}")
                A("s_nop 1")
                for v in range(4): A(f"v_add_f32_dpp v{D1+v}, v{D2+v}, v{D1+v} row_ror:8 {DPPF}")
                A(f"s_mov_b64 exec, s[{sMASK}:{sMASK+1}]")
                A(f"ds_write_b128 v{vT1}, {r4(D1)} offset:{S1}")
                A("s_mov_b64 exec, -1")
                A("s_waitcnt lgkmcnt(0)"); A("s_barrier")
                stamp(3)
                A(f"v_readfirstlane_b32 s{sEP}, v{vT2}")
                late_addr()
        elif nm[0] in "VW" and state["qk"]:
            t = max(int(n[1:]) for n in names[:names.index(nm)+1] if n[0] == "V")
            while state["pv"] <= t:
                pv(state["pv"]); state["pv"] += 1

    N = len(loads)
    landed = -1
    ib2 = names.index(f"V{b2}")
    assert pre >= 2 and names.index("U8") + depth < names.index("V7") and ib2 - depth >= names.index("K15")
    for i, (nm, code) in enumerate(loads):
        if nm == "U0": rest_of_prologue()
        if i == 1: table_load("a")
        for c in code: A(c)
        if i >= depth:
            A(f"s_waitcnt vmcnt({depth})")
            landed = i - depth
            on_landed(names[landed])
        if i == ib2:
            if dry: stamp(7)
            else: qk_block()
            state["qk"] = True
    while landed < names.index("V15"):
        landed += 1
        A(f"s_waitcnt vmcnt({N-1-landed})")
        on_landed(names[landed])
    stamp(6)
    if dry:
        A("s_waitcnt vmcnt(0)"); stamp(8); A("s_branch L_fin")
    A("s_nop 7")
    A(f"ds_write2st64_b64 v{vOS}, {r2(ACC)}, {r2(ACC+2)} offset0:{OS//512} offset1:{OS//512+1}")
    A("s_waitcnt lgkmcnt(0)")
    A("s_barrier")
    stamp(12)
    if nwb < 5:
        A("s_barrier")
        for c in LATE[nwb:]: A(c)
    A("s_waitcnt vmcnt(2)")
    w2_mfmas()
    A("s_waitcnt vmcnt(0)")
    stamp(8)
    A("s_barrier")
    A(f"ds_read_b128 {r4(PL)}, v{vT1} offset:{ZL}")
    A("s_waitcnt lgkmcnt(0)")

    svc0 = len(L)
    A("L_service:")
    if dry: A("s_endpgm")
    def vm(ins):
        A("s_setprio 3")
        for x in ins: A(x)
        A("s_setprio 0")
    XS = SV + 8
    PA, PD, TG0 = 100, 96, 63
    srd_const(X); srd_const(WS)
    A(f"v_lshrrev_b32 v{vA1}, 5, v0"); A(f"v_mul_u32_u24 v{vA2}, 1152, v{vA1}")
    A(f"v_and_b32 v{vT2}, 31, v0"); A(f"v_mad_u32_u24 v{vA2}, v{vT2}, 36, v{vA2}")
    A("s_setprio 3")
    A("s_waitcnt lgkmcnt(0)")
    stamp(1)
    srd_ptr(X)
    A(f"buffer_load_dwordx4 {r4(XS)}, v{vA2}, {srd(X)}, 0 offen")
    A(f"buffer_load_dwordx4 {r4(XS+4)}, v{vA2}, {srd(X)}, 0 offen offset:16")
    A(f"buffer_load_dword v{XS+8}, v{vA2}, {srd(X)}, 0 offen offset:32")
    A("s_setprio 0")
    if pf:
        A(f"s_getpc_b64 s[{sT2}:{sT2+1}]"); A("L_pf:"); A(f"s_sub_u32 s{sT2}, s{sT2}, L_pf-{NAME}"); A(f"s_subb_u32 s{sT2+1}, s{sT2+1}, 0")
        A(f"v_lshlrev_b32 v{SV}, 7, v0")
        A(f"global_load_dword v{SV+1}, v{SV}, s[{sT2}:{sT2+1}]"); A(f"v_add_u32 v{SV}, 8192, v{SV}"); A("s_mov_b64 exec, 0xffffff"); A(f"global_load_dword v{SV+2}, v{SV}, s[{sT2}:{sT2+1}]"); A("s_mov_b64 exec, -1")
    srd_ptr(WS)
    A(f"s_load_dword s{sEP}, s[{WS}:{WS+1}], {EP}")
    table_load("b")
    A(f"v_lshlrev_b32 v{vK}, 4, v0")
    A(f"v_mov_b32 v{SV+4}, 0"); A(f"v_lshlrev_b32 v{SV+5}, 2, v0")
    A(f"ds_write_b32 v{SV+4}, v{SV+4} offset:{QF}")
    A(f"v_mov_b32 v{SV+6}, -1"); A(f"v_and_b32 v{SV+5}, 124, v{SV+5}"); A(f"ds_write_b32 v{SV+5}, v{SV+6} offset:{MW}")
    for d in (WO, W2, OUT): srd_const(d); srd_ptr(d)
    consts()
    group_ids()
    masks(SV + 5)
    A(f"v_lshlrev_b32 v{vA2}, 1, v{vA2}")
    U = 12
    A("s_waitcnt vmcnt(0)")
    stamp(12)
    for i in range(9):
        A(f"v_lshlrev_b32 v{U+2*i}, 16, v{XS+i}"); A(f"v_and_b32 v{U+2*i+1}, 0xffff0000, v{XS+i}")
    s = XS
    A(f"v_add_f32 v{s}, v{U}, v{U+1}"); A(f"v_add_f32 v{s+1}, v{U+2}, v{U+3}")
    for i in range(4, 18, 2):
        A(f"v_add_f32 v{s}, v{s}, v{U+i}"); A(f"v_add_f32 v{s+1}, v{s+1}, v{U+i+1}")
    A(f"v_add_f32 v{s}, v{s}, v{s+1}")
    allred32(s, s + 1)
    A(f"v_mul_f32 v{s}, {0x3AE38E39:#x}, v{s}")
    W = 40
    for i in range(18):
        A(f"v_sub_f32 v{W+i}, v{U+i}, v{s}")
    A(f"v_mul_f32 v{s+2}, v{W}, v{W}"); A(f"v_mul_f32 v{s+3}, v{W+1}, v{W+1}")
    for i in range(2, 18, 2):
        A(f"v_fmac_f32 v{s+2}, v{W+i}, v{W+i}"); A(f"v_fmac_f32 v{s+3}, v{W+i+1}, v{W+i+1}")
    A(f"v_add_f32 v{s+2}, v{s+2}, v{s+3}")
    allred32(s + 2, s + 3)
    A(f"v_mul_f32 v{s+2}, {0x3AE38E39:#x}, v{s+2}")
    bf16r(s + 2, s + 2)
    A(f"v_add_f32 v{s+2}, {0x3727C5AC:#x}, v{s+2}")
    bf16r(s + 2, s + 2)
    A(f"v_sqrt_f32 v{s+2}, v{s+2}")
    bf16r(s, s)
    bf16r(s + 2, s + 2)
    A(f"v_rcp_f32 v{s+2}, v{s+2}")
    for i in range(18):
        A(f"v_sub_f32 v{U+i}, v{U+i}, v{s}")
    for i in range(0, 18, 2):
        A(f"v_cvt_pk_bf16_f32 v{U+i+1}, v{U+i}, v{U+i+1}"); A(f"v_lshlrev_b32 v{U+i}, 16, v{U+i+1}"); A(f"v_and_b32 v{U+i+1}, 0xffff0000, v{U+i+1}")
        A(f"v_mul_f32 v{U+i}, v{U+i}, v{s+2}"); A(f"v_mul_f32 v{U+i+1}, v{U+i+1}, v{s+2}")
        A(f"v_cvt_pk_bf16_f32 v{U+i}, v{U+i}, v{U+i}"); A(f"v_cvt_pk_bf16_f32 v{U+i+1}, v{U+i+1}, v{U+i+1}")
        A(f"ds_write_b64 v{vA2}, {r2(U+i)} offset:{XN+4*i}")
    A("s_waitcnt lgkmcnt(0)")
    A(f"s_add_u32 s{sEP}, s{sEP}, 1")
    A(f"v_mov_b32 v{vTAG}, s{sEP}")
    A(f"ds_write_b32 v{SV+4}, v{vTAG} offset:{TG}")
    A("s_waitcnt lgkmcnt(0)")
    A("s_barrier")
    stamp(2)
    A(f"s_and_b32 s{sT0}, s{sEP}, s{sTM}"); A(f"v_mov_b32 v{vTAG}, s{sT0}")
    A(f"s_bfe_u32 s{sSF}, s{sEP}, 0x6000a"); A(f"s_lshl_b32 s{sSF}, s{sSF}, 20"); A(f"s_add_u32 s{sSF}, s{sSF}, {SAFE}")
    T = SV + 8
    GT = 40
    A(f"s_and_b32 s{sU}, s{sTB}, 255")
    A(f"v_and_b32 v{SV+1}, 7, v0"); A(f"v_bfe_u32 v{SV}, v0, 3, 1")
    A(f"v_bfe_u32 v{PA}, v0, 4, 1"); A(f"v_mul_u32_u24 v{SV+2}, {P1P}, v{PA}"); A(f"v_mul_u32_u24 v{PA}, {P1B}, v{PA}")
    A(f"v_lshl_add_u32 v{PA}, v{SV+1}, 5, v{PA}")
    A(f"v_lshl_add_u32 v{PA}, v{SV}, 4, v{PA}")
    A(f"s_bfe_u32 s{sT0}, s{sTB}, 0x10011"); A(f"v_xor_b32 v{SV+3}, s{sT0}, v{vA1}"); A(f"v_mul_u32_u24 v{SV+3}, {P1P}, v{SV+3}"); A(f"v_add_u32 v{PA}, v{PA}, v{SV+3}")
    A(f"s_mov_b32 s{sPM}, -1"); A(f"s_bitcmp1_b32 s{sTB}, 18"); A(f"s_cselect_b32 s{sPM+1}, -1, 0")
    A(f"s_lshl_b32 s{sPS}, s{sU}, 8"); A(f"s_add_u32 s{sPS}, s{sPS}, {P1}")
    A(f"s_cmp_lt_u32 s{sU}, 208"); A(f"s_cselect_b32 s{sPS}, s{sPS}, {HUGE}")
    A(f"s_mul_i32 s{sT2}, s{sB}, {P1B}"); A(f"s_lshl_b32 s{sT3}, s{sHKV}, 10"); A(f"s_add_u32 s{sT2}, s{sT2}, s{sT3}"); A(f"s_add_u32 s{sT2}, s{sT2}, {P1}")
    A(f"s_add_u32 s{sC2}, s{sT2}, {P1P}")
    A(f"v_mul_u32_u24 v{vA2}, {P1B}, v{SV}"); A(f"v_mul_u32_u24 v{vA1}, 18432, v{vA1}"); A(f"v_add3_u32 v{vA2}, v{vA2}, v{vA1}, v{SV+2}")
    A(f"v_lshl_add_u32 v{vA2}, v{SV+1}, 4, v{vA2}")
    A(f"v_mov_b32 v{SV+3}, {HUGE}")
    A(f"v_cmp_gt_u32 vcc, s{sNSL}, v{SV+1}"); A("s_nop 1")
    A(f"v_cndmask_b32 v{vA2}, v{SV+3}, v{vA2}, vcc"); A(f"v_cndmask_b32 v{TG0}, 0, v{vTAG}, vcc")
    A(f"s_lshl_b32 s{sT3}, s{sROW}, 2"); A(f"s_add_u32 s{sT3}, s{sT3}, {P1 + 16384}")
    A(f"s_mov_b32 s{sSP}, 0"); A(f"s_mov_b32 s{sC1}, 0"); A(f"s_sub_u32 s{sC3}, s{sSF}, {P1}")
    for v in range(4): A(f"v_mov_b32 v{PD+v}, 0")
    A("s_barrier")
    A("s_mov_b64 exec, 0xffffffff")
    for w in range(8):
        A(f"ds_read_b128 {r4(T+4*w)}, v{vK} offset:{S1 + w*512}")
    for w in range(1, 8):
        A(f"s_waitcnt lgkmcnt({7-w})")
        for v in range(4):
            A(f"v_add_f32 v{PD+v}, v{T+v if w == 1 else PD+v}, v{T+4*w+v}")
    for v in range(4): A(f"v_add_u32 v{PD+v}, {(TMASK+1)//2}, v{PD+v}")
    A("s_mov_b64 exec, -1")
    tag4(PD)
    A(f"s_mov_b64 exec, s[{sPM}:{sPM+1}]")
    vm([f"buffer_store_dwordx4 {r4(PD)}, v{PA}, {srd(WS)}, s{sPS} offen"])
    A("s_mov_b64 exec, -1")
    def safe_p1(tag):
        A(f"s_cmp_lg_u32 s{sSP}, 0"); A(f"s_cbranch_scc1 L_sp{tag}")
        A(f"s_add_u32 s{sPS}, s{sPS}, s{sSF}"); A(f"s_sub_u32 s{sPS}, s{sPS}, {P1}"); A(f"s_mov_b32 s{sSP}, 1")
        A(f"s_mov_b64 exec, s[{sPM}:{sPM+1}]")
        vm([f"buffer_store_dwordx4 {r4(PD)}, v{PA}, {srd(WS)}, s{sPS} offen sc1"])
        A("s_mov_b64 exec, -1")
        A(f"L_sp{tag}:")
    stamp(3)
    A("L_gather:")
    vm([f"buffer_load_dwordx4 {r4(T)}, v{vK}, {srd(WS)}, s{sT2} offen sc1",
        f"buffer_load_dwordx4 {r4(T+4)}, v{vK}, {srd(WS)}, s{sC2} offen sc1",
        f"buffer_load_dwordx4 {r4(GT)}, v{vA2}, {srd(WS)}, s{sT3} offen sc1"])
    A(f"s_add_u32 s{sSPIN}, s{sSPIN}, 1")
    A("s_waitcnt vmcnt(0)")
    rg = [T + i for i in range(8)] + [GT + i for i in range(4)]
    untag_check(rg, rg, [vTAG] * 8 + [TG0] * 4, SV)
    A("s_cbranch_vccz L_gotg")
    A(f"s_cmp_lt_u32 s{sSPIN}, {gtmo}"); A("s_cbranch_scc1 L_gather")
    safe_p1("g")
    for r_ in (sT2, sC2, sT3): A(f"s_sub_u32 s{r_}, s{r_}, s{sC1}")
    A(f"s_xor_b32 s{sC1}, s{sC1}, s{sC3}")
    for r_ in (sT2, sC2, sT3): A(f"s_add_u32 s{r_}, s{r_}, s{sC1}")
    A(f"s_cmp_lt_u32 s{sSPIN}, {spin}"); A("s_cbranch_scc1 L_gather")
    A("L_gotg:")
    for v in range(4): A(f"v_add_f32 v{T+v}, v{T+v}, v{T+4+v}")
    A(f"v_cvt_pk_bf16_f32 v{T}, v{T}, v{T+1}"); A(f"v_cvt_pk_bf16_f32 v{T+1}, v{T+2}, v{T+3}")
    A(f"v_lshlrev_b32 v{vA1}, 3, v0")
    A(f"ds_write_b64 v{vA1}, {r2(T)} offset:{QL}")
    for v in range(4): A(f"v_mov_b32 v{GT+4+v}, v{GT+v}")
    A("s_nop 1")
    for v in range(4): A(f"v_permlane16_swap_b32 v{GT+v}, v{GT+4+v}")
    A("s_nop 1")
    for v in range(4): A(f"v_add_f32 v{GT+v}, v{GT+v}, v{GT+4+v}")
    for v in range(4): bf16r(GT + v, GT + v)
    for v in range(4): A(f"v_mov_b32 v{GT+4+v}, v{GT+v}")
    A("s_nop 1")
    for v in range(4): A(f"v_permlane32_swap_b32 v{GT+v}, v{GT+4+v}")
    A("s_nop 1")
    for v in range(4): A(f"v_mul_f32 v{GT+8+v}, s{sLOG2E}, v{GT+v}")
    for v in range(4): A(f"v_exp_f32 v{GT+8+v}, -v{GT+8+v}")
    for v in range(4): A(f"v_add_f32 v{GT+8+v}, 1.0, v{GT+8+v}")
    for v in range(4): A(f"v_rcp_f32 v{GT+8+v}, v{GT+8+v}")
    for v in range(4): A(f"v_mul_f32 v{GT+v}, v{GT+v}, v{GT+8+v}")
    for v in range(4): bf16r(GT + v, GT + v)
    for v in range(4): A(f"v_mul_f32 v{GT+v}, v{GT+v}, v{GT+4+v}")
    for v in range(4): A(f"v_cvt_pk_bf16_f32 v{GT+v}, v{GT+v}, v{GT+v}")
    A("s_mov_b64 exec, 0xffff")
    A(f"ds_write_b128 v{vK}, {r4(GT)} offset:{HD}")
    A("s_mov_b64 exec, -1")
    A(f"v_mov_b32 v{SV+3}, 1")
    A("s_waitcnt lgkmcnt(0)")
    A(f"ds_write_b32 v{SV+4}, v{SV+3} offset:{QF}")
    stamp(5)
    late_addr(); tail_addr()
    A(f"s_lshl_b32 s{sT0}, s{sSL}, 6"); A(f"v_lshl_add_u32 v{SV+20}, v0, 2, s{sT0}")
    vm(LATE + [f"buffer_load_dword v{SV+21}, v{SV+20}, {srd(X)}, 0 offen"])
    A(f"v_and_b32 v{vA1}, 15, v0"); A(f"s_lshl_b32 s{sT1}, s{sHKV}, 4"); A(f"v_add_u32 v{SV+12}, s{sT1}, v{vA1}")
    A(f"v_mul_u32_u24 v{vA1}, {REC}, v{SV+12}")
    A(f"s_mul_i32 s{sT2}, s{sJ}, 80"); A(f"v_lshl_add_u32 v{vA2}, v{vT0}, 4, v{vA1}")
    A(f"s_mul_i32 s{sPC}, s2, {REC}")
    A(f"v_lshrrev_b32 v{vV}, 2, v0"); A(f"v_mul_u32_u24 v{vV}, 80, v{vV}"); A(f"v_and_b32 v{SV+1}, 3, v0"); A(f"v_lshl_add_u32 v{vV}, v{SV+1}, 4, v{vV}")
    A(f"v_mul_u32_u24 v{SV+1}, 80, v0")
    A("s_mov_b32 s0, 0x01010101"); A("s_mov_b32 s1, 0x01010101")
    A(f"v_lshl_add_u32 v{SV+14}, v0, 4, s{sJ}"); A(f"v_cmp_gt_u32 vcc, 36, v{SV+14}"); A(f"v_lshlrev_b32 v{SV+14}, 10, v{SV+14}")
    A(f"s_lshr_b32 s{sT0}, s{sHKV}, 1"); A(f"s_lshl_b32 s{sT0}, s{sT0}, 7"); A(f"s_and_b32 s{sT1}, s{sHKV}, 1"); A(f"s_lshl2_add_u32 s{sT0}, s{sT1}, s{sT0}")
    A(f"s_add_u32 s{sUO}, s{sT0}, {HINT}"); A(f"s_mov_b64 s[{sUS}:{sUS+1}], vcc")
    A(f"s_getreg_b32 s{sC3}, hwreg(HW_REG_XCC_ID)"); A(f"s_lshl_b32 s{sC3}, s{sC3}, 16")
    if warm:
        A(f"s_mov_b32 s{sWARM}, 1")
        A(f"s_mov_b32 s{sT0}, s{sUO}"); A(f"s_mov_b32 s{sT1}, s{sC2}"); A(f"s_mov_b32 s{sT3}, s{sCK}")
        A(f"s_mov_b32 s{sUO}, {HUGE}"); A(f"s_mov_b32 s{sC2}, {HUGE}"); A(f"s_mov_b32 s{sCK}, 0")
        A("s_branch L_goto")
        A("L_back:")
        A(f"s_mov_b32 s{sUO}, s{sT0}"); A(f"s_mov_b32 s{sC2}, s{sT1}"); A(f"s_mov_b32 s{sCK}, s{sT3}")
        A(f"s_mov_b32 s{sWARM}, 0")
    FW = 80
    A(f"v_and_b32 v{SV+2}, 15, v0"); A(f"v_lshlrev_b32 v{SV+3}, 2, v{SV+2}"); A(f"v_lshlrev_b32 v{SV+2}, 3, v{SV+2}")
    A(f"v_lshrrev_b32 v{SV}, 5, v0"); A(f"v_lshlrev_b32 v{SV}, 5, v{SV}")
    A("L_mlwait:")
    A(f"s_sleep {mlsleep}")
    A(f"ds_read_b64 {r2(SV+6)}, v{SV+2} offset:{MW}")
    A(f"s_add_u32 s{sSPIN}, s{sSPIN}, 1"); A(f"s_cmp_gt_u32 s{sSPIN}, {spin*16}")
    A("s_waitcnt lgkmcnt(0)")
    A(f"v_cmp_eq_u32 vcc, -1, v{SV+7}")
    A(f"v_max_f32_dpp v{SV+4}, v{SV+6}, v{SV+6} {STEPS[0]} {DPPF}")
    A("s_cbranch_scc1 L_mlgot")
    A("s_cbranch_vccnz L_mlwait")
    A("L_mlgot:")
    A("s_setprio 3")
    A(f"v_max_f32_dpp v{SV+4}, v{SV+4}, v{SV+4} {STEPS[1]} {DPPF}"); A("s_nop 1")
    A(f"v_max_f32_dpp v{SV+4}, v{SV+4}, v{SV+4} {STEPS[2]} {DPPF}")
    A(f"v_sub_f32 v{SV+6}, v{SV+6}, v{SV+4}"); A(f"v_mul_f32 v{SV+6}, s{sLOG2E}, v{SV+6}"); A(f"v_exp_f32 v{SV+6}, v{SV+6}"); A("s_nop 0")
    A(f"ds_write_b32 v{SV+3}, v{SV+6} offset:{FWL}")
    A(f"v_mul_f32 v{SV+5}, v{SV+7}, v{SV+6}")
    A(f"ds_read_b128 {r4(FW)}, v{SV} offset:{FWL}"); A(f"ds_read_b128 {r4(FW+4)}, v{SV} offset:{FWL+16}")
    for s_ in STEPS:
        A(f"v_add_f32_dpp v{SV+5}, v{SV+5}, v{SV+5} {s_} {DPPF}"); A("s_nop 1")
    A(f"v_mov_b32 v{SV+6}, s{sC3}")
    tag4(SV + 4)
    A(f"s_mov_b32 s{sT0}, 0"); A(f"s_add_u32 s{sT3}, s{sSPIN}, {tmo}")
    stamp(4)
    A("s_barrier")
    OT = 128
    for w in range(8):
        A(f"ds_read_b128 {r4(OT+4*w)}, v{vK} offset:{OS+w*1024}")
    A("s_mov_b64 exec, 0xffff")
    A(f"buffer_store_dwordx4 {r4(SV+4)}, v{SV+1}, {srd(WS)}, s{sPC} offen offset:64")
    A("s_mov_b64 exec, -1")
    for w in range(8):
        A(f"s_waitcnt lgkmcnt({7-w})")
        f = FW + (w & ~1); sel = w & 1
        for hlf in range(2):
            d = f"v[{OT+2*hlf}:{OT+2*hlf+1}]"; x = f"v[{OT+4*w+2*hlf}:{OT+4*w+2*hlf+1}]"
            if w == 0: A(f"v_pk_mul_f32 {d}, {x}, v[{f}:{f+1}] op_sel:[0,{sel}] op_sel_hi:[1,{sel}]")
            else: A(f"v_pk_fma_f32 {d}, {x}, v[{f}:{f+1}], {d} op_sel:[0,{sel},0] op_sel_hi:[1,{sel},1]")
    tag4(OT)
    A(f"buffer_store_dwordx4 {r4(OT)}, v{vV}, {srd(WS)}, s{sPC} offen")
    POLL = [f"buffer_load_dwordx4 {r4(PL)}, v{vA2}, {srd(WS)}, s{sT2} offen sc1",
            f"buffer_load_dwordx4 {r4(PL+4)}, v{vA1}, {srd(WS)}, s{sT2} offen offset:64 sc1"]
    for c in POLL: A(c)
    if nwb < 5: A("s_barrier")
    stamp(6)
    A(f"s_waitcnt vmcnt(4)")
    w2_mfmas()
    A("s_branch L_pollo1")
    def safe_o():
        A(f"s_mul_i32 s{sT1}, s2, 1280"); A(f"s_add_u32 s{sT1}, s{sT1}, s{sSF}"); A(f"s_add_u32 s{sT1}, s{sT1}, {SAFO}")
        A(f"buffer_store_dwordx4 {r4(OT)}, v{vV}, {srd(WS)}, s{sT1} offen sc1")
        A("s_mov_b64 exec, 0xffff")
        A(f"buffer_store_dwordx4 {r4(SV+4)}, v{SV+1}, {srd(WS)}, s{sT1} offen offset:64 sc1")
        A("s_mov_b64 exec, -1")
        A(f"s_mov_b32 s{sT0}, 1")
    m, l, M = PL + 4, PL + 5, TT + 1
    A("L_otmo:")
    A(f"s_cmp_lg_u32 s{sT0}, 0"); A("s_cbranch_scc1 L_goto")
    safe_p1("o")
    A("s_setprio 3")
    safe_o()
    A(f"v_mul_u32_u24 v{SV+12}, 1280, v{SV+12}"); A(f"v_lshl_add_u32 v{SV+13}, v{vT0}, 4, v{SV+12}")
    A(f"s_add_u32 s{sC1}, s{sT2}, s{sSF}"); A(f"s_add_u32 s{sC1}, s{sC1}, {SAFO}"); A(f"s_add_u32 s{sT3}, s{sSPIN}, {spin}")
    A("s_branch L_oswap")
    A("L_oretry:")
    A("s_cbranch_scc1 L_otmo")
    A(f"s_cmp_eq_u32 s{sT0}, 0"); A("s_cbranch_scc1 L_pollo")
    A("L_oswap:")
    A(f"v_swap_b32 v{vA1}, v{SV+12}"); A(f"v_swap_b32 v{vA2}, v{SV+13}")
    A(f"s_mov_b32 s{sT1}, s{sT2}"); A(f"s_mov_b32 s{sT2}, s{sC1}"); A(f"s_mov_b32 s{sC1}, s{sT1}")
    A("L_pollo:")
    for c in POLL: A(c)
    A("L_pollo1:")
    A(f"s_add_u32 s{sSPIN}, s{sSPIN}, 1"); A(f"s_cmp_gt_u32 s{sSPIN}, s{sT3}")
    A("s_waitcnt vmcnt(0)")
    rg = [PL + 4 + i for i in range(4)] + [PL + i for i in range(4)]
    untag_check(rg, rg, [vTAG] * 8, TT + 1)
    A(f"v_max_f32_dpp v{M}, v{m}, v{m} {STEPS[0]} {DPPF}")
    A("s_cbranch_vccnz L_oretry")
    A(f"v_cmp_ne_u32 vcc, s{sC3}, v{PL+6}")
    A("s_cbranch_vccz L_goto")
    A(f"s_cmp_lg_u32 s{sT0}, 0"); A("s_cbranch_scc1 L_goto")
    safe_o()
    A("L_goto:")
    if hint == "goto": A(f"s_mov_b64 exec, s[{sUS}:{sUS+1}]"); A(f"buffer_store_dword v{vTAG}, v{SV+14}, {srd(WS)}, s{sUO} offen sc1"); A("s_mov_b64 exec, -1")
    stamp(9)
    A(f"v_max_f32_dpp v{M}, v{M}, v{M} {STEPS[1]} {DPPF}"); A("s_nop 1")
    A(f"v_max_f32_dpp v{M}, v{M}, v{M} {STEPS[2]} {DPPF}")
    A(f"v_sub_f32 v{m}, v{m}, v{M}"); A(f"v_mul_f32 v{m}, s{sLOG2E}, v{m}"); A(f"v_exp_f32 v{m}, v{m}"); A("s_nop 0")
    A(f"v_mul_f32 v{l}, v{l}, v{m}")
    for v in range(4): A(f"v_mul_f32 v{PL+v}, v{PL+v}, v{m}")
    for s_ in STEPS:
        for r in (l, PL, PL + 1, PL + 2, PL + 3):
            A(f"v_add_f32_dpp v{r}, v{r}, v{r} {s_} {DPPF}")
        if s_ == STEPS[2]: pass
    A(f"v_rcp_f32 v{l}, v{l}"); A("s_mov_b64 exec, s[0:1]")
    for v in range(4): A(f"v_mul_f32 v{PL+v}, v{PL+v}, v{l}")
    for v in range(4): A(f"v_cvt_pk_bf16_f32 v{PL+v}, v{PL+v}, v{PL+v}")
    A(f"ds_write_b128 v{vT1}, {r4(PL)} offset:{ZL}")
    A("s_mov_b64 exec, -1")
    A("s_waitcnt lgkmcnt(0)")
    if hint == "z": A(f"s_mov_b64 exec, s[{sUS}:{sUS+1}]"); A(f"buffer_store_dword v{vTAG}, v{SV+14}, {srd(WS)}, s{sUO} offen sc1"); A("s_mov_b64 exec, -1")
    if warm: A(f"s_cmp_lg_u32 s{sWARM}, 0"); A("s_cbranch_scc1 L_nb5")
    A("s_barrier")
    A("L_nb5:")
    stamp(13)
    A(f"ds_read_b128 {r4(PL)}, v{vT1} offset:{ZL}")
    if hint == "b5": A(f"s_mov_b64 exec, s[{sUS}:{sUS+1}]"); A(f"buffer_store_dword v{vTAG}, v{SV+14}, {srd(WS)}, s{sUO} offen sc1"); A("s_mov_b64 exec, -1")
    A("s_waitcnt lgkmcnt(0)")

    A("s_branch L_tail")
    svc = L[svc0:]; del L[svc0:]
    A("L_tail:")
    for n in range(2):
        for rho in range(2):
            gemv_mfma(PL + 2 * n + rho, WL + 12 + 4 * n, D1 if rho == 0 else D2, False)
    A("s_nop 7")
    for v in range(4):
        A(f"v_add_f32_dpp v{D1+v}, v{D2+v}, v{D1+v} row_ror:8 {DPPF}")
    tag4(D1)
    A(f"s_mov_b64 exec, s[{sMASK}:{sMASK+1}]")
    A(f"buffer_store_dwordx4 {r4(D1)}, v{TT}, {srd(WS)}, s{sC2} offen sc1")
    A("s_mov_b64 exec, -1")
    stamp(10)
    if hint == "fp":
        A("s_cmp_lg_u32 s3, 8"); A("s_cbranch_scc1 L_nh")
        A(f"s_mov_b64 exec, s[{sUS}:{sUS+1}]"); A(f"buffer_store_dword v{vTAG}, v{SV+14}, {srd(WS)}, s{sUO} offen sc1"); A("s_mov_b64 exec, -1")
        A("L_nh:")
    if clean:
        A("s_cmp_lg_u32 s3, 8"); A("s_cbranch_scc1 L_nocl")
        if "o" in clean:
            A(f"buffer_store_dwordx4 {r4(128)}, v{vV}, {srd(WS)}, s{sPC} offen sc1")
            A("s_mov_b64 exec, 0xffff")
            A(f"buffer_store_dwordx4 {r4(SV+4)}, v{SV+1}, {srd(WS)}, s{sPC} offen offset:64 sc1")
        if "p" in clean:
            A(f"s_mov_b64 exec, s[{sPM}:{sPM+1}]")
            A(f"buffer_store_dwordx4 {r4(96)}, v100, {srd(WS)}, s{sPS} offen sc1")
        A("s_mov_b64 exec, -1")
        A("L_nocl:")
    A(f"s_cmp_lg_u32 s{sCK}, 0"); A("s_cbranch_scc1 L_fin")
    A("s_cmp_eq_u32 s3, 8"); A("s_cbranch_scc1 L_final")
    A(f"v_lshrrev_b32 v{TT}, 3, v0"); A(f"s_lshl_b32 s{sT0}, s3, 5"); A(f"v_add_u32 v{TT}, s{sT0}, v{TT}")
    A(f"v_mul_u32_u24 v{TT}, {REC}, v{TT}"); A(f"v_and_b32 v{TT+1}, 7, v0"); A(f"v_lshl_add_u32 v{TT}, v{TT+1}, 4, v{TT}")
    A(f"s_lshl_b32 s{sT0}, s{sSL}, 7"); A(f"s_add_u32 s{sT0}, s{sT0}, {FPO}")
    A(f"s_add_u32 s{sC1}, s{sT0}, {8*REC}"); A(f"s_add_u32 s{sC2}, s{sT0}, {16*REC}"); A(f"s_add_u32 s{sC3}, s{sT0}, {24*REC}")
    A(f"s_add_u32 s{sT3}, s{sSPIN}, {spin}")
    A(f"v_bfe_u32 v{TT+2}, v0, 3, 2"); A(f"v_lshlrev_b32 v{TT+2}, 2, v{TT+2}"); A(f"v_lshl_add_u32 v{TT+2}, v{TT+1}, 4, v{TT+2}")
    A(f"s_lshl_b32 s{sT1}, s3, 7"); A(f"v_add_u32 v{TT+2}, s{sT1}, v{TT+2}")
    SO = (sT0, sC1, sC2, sC3)
    if hint:
        A(f"s_lshl3_add_u32 s{sT1}, s{sSL}, s3"); A(f"s_lshl_b32 s{sT1}, s{sT1}, 7"); A(f"s_add_u32 s{sT1}, s{sT1}, {HINT}")
        if hsc:
            A(f"s_and_b32 s{sT2}, s{sEP}, s{sTM}")
            A("L_hint:")
            A(f"s_load_dwordx2 s[{sUS}:{sUS+1}], s[{WS}:{WS+1}], s{sT1} glc")
            A(f"s_add_u32 s{sSPIN}, s{sSPIN}, 1"); A(f"s_cmp_gt_u32 s{sSPIN}, s{sT3}"); A("s_cbranch_scc1 L_hok")
            A("s_waitcnt lgkmcnt(0)")
            A(f"s_cmp_lg_u32 s{sUS}, s{sT2}"); A("s_cbranch_scc1 L_hint")
            A(f"s_cmp_lg_u32 s{sUS+1}, s{sT2}"); A("s_cbranch_scc1 L_hint")
            A("L_hok:")
        else:
            A(f"v_mov_b32 v{TT+3}, 0")
            A("s_mov_b64 exec, 1")
            A("L_hint:")
            A(f"buffer_load_dwordx2 {r2(FC)}, v{TT+3}, {srd(WS)}, s{sT1} offen sc1")
            A(f"s_add_u32 s{sSPIN}, s{sSPIN}, 1"); A(f"s_cmp_gt_u32 s{sSPIN}, s{sT3}")
            A("s_waitcnt vmcnt(0)")
            A(f"v_xor_b32 v{FC}, v{vTAG}, v{FC}"); A(f"v_xor_b32 v{FC+1}, v{vTAG}, v{FC+1}"); A(f"v_or_b32 v{FC}, v{FC}, v{FC+1}")
            A(f"v_cmp_ne_u32 vcc, 0, v{FC}")
            A("s_cbranch_scc1 L_hok")
            A("s_cbranch_vccnz L_hint")
            A("L_hok:")
            A("s_mov_b64 exec, -1")
        stamp(7)
    if sel:
        FB = FC + 16
        for q in range(4): A(f"buffer_load_dwordx4 {r4(FB+4*q)}, v{TT}, {srd(WS)}, s{SO[q]} offen sc1")
        for hf in range(2):
            d = [FC + 8 * hf + i for i in range(8)]
            bufs = [FB + 8 * hf, FB + 16 + 8 * hf]
            def iss(bb):
                for q in range(2): A(f"buffer_load_dwordx4 {r4(bb+4*q)}, v{TT}, {srd(WS)}, s{SO[2*hf+q]} offen sc1")
            if hf == 0:
                A("s_waitcnt vmcnt(2)")
            else:
                A(f"s_waitcnt vmcnt(0)")
            untag_check(d, [bufs[0] + i for i in range(8)], [vTAG] * 8, TT + 1)
            A(f"s_cbranch_vccz L_h{hf}ok")
            iss(bufs[0])
            A(f"L_h{hf}:")
            for k in range(2):
                iss(bufs[1 - k])
                if k == 0: A(f"s_add_u32 s{sSPIN}, s{sSPIN}, 1"); A(f"s_cmp_gt_u32 s{sSPIN}, s{sT3}")
                A("s_waitcnt vmcnt(2)")
                untag_check(d, [bufs[k] + i for i in range(8)], [vTAG] * 8, TT + 1)
                if k == 0: A(f"s_cbranch_vccz L_h{hf}ok")
                else: A(f"s_cbranch_scc1 L_h{hf}ok"); A(f"s_cbranch_vccnz L_h{hf}")
            A(f"L_h{hf}ok:")
    else:
        FB = FC + 16
        def fpoll(k):
            for q in range(4): A(f"buffer_load_dwordx4 {r4(FB+16*k+4*q)}, v{TT}, {srd(WS)}, s{SO[q]} offen sc1")
        for k in range(npf - 1): fpoll(k)
        A("L_pollf:")
        for k in range(npf):
            fpoll((k + npf - 1) % npf)
            if k == 0: A(f"s_add_u32 s{sSPIN}, s{sSPIN}, 1"); A(f"s_cmp_gt_u32 s{sSPIN}, s{sT3}")
            A(f"s_waitcnt vmcnt({4*(npf-1)})")
            untag_check([FC + i for i in range(16)], [FB + 16 * k + i for i in range(16)], [vTAG] * 16, TT + 1)
            if k < npf - 1: A("s_cbranch_vccz L_gotf")
            else: A("s_cbranch_scc1 L_gotf"); A("s_cbranch_vccnz L_pollf")
    A("L_gotf:")
    stamp(9)
    for hlf in range(2):
        A(f"v_pk_add_f32 {r2(FC+2*hlf)}, {r2(FC+2*hlf)}, {r2(FC+4+2*hlf)}"); A(f"v_pk_add_f32 {r2(FC+8+2*hlf)}, {r2(FC+8+2*hlf)}, {r2(FC+12+2*hlf)}")
    for hlf in range(2):
        A(f"v_pk_add_f32 {r2(FC+2*hlf)}, {r2(FC+2*hlf)}, {r2(FC+8+2*hlf)}")
    a, b = FC + 4, FC + 5
    A("s_nop 0")
    A(f"v_add_f32_dpp v{a}, v{FC}, v{FC} row_ror:8 row_mask:0xf bank_mask:0x3")
    A(f"v_add_f32_dpp v{a}, v{FC+1}, v{FC+1} row_ror:8 row_mask:0xf bank_mask:0xc")
    A(f"v_add_f32_dpp v{b}, v{FC+2}, v{FC+2} row_ror:8 row_mask:0xf bank_mask:0x3")
    A(f"v_add_f32_dpp v{b}, v{FC+3}, v{FC+3} row_ror:8 row_mask:0xf bank_mask:0xc")
    A("s_nop 1")
    A(f"v_permlane16_swap_b32 v{a}, v{b}")
    A("s_nop 1")
    A(f"v_add_f32 v{a}, v{a}, v{b}")
    swap_red(a, b, "v_add_f32", "v_permlane32_swap_b32")
    A(f"ds_write_b32 v{TT+2}, v{a} offset:{FS}")
    A("s_waitcnt lgkmcnt(0)")
    A("s_barrier")
    A("s_branch L_fin")
    A("L_final:")
    if warm: A(f"s_cmp_lg_u32 s{sWARM}, 0"); A("s_cbranch_scc1 L_back")
    A(f"v_lshlrev_b32 v{TT}, 3, v0")
    A(f"v_lshlrev_b32 v{TT+2}, 16, v{SV+21}"); A(f"v_and_b32 v{TT+3}, 0xffff0000, v{SV+21}")
    A(f"v_mov_b32 v{TT+1}, s{sEP}"); A(f"v_mov_b32 v{SV}, {EP}")
    A(f"s_cmp_eq_u32 s2, 0"); A(f"s_cselect_b32 s{sT0}, 0, {HUGE}")
    A("s_mov_b64 exec, 0xffff")
    A("s_barrier")
    for w in range(8):
        A(f"ds_read_b64 {r2(80+2*w)}, v{TT} offset:{FS+128*w}")
    for w in range(8):
        A(f"s_waitcnt lgkmcnt({7-w})")
        A(f"v_pk_add_f32 {r2(TT+2)}, {r2(TT+2)}, {r2(80+2*w)}")
    A(f"v_cvt_pk_bf16_f32 v{TT+2}, v{TT+2}, v{TT+3}")
    A(f"buffer_store_dword v{TT+2}, v{SV+20}, {srd(OUT)}, 0 offen{outsc}")
    A("s_mov_b64 exec, 1")
    A(f"buffer_store_dword v{TT+1}, v{SV}, {srd(WS)}, s{sT0} offen sc1")
    if hold:
        A(f"s_add_u32 s100, s100, {hold}")
        A("L_hold:"); A("s_memrealtime s[98:99]"); A("s_waitcnt lgkmcnt(0)"); A("s_sub_u32 s98, s98, s100"); A("s_cmp_lt_i32 s98, 0"); A("s_cbranch_scc1 L_hold")
    A("L_fin:")
    if stamps:
        stamp(11)
        A("s_mov_b64 exec, -1")
        A("s_waitcnt vmcnt(0) lgkmcnt(0)")
        A(f"s_mul_i32 s{sT0}, s2, 9"); A(f"s_add_u32 s{sT0}, s{sT0}, s3"); A(f"s_lshl_b32 s{sT0}, s{sT0}, 7"); A(f"s_add_u32 s{sT0}, s{sT0}, {STAMP}")
        for i in range(14):
            A(f"v_mov_b32 v{104+2*i}, s{stamp_reg(i)}"); A(f"v_mov_b32 v{105+2*i}, s{stamp_reg(i)+1}")
        A(f"v_mov_b32 v132, s{sSPIN}")
        A("s_getreg_b32 s76, hwreg(HW_REG_XCC_ID)"); A("v_mov_b32 v133, s76"); A("v_mov_b32 v134, 0"); A("v_mov_b32 v135, 0")
        A("v_mov_b32 v100, 0")
        A("s_mov_b64 exec, 1")
        for i in range(8):
            A(f"buffer_store_dwordx4 {r4(104+4*i)}, v100, {srd(WS)}, s{sT0} offen offset:{16*i}")
    A("L_end:")
    A("s_endpgm")
    L.extend(svc)
    A(".p2align 6")
    A(".type L_tab,@object"); A(".size L_tab, 1024")
    A("L_tab:")
    tb = unit_table(split)
    for i in range(0, 256, 8): A(".long " + ", ".join(f"{x:#x}" for x in tb[i:i+8]))
    A('.section .rodata,"a"'); A(".p2align 6"); A(f".amdhsa_kernel {NAME}")
    A("  .amdhsa_next_free_vgpr 168"); A("  .amdhsa_next_free_sgpr 102"); A("  .amdhsa_accum_offset 168")
    A("  .amdhsa_group_segment_fixed_size 0"); A("  .amdhsa_kernarg_size 96"); A("  .amdhsa_user_sgpr_count 2")
    A("  .amdhsa_user_sgpr_kernarg_segment_ptr 1"); A("  .amdhsa_system_sgpr_workgroup_id_x 1")
    A(".end_amdhsa_kernel")
    return "\n".join(L) + "\n"


if __name__ == "__main__":
    kw = eval("dict(%s)" % (sys.argv[2] if len(sys.argv) > 2 else ""))
    open(sys.argv[1], "w").write(gen(**kw))
```

```python
import sys
NAME = "parallel_sum__sliding_block_cached__glu_gated_swiglu__decode_kernel"

HEADER = """; Fused decode step: out = x + Attn(LN(x)) + SwiGLU(LN(x)); one launch, 256 workgroups x 9 waves.
;
;
"""

OS = 0
S1 = 0
FS = 8192
QL = 9216
HD = QL + 512
MW = HD + 256
ZL = MW + 128
FWL = ZL + 128
TG = FWL + 64
QF = TG + 4
XN = 10368
assert QF + 4 <= XN
LDS_BYTES = XN + 4608
REC = 6144
FPO = 1536
EP = 1408
P1 = 3 << 19
P1B = 13312 * 4
P1P = 2 * P1B
HINT = (7 << 18) + (1 << 16)
STAMP = 2 << 20
SAFE = 4 << 20
SAFO = 1 << 18
WS_BYTES = 68 << 20
HUGE = 0x40000000
LOG2E = 0x3FB8AA3B
SCALE = 0x3DB504F3
TMASK = 0x3FF
STAMP_NAMES = ["start", "karg", "Bt/B0", "B1", "qgot", "sm", "Vend", "s7", "s8", "gotO", "FPst", "end", "x/B4", "B5"]

X, K, V, SU, WO, W2, OUT, WS = [4 + 4 * i for i in range(8)]
SRD_INFO = {X: (0, 2304), K: (2, 1 << 28), V: (4, 1 << 28), WO: (8, 4096 * 1152),
            W2: (16, 4608 * 1152), OUT: (18, 2304), WS: (22, WS_BYTES)}
sPS, sSP, sPM = 36, 37, 38
sSF = 40
sPC = 42
sU, sRB = 46, 47
sHKV, sJ, sB, sS, sSL, sCK = 48, 49, 50, 51, 52, 53
sT0, sT1, sT2, sT3 = 54, 55, 56, 57
sHASH = 58
sUO, sUS = 59, 60
sTB = 62
sLOG2E = 63
sSPIN = 64
sTM = 65
sC1, sC2, sC3 = 66, 67, 68
sEP = 69
sMASK = 70
sROW, sNSL = 74, 75
KA = 76
def stamp_reg(i): return {0: 100, 1: 72}.get(i, KA + 2 * (i - 2))

vK, vV, vA1, vA2 = 1, 2, 3, 4
MK = 5
vT0, vT1, vT2 = 9, 10, 11
A0, A1 = 12, 16
ACC, D1, D2 = 20, 24, 28
SR = 32
QB = 36
KR = 40
VR = 104
def kreg(t): return KR + 4 * t
def vreg(t): return VR + 4 * t
XA = 32
S1D = 132
WL = 40
PL = 60
HV = 68
vTAG = 74
vA3 = 75
TT = 76
vOS = 80
FC = 104
SV = 104


def r4(b): return f"v[{b}:{b+3}]"
def r2(b): return f"v[{b}:{b+1}]"
def srd(b): return f"s[{b}:{b+3}]"
DPPF = "row_mask:0xf bank_mask:0xf"
STEPS = ("quad_perm:[1,0,3,2]", "quad_perm:[2,3,0,1]", "row_half_mirror")


def unit_table(split):
    tab = []
    for hkv in range(16):
        ns = 4 + (hkv & 1); g0 = 9 * (hkv >> 1) + 4 * (hkv & 1)
        units = [4 * hkv + i for i in range(4)] + [64 + g0 + i for i in range(ns)] + [136 + g0 + i for i in range(ns)]
        cls = lambda u: (u - (0 if u < 64 else 64 if u < 136 else 136)) & 7
        nfree = 16 - len(units)
        order = sorted(units, key=lambda u: 0 if cls(u) == 3 else 1)
        nsp = {"c3": sum(cls(u) == 3 for u in units), "all": nfree, "none": 0}[split]
        assert nsp <= nfree
        sp = order[:nsp]
        ent = []
        for u in units:
            if u in sp: ent.append(u | (0x01f << 8))
            else: ent.append(u | (0x1ff << 8) | (1 << 18))
        for u in sp: ent.append(u | (0x1e0 << 8) | (1 << 17))
        while len(ent) < 16: ent.append(255)
        tab += ent[0::2] + ent[1::2]
    return tab


def gen(depth=4, b2=11, pre=2, nwb=2, stamps=False, pol=" nt", spin=100000, mlsleep=4, tmo=40, gtmo=12, split="all",
        xg=True, dry=False, psel=0, usehint=True, hat='fp', hsc=True, npf=1):
    L = []
    A = L.append

    def stamp(i):
        if stamps:
            r = stamp_reg(i)
            A(f"s_memrealtime s[{r}:{r+1}]")

    def srd_const(d):
        A(f"s_mov_b32 s{d+2}, {SRD_INFO[d][1]}"); A(f"s_mov_b32 s{d+3}, 0x00020000")

    def srd_ptr(d):
        o = KA + SRD_INFO[d][0]
        A(f"s_mov_b64 s[{d}:{d+1}], s[{o}:{o+1}]")

    def consts():
        A(f"s_mov_b32 s{sLOG2E}, {LOG2E:#x}"); A(f"s_mov_b32 s{sSPIN}, 0"); A(f"s_movk_i32 s{sTM}, {TMASK:#x}")
        A(f"s_mov_b32 s{sMASK}, 0x00ff00ff"); A(f"s_mov_b32 s{sMASK+1}, 0x00ff00ff")
        A(f"s_mul_i32 s{sSL}, s2, 9363"); A(f"s_lshr_b32 s{sSL}, s{sSL}, 16")
        A(f"s_mul_i32 s{sT0}, s{sSL}, 7"); A(f"s_sub_u32 s{sCK}, s2, s{sT0}")
        A("s_cmp_ge_u32 s2, 252"); A(f"s_cselect_b32 s{sCK}, 1, s{sCK}")

    def masks(tmp):
        A(f"v_and_b32 v{vT2}, 1, v0"); A(f"v_lshlrev_b32 v{vT2}, 4, v{vT2}")
        A(f"v_mov_b32 v{MK}, 0xffff"); A(f"v_lshlrev_b32 v{vT2}, v{vT2}, v{MK}")
        A(f"v_bfe_u32 v{tmp}, v0, 1, 2")
        for j in range(4):
            A(f"v_cmp_eq_u32 vcc, {j}, v{tmp}"); A("s_nop 1"); A(f"v_cndmask_b32 v{MK+j}, 0, v{vT2}, vcc")

    def table_load(tag):
        A(f"s_getpc_b64 s[{sPC}:{sPC+1}]")
        A(f"L_pc{tag}:")
        A(f"s_lshl_b32 s{sPC+2}, s2, 2"); A(f"s_add_u32 s{sPC+2}, s{sPC+2}, L_tab-L_pc{tag}")
        A(f"s_load_dword s{sTB}, s[{sPC}:{sPC+1}], s{sPC+2}")

    def group_ids():
        A(f"s_and_b32 s{sT0}, s{sHKV}, 1"); A(f"s_add_u32 s{sNSL}, s{sT0}, 4")
        A(f"s_lshr_b32 s{sT1}, s{sHKV}, 1"); A(f"s_mul_i32 s{sT1}, s{sT1}, 9"); A(f"s_lshl2_add_u32 s{sT1}, s{sT0}, s{sT1}")
        A(f"s_mul_i32 s{sROW}, s{sNSL}, s{sJ}"); A(f"s_lshl4_add_u32 s{sROW}, s{sT1}, s{sROW}"); A(f"s_lshl_b32 s{sROW}, s{sROW}, 2")

    def tag4(r):
        for v in range(4): A(f"v_bfi_b32 v{r+v}, s{sTM}, v{vTAG}, v{r+v}")

    def untag_check(dst, src, tags, acc):
        for d, r, t in zip(dst, src, tags): A(f"v_xor_b32 v{d}, v{t}, v{r}")
        A(f"v_or3_b32 v{acc}, v{dst[0]}, v{dst[1]}, v{dst[2]}")
        rest = dst[3:]
        while len(rest) >= 2:
            A(f"v_or3_b32 v{acc}, v{acc}, v{rest[0]}, v{rest[1]}"); rest = rest[2:]
        if rest: A(f"v_or_b32 v{acc}, v{acc}, v{rest[0]}")
        A(f"v_and_b32 v{acc}, s{sTM}, v{acc}")
        A(f"v_cmp_ne_u32 vcc, 0, v{acc}")

    def bf16r(dst, src):
        A(f"v_cvt_pk_bf16_f32 v{dst}, v{src}, v{src}"); A(f"v_and_b32 v{dst}, 0xffff0000, v{dst}")

    def swap_red(r, t, op, sw):
        A(f"v_mov_b32 v{t}, v{r}"); A("s_nop 1"); A(f"{sw} v{r}, v{t}"); A("s_nop 1"); A(f"{op} v{r}, v{r}, v{t}")

    def allred32(r, t, op="v_add_f32"):
        for n in (1, 2, 4, 8):
            A("s_nop 1"); A(f"{op}_dpp v{r}, v{r}, v{r} row_ror:{n} {DPPF}")
        swap_red(r, t, op, "v_permlane16_swap_b32")

    def allred_banks_rows(r, t, op):
        for n in (4, 8):
            A("s_nop 1"); A(f"{op}_dpp v{r}, v{r}, v{r} row_ror:{n} {DPPF}")
        swap_red(r, t, op, "v_permlane16_swap_b32"); swap_red(r, t, op, "v_permlane32_swap_b32")

    aflip = [0]
    def gemv_mfma(val, data, acc, first):
        a = A0 if aflip[0] == 0 else A1
        aflip[0] ^= 1
        for j in range(4):
            A(f"v_and_b32 v{a+j}, v{val}, v{MK+j}")
        A("s_nop 1")
        A(f"v_mfma_f32_16x16x32_bf16 {r4(acc)}, {r4(a)}, {r4(data)}, {'0' if first else r4(acc)}")

    def w2_mfmas():
        for n in range(3):
            for rho in range(2):
                gemv_mfma(HV + 2 * n + rho, WL + 4 * n, D1 if rho == 0 else D2, n == 0)

    LATE = [f"buffer_load_dwordx4 {r4(WL)}, v{vA2}, {srd(W2)}, 0 offen{pol}",
            f"buffer_load_dwordx4 {r4(WL+4)}, v{vA2}, {srd(W2)}, s{sC1} offen{pol}",
            f"buffer_load_dwordx4 {r4(WL+8)}, v{vA3}, {srd(W2)}, 0 offen{pol}",
            f"buffer_load_dwordx4 {r4(WL+12)}, v{vA1}, {srd(WO)}, 0 offen{pol}",
            f"buffer_load_dwordx4 {r4(WL+16)}, v{vA1}, {srd(WO)}, 0 offen offset:2304{pol}"]

    def late_addr():
        A(f"v_bfe_u32 v{vT2}, v0, 3, 1")
        A(f"v_lshl_add_u32 v{vA1}, v{vT0}, 2, v{vT2}")
        A(f"s_lshl_b32 s{sT1}, s2, 4"); A(f"v_add_u32 v{vA1}, s{sT1}, v{vA1}")
        A(f"v_mul_u32_u24 v{vA1}, 1152, v{vA1}")
        A(f"v_lshl_add_u32 v{vA2}, v{vT0}, 1, v{vT2}")
        A(f"v_add_u32 v{vA2}, s{sROW}, v{vA2}")
        A(f"v_mul_u32_u24 v{vA2}, 1152, v{vA2}")
        A(f"v_and_b32 v{vT2}, 7, v0"); A(f"v_lshlrev_b32 v{vT2}, 4, v{vT2}")
        A(f"s_lshl_b32 s{sT1}, s3, 7"); A(f"v_add_u32 v{vT2}, s{sT1}, v{vT2}")
        A(f"v_add_u32 v{vA1}, v{vA1}, v{vT2}"); A(f"v_add_u32 v{vA2}, v{vA2}, v{vT2}")
        A(f"s_movk_i32 s{sC1}, 9216")

    def tail_addr():
        A(f"s_sub_u32 s{sT1}, s{sNSL}, 4"); A(f"s_lshl_b32 s{sT1}, s{sT1}, 1")
        A(f"v_add_u32 v{vA3}, {16*1152}, v{vA2}")
        A(f"v_cmp_gt_u32 vcc, s{sT1}, v{vT0}"); A(f"v_mov_b32 v{TT}, {HUGE}"); A("s_nop 0")
        A(f"v_cndmask_b32 v{vA3}, v{TT}, v{vA3}, vcc")
        A(f"v_lshrrev_b32 v{TT}, 1, v{vT0}"); A(f"v_mul_u32_u24 v{TT}, 2304, v{TT}")
        A(f"v_and_b32 v{TT+1}, 7, v0"); A(f"v_lshl_add_u32 v{TT}, v{TT+1}, 5, v{TT}")
        A(f"v_and_b32 v{TT+1}, 1, v{vT0}"); A(f"v_lshl_add_u32 v{TT}, v{TT+1}, 4, v{TT}")
        A(f"s_mul_i32 s{sC2}, s2, {REC}"); A(f"s_lshl_b32 s{sT1}, s3, 8"); A(f"s_add_u32 s{sC2}, s{sC2}, s{sT1}"); A(f"s_add_u32 s{sC2}, s{sC2}, {FPO}")
        A(f"v_bfe_u32 v{TT+1}, v0, 3, 1"); A(f"v_lshlrev_b32 v{TT+1}, 7, v{TT+1}"); A(f"v_lshl_add_u32 v{TT+1}, v{vT0}, 3, v{TT+1}")
        for i in range(3):
            A(f"ds_read_b64 {r2(HV+2*i)}, v{TT+1} offset:{HD+32*i}")
        A(f"v_lshrrev_b32 v{vT1}, 3, v0"); A(f"v_lshlrev_b32 v{vT1}, 4, v{vT1}")
        A(f"s_and_b32 s{sT1}, s{sEP}, s{sTM}"); A(f"v_mov_b32 v{vTAG}, s{sT1}")

    A(HEADER.rstrip("\n"))
    A(f"; @launch grid=(256,1,1) block=(576,1,1) lds={LDS_BYTES}")
    A('.amdgcn_target "amdgcn-amd-amdhsa--gfx950"')
    A(".text"); A(f".globl {NAME}"); A(".p2align 8"); A(f".type {NAME},@function"); A(f"{NAME}:")
    stamp(0)
    A(f"s_load_dwordx16 s[{KA}:{KA+15}], s[0:1], 0")
    A(f"s_load_dwordx8 s[{KA+16}:{KA+23}], s[0:1], 64")
    A("v_lshrrev_b32 v1, 6, v0")
    A("s_cmp_ge_u32 s2, 256"); A("s_cbranch_scc1 L_end")
    A("v_readfirstlane_b32 s3, v1")
    A("v_and_b32 v0, 63, v0")
    if xg:
        A(f"s_and_b32 s{sT0}, s2, 7"); A(f"s_lshl_b32 s{sT0}, s{sT0}, 5"); A("s_lshr_b32 s2, s2, 3"); A(f"s_add_u32 s2, s2, s{sT0}")
    A(f"s_lshr_b32 s{sHKV}, s2, 4"); A(f"s_and_b32 s{sJ}, s2, 15"); A(f"s_lshr_b32 s{sB}, s{sJ}, 3"); A(f"s_and_b32 s{sS}, s2, 7")
    A(f"v_lshrrev_b32 v{vT0}, 4, v0")
    A("s_cmp_eq_u32 s3, 8"); A("s_cbranch_scc1 L_service")

    srd_const(K)
    A(f"s_lshl4_add_u32 s{sT0}, s{sB}, s{sHKV}"); A(f"s_lshl_b32 s{sT0}, s{sT0}, 6"); A(f"s_add_u32 s{sT0}, s{sT0}, s{sS}")
    A(f"s_lshl_b32 s{sT0}, s{sT0}, 7"); A(f"s_add_u32 s{sT0}, s{sT0}, s3"); A(f"s_addk_i32 s{sT0}, {7 << 10}"); A(f"s_lshl_b32 s{sT2}, s{sT0}, 10")
    A(f"v_and_b32 v{vK}, 3, v0"); A(f"v_lshl_add_u32 v{vK}, v{vK}, 4, s{sT2}")
    A(f"v_bfe_u32 v{vT1}, v0, 2, 2"); A(f"v_lshl_add_u32 v{vK}, v{vT1}, 8, v{vK}")
    A(f"v_lshl_add_u32 v{vK}, v{vT0}, 6, v{vK}")
    A(f"s_lshl3_add_u32 s{sT0}, s2, s3"); A(f"s_mul_i32 s{sHASH}, s{sT0}, 0x9E3779B1")
    A(f"s_bfe_u32 s{sHASH}, s{sHASH}, 0x40018"); A(f"s_lshl_b32 s{sHASH}, s{sHASH}, 13")
    A("s_waitcnt lgkmcnt(0)")
    stamp(1)
    srd_ptr(K)

    def kvld(nm, t, reg, va, sr):
        return (f"{nm}{t}", [f"s_xor_b32 s{sT0}, s{sHASH}, {t << 13}", f"buffer_load_dwordx4 {r4(reg)}, v{va}, {srd(sr)}, s{sT0} offen{pol}"])
    loads = [kvld("K", t, kreg(t), vK, K) for t in range(pre)]
    for k in range(9):
        c = [f"s_bitcmp1_b32 s{sTB}, {8+k}", f"s_cselect_b32 s{sT0}, s{sUO}, {HUGE}",
             f"buffer_load_dwordx4 {r4(S1D+4*k)}, v{vA1}, {srd(SU)}, s{sT0} offen{pol}"]
        if k < 8: c.append(f"s_add_u32 s{sUO}, s{sUO}, s{sUS}")
        loads.append((f"U{k}", c))
    loads += [kvld("K", t, kreg(t), vK, K) for t in range(pre, 16)]
    loads += [kvld("V", t, vreg(t), vV, V) for t in range(16)]
    loads += [(f"W{i}", [LATE[i]]) for i in range(5 if dry else nwb)]
    names = [n for n, _ in loads]

    def rest_of_prologue():
        A(f"v_lshl_add_u32 v{vV}, v0, 4, s{sT2}")
        for d in (V, WO, W2, WS): srd_const(d); srd_ptr(d)
        consts()
        group_ids()
        masks(vT1)
        A(f"v_bfe_u32 v{vT2}, v0, 3, 1"); A(f"s_lshl_b32 s{sT1}, s3, 3")
        A(f"v_lshl_add_u32 v{vA1}, v{vT0}, 1, s{sT1}")
        A(f"v_mul_u32_u24 v{vA2}, 2304, v{vT2}"); A(f"v_lshl_add_u32 v{vA2}, v{vA1}, 2, v{vA2}")
        A(f"v_add_u32 v{vA1}, v{vA1}, v{vT2}")
        A(f"v_and_b32 v{vT1}, 7, v0"); A(f"v_lshlrev_b32 v{vT1}, 4, v{vT1}")
        A(f"s_mov_b32 s{SU+3}, 0x00020000")
        A("s_waitcnt lgkmcnt(0)")
        A(f"s_and_b32 s{sU}, s{sTB}, 255")
        A(f"s_cmp_lt_u32 s{sU}, 136")
        A(f"s_cselect_b64 s[{SU}:{SU+1}], s[{KA+12}:{KA+13}], s[{KA+14}:{KA+15}]"); A(f"s_cselect_b32 s{sT1}, 64, 136")
        A(f"s_cmp_lt_u32 s{sU}, 64")
        A(f"s_cselect_b64 s[{SU}:{SU+1}], s[{KA+6}:{KA+7}], s[{SU}:{SU+1}]"); A(f"s_cselect_b32 s{sT1}, 0, s{sT1}")
        A(f"s_movk_i32 s{sRB}, 9216"); A(f"s_cselect_b32 s{sRB}, 8192, s{sRB}")
        A(f"s_mul_i32 s{SU+2}, s{sRB}, 576")
        A(f"s_sub_u32 s{sUO}, s{sU}, s{sT1}"); A(f"s_lshl_b32 s{sUO}, s{sUO}, 7"); A(f"s_lshl_b32 s{sUS}, s{sRB}, 6")
        A(f"v_mad_u32_u24 v{vA1}, v{vA1}, s{sRB}, v{vT1}")
        stamp(2)

    def qk_block():
        A(f"v_bfe_u32 v{vT2}, v0, 1, 1"); A(f"v_lshlrev_b32 v{vT2}, 8, v{vT2}"); A(f"v_lshl_add_u32 v{vT2}, v{vT0}, 6, v{vT2}")
        A(f"v_bfe_u32 v{vT1}, v0, 2, 2"); A(f"v_lshl_add_u32 v{vT2}, v{vT1}, 4, v{vT2}")
        A(f"v_mov_b32 v{vT1}, 0")
        stamp(7)
        A("s_branch L_qwait1")
        A("L_qwait:")
        A("s_sleep 2")
        A("L_qwait1:")
        A(f"ds_read_b32 v{SR}, v{vT1} offset:{QF}")
        A(f"ds_read_b128 {r4(QB)}, v{vT2} offset:{QL}")
        A(f"s_add_u32 s{sSPIN}, s{sSPIN}, 1"); A(f"s_cmp_gt_u32 s{sSPIN}, {spin*16}")
        A("s_waitcnt lgkmcnt(0)")
        A(f"v_cmp_eq_u32 vcc, 0, v{SR}")
        A("s_cbranch_scc1 L_qgot")
        A("s_cbranch_vccnz L_qwait")
        A("L_qgot:")
        stamp(4)
        Ds = [A0, A1, D1, D2]
        def mf(t): A(f"v_mfma_f32_16x16x32_bf16 {r4(Ds[t%4])}, {r4(kreg(t))}, {r4(QB)}, 0")
        def ops(t):
            b = t & 3; S = SR + (t >> 2); D = Ds[t % 4]; bm = f"row_mask:0xf bank_mask:{1<<b:#x}"
            A(f"v_add_f32_dpp v{S}, v{D+((b+1)&3)}, v{D+b} row_ror:12 {bm}")
            A(f"v_add_f32_dpp v{S}, v{D+((b+2)&3)}, v{S} row_ror:8 {bm}")
            A(f"v_add_f32_dpp v{S}, v{D+((b+3)&3)}, v{S} row_ror:4 {bm}")
        for t in range(4): mf(t)
        A("s_nop 4")
        for t in range(16):
            ops(t)
            if t + 4 < 16: mf(t + 4)
            elif t < 15: A("s_nop 0")
        for p in (0, 2):
            a, b = SR + p, SR + p + 1
            A(f"v_cvt_pk_bf16_f32 v{b}, v{a}, v{b}"); A(f"v_lshlrev_b32 v{a}, 16, v{b}"); A(f"v_and_b32 v{b}, 0xffff0000, v{b}")
            A(f"v_mul_f32 v{a}, {SCALE:#x}, v{a}"); A(f"v_mul_f32 v{b}, {SCALE:#x}, v{b}")
            A(f"v_cvt_pk_bf16_f32 v{b}, v{a}, v{b}"); A(f"v_lshlrev_b32 v{a}, 16, v{b}"); A(f"v_and_b32 v{b}, 0xffff0000, v{b}")
        m = D1; l = D1 + 1
        A(f"v_max3_f32 v{m}, v{SR}, v{SR+1}, v{SR+2}"); A(f"v_max_f32 v{m}, v{m}, v{SR+3}")
        allred_banks_rows(m, D2, "v_max_f32")
        A(f"v_mul_f32 v{vT2}, s{sLOG2E}, v{m}")
        for T in range(4): A(f"v_fma_f32 v{SR+T}, v{SR+T}, s{sLOG2E}, -v{vT2}")
        for T in range(4): A(f"v_exp_f32 v{SR+T}, v{SR+T}")
        A(f"s_lshl_b32 s{sT1}, s3, 3"); A(f"v_lshl_add_u32 v{QB}, v0, 5, s{sT1}")
        A(f"v_add_f32 v{l}, v{SR}, v{SR+1}"); A(f"v_add_f32 v{D2}, v{SR+2}, v{SR+3}"); A(f"v_add_f32 v{l}, v{l}, v{D2}")
        allred_banks_rows(l, D2, "v_add_f32")
        A("s_mov_b64 exec, 5")
        A(f"ds_write_b64 v{QB}, {r2(m)} offset:{MW}")
        A("s_mov_b64 exec, -1")
        for j in range(8): A(f"v_mov_b32 v{A0+j}, 0")
        A(f"v_and_b32 v{D2}, 1, v0"); A(f"v_lshlrev_b32 v{D2}, 4, v{D2}"); A(f"v_mov_b32 v{D2+1}, 0xffff"); A(f"v_lshlrev_b32 v{D2}, v{D2}, v{D2+1}")
        for T in range(4): A(f"v_cvt_pk_bf16_f32 v{SR+T}, v{SR+T}, v{SR+T}")
        for T in range(4): A(f"v_and_b32 v{SR+T}, v{SR+T}, v{D2}")
        A(f"v_and_b32 v{vOS}, 15, v0"); A(f"v_lshlrev_b32 v{vOS}, 5, v{vOS}"); A(f"v_lshl_add_u32 v{vOS}, v{vT0}, 3, v{vOS}")
        A(f"s_lshl_b32 s{sT1}, s3, 10"); A(f"v_add_u32 v{vOS}, s{sT1}, v{vOS}")
        tail_addr()
        stamp(5)

    def pv(t):
        b = t & 3; P = SR + (t >> 2); a = A0 if t % 2 == 0 else A1
        for j in range(4):
            n = (4 * (j - b)) % 16
            ctl = "quad_perm:[0,1,2,3]" if n == 0 else f"row_ror:{n}"
            A(f"v_mov_b32_dpp v{a+j}, v{P} {ctl} row_mask:0xf bank_mask:{1<<j:#x}")
        A("s_nop 1")
        A(f"v_mfma_f32_16x16x32_bf16 {r4(ACC)}, {r4(a)}, {r4(vreg(t))}, {'0' if t == 0 else r4(ACC)}")

    state = {"qk": False, "pv": 0}

    def on_landed(nm):
        if dry:
            if nm == "U8": stamp(3); late_addr()
            if nm == "V0": tail_addr()
            return
        if nm[0] == "U":
            k = int(nm[1])
            if k == 0:
                A("s_barrier")
                for i in range(4): A(f"ds_read_b64 {r2(XA+2*i)}, v{vA2} offset:{XN+256*i}")
            A(f"s_waitcnt lgkmcnt({min(k+4, 9) - k - 1})")
            x = XA + 2 * (k % 4)
            gemv_mfma(x, S1D + 4 * k, D1, k == 0)
            gemv_mfma(x + 1, S1D + 4 * k, D2, k == 0)
            if k + 4 < 9: A(f"ds_read_b64 {r2(x)}, v{vA2} offset:{XN+256*(k+4)}")
            if k == 8:
                A(f"v_and_b32 v{vT1}, 7, v0"); A(f"v_lshl_add_u32 v{vT1}, v{vT0}, 3, v{vT1}"); A(f"s_lshl_b32 s{sT1}, s3, 9")
                A(f"v_lshl_add_u32 v{vT1}, v{vT1}, 4, s{sT1}")
                A(f"v_mov_b32 v{vT2}, 0"); A(f"ds_read_b32 v{vT2}, v{vT2} offset:{TG}")
                A("s_nop 1")
                for v in range(4): A(f"v_add_f32_dpp v{D1+v}, v{D2+v}, v{D1+v} row_ror:8 {DPPF}")
                A(f"s_mov_b64 exec, s[{sMASK}:{sMASK+1}]")
                A(f"ds_write_b128 v{vT1}, {r4(D1)} offset:{S1}")
                A("s_mov_b64 exec, -1")
                A("s_waitcnt lgkmcnt(0)"); A("s_barrier")
                stamp(3)
                A(f"v_readfirstlane_b32 s{sEP}, v{vT2}")
                late_addr()
        elif nm[0] in "VW" and state["qk"]:
            t = max(int(n[1:]) for n in names[:names.index(nm)+1] if n[0] == "V")
            while state["pv"] <= t:
                pv(state["pv"]); state["pv"] += 1

    N = len(loads)
    landed = -1
    ib2 = names.index(f"V{b2}")
    assert pre >= 2 and names.index("U8") + depth < names.index("V7") and ib2 - depth >= names.index("K15")
    for i, (nm, code) in enumerate(loads):
        if nm == "U0": rest_of_prologue()
        if i == 1: table_load("a")
        for c in code: A(c)
        if i >= depth:
            A(f"s_waitcnt vmcnt({depth})")
            landed = i - depth
            on_landed(names[landed])
        if i == ib2:
            if dry: stamp(7)
            else: qk_block()
            state["qk"] = True
    def drain(extra):
        ld = landed
        while ld < names.index("V15"):
            ld += 1
            A(f"s_waitcnt vmcnt({N-1-ld+extra})")
            on_landed(names[ld])
    def slot_b4():
        A("s_nop 7")
        A(f"ds_write2st64_b64 v{vOS}, {r2(ACC)}, {r2(ACC+2)} offset0:{OS//512} offset1:{OS//512+1}")
        A("s_waitcnt lgkmcnt(0)")
        A("s_barrier")
        stamp(12)
        if nwb < 5: A("s_barrier")
    drain(0)
    stamp(6)
    if dry:
        A("s_waitcnt vmcnt(0)"); stamp(8); A("s_branch L_fin")
    slot_b4()
    for c in LATE[nwb:]: A(c)
    A("s_waitcnt vmcnt(2)")
    w2_mfmas()
    A("s_waitcnt vmcnt(0)")
    stamp(8)
    A("s_barrier")
    A(f"ds_read_b128 {r4(PL)}, v{vT1} offset:{ZL}")
    A("s_waitcnt lgkmcnt(0)")

    svc0 = len(L)
    A("L_service:")
    if dry: A("s_endpgm")
    def vm(ins):
        A("s_setprio 3")
        for x in ins: A(x)
        A("s_setprio 0")
    XS = SV + 8
    PA, PD, TG0 = 100, 96, 63
    srd_const(X); srd_const(WS)
    A(f"v_lshrrev_b32 v{vA1}, 5, v0"); A(f"v_mul_u32_u24 v{vA2}, 1152, v{vA1}")
    A(f"v_and_b32 v{vT2}, 31, v0"); A(f"v_mad_u32_u24 v{vA2}, v{vT2}, 36, v{vA2}")
    A("s_setprio 3")
    A("s_waitcnt lgkmcnt(0)")
    stamp(1)
    srd_ptr(X)
    A(f"buffer_load_dwordx4 {r4(XS)}, v{vA2}, {srd(X)}, 0 offen")
    A(f"buffer_load_dwordx4 {r4(XS+4)}, v{vA2}, {srd(X)}, 0 offen offset:16")
    A(f"buffer_load_dword v{XS+8}, v{vA2}, {srd(X)}, 0 offen offset:32")
    A("s_setprio 0")
    srd_ptr(WS)
    A(f"s_load_dword s{sEP}, s[{WS}:{WS+1}], {EP}")
    table_load("b")
    A(f"v_lshlrev_b32 v{vK}, 4, v0")
    A(f"v_mov_b32 v{SV+4}, 0"); A(f"v_lshlrev_b32 v{SV+5}, 2, v0")
    A(f"ds_write_b32 v{SV+4}, v{SV+4} offset:{QF}")
    A(f"v_mov_b32 v{SV+6}, -1"); A(f"v_and_b32 v{SV+5}, 124, v{SV+5}"); A(f"ds_write_b32 v{SV+5}, v{SV+6} offset:{MW}")
    for d in (WO, W2, OUT): srd_const(d); srd_ptr(d)
    consts()
    group_ids()
    masks(SV + 5)
    A(f"v_lshlrev_b32 v{vA2}, 1, v{vA2}")
    U = 12
    A("s_waitcnt vmcnt(0)")
    stamp(12)
    for i in range(9):
        A(f"v_lshlrev_b32 v{U+2*i}, 16, v{XS+i}"); A(f"v_and_b32 v{U+2*i+1}, 0xffff0000, v{XS+i}")
    s = XS
    A(f"v_add_f32 v{s}, v{U}, v{U+1}"); A(f"v_add_f32 v{s+1}, v{U+2}, v{U+3}")
    for i in range(4, 18, 2):
        A(f"v_add_f32 v{s}, v{s}, v{U+i}"); A(f"v_add_f32 v{s+1}, v{s+1}, v{U+i+1}")
    A(f"v_add_f32 v{s}, v{s}, v{s+1}")
    allred32(s, s + 1)
    A(f"v_mul_f32 v{s}, {0x3AE38E39:#x}, v{s}")
    W = 40
    for i in range(18):
        A(f"v_sub_f32 v{W+i}, v{U+i}, v{s}")
    A(f"v_mul_f32 v{s+2}, v{W}, v{W}"); A(f"v_mul_f32 v{s+3}, v{W+1}, v{W+1}")
    for i in range(2, 18, 2):
        A(f"v_fmac_f32 v{s+2}, v{W+i}, v{W+i}"); A(f"v_fmac_f32 v{s+3}, v{W+i+1}, v{W+i+1}")
    A(f"v_add_f32 v{s+2}, v{s+2}, v{s+3}")
    allred32(s + 2, s + 3)
    A(f"v_mul_f32 v{s+2}, {0x3AE38E39:#x}, v{s+2}")
    bf16r(s + 2, s + 2)
    A(f"v_add_f32 v{s+2}, {0x3727C5AC:#x}, v{s+2}")
    bf16r(s + 2, s + 2)
    A(f"v_sqrt_f32 v{s+2}, v{s+2}")
    bf16r(s, s)
    bf16r(s + 2, s + 2)
    A(f"v_rcp_f32 v{s+2}, v{s+2}")
    for i in range(18):
        A(f"v_sub_f32 v{U+i}, v{U+i}, v{s}")
    for i in range(0, 18, 2):
        A(f"v_cvt_pk_bf16_f32 v{U+i+1}, v{U+i}, v{U+i+1}"); A(f"v_lshlrev_b32 v{U+i}, 16, v{U+i+1}"); A(f"v_and_b32 v{U+i+1}, 0xffff0000, v{U+i+1}")
        A(f"v_mul_f32 v{U+i}, v{U+i}, v{s+2}"); A(f"v_mul_f32 v{U+i+1}, v{U+i+1}, v{s+2}")
        A(f"v_cvt_pk_bf16_f32 v{U+i}, v{U+i}, v{U+i}"); A(f"v_cvt_pk_bf16_f32 v{U+i+1}, v{U+i+1}, v{U+i+1}")
        A(f"ds_write_b64 v{vA2}, {r2(U+i)} offset:{XN+4*i}")
    A("s_waitcnt lgkmcnt(0)")
    A(f"s_add_u32 s{sEP}, s{sEP}, 1")
    A(f"v_mov_b32 v{vTAG}, s{sEP}")
    A(f"ds_write_b32 v{SV+4}, v{vTAG} offset:{TG}")
    A("s_waitcnt lgkmcnt(0)")
    A("s_barrier")
    stamp(2)
    A(f"s_and_b32 s{sT0}, s{sEP}, s{sTM}"); A(f"v_mov_b32 v{vTAG}, s{sT0}")
    A(f"s_bfe_u32 s{sSF}, s{sEP}, 0x6000a"); A(f"s_lshl_b32 s{sSF}, s{sSF}, 20"); A(f"s_add_u32 s{sSF}, s{sSF}, {SAFE}")
    T = SV + 8
    GT = 40
    A(f"s_and_b32 s{sU}, s{sTB}, 255")
    A(f"v_and_b32 v{SV+1}, 7, v0"); A(f"v_bfe_u32 v{SV}, v0, 3, 1")
    A(f"v_bfe_u32 v{PA}, v0, 4, 1"); A(f"v_mul_u32_u24 v{SV+2}, {P1P}, v{PA}"); A(f"v_mul_u32_u24 v{PA}, {P1B}, v{PA}")
    A(f"v_lshl_add_u32 v{PA}, v{SV+1}, 5, v{PA}")
    A(f"v_lshl_add_u32 v{PA}, v{SV}, 4, v{PA}")
    A(f"s_bfe_u32 s{sT0}, s{sTB}, 0x10011"); A(f"v_xor_b32 v{SV+3}, s{sT0}, v{vA1}"); A(f"v_mul_u32_u24 v{SV+3}, {P1P}, v{SV+3}"); A(f"v_add_u32 v{PA}, v{PA}, v{SV+3}")
    A(f"s_mov_b32 s{sPM}, -1"); A(f"s_bitcmp1_b32 s{sTB}, 18"); A(f"s_cselect_b32 s{sPM+1}, -1, 0")
    A(f"s_lshl_b32 s{sPS}, s{sU}, 8"); A(f"s_add_u32 s{sPS}, s{sPS}, {P1}")
    A(f"s_cmp_lt_u32 s{sU}, 208"); A(f"s_cselect_b32 s{sPS}, s{sPS}, {HUGE}")
    A(f"s_mul_i32 s{sT2}, s{sB}, {P1B}"); A(f"s_lshl_b32 s{sT3}, s{sHKV}, 10"); A(f"s_add_u32 s{sT2}, s{sT2}, s{sT3}"); A(f"s_add_u32 s{sT2}, s{sT2}, {P1}")
    A(f"s_add_u32 s{sC2}, s{sT2}, {P1P}")
    A(f"v_mul_u32_u24 v{vA2}, {P1B}, v{SV}"); A(f"v_mul_u32_u24 v{vA1}, 18432, v{vA1}"); A(f"v_add3_u32 v{vA2}, v{vA2}, v{vA1}, v{SV+2}")
    A(f"v_lshl_add_u32 v{vA2}, v{SV+1}, 4, v{vA2}")
    A(f"v_mov_b32 v{SV+3}, {HUGE}")
    A(f"v_cmp_gt_u32 vcc, s{sNSL}, v{SV+1}"); A("s_nop 1")
    A(f"v_cndmask_b32 v{vA2}, v{SV+3}, v{vA2}, vcc"); A(f"v_cndmask_b32 v{TG0}, 0, v{vTAG}, vcc")
    A(f"s_lshl_b32 s{sT3}, s{sROW}, 2"); A(f"s_add_u32 s{sT3}, s{sT3}, {P1 + 16384}")
    A(f"s_mov_b32 s{sSP}, 0"); A(f"s_mov_b32 s{sC1}, 0"); A(f"s_sub_u32 s{sC3}, s{sSF}, {P1}")
    for v in range(4): A(f"v_mov_b32 v{PD+v}, 0")
    A("s_barrier")
    A("s_mov_b64 exec, 0xffffffff")
    for w in range(8):
        A(f"ds_read_b128 {r4(T+4*w)}, v{vK} offset:{S1 + w*512}")
    for w in range(1, 8):
        A(f"s_waitcnt lgkmcnt({7-w})")
        for v in range(4):
            A(f"v_add_f32 v{PD+v}, v{T+v if w == 1 else PD+v}, v{T+4*w+v}")
    for v in range(4): A(f"v_add_u32 v{PD+v}, {(TMASK+1)//2}, v{PD+v}")
    A("s_mov_b64 exec, -1")
    tag4(PD)
    A(f"s_mov_b64 exec, s[{sPM}:{sPM+1}]")
    vm([f"buffer_store_dwordx4 {r4(PD)}, v{PA}, {srd(WS)}, s{sPS} offen"])
    A("s_mov_b64 exec, -1")
    def safe_p1(tag):
        A(f"s_cmp_lg_u32 s{sSP}, 0"); A(f"s_cbranch_scc1 L_sp{tag}")
        A(f"s_add_u32 s{sPS}, s{sPS}, s{sSF}"); A(f"s_sub_u32 s{sPS}, s{sPS}, {P1}"); A(f"s_mov_b32 s{sSP}, 1")
        A(f"s_mov_b64 exec, s[{sPM}:{sPM+1}]")
        vm([f"buffer_store_dwordx4 {r4(PD)}, v{PA}, {srd(WS)}, s{sPS} offen sc1"])
        A("s_mov_b64 exec, -1")
        A(f"L_sp{tag}:")
    stamp(3)
    A("L_gather:")
    vm([f"buffer_load_dwordx4 {r4(T)}, v{vK}, {srd(WS)}, s{sT2} offen sc1",
        f"buffer_load_dwordx4 {r4(T+4)}, v{vK}, {srd(WS)}, s{sC2} offen sc1",
        f"buffer_load_dwordx4 {r4(GT)}, v{vA2}, {srd(WS)}, s{sT3} offen sc1"])
    A(f"s_add_u32 s{sSPIN}, s{sSPIN}, 1")
    A("s_waitcnt vmcnt(0)")
    rg = [T + i for i in range(8)] + [GT + i for i in range(4)]
    untag_check(rg, rg, [vTAG] * 8 + [TG0] * 4, SV)
    A("s_cbranch_vccz L_gotg")
    A(f"s_cmp_lt_u32 s{sSPIN}, {gtmo}"); A("s_cbranch_scc1 L_gather")
    safe_p1("g")
    for r_ in (sT2, sC2, sT3): A(f"s_sub_u32 s{r_}, s{r_}, s{sC1}")
    A(f"s_xor_b32 s{sC1}, s{sC1}, s{sC3}")
    for r_ in (sT2, sC2, sT3): A(f"s_add_u32 s{r_}, s{r_}, s{sC1}")
    A(f"s_cmp_lt_u32 s{sSPIN}, {spin}"); A("s_cbranch_scc1 L_gather")
    A("L_gotg:")
    for v in range(4): A(f"v_add_f32 v{T+v}, v{T+v}, v{T+4+v}")
    A(f"v_cvt_pk_bf16_f32 v{T}, v{T}, v{T+1}"); A(f"v_cvt_pk_bf16_f32 v{T+1}, v{T+2}, v{T+3}")
    A(f"v_lshlrev_b32 v{vA1}, 3, v0")
    A(f"ds_write_b64 v{vA1}, {r2(T)} offset:{QL}")
    for v in range(4): A(f"v_mov_b32 v{GT+4+v}, v{GT+v}")
    A("s_nop 1")
    for v in range(4): A(f"v_permlane16_swap_b32 v{GT+v}, v{GT+4+v}")
    A("s_nop 1")
    for v in range(4): A(f"v_add_f32 v{GT+v}, v{GT+v}, v{GT+4+v}")
    for v in range(4): bf16r(GT + v, GT + v)
    for v in range(4): A(f"v_mov_b32 v{GT+4+v}, v{GT+v}")
    A("s_nop 1")
    for v in range(4): A(f"v_permlane32_swap_b32 v{GT+v}, v{GT+4+v}")
    A("s_nop 1")
    for v in range(4): A(f"v_mul_f32 v{GT+8+v}, s{sLOG2E}, v{GT+v}")
    for v in range(4): A(f"v_exp_f32 v{GT+8+v}, -v{GT+8+v}")
    for v in range(4): A(f"v_add_f32 v{GT+8+v}, 1.0, v{GT+8+v}")
    for v in range(4): A(f"v_rcp_f32 v{GT+8+v}, v{GT+8+v}")
    for v in range(4): A(f"v_mul_f32 v{GT+v}, v{GT+v}, v{GT+8+v}")
    for v in range(4): bf16r(GT + v, GT + v)
    for v in range(4): A(f"v_mul_f32 v{GT+v}, v{GT+v}, v{GT+4+v}")
    for v in range(4): A(f"v_cvt_pk_bf16_f32 v{GT+v}, v{GT+v}, v{GT+v}")
    A("s_mov_b64 exec, 0xffff")
    A(f"ds_write_b128 v{vK}, {r4(GT)} offset:{HD}")
    A("s_mov_b64 exec, -1")
    A(f"v_mov_b32 v{SV+3}, 1")
    A("s_waitcnt lgkmcnt(0)")
    A(f"ds_write_b32 v{SV+4}, v{SV+3} offset:{QF}")
    stamp(5)
    late_addr(); tail_addr()
    A(f"s_lshl_b32 s{sT0}, s{sSL}, 6"); A(f"v_lshl_add_u32 v{SV+20}, v0, 2, s{sT0}")
    vm(LATE + [f"buffer_load_dword v{SV+21}, v{SV+20}, {srd(X)}, 0 offen"])
    A(f"v_and_b32 v{vA1}, 15, v0"); A(f"s_lshl_b32 s{sT1}, s{sHKV}, 4"); A(f"v_add_u32 v{SV+12}, s{sT1}, v{vA1}")
    A(f"v_mul_u32_u24 v{vA1}, {REC}, v{SV+12}")
    A(f"s_mul_i32 s{sT2}, s{sJ}, 80"); A(f"v_lshl_add_u32 v{vA2}, v{vT0}, 4, v{vA1}")
    A(f"s_mul_i32 s{sPC}, s2, {REC}")
    A(f"v_lshrrev_b32 v{vV}, 2, v0"); A(f"v_mul_u32_u24 v{vV}, 80, v{vV}"); A(f"v_and_b32 v{SV+1}, 3, v0"); A(f"v_lshl_add_u32 v{vV}, v{SV+1}, 4, v{vV}")
    A(f"v_mul_u32_u24 v{SV+1}, 80, v0")
    A("s_mov_b32 s0, 0x01010101"); A("s_mov_b32 s1, 0x01010101")
    A(f"v_lshl_add_u32 v{SV+14}, v0, 4, s{sJ}"); A(f"v_cmp_gt_u32 vcc, 36, v{SV+14}"); A(f"v_lshlrev_b32 v{SV+14}, 10, v{SV+14}")
    A(f"s_lshr_b32 s{sT0}, s{sHKV}, 1"); A(f"s_lshl_b32 s{sT0}, s{sT0}, 7"); A(f"s_and_b32 s{sT1}, s{sHKV}, 1"); A(f"s_lshl2_add_u32 s{sT0}, s{sT1}, s{sT0}")
    A(f"s_add_u32 s{sUO}, s{sT0}, {HINT}"); A(f"s_mov_b64 s[{sUS}:{sUS+1}], vcc")
    A(f"s_getreg_b32 s{sC3}, hwreg(HW_REG_XCC_ID)"); A(f"s_lshl_b32 s{sC3}, s{sC3}, 16")
    FW = 80
    A(f"v_and_b32 v{SV+2}, 15, v0"); A(f"v_lshlrev_b32 v{SV+3}, 2, v{SV+2}"); A(f"v_lshlrev_b32 v{SV+2}, 3, v{SV+2}")
    A(f"v_lshrrev_b32 v{SV}, 5, v0"); A(f"v_lshlrev_b32 v{SV}, 5, v{SV}")
    A("L_mlwait:")
    A(f"s_sleep {mlsleep}")
    A(f"ds_read_b64 {r2(SV+6)}, v{SV+2} offset:{MW}")
    A(f"s_add_u32 s{sSPIN}, s{sSPIN}, 1"); A(f"s_cmp_gt_u32 s{sSPIN}, {spin*16}")
    A("s_waitcnt lgkmcnt(0)")
    A(f"v_cmp_eq_u32 vcc, -1, v{SV+7}")
    A(f"v_max_f32_dpp v{SV+4}, v{SV+6}, v{SV+6} {STEPS[0]} {DPPF}")
    A("s_cbranch_scc1 L_mlgot")
    A("s_cbranch_vccnz L_mlwait")
    A("L_mlgot:")
    A("s_setprio 3")
    A(f"v_max_f32_dpp v{SV+4}, v{SV+4}, v{SV+4} {STEPS[1]} {DPPF}"); A("s_nop 1")
    A(f"v_max_f32_dpp v{SV+4}, v{SV+4}, v{SV+4} {STEPS[2]} {DPPF}")
    A(f"v_sub_f32 v{SV+6}, v{SV+6}, v{SV+4}"); A(f"v_mul_f32 v{SV+6}, s{sLOG2E}, v{SV+6}"); A(f"v_exp_f32 v{SV+6}, v{SV+6}"); A("s_nop 0")
    A(f"ds_write_b32 v{SV+3}, v{SV+6} offset:{FWL}")
    A(f"v_mul_f32 v{SV+5}, v{SV+7}, v{SV+6}")
    A(f"ds_read_b128 {r4(FW)}, v{SV} offset:{FWL}"); A(f"ds_read_b128 {r4(FW+4)}, v{SV} offset:{FWL+16}")
    for s_ in STEPS:
        A(f"v_add_f32_dpp v{SV+5}, v{SV+5}, v{SV+5} {s_} {DPPF}"); A("s_nop 1")
    A(f"v_mov_b32 v{SV+6}, s{sC3}")
    tag4(SV + 4)
    A(f"s_mov_b32 s{sT0}, 0"); A(f"s_add_u32 s{sT3}, s{sSPIN}, {tmo}")
    stamp(4)
    A("s_barrier")
    OT = 128
    for w in range(8):
        A(f"ds_read_b128 {r4(OT+4*w)}, v{vK} offset:{OS+w*1024}")
    A("s_mov_b64 exec, 0xffff")
    A(f"buffer_store_dwordx4 {r4(SV+4)}, v{SV+1}, {srd(WS)}, s{sPC} offen offset:64")
    A("s_mov_b64 exec, -1")
    for w in range(8):
        A(f"s_waitcnt lgkmcnt({7-w})")
        f = FW + (w & ~1); sel = w & 1
        for hlf in range(2):
            d = f"v[{OT+2*hlf}:{OT+2*hlf+1}]"; x = f"v[{OT+4*w+2*hlf}:{OT+4*w+2*hlf+1}]"
            if w == 0: A(f"v_pk_mul_f32 {d}, {x}, v[{f}:{f+1}] op_sel:[0,{sel}] op_sel_hi:[1,{sel}]")
            else: A(f"v_pk_fma_f32 {d}, {x}, v[{f}:{f+1}], {d} op_sel:[0,{sel},0] op_sel_hi:[1,{sel},1]")
    tag4(OT)
    A(f"buffer_store_dwordx4 {r4(OT)}, v{vV}, {srd(WS)}, s{sPC} offen")
    POLL = [f"buffer_load_dwordx4 {r4(PL)}, v{vA2}, {srd(WS)}, s{sT2} offen sc1",
            f"buffer_load_dwordx4 {r4(PL+4)}, v{vA1}, {srd(WS)}, s{sT2} offen offset:64 sc1"]
    for c in POLL: A(c)
    if nwb < 5: A("s_barrier")
    stamp(6)
    A(f"s_waitcnt vmcnt(4)")
    w2_mfmas()
    A("s_branch L_pollo1")
    def safe_o():
        A(f"s_mul_i32 s{sT1}, s2, 1280"); A(f"s_add_u32 s{sT1}, s{sT1}, s{sSF}"); A(f"s_add_u32 s{sT1}, s{sT1}, {SAFO}")
        A(f"buffer_store_dwordx4 {r4(OT)}, v{vV}, {srd(WS)}, s{sT1} offen sc1")
        A("s_mov_b64 exec, 0xffff")
        A(f"buffer_store_dwordx4 {r4(SV+4)}, v{SV+1}, {srd(WS)}, s{sT1} offen offset:64 sc1")
        A("s_mov_b64 exec, -1")
        A(f"s_mov_b32 s{sT0}, 1")
    m, l, M = PL + 4, PL + 5, TT + 1
    A("L_otmo:")
    A(f"s_cmp_lg_u32 s{sT0}, 0"); A("s_cbranch_scc1 L_goto")
    safe_p1("o")
    A("s_setprio 3")
    safe_o()
    A(f"v_mul_u32_u24 v{SV+12}, 1280, v{SV+12}"); A(f"v_lshl_add_u32 v{SV+13}, v{vT0}, 4, v{SV+12}")
    A(f"s_add_u32 s{sC1}, s{sT2}, s{sSF}"); A(f"s_add_u32 s{sC1}, s{sC1}, {SAFO}"); A(f"s_add_u32 s{sT3}, s{sSPIN}, {spin}")
    A("s_branch L_oswap")
    A("L_oretry:")
    A("s_cbranch_scc1 L_otmo")
    A(f"s_cmp_eq_u32 s{sT0}, 0"); A("s_cbranch_scc1 L_pollo")
    A("L_oswap:")
    A(f"v_swap_b32 v{vA1}, v{SV+12}"); A(f"v_swap_b32 v{vA2}, v{SV+13}")
    A(f"s_mov_b32 s{sT1}, s{sT2}"); A(f"s_mov_b32 s{sT2}, s{sC1}"); A(f"s_mov_b32 s{sC1}, s{sT1}")
    A("L_pollo:")
    for c in POLL: A(c)
    A("L_pollo1:")
    A(f"s_add_u32 s{sSPIN}, s{sSPIN}, 1"); A(f"s_cmp_gt_u32 s{sSPIN}, s{sT3}")
    A("s_waitcnt vmcnt(0)")
    rg = [PL + 4 + i for i in range(4)] + [PL + i for i in range(4)]
    untag_check(rg, rg, [vTAG] * 8, TT + 1)
    A(f"v_max_f32_dpp v{M}, v{m}, v{m} {STEPS[0]} {DPPF}")
    A("s_cbranch_vccnz L_oretry")
    A(f"v_cmp_ne_u32 vcc, s{sC3}, v{PL+6}")
    A("s_cbranch_vccz L_goto")
    A(f"s_cmp_lg_u32 s{sT0}, 0"); A("s_cbranch_scc1 L_goto")
    safe_o()
    A("L_goto:")
    if hat == 'goto': A(f"s_mov_b64 exec, s[{sUS}:{sUS+1}]"); A(f"buffer_store_dword v{vTAG}, v{SV+14}, {srd(WS)}, s{sUO} offen sc1"); A("s_mov_b64 exec, -1")
    stamp(9)
    A(f"v_max_f32_dpp v{M}, v{M}, v{M} {STEPS[1]} {DPPF}"); A("s_nop 1")
    A(f"v_max_f32_dpp v{M}, v{M}, v{M} {STEPS[2]} {DPPF}")
    A(f"v_sub_f32 v{m}, v{m}, v{M}"); A(f"v_mul_f32 v{m}, s{sLOG2E}, v{m}"); A(f"v_exp_f32 v{m}, v{m}"); A("s_nop 0")
    A(f"v_mul_f32 v{l}, v{l}, v{m}")
    for v in range(4): A(f"v_mul_f32 v{PL+v}, v{PL+v}, v{m}")
    for s_ in STEPS:
        for r in (l, PL, PL + 1, PL + 2, PL + 3):
            A(f"v_add_f32_dpp v{r}, v{r}, v{r} {s_} {DPPF}")
    A(f"v_rcp_f32 v{l}, v{l}"); A("s_mov_b64 exec, s[0:1]")
    for v in range(4): A(f"v_mul_f32 v{PL+v}, v{PL+v}, v{l}")
    for v in range(4): A(f"v_cvt_pk_bf16_f32 v{PL+v}, v{PL+v}, v{PL+v}")
    A(f"ds_write_b128 v{vT1}, {r4(PL)} offset:{ZL}")
    A("s_mov_b64 exec, -1")
    A("s_waitcnt lgkmcnt(0)")
    if hat == 'z': A(f"s_mov_b64 exec, s[{sUS}:{sUS+1}]"); A(f"buffer_store_dword v{vTAG}, v{SV+14}, {srd(WS)}, s{sUO} offen sc1"); A("s_mov_b64 exec, -1")
    A("s_barrier")
    stamp(13)
    A(f"ds_read_b128 {r4(PL)}, v{vT1} offset:{ZL}")
    if hat == 'b5': A(f"s_mov_b64 exec, s[{sUS}:{sUS+1}]"); A(f"buffer_store_dword v{vTAG}, v{SV+14}, {srd(WS)}, s{sUO} offen sc1"); A("s_mov_b64 exec, -1")
    A("s_waitcnt lgkmcnt(0)")

    A("s_branch L_tail")
    svc = L[svc0:]; del L[svc0:]
    A("L_tail:")
    for n in range(2):
        for rho in range(2):
            gemv_mfma(PL + 2 * n + rho, WL + 12 + 4 * n, D1 if rho == 0 else D2, False)
    A("s_nop 7")
    for v in range(4):
        A(f"v_add_f32_dpp v{D1+v}, v{D2+v}, v{D1+v} row_ror:8 {DPPF}")
    tag4(D1)
    A(f"s_mov_b64 exec, s[{sMASK}:{sMASK+1}]")
    A(f"buffer_store_dwordx4 {r4(D1)}, v{TT}, {srd(WS)}, s{sC2} offen sc1")
    A("s_mov_b64 exec, -1")
    stamp(10)
    if hat == 'fp':
        A("s_cmp_lg_u32 s3, 8"); A("s_cbranch_scc1 L_nh")
        A(f"s_mov_b64 exec, s[{sUS}:{sUS+1}]"); A(f"buffer_store_dword v{vTAG}, v{SV+14}, {srd(WS)}, s{sUO} offen sc1"); A("s_mov_b64 exec, -1")
        A("L_nh:")
    A(f"s_cmp_lg_u32 s{sCK}, 0"); A("s_cbranch_scc1 L_fin")
    A("s_cmp_eq_u32 s3, 8"); A("s_cbranch_scc1 L_final")
    A(f"v_lshrrev_b32 v{TT}, 3, v0"); A(f"s_lshl_b32 s{sT0}, s3, 5"); A(f"v_add_u32 v{TT}, s{sT0}, v{TT}")
    A(f"v_mul_u32_u24 v{TT}, {REC}, v{TT}"); A(f"v_and_b32 v{TT+1}, 7, v0"); A(f"v_lshl_add_u32 v{TT}, v{TT+1}, 4, v{TT}")
    A(f"s_lshl_b32 s{sT0}, s{sSL}, 7"); A(f"s_add_u32 s{sT0}, s{sT0}, {FPO}")
    A(f"s_add_u32 s{sC1}, s{sT0}, {8*REC}"); A(f"s_add_u32 s{sC2}, s{sT0}, {16*REC}"); A(f"s_add_u32 s{sC3}, s{sT0}, {24*REC}")
    A(f"s_add_u32 s{sT3}, s{sSPIN}, {spin}")
    A(f"v_bfe_u32 v{TT+2}, v0, 3, 2"); A(f"v_lshlrev_b32 v{TT+2}, 2, v{TT+2}"); A(f"v_lshl_add_u32 v{TT+2}, v{TT+1}, 4, v{TT+2}")
    A(f"s_lshl_b32 s{sT1}, s3, 7"); A(f"v_add_u32 v{TT+2}, s{sT1}, v{TT+2}")
    A(f"s_lshl3_add_u32 s{sT1}, s{sSL}, s3"); A(f"s_lshl_b32 s{sT1}, s{sT1}, 7"); A(f"s_add_u32 s{sT1}, s{sT1}, {HINT}")
    if hsc:
        A(f"s_and_b32 s{sT2}, s{sEP}, s{sTM}")
        A("L_hint:")
        A(f"s_load_dwordx2 s[{sUS}:{sUS+1}], s[{WS}:{WS+1}], s{sT1} glc")
        A(f"s_add_u32 s{sSPIN}, s{sSPIN}, 1"); A(f"s_cmp_gt_u32 s{sSPIN}, s{sT3}"); A("s_cbranch_scc1 L_hok")
        A("s_waitcnt lgkmcnt(0)")
        A(f"s_cmp_lg_u32 s{sUS}, s{sT2}"); A("s_cbranch_scc1 L_hint")
        A(f"s_cmp_lg_u32 s{sUS+1}, s{sT2}"); A("s_cbranch_scc1 L_hint")
        A("L_hok:")
    else:
        A(f"v_mov_b32 v{TT+3}, 0")
        A("s_mov_b64 exec, 1")
        if not usehint: A("s_branch L_hok")
        A("L_hint:")
        A(f"buffer_load_dwordx2 {r2(FC)}, v{TT+3}, {srd(WS)}, s{sT1} offen sc1")
        A(f"s_add_u32 s{sSPIN}, s{sSPIN}, 1"); A(f"s_cmp_gt_u32 s{sSPIN}, s{sT3}")
        A("s_waitcnt vmcnt(0)")
        A(f"v_xor_b32 v{FC}, v{vTAG}, v{FC}"); A(f"v_xor_b32 v{FC+1}, v{vTAG}, v{FC+1}"); A(f"v_or_b32 v{FC}, v{FC}, v{FC+1}")
        A(f"v_cmp_ne_u32 vcc, 0, v{FC}")
        A("s_cbranch_scc1 L_hok")
        A("s_cbranch_vccnz L_hint")
        A("L_hok:")
        A("s_mov_b64 exec, -1")
    stamp(7)
    SO = (sT0, sC1, sC2, sC3)
    if psel == 1:
        FB = FC + 16
        for q in range(4): A(f"buffer_load_dwordx4 {r4(FB+4*q)}, v{TT}, {srd(WS)}, s{SO[q]} offen sc1")
        for hf in range(2):
            d = [FC + 8 * hf + i for i in range(8)]
            bufs = [FB + 8 * hf, FB + 16 + 8 * hf]
            def iss(bb):
                for q in range(2): A(f"buffer_load_dwordx4 {r4(bb+4*q)}, v{TT}, {srd(WS)}, s{SO[2*hf+q]} offen sc1")
            A(f"s_waitcnt vmcnt({2 if hf == 0 else 0})")
            untag_check(d, [bufs[0] + i for i in range(8)], [vTAG] * 8, TT + 1)
            A(f"s_cbranch_vccz L_h{hf}ok")
            iss(bufs[0])
            A(f"L_h{hf}:")
            for k in range(2):
                iss(bufs[1 - k])
                if k == 0: A(f"s_add_u32 s{sSPIN}, s{sSPIN}, 1"); A(f"s_cmp_gt_u32 s{sSPIN}, s{sT3}")
                A("s_waitcnt vmcnt(2)")
                untag_check(d, [bufs[k] + i for i in range(8)], [vTAG] * 8, TT + 1)
                if k == 0: A(f"s_cbranch_vccz L_h{hf}ok")
                else: A(f"s_cbranch_scc1 L_h{hf}ok"); A(f"s_cbranch_vccnz L_h{hf}")
            A(f"L_h{hf}ok:")
    elif psel == 2:
        for q in range(4): A(f"buffer_load_dwordx4 {r4(FC+4*q)}, v{TT}, {srd(WS)}, s{SO[q]} offen sc1")
        for q in range(4):
            rg = [FC + 4 * q + i for i in range(4)]
            A(f"s_waitcnt vmcnt({3-q})")
            A(f"s_branch L_q{q}c")
            A(f"L_q{q}:")
            A(f"buffer_load_dwordx4 {r4(FC+4*q)}, v{TT}, {srd(WS)}, s{SO[q]} offen sc1")
            A(f"s_add_u32 s{sSPIN}, s{sSPIN}, 1"); A(f"s_cmp_gt_u32 s{sSPIN}, s{sT3}"); A(f"s_cbranch_scc1 L_gotf")
            A("s_waitcnt vmcnt(0)")
            A(f"L_q{q}c:")
            untag_check(rg, rg, [vTAG] * 4, TT + 1)
            A(f"s_cbranch_vccnz L_q{q}")
    else:
        A("L_pollf:")
        for q, so in enumerate((sT0, sC1, sC2, sC3)):
            A(f"buffer_load_dwordx4 {r4(FC+4*q)}, v{TT}, {srd(WS)}, s{so} offen sc1")
        A(f"s_add_u32 s{sSPIN}, s{sSPIN}, 1"); A(f"s_cmp_gt_u32 s{sSPIN}, s{sT3}")
        A("s_waitcnt vmcnt(0)")
        rg = [FC + i for i in range(16)]
        untag_check(rg, rg, [vTAG] * 16, TT + 1)
        A("s_cbranch_scc1 L_gotf")
        A("s_cbranch_vccnz L_pollf")
    A("L_gotf:")
    stamp(9)
    for hlf in range(2):
        A(f"v_pk_add_f32 {r2(FC+2*hlf)}, {r2(FC+2*hlf)}, {r2(FC+4+2*hlf)}"); A(f"v_pk_add_f32 {r2(FC+8+2*hlf)}, {r2(FC+8+2*hlf)}, {r2(FC+12+2*hlf)}")
    for hlf in range(2):
        A(f"v_pk_add_f32 {r2(FC+2*hlf)}, {r2(FC+2*hlf)}, {r2(FC+8+2*hlf)}")
    a, b = FC + 4, FC + 5
    A("s_nop 0")
    A(f"v_add_f32_dpp v{a}, v{FC}, v{FC} row_ror:8 row_mask:0xf bank_mask:0x3")
    A(f"v_add_f32_dpp v{a}, v{FC+1}, v{FC+1} row_ror:8 row_mask:0xf bank_mask:0xc")
    A(f"v_add_f32_dpp v{b}, v{FC+2}, v{FC+2} row_ror:8 row_mask:0xf bank_mask:0x3")
    A(f"v_add_f32_dpp v{b}, v{FC+3}, v{FC+3} row_ror:8 row_mask:0xf bank_mask:0xc")
    A("s_nop 1")
    A(f"v_permlane16_swap_b32 v{a}, v{b}")
    A("s_nop 1")
    A(f"v_add_f32 v{a}, v{a}, v{b}")
    swap_red(a, b, "v_add_f32", "v_permlane32_swap_b32")
    A(f"ds_write_b32 v{TT+2}, v{a} offset:{FS}")
    A("s_waitcnt lgkmcnt(0)")
    A("s_barrier")
    A("s_branch L_fin")
    A("L_final:")
    A(f"v_lshlrev_b32 v{TT}, 3, v0")
    A(f"v_lshlrev_b32 v{TT+2}, 16, v{SV+21}"); A(f"v_and_b32 v{TT+3}, 0xffff0000, v{SV+21}")
    A(f"v_mov_b32 v{TT+1}, s{sEP}"); A(f"v_mov_b32 v{SV}, {EP}")
    A(f"s_cmp_eq_u32 s2, 0"); A(f"s_cselect_b32 s{sT0}, 0, {HUGE}")
    A("s_mov_b64 exec, 0xffff")
    A("s_barrier")
    for w in range(8):
        A(f"ds_read_b64 {r2(80+2*w)}, v{TT} offset:{FS+128*w}")
    for w in range(8):
        A(f"s_waitcnt lgkmcnt({7-w})")
        A(f"v_pk_add_f32 {r2(TT+2)}, {r2(TT+2)}, {r2(80+2*w)}")
    A(f"v_cvt_pk_bf16_f32 v{TT+2}, v{TT+2}, v{TT+3}")
    A(f"buffer_store_dword v{TT+2}, v{SV+20}, {srd(OUT)}, 0 offen")
    A("s_mov_b64 exec, 1")
    A(f"buffer_store_dword v{TT+1}, v{SV}, {srd(WS)}, s{sT0} offen sc1")
    A("L_fin:")
    if stamps:
        stamp(11)
        A("s_mov_b64 exec, -1")
        A("s_waitcnt vmcnt(0) lgkmcnt(0)")
        A(f"s_mul_i32 s{sT0}, s2, 9"); A(f"s_add_u32 s{sT0}, s{sT0}, s3"); A(f"s_lshl_b32 s{sT0}, s{sT0}, 7"); A(f"s_add_u32 s{sT0}, s{sT0}, {STAMP}")
        for i in range(14):
            A(f"v_mov_b32 v{104+2*i}, s{stamp_reg(i)}"); A(f"v_mov_b32 v{105+2*i}, s{stamp_reg(i)+1}")
        A(f"v_mov_b32 v132, s{sSPIN}")
        A("s_getreg_b32 s76, hwreg(HW_REG_XCC_ID)"); A("v_mov_b32 v133, s76"); A("v_mov_b32 v134, 0"); A("v_mov_b32 v135, 0")
        A("v_mov_b32 v100, 0")
        A("s_mov_b64 exec, 1")
        for i in range(8):
            A(f"buffer_store_dwordx4 {r4(104+4*i)}, v100, {srd(WS)}, s{sT0} offen offset:{16*i}")
    A("L_end:")
    A("s_endpgm")
    L.extend(svc)
    A(".p2align 6")
    A(".type L_tab,@object"); A(".size L_tab, 1024")
    A("L_tab:")
    tb = unit_table(split)
    for i in range(0, 256, 8): A(".long " + ", ".join(f"{x:#x}" for x in tb[i:i+8]))
    A('.section .rodata,"a"'); A(".p2align 6"); A(f".amdhsa_kernel {NAME}")
    A("  .amdhsa_next_free_vgpr 168"); A("  .amdhsa_next_free_sgpr 102"); A("  .amdhsa_accum_offset 168")
    A("  .amdhsa_group_segment_fixed_size 0"); A("  .amdhsa_kernarg_size 96"); A("  .amdhsa_user_sgpr_count 2")
    A("  .amdhsa_user_sgpr_kernarg_segment_ptr 1"); A("  .amdhsa_system_sgpr_workgroup_id_x 1")
    A(".end_amdhsa_kernel")
    return "\n".join(L) + "\n"


if __name__ == "__main__":
    kw = eval("dict(%s)" % (sys.argv[2] if len(sys.argv) > 2 else ""))
    open(sys.argv[1], "w").write(gen(**kw))
```

```python
import sys
NAME = "parallel_sum__sliding_block_cached__glu_gated_swiglu__decode_kernel"

HEADER = """; Fused decode step: out = x + Attn(LN(x)) + SwiGLU(LN(x)); one launch, 256 workgroups x 9 waves.
;
;
"""

OS = 0
S1 = 0
FS = 8192
QL = 9216
HD = QL + 512
MW = HD + 256
ZL = MW + 128
FWL = ZL + 128
TG = FWL + 64
QF = TG + 4
XN = 10368
assert QF + 4 <= XN
LDS_BYTES = XN + 4608
REC = 6144
FPO = 1536
EP = 1408
P1 = 3 << 19
P1B = 13312 * 4
P1P = 2 * P1B
HINT = (7 << 18) + (1 << 16)
STAMP = 2 << 20
SAFE = 4 << 20
SAFO = 1 << 18
WS_BYTES = 68 << 20
HUGE = 0x40000000
LOG2E = 0x3FB8AA3B
SCALE = 0x3DB504F3
TMASK = 0x3FF
STAMP_NAMES = ["start", "karg", "Bt/B0", "B1", "qgot", "sm", "Vend", "s7", "s8", "gotO", "FPst", "end", "x/B4", "B5"]

X, K, V, SU, WO, W2, OUT, WS = [4 + 4 * i for i in range(8)]
SRD_INFO = {X: (0, 2304), K: (2, 1 << 28), V: (4, 1 << 28), WO: (8, 4096 * 1152),
            W2: (16, 4608 * 1152), OUT: (18, 2304), WS: (22, WS_BYTES)}
sPS, sSP, sPM = 36, 37, 38
sSF = 40
sPC = 42
sU, sRB = 46, 47
sHKV, sJ, sB, sS, sSL, sCK = 48, 49, 50, 51, 52, 53
sT0, sT1, sT2, sT3 = 54, 55, 56, 57
sHASH = 58
sUO, sUS = 59, 60
sTB = 62
sLOG2E = 63
sSPIN = 64
sTM = 65
sC1, sC2, sC3 = 66, 67, 68
sEP = 69
sMASK = 70
sROW, sNSL = 74, 75
KA = 76
def stamp_reg(i): return {0: 100, 1: 72}.get(i, KA + 2 * (i - 2))

vK, vV, vA1, vA2 = 1, 2, 3, 4
MK = 5
vT0, vT1, vT2 = 9, 10, 11
A0, A1 = 12, 16
ACC, D1, D2 = 20, 24, 28
SR = 32
QB = 36
KR = 40
VR = 104
def kreg(t): return KR + 4 * t
def vreg(t): return VR + 4 * t
XA = 32
S1D = 132
WL = 40
PL = 60
HV = 68
vTAG = 74
vA3 = 75
TT = 76
vOS = 80
vA4 = 94
FC = 104
SV = 104


def r4(b): return f"v[{b}:{b+3}]"
def r2(b): return f"v[{b}:{b+1}]"
def srd(b): return f"s[{b}:{b+3}]"
DPPF = "row_mask:0xf bank_mask:0xf"
STEPS = ("quad_perm:[1,0,3,2]", "quad_perm:[2,3,0,1]", "row_half_mirror")


def unit_table(split, slabs):
    tab = []
    assert sum(slabs) == 72
    NSG = [(slabs[h >> 1] + (h & 1)) // 2 for h in range(16)]
    def place(g, left):
        if not left: return {}
        seen = set()
        for h in left:
            key = (NSG[h], h & 1)
            if key in seen: continue
            seen.add(key)
            slow = 2 * sum((g + i) % 8 == 3 for i in range(NSG[h])) + (1 - (h & 1))
            if slow > 12 - 2 * NSG[h]: continue
            r = place(g + NSG[h], [x for x in left if x != h])
            if r is not None:
                r[h] = g; return r
        return None
    G0 = place(0, list(range(16)))
    if G0 is None:
        G0 = {h: sum(NSG[:h]) for h in range(16)}; print("no clean placement", file=sys.stderr)
    for hkv in range(16):
        g0 = G0[hkv]; ns = NSG[hkv]
        assert 3 <= ns <= 6
        units = [4 * hkv + i for i in range(4)] + [64 + g0 + i for i in range(ns)] + [136 + g0 + i for i in range(ns)]
        cls = lambda u: (u - (0 if u < 64 else 64 if u < 136 else 136)) & 7
        nfree = 16 - len(units)
        order = sorted(units, key=lambda u: 0 if cls(u) == 3 else 1)
        nsp = min(nfree, {"c3": sum(cls(u) == 3 for u in units), "all": nfree, "none": 0}[split])
        sp = order[:nsp]
        ent = []
        for u in units:
            if u in sp: ent.append(u | (0x01f << 8))
            else: ent.append(u | (0x1ff << 8) | (1 << 18))
        for u in sp: ent.append(u | (0x1e0 << 8) | (1 << 17))
        while len(ent) < 16: ent.append(255)
        tab += [e | (ns << 19) | (g0 << 22) for e in ent[0::2] + ent[1::2]]
    return tab


def gen(depth=4, b2=11, pre=2, nwb=2, stamps=False, pol=" nt", spin=100000, mlsleep=4, tmo=40, gtmo=12, split="all",
        xg=True, dry=False, psel=0, usehint=True, hat='fp', hsc=True, npf=1, tlb=False, psleep=0, slabs=(9, 9, 9, 9, 9, 9, 9, 9)):
    L = []
    A = L.append

    def stamp(i):
        if stamps:
            r = stamp_reg(i)
            A(f"s_memrealtime s[{r}:{r+1}]")

    def srd_const(d):
        A(f"s_mov_b32 s{d+2}, {SRD_INFO[d][1]}"); A(f"s_mov_b32 s{d+3}, 0x00020000")

    def srd_ptr(d):
        o = KA + SRD_INFO[d][0]
        A(f"s_mov_b64 s[{d}:{d+1}], s[{o}:{o+1}]")

    def consts():
        A(f"s_mov_b32 s{sLOG2E}, {LOG2E:#x}"); A(f"s_mov_b32 s{sSPIN}, 0"); A(f"s_movk_i32 s{sTM}, {TMASK:#x}")
        A(f"s_mov_b32 s{sMASK}, 0x00ff00ff"); A(f"s_mov_b32 s{sMASK+1}, 0x00ff00ff")
        A(f"s_mul_i32 s{sSL}, s2, 9363"); A(f"s_lshr_b32 s{sSL}, s{sSL}, 16")
        A(f"s_mul_i32 s{sT0}, s{sSL}, 7"); A(f"s_sub_u32 s{sCK}, s2, s{sT0}")
        A("s_cmp_ge_u32 s2, 252"); A(f"s_cselect_b32 s{sCK}, 1, s{sCK}")

    def masks(tmp):
        A(f"v_and_b32 v{vT2}, 1, v0"); A(f"v_lshlrev_b32 v{vT2}, 4, v{vT2}")
        A(f"v_mov_b32 v{MK}, 0xffff"); A(f"v_lshlrev_b32 v{vT2}, v{vT2}, v{MK}")
        A(f"v_bfe_u32 v{tmp}, v0, 1, 2")
        for j in range(4):
            A(f"v_cmp_eq_u32 vcc, {j}, v{tmp}"); A("s_nop 1"); A(f"v_cndmask_b32 v{MK+j}, 0, v{vT2}, vcc")

    def table_load(tag):
        A(f"s_getpc_b64 s[{sPC}:{sPC+1}]")
        A(f"L_pc{tag}:")
        A(f"s_lshl_b32 s{sPC+2}, s2, 2"); A(f"s_add_u32 s{sPC+2}, s{sPC+2}, L_tab-L_pc{tag}")
        A(f"s_load_dword s{sTB}, s[{sPC}:{sPC+1}], s{sPC+2}")

    def group_ids():
        A(f"s_bfe_u32 s{sNSL}, s{sTB}, 0x30013"); A(f"s_lshr_b32 s{sT1}, s{sTB}, 22")
        A(f"s_mul_i32 s{sROW}, s{sNSL}, s{sJ}"); A(f"s_lshl4_add_u32 s{sROW}, s{sT1}, s{sROW}"); A(f"s_lshl_b32 s{sROW}, s{sROW}, 2")

    def tag4(r):
        for v in range(4): A(f"v_bfi_b32 v{r+v}, s{sTM}, v{vTAG}, v{r+v}")

    def untag_check(dst, src, tags, acc):
        for d, r, t in zip(dst, src, tags): A(f"v_xor_b32 v{d}, v{t}, v{r}")
        A(f"v_or3_b32 v{acc}, v{dst[0]}, v{dst[1]}, v{dst[2]}")
        rest = dst[3:]
        while len(rest) >= 2:
            A(f"v_or3_b32 v{acc}, v{acc}, v{rest[0]}, v{rest[1]}"); rest = rest[2:]
        if rest: A(f"v_or_b32 v{acc}, v{acc}, v{rest[0]}")
        A(f"v_and_b32 v{acc}, s{sTM}, v{acc}")
        A(f"v_cmp_ne_u32 vcc, 0, v{acc}")

    def bf16r(dst, src):
        A(f"v_cvt_pk_bf16_f32 v{dst}, v{src}, v{src}"); A(f"v_and_b32 v{dst}, 0xffff0000, v{dst}")

    def swap_red(r, t, op, sw):
        A(f"v_mov_b32 v{t}, v{r}"); A("s_nop 1"); A(f"{sw} v{r}, v{t}"); A("s_nop 1"); A(f"{op} v{r}, v{r}, v{t}")

    def allred32(r, t, op="v_add_f32"):
        for n in (1, 2, 4, 8):
            A("s_nop 1"); A(f"{op}_dpp v{r}, v{r}, v{r} row_ror:{n} {DPPF}")
        swap_red(r, t, op, "v_permlane16_swap_b32")

    def allred_banks_rows(r, t, op):
        for n in (4, 8):
            A("s_nop 1"); A(f"{op}_dpp v{r}, v{r}, v{r} row_ror:{n} {DPPF}")
        swap_red(r, t, op, "v_permlane16_swap_b32"); swap_red(r, t, op, "v_permlane32_swap_b32")

    aflip = [0]
    def gemv_mfma(val, data, acc, first):
        a = A0 if aflip[0] == 0 else A1
        aflip[0] ^= 1
        for j in range(4):
            A(f"v_and_b32 v{a+j}, v{val}, v{MK+j}")
        A("s_nop 1")
        A(f"v_mfma_f32_16x16x32_bf16 {r4(acc)}, {r4(a)}, {r4(data)}, {'0' if first else r4(acc)}")

    def w2_mfmas():
        for n in range(3):
            for rho in range(2):
                gemv_mfma(HV + 2 * n + rho, WL + 4 * n, D1 if rho == 0 else D2, n == 0)

    LATE = [f"buffer_load_dwordx4 {r4(WL)}, v{vA2}, {srd(W2)}, 0 offen{pol}",
            f"buffer_load_dwordx4 {r4(WL+4)}, v{vA4}, {srd(W2)}, 0 offen{pol}",
            f"buffer_load_dwordx4 {r4(WL+8)}, v{vA3}, {srd(W2)}, 0 offen{pol}",
            f"buffer_load_dwordx4 {r4(WL+12)}, v{vA1}, {srd(WO)}, 0 offen{pol}",
            f"buffer_load_dwordx4 {r4(WL+16)}, v{vA1}, {srd(WO)}, 0 offen offset:2304{pol}"]

    def late_addr():
        A(f"v_bfe_u32 v{vT2}, v0, 3, 1")
        A(f"v_lshl_add_u32 v{vA1}, v{vT0}, 2, v{vT2}")
        A(f"s_lshl_b32 s{sT1}, s2, 4"); A(f"v_add_u32 v{vA1}, s{sT1}, v{vA1}")
        A(f"v_mul_u32_u24 v{vA1}, 1152, v{vA1}")
        A(f"v_lshl_add_u32 v{vA2}, v{vT0}, 1, v{vT2}")
        A(f"v_add_u32 v{vA2}, s{sROW}, v{vA2}")
        A(f"v_mul_u32_u24 v{vA2}, 1152, v{vA2}")
        A(f"v_and_b32 v{vT2}, 7, v0"); A(f"v_lshlrev_b32 v{vT2}, 4, v{vT2}")
        A(f"s_lshl_b32 s{sT1}, s3, 7"); A(f"v_add_u32 v{vT2}, s{sT1}, v{vT2}")
        A(f"v_add_u32 v{vA1}, v{vA1}, v{vT2}"); A(f"v_add_u32 v{vA2}, v{vA2}, v{vT2}")

    def tail_addr():
        A(f"s_lshl_b32 s{sT1}, s{sNSL}, 1"); A(f"v_mov_b32 v{TT}, {HUGE}")
        for n_, r_ in ((1, vA4), (2, vA3)):
            A(f"s_sub_i32 s{sT1}, s{sT1}, 4")
            A(f"v_cmp_gt_i32 vcc, s{sT1}, v{vT0}"); A(f"v_add_u32 v{r_}, {8*n_*1152}, v{vA2}"); A("s_nop 0")
            A(f"v_cndmask_b32 v{r_}, v{TT}, v{r_}, vcc")
        A(f"v_lshrrev_b32 v{TT}, 1, v{vT0}"); A(f"v_mul_u32_u24 v{TT}, 2304, v{TT}")
        A(f"v_and_b32 v{TT+1}, 7, v0"); A(f"v_lshl_add_u32 v{TT}, v{TT+1}, 5, v{TT}")
        A(f"v_and_b32 v{TT+1}, 1, v{vT0}"); A(f"v_lshl_add_u32 v{TT}, v{TT+1}, 4, v{TT}")
        A(f"s_mul_i32 s{sC2}, s2, {REC}"); A(f"s_lshl_b32 s{sT1}, s3, 8"); A(f"s_add_u32 s{sC2}, s{sC2}, s{sT1}"); A(f"s_add_u32 s{sC2}, s{sC2}, {FPO}")
        A(f"v_bfe_u32 v{TT+1}, v0, 3, 1"); A(f"v_lshlrev_b32 v{TT+1}, 7, v{TT+1}"); A(f"v_lshl_add_u32 v{TT+1}, v{vT0}, 3, v{TT+1}")
        for i in range(3):
            A(f"ds_read_b64 {r2(HV+2*i)}, v{TT+1} offset:{HD+32*i}")
        A(f"v_lshrrev_b32 v{vT1}, 3, v0"); A(f"v_lshlrev_b32 v{vT1}, 4, v{vT1}")
        A(f"s_and_b32 s{sT1}, s{sEP}, s{sTM}"); A(f"v_mov_b32 v{vTAG}, s{sT1}")

    A(HEADER.rstrip("\n"))
    A(f"; @launch grid=(256,1,1) block=(576,1,1) lds={LDS_BYTES}")
    A('.amdgcn_target "amdgcn-amd-amdhsa--gfx950"')
    A(".text"); A(f".globl {NAME}"); A(".p2align 8"); A(f".type {NAME},@function"); A(f"{NAME}:")
    stamp(0)
    A(f"s_load_dwordx16 s[{KA}:{KA+15}], s[0:1], 0")
    A(f"s_load_dwordx8 s[{KA+16}:{KA+23}], s[0:1], 64")
    A("v_lshrrev_b32 v1, 6, v0")
    A("s_cmp_ge_u32 s2, 256"); A("s_cbranch_scc1 L_end")
    A("v_readfirstlane_b32 s3, v1")
    A("v_and_b32 v0, 63, v0")
    if xg:
        A(f"s_and_b32 s{sT0}, s2, 7"); A(f"s_lshl_b32 s{sT0}, s{sT0}, 5"); A("s_lshr_b32 s2, s2, 3"); A(f"s_add_u32 s2, s2, s{sT0}")
    A(f"s_lshr_b32 s{sHKV}, s2, 4"); A(f"s_and_b32 s{sJ}, s2, 15"); A(f"s_lshr_b32 s{sB}, s{sJ}, 3"); A(f"s_and_b32 s{sS}, s2, 7")
    A(f"v_lshrrev_b32 v{vT0}, 4, v0")
    A("s_cmp_eq_u32 s3, 8"); A("s_cbranch_scc1 L_service")

    srd_const(K)
    A(f"s_lshl4_add_u32 s{sT0}, s{sB}, s{sHKV}"); A(f"s_lshl_b32 s{sT0}, s{sT0}, 6"); A(f"s_add_u32 s{sT0}, s{sT0}, s{sS}")
    A(f"s_lshl_b32 s{sT0}, s{sT0}, 7"); A(f"s_add_u32 s{sT0}, s{sT0}, s3"); A(f"s_addk_i32 s{sT0}, {7 << 10}"); A(f"s_lshl_b32 s{sT2}, s{sT0}, 10")
    A(f"v_and_b32 v{vK}, 3, v0"); A(f"v_lshl_add_u32 v{vK}, v{vK}, 4, s{sT2}")
    A(f"v_bfe_u32 v{vT1}, v0, 2, 2"); A(f"v_lshl_add_u32 v{vK}, v{vT1}, 8, v{vK}")
    A(f"v_lshl_add_u32 v{vK}, v{vT0}, 6, v{vK}")
    A(f"s_lshl3_add_u32 s{sT0}, s2, s3"); A(f"s_mul_i32 s{sHASH}, s{sT0}, 0x9E3779B1")
    A(f"s_bfe_u32 s{sHASH}, s{sHASH}, 0x40018"); A(f"s_lshl_b32 s{sHASH}, s{sHASH}, 13")
    A("s_waitcnt lgkmcnt(0)")
    stamp(1)
    srd_ptr(K)

    def kvld(nm, t, reg, va, sr):
        return (f"{nm}{t}", [f"s_xor_b32 s{sT0}, s{sHASH}, {t << 13}", f"buffer_load_dwordx4 {r4(reg)}, v{va}, {srd(sr)}, s{sT0} offen{pol}"])
    loads = [kvld("K", t, kreg(t), vK, K) for t in range(pre)]
    for k in range(9):
        c = [f"s_bitcmp1_b32 s{sTB}, {8+k}", f"s_cselect_b32 s{sT0}, s{sUO}, {HUGE}",
             f"buffer_load_dwordx4 {r4(S1D+4*k)}, v{vA1}, {srd(SU)}, s{sT0} offen{pol}"]
        if k < 8: c.append(f"s_add_u32 s{sUO}, s{sUO}, s{sUS}")
        loads.append((f"U{k}", c))
    loads += [kvld("K", t, kreg(t), vK, K) for t in range(pre, 16)]
    loads += [kvld("V", t, vreg(t), vV, V) for t in range(16)]
    loads += [(f"W{i}", [LATE[i]]) for i in range(5 if dry else nwb)]
    names = [n for n, _ in loads]

    def rest_of_prologue():
        A("; remaining set-up; stage-1 slab (matrix, columns, row blocks) comes from the table behind the code")
        A(f"v_lshl_add_u32 v{vV}, v0, 4, s{sT2}")
        for d in (V, WO, W2, WS): srd_const(d); srd_ptr(d)
        consts()
        masks(vT1)
        A(f"v_bfe_u32 v{vT2}, v0, 3, 1"); A(f"s_lshl_b32 s{sT1}, s3, 3")
        A(f"v_lshl_add_u32 v{vA1}, v{vT0}, 1, s{sT1}")
        A(f"v_mul_u32_u24 v{vA2}, 2304, v{vT2}"); A(f"v_lshl_add_u32 v{vA2}, v{vA1}, 2, v{vA2}")
        A(f"v_add_u32 v{vA1}, v{vA1}, v{vT2}")
        A(f"v_and_b32 v{vT1}, 7, v0"); A(f"v_lshlrev_b32 v{vT1}, 4, v{vT1}")
        A(f"s_mov_b32 s{SU+3}, 0x00020000")
        A("s_waitcnt lgkmcnt(0)")
        group_ids()
        A(f"s_and_b32 s{sU}, s{sTB}, 255")
        A(f"s_cmp_lt_u32 s{sU}, 136")
        A(f"s_cselect_b64 s[{SU}:{SU+1}], s[{KA+12}:{KA+13}], s[{KA+14}:{KA+15}]"); A(f"s_cselect_b32 s{sT1}, 64, 136")
        A(f"s_cmp_lt_u32 s{sU}, 64")
        A(f"s_cselect_b64 s[{SU}:{SU+1}], s[{KA+6}:{KA+7}], s[{SU}:{SU+1}]"); A(f"s_cselect_b32 s{sT1}, 0, s{sT1}")
        A(f"s_movk_i32 s{sRB}, 9216"); A(f"s_cselect_b32 s{sRB}, 8192, s{sRB}")
        A(f"s_mul_i32 s{SU+2}, s{sRB}, 576")
        A(f"s_sub_u32 s{sUO}, s{sU}, s{sT1}"); A(f"s_lshl_b32 s{sUO}, s{sUO}, 7"); A(f"s_lshl_b32 s{sUS}, s{sRB}, 6")
        A(f"v_mad_u32_u24 v{vA1}, v{vA1}, s{sRB}, v{vT1}")
        stamp(2)

    def qk_block():
        A("; ---- QK^T for the 16 tiles of this wave, scores rounded as the bf16 reference does, softmax against the wave's true max")
        A(f"v_bfe_u32 v{vT2}, v0, 1, 1"); A(f"v_lshlrev_b32 v{vT2}, 8, v{vT2}"); A(f"v_lshl_add_u32 v{vT2}, v{vT0}, 6, v{vT2}")
        A(f"v_bfe_u32 v{vT1}, v0, 2, 2"); A(f"v_lshl_add_u32 v{vT2}, v{vT1}, 4, v{vT2}")
        A(f"v_mov_b32 v{vT1}, 0")
        stamp(7)
        A("s_branch L_qwait1")
        A("L_qwait:")
        A("s_sleep 2")
        A("L_qwait1:")
        A(f"ds_read_b32 v{SR}, v{vT1} offset:{QF}")
        A(f"ds_read_b128 {r4(QB)}, v{vT2} offset:{QL}")
        A(f"s_add_u32 s{sSPIN}, s{sSPIN}, 1"); A(f"s_cmp_gt_u32 s{sSPIN}, {spin*16}")
        A("s_waitcnt lgkmcnt(0)")
        A(f"v_cmp_eq_u32 vcc, 0, v{SR}")
        A("s_cbranch_scc1 L_qgot")
        A("s_cbranch_vccnz L_qwait")
        A("L_qgot:")
        stamp(4)
        Ds = [A0, A1, D1, D2]
        def mf(t): A(f"v_mfma_f32_16x16x32_bf16 {r4(Ds[t%4])}, {r4(kreg(t))}, {r4(QB)}, 0")
        def ops(t):
            b = t & 3; S = SR + (t >> 2); D = Ds[t % 4]; bm = f"row_mask:0xf bank_mask:{1<<b:#x}"
            A(f"v_add_f32_dpp v{S}, v{D+((b+1)&3)}, v{D+b} row_ror:12 {bm}")
            A(f"v_add_f32_dpp v{S}, v{D+((b+2)&3)}, v{S} row_ror:8 {bm}")
            A(f"v_add_f32_dpp v{S}, v{D+((b+3)&3)}, v{S} row_ror:4 {bm}")
        for t in range(4): mf(t)
        A("s_nop 4")
        for t in range(16):
            ops(t)
            if t + 4 < 16: mf(t + 4)
            elif t < 15: A("s_nop 0")
        for p in (0, 2):
            a, b = SR + p, SR + p + 1
            A(f"v_cvt_pk_bf16_f32 v{b}, v{a}, v{b}"); A(f"v_lshlrev_b32 v{a}, 16, v{b}"); A(f"v_and_b32 v{b}, 0xffff0000, v{b}")
            A(f"v_mul_f32 v{a}, {SCALE:#x}, v{a}"); A(f"v_mul_f32 v{b}, {SCALE:#x}, v{b}")
            A(f"v_cvt_pk_bf16_f32 v{b}, v{a}, v{b}"); A(f"v_lshlrev_b32 v{a}, 16, v{b}"); A(f"v_and_b32 v{b}, 0xffff0000, v{b}")
        m = D1; l = D1 + 1
        A(f"v_max3_f32 v{m}, v{SR}, v{SR+1}, v{SR+2}"); A(f"v_max_f32 v{m}, v{m}, v{SR+3}")
        allred_banks_rows(m, D2, "v_max_f32")
        A(f"v_mul_f32 v{vT2}, s{sLOG2E}, v{m}")
        for T in range(4): A(f"v_fma_f32 v{SR+T}, v{SR+T}, s{sLOG2E}, -v{vT2}")
        for T in range(4): A(f"v_exp_f32 v{SR+T}, v{SR+T}")
        A(f"s_lshl_b32 s{sT1}, s3, 3"); A(f"v_lshl_add_u32 v{QB}, v0, 5, s{sT1}")
        A(f"v_add_f32 v{l}, v{SR}, v{SR+1}"); A(f"v_add_f32 v{D2}, v{SR+2}, v{SR+3}"); A(f"v_add_f32 v{l}, v{l}, v{D2}")
        allred_banks_rows(l, D2, "v_add_f32")
        A("s_mov_b64 exec, 5")
        A(f"ds_write_b64 v{QB}, {r2(m)} offset:{MW}")
        A("s_mov_b64 exec, -1")
        for j in range(8): A(f"v_mov_b32 v{A0+j}, 0")
        A(f"v_and_b32 v{D2}, 1, v0"); A(f"v_lshlrev_b32 v{D2}, 4, v{D2}"); A(f"v_mov_b32 v{D2+1}, 0xffff"); A(f"v_lshlrev_b32 v{D2}, v{D2}, v{D2+1}")
        for T in range(4): A(f"v_cvt_pk_bf16_f32 v{SR+T}, v{SR+T}, v{SR+T}")
        for T in range(4): A(f"v_and_b32 v{SR+T}, v{SR+T}, v{D2}")
        A(f"v_and_b32 v{vOS}, 15, v0"); A(f"v_lshlrev_b32 v{vOS}, 5, v{vOS}"); A(f"v_lshl_add_u32 v{vOS}, v{vT0}, 3, v{vOS}")
        A(f"s_lshl_b32 s{sT1}, s3, 10"); A(f"v_add_u32 v{vOS}, s{sT1}, v{vOS}")
        tail_addr()
        stamp(5)

    def pv(t):
        b = t & 3; P = SR + (t >> 2); a = A0 if t % 2 == 0 else A1
        for j in range(4):
            n = (4 * (j - b)) % 16
            ctl = "quad_perm:[0,1,2,3]" if n == 0 else f"row_ror:{n}"
            A(f"v_mov_b32_dpp v{a+j}, v{P} {ctl} row_mask:0xf bank_mask:{1<<j:#x}")
        A("s_nop 1")
        A(f"v_mfma_f32_16x16x32_bf16 {r4(ACC)}, {r4(a)}, {r4(vreg(t))}, {'0' if t == 0 else r4(ACC)}")

    state = {"qk": False, "pv": 0}

    def on_landed(nm):
        if dry:
            if nm == "U8": stamp(3); late_addr()
            if nm == "V0": tail_addr()
            return
        if nm[0] == "U":
            k = int(nm[1])
            if k == 0:
                A("; B0: xn is in LDS; stage 1 = xn^T (one-hot A operand) x slab rows on MFMA")
                A("s_barrier")
                for i in range(4): A(f"ds_read_b64 {r2(XA+2*i)}, v{vA2} offset:{XN+256*i}")
            A(f"s_waitcnt lgkmcnt({min(k+4, 9) - k - 1})")
            x = XA + 2 * (k % 4)
            gemv_mfma(x, S1D + 4 * k, D1, k == 0)
            gemv_mfma(x + 1, S1D + 4 * k, D2, k == 0)
            if k + 4 < 9: A(f"ds_read_b64 {r2(x)}, v{vA2} offset:{XN+256*(k+4)}")
            if k == 8:
                A(f"v_and_b32 v{vT1}, 7, v0"); A(f"v_lshl_add_u32 v{vT1}, v{vT0}, 3, v{vT1}"); A(f"s_lshl_b32 s{sT1}, s3, 9")
                A(f"v_lshl_add_u32 v{vT1}, v{vT1}, 4, s{sT1}")
                A(f"v_mov_b32 v{vT2}, 0"); A(f"ds_read_b32 v{vT2}, v{vT2} offset:{TG}")
                A("s_nop 1")
                for v in range(4): A(f"v_add_f32_dpp v{D1+v}, v{D2+v}, v{D1+v} row_ror:8 {DPPF}")
                A(f"s_mov_b64 exec, s[{sMASK}:{sMASK+1}]")
                A(f"ds_write_b128 v{vT1}, {r4(D1)} offset:{S1}")
                A("s_mov_b64 exec, -1")
                A("s_waitcnt lgkmcnt(0)"); A("s_barrier")
                stamp(3)
                A(f"v_readfirstlane_b32 s{sEP}, v{vT2}")
                late_addr()
        elif nm[0] in "VW" and state["qk"]:
            t = max(int(n[1:]) for n in names[:names.index(nm)+1] if n[0] == "V")
            while state["pv"] <= t:
                pv(state["pv"]); state["pv"] += 1

    N = len(loads)
    landed = -1
    ib2 = names.index(f"V{b2}")
    assert pre >= 2 and names.index("U8") + depth < names.index("V7") and ib2 - depth >= names.index("K15")
    for i, (nm, code) in enumerate(loads):
        if nm == "U0": rest_of_prologue()
        if i == 1: table_load("a")
        for c in code: A(c)
        if i >= depth:
            A(f"s_waitcnt vmcnt({depth})")
            landed = i - depth
            on_landed(names[landed])
        if i == ib2:
            if dry: stamp(7)
            else: qk_block()
            state["qk"] = True
    def drain(extra):
        ld = landed
        while ld < names.index("V15"):
            ld += 1
            A(f"s_waitcnt vmcnt({N-1-ld+extra})")
            on_landed(names[ld])
    def slot_b4():
        A("; ---- PV done: B4 hands the wave's o to the service wave, B4b lets its record leave first, B5 brings z back")
        A("s_nop 7")
        A(f"ds_write2st64_b64 v{vOS}, {r2(ACC)}, {r2(ACC+2)} offset0:{OS//512} offset1:{OS//512+1}")
        A("s_waitcnt lgkmcnt(0)")
        A("s_barrier")
        stamp(12)
        if nwb < 5: A("s_barrier")
    drain(0)
    stamp(6)
    if dry:
        A("s_waitcnt vmcnt(0)"); stamp(8); A("s_branch L_fin")
    slot_b4()
    for c in LATE[nwb:]: A(c)
    A("s_waitcnt vmcnt(2)")
    w2_mfmas()
    A("s_waitcnt vmcnt(0)")
    stamp(8)
    A("s_barrier")
    A(f"ds_read_b128 {r4(PL)}, v{vT1} offset:{ZL}")
    A("s_waitcnt lgkmcnt(0)")

    svc0 = len(L)
    A("L_service:")
    if dry: A("s_endpgm")
    def vm(ins):
        A("s_setprio 3")
        for x in ins: A(x)
        A("s_setprio 0")
    XS = SV + 8
    PA, PD, TG0 = 100, 96, 63
    srd_const(X); srd_const(WS)
    A(f"v_lshrrev_b32 v{vA1}, 5, v0"); A(f"v_mul_u32_u24 v{vA2}, 1152, v{vA1}")
    A(f"v_and_b32 v{vT2}, 31, v0"); A(f"v_mad_u32_u24 v{vA2}, v{vT2}, 36, v{vA2}")
    A("s_setprio 3")
    A("s_waitcnt lgkmcnt(0)")
    stamp(1)
    srd_ptr(X)
    A(f"buffer_load_dwordx4 {r4(XS)}, v{vA2}, {srd(X)}, 0 offen")
    A(f"buffer_load_dwordx4 {r4(XS+4)}, v{vA2}, {srd(X)}, 0 offen offset:16")
    A(f"buffer_load_dword v{XS+8}, v{vA2}, {srd(X)}, 0 offen offset:32")
    A("s_setprio 0")
    srd_ptr(WS)
    A(f"s_load_dword s{sEP}, s[{WS}:{WS+1}], {EP}")
    table_load("b")
    A(f"v_lshlrev_b32 v{vK}, 4, v0")
    A(f"v_mov_b32 v{SV+4}, 0"); A(f"v_lshlrev_b32 v{SV+5}, 2, v0")
    A(f"ds_write_b32 v{SV+4}, v{SV+4} offset:{QF}")
    A(f"v_mov_b32 v{SV+6}, -1"); A(f"v_and_b32 v{SV+5}, 124, v{SV+5}"); A(f"ds_write_b32 v{SV+5}, v{SV+6} offset:{MW}")
    for d in (WO, W2, OUT): srd_const(d); srd_ptr(d)
    consts()
    masks(SV + 5)
    A(f"v_lshlrev_b32 v{vA2}, 1, v{vA2}")
    if tlb:
        srd_const(V); srd_ptr(V)
        A(f"s_lshl4_add_u32 s{sT0}, s{sB}, s{sHKV}"); A(f"s_lshl_b32 s{sT0}, s{sT0}, 23"); A(f"s_add_u32 s{sT0}, s{sT0}, {(7 << 20) - 128}")
        A(f"s_mul_i32 s{sT1}, s2, {16*1152}"); A(f"s_mul_i32 s{sT2}, s{sROW}, 1152"); A(f"s_mul_i32 s{sT3}, s2, {REC}")
        A("s_mov_b64 exec, 1")
        vm([f"buffer_load_dword v{SV+30}, v{SV+4}, {srd(V)}, s{sT0} offen nt", f"buffer_load_dword v{SV+31}, v{SV+4}, {srd(WO)}, s{sT1} offen nt",
            f"buffer_load_dword v{SV+32}, v{SV+4}, {srd(W2)}, s{sT2} offen nt"])
        A("s_mov_b64 exec, -1")
    U = 12
    A(f"s_waitcnt vmcnt({3 if tlb else 0})")
    stamp(12)
    for i in range(9):
        A(f"v_lshlrev_b32 v{U+2*i}, 16, v{XS+i}"); A(f"v_and_b32 v{U+2*i+1}, 0xffff0000, v{XS+i}")
    s = XS
    A(f"v_add_f32 v{s}, v{U}, v{U+1}"); A(f"v_add_f32 v{s+1}, v{U+2}, v{U+3}")
    for i in range(4, 18, 2):
        A(f"v_add_f32 v{s}, v{s}, v{U+i}"); A(f"v_add_f32 v{s+1}, v{s+1}, v{U+i+1}")
    A(f"v_add_f32 v{s}, v{s}, v{s+1}")
    allred32(s, s + 1)
    A(f"v_mul_f32 v{s}, {0x3AE38E39:#x}, v{s}")
    W = 40
    for i in range(18):
        A(f"v_sub_f32 v{W+i}, v{U+i}, v{s}")
    A(f"v_mul_f32 v{s+2}, v{W}, v{W}"); A(f"v_mul_f32 v{s+3}, v{W+1}, v{W+1}")
    for i in range(2, 18, 2):
        A(f"v_fmac_f32 v{s+2}, v{W+i}, v{W+i}"); A(f"v_fmac_f32 v{s+3}, v{W+i+1}, v{W+i+1}")
    A(f"v_add_f32 v{s+2}, v{s+2}, v{s+3}")
    allred32(s + 2, s + 3)
    A(f"v_mul_f32 v{s+2}, {0x3AE38E39:#x}, v{s+2}")
    bf16r(s + 2, s + 2)
    A(f"v_add_f32 v{s+2}, {0x3727C5AC:#x}, v{s+2}")
    bf16r(s + 2, s + 2)
    A(f"v_sqrt_f32 v{s+2}, v{s+2}")
    bf16r(s, s)
    bf16r(s + 2, s + 2)
    A(f"v_rcp_f32 v{s+2}, v{s+2}")
    for i in range(18):
        A(f"v_sub_f32 v{U+i}, v{U+i}, v{s}")
    for i in range(0, 18, 2):
        A(f"v_cvt_pk_bf16_f32 v{U+i+1}, v{U+i}, v{U+i+1}"); A(f"v_lshlrev_b32 v{U+i}, 16, v{U+i+1}"); A(f"v_and_b32 v{U+i+1}, 0xffff0000, v{U+i+1}")
        A(f"v_mul_f32 v{U+i}, v{U+i}, v{s+2}"); A(f"v_mul_f32 v{U+i+1}, v{U+i+1}, v{s+2}")
        A(f"v_cvt_pk_bf16_f32 v{U+i}, v{U+i}, v{U+i}"); A(f"v_cvt_pk_bf16_f32 v{U+i+1}, v{U+i+1}, v{U+i+1}")
        A(f"ds_write_b64 v{vA2}, {r2(U+i)} offset:{XN+4*i}")
    A("s_waitcnt lgkmcnt(0)")
    A(f"s_add_u32 s{sEP}, s{sEP}, 1")
    A(f"v_mov_b32 v{vTAG}, s{sEP}")
    A(f"ds_write_b32 v{SV+4}, v{vTAG} offset:{TG}")
    A("s_waitcnt lgkmcnt(0)")
    A("s_barrier")
    stamp(2)
    A(f"s_and_b32 s{sT0}, s{sEP}, s{sTM}"); A(f"v_mov_b32 v{vTAG}, s{sT0}")
    A(f"s_bfe_u32 s{sSF}, s{sEP}, 0x6000a"); A(f"s_lshl_b32 s{sSF}, s{sSF}, 20"); A(f"s_add_u32 s{sSF}, s{sSF}, {SAFE}")
    T = SV + 8
    GT = 40
    group_ids()
    A(f"s_and_b32 s{sU}, s{sTB}, 255")
    A(f"v_and_b32 v{SV+1}, 7, v0"); A(f"v_bfe_u32 v{SV}, v0, 3, 1")
    A(f"v_bfe_u32 v{PA}, v0, 4, 1"); A(f"v_mul_u32_u24 v{SV+2}, {P1P}, v{PA}"); A(f"v_mul_u32_u24 v{PA}, {P1B}, v{PA}")
    A(f"v_lshl_add_u32 v{PA}, v{SV+1}, 5, v{PA}")
    A(f"v_lshl_add_u32 v{PA}, v{SV}, 4, v{PA}")
    A(f"s_bfe_u32 s{sT0}, s{sTB}, 0x10011"); A(f"v_xor_b32 v{SV+3}, s{sT0}, v{vA1}"); A(f"v_mul_u32_u24 v{SV+3}, {P1P}, v{SV+3}"); A(f"v_add_u32 v{PA}, v{PA}, v{SV+3}")
    A(f"s_mov_b32 s{sPM}, -1"); A(f"s_bitcmp1_b32 s{sTB}, 18"); A(f"s_cselect_b32 s{sPM+1}, -1, 0")
    A(f"s_lshl_b32 s{sPS}, s{sU}, 8"); A(f"s_add_u32 s{sPS}, s{sPS}, {P1}")
    A(f"s_cmp_lt_u32 s{sU}, 208"); A(f"s_cselect_b32 s{sPS}, s{sPS}, {HUGE}")
    A(f"s_mul_i32 s{sT2}, s{sB}, {P1B}"); A(f"s_lshl_b32 s{sT3}, s{sHKV}, 10"); A(f"s_add_u32 s{sT2}, s{sT2}, s{sT3}"); A(f"s_add_u32 s{sT2}, s{sT2}, {P1}")
    A(f"s_add_u32 s{sC2}, s{sT2}, {P1P}")
    A(f"v_mul_u32_u24 v{vA2}, {P1B}, v{SV}"); A(f"v_mul_u32_u24 v{vA1}, 18432, v{vA1}"); A(f"v_add3_u32 v{vA2}, v{vA2}, v{vA1}, v{SV+2}")
    A(f"v_lshl_add_u32 v{vA2}, v{SV+1}, 4, v{vA2}")
    A(f"v_mov_b32 v{SV+3}, {HUGE}")
    A(f"v_cmp_gt_u32 vcc, s{sNSL}, v{SV+1}"); A("s_nop 1")
    A(f"v_cndmask_b32 v{vA2}, v{SV+3}, v{vA2}, vcc"); A(f"v_cndmask_b32 v{TG0}, 0, v{vTAG}, vcc")
    A(f"s_lshl_b32 s{sT3}, s{sROW}, 2"); A(f"s_add_u32 s{sT3}, s{sT3}, {P1 + 16384}")
    A(f"s_mov_b32 s{sSP}, 0"); A(f"s_mov_b32 s{sC1}, 0"); A(f"s_sub_u32 s{sC3}, s{sSF}, {P1}")
    for v in range(4): A(f"v_mov_b32 v{PD+v}, 0")
    A("s_barrier")
    A("s_mov_b64 exec, 0xffffffff")
    for w in range(8):
        A(f"ds_read_b128 {r4(T+4*w)}, v{vK} offset:{S1 + w*512}")
    for w in range(1, 8):
        A(f"s_waitcnt lgkmcnt({7-w})")
        for v in range(4):
            A(f"v_add_f32 v{PD+v}, v{T+v if w == 1 else PD+v}, v{T+4*w+v}")
    for v in range(4): A(f"v_add_u32 v{PD+v}, {(TMASK+1)//2}, v{PD+v}")
    A("s_mov_b64 exec, -1")
    tag4(PD)
    A(f"s_mov_b64 exec, s[{sPM}:{sPM+1}]")
    vm([f"buffer_store_dwordx4 {r4(PD)}, v{PA}, {srd(WS)}, s{sPS} offen"])
    A("s_mov_b64 exec, -1")
    def safe_p1(tag):
        A(f"s_cmp_lg_u32 s{sSP}, 0"); A(f"s_cbranch_scc1 L_sp{tag}")
        A(f"s_add_u32 s{sPS}, s{sPS}, s{sSF}"); A(f"s_sub_u32 s{sPS}, s{sPS}, {P1}"); A(f"s_mov_b32 s{sSP}, 1")
        A(f"s_mov_b64 exec, s[{sPM}:{sPM+1}]")
        vm([f"buffer_store_dwordx4 {r4(PD)}, v{PA}, {srd(WS)}, s{sPS} offen sc1"])
        A("s_mov_b64 exec, -1")
        A(f"L_sp{tag}:")
    stamp(3)
    A("L_gather:")
    vm([f"buffer_load_dwordx4 {r4(T)}, v{vK}, {srd(WS)}, s{sT2} offen sc1",
        f"buffer_load_dwordx4 {r4(T+4)}, v{vK}, {srd(WS)}, s{sC2} offen sc1",
        f"buffer_load_dwordx4 {r4(GT)}, v{vA2}, {srd(WS)}, s{sT3} offen sc1"])
    A(f"s_add_u32 s{sSPIN}, s{sSPIN}, 1")
    A("s_waitcnt vmcnt(0)")
    rg = [T + i for i in range(8)] + [GT + i for i in range(4)]
    untag_check(rg, rg, [vTAG] * 8 + [TG0] * 4, SV)
    A("s_cbranch_vccz L_gotg")
    A(f"s_cmp_lt_u32 s{sSPIN}, {gtmo}"); A("s_cbranch_scc1 L_gather")
    safe_p1("g")
    for r_ in (sT2, sC2, sT3): A(f"s_sub_u32 s{r_}, s{r_}, s{sC1}")
    A(f"s_xor_b32 s{sC1}, s{sC1}, s{sC3}")
    for r_ in (sT2, sC2, sT3): A(f"s_add_u32 s{r_}, s{r_}, s{sC1}")
    A(f"s_cmp_lt_u32 s{sSPIN}, {spin}"); A("s_cbranch_scc1 L_gather")
    A("L_gotg:")
    for v in range(4): A(f"v_add_f32 v{T+v}, v{T+v}, v{T+4+v}")
    A(f"v_cvt_pk_bf16_f32 v{T}, v{T}, v{T+1}"); A(f"v_cvt_pk_bf16_f32 v{T+1}, v{T+2}, v{T+3}")
    A(f"v_lshlrev_b32 v{vA1}, 3, v0")
    A(f"ds_write_b64 v{vA1}, {r2(T)} offset:{QL}")
    for v in range(4): A(f"v_mov_b32 v{GT+4+v}, v{GT+v}")
    A("s_nop 1")
    for v in range(4): A(f"v_permlane16_swap_b32 v{GT+v}, v{GT+4+v}")
    A("s_nop 1")
    for v in range(4): A(f"v_add_f32 v{GT+v}, v{GT+v}, v{GT+4+v}")
    for v in range(4): bf16r(GT + v, GT + v)
    for v in range(4): A(f"v_mov_b32 v{GT+4+v}, v{GT+v}")
    A("s_nop 1")
    for v in range(4): A(f"v_permlane32_swap_b32 v{GT+v}, v{GT+4+v}")
    A("s_nop 1")
    for v in range(4): A(f"v_mul_f32 v{GT+8+v}, s{sLOG2E}, v{GT+v}")
    for v in range(4): A(f"v_exp_f32 v{GT+8+v}, -v{GT+8+v}")
    for v in range(4): A(f"v_add_f32 v{GT+8+v}, 1.0, v{GT+8+v}")
    for v in range(4): A(f"v_rcp_f32 v{GT+8+v}, v{GT+8+v}")
    for v in range(4): A(f"v_mul_f32 v{GT+v}, v{GT+v}, v{GT+8+v}")
    for v in range(4): bf16r(GT + v, GT + v)
    for v in range(4): A(f"v_mul_f32 v{GT+v}, v{GT+v}, v{GT+4+v}")
    for v in range(4): A(f"v_cvt_pk_bf16_f32 v{GT+v}, v{GT+v}, v{GT+v}")
    A("s_mov_b64 exec, 0xffff")
    A(f"ds_write_b128 v{vK}, {r4(GT)} offset:{HD}")
    A("s_mov_b64 exec, -1")
    A(f"v_mov_b32 v{SV+3}, 1")
    A("s_waitcnt lgkmcnt(0)")
    A(f"ds_write_b32 v{SV+4}, v{SV+3} offset:{QF}")
    stamp(5)
    late_addr(); tail_addr()
    A(f"s_lshl_b32 s{sT0}, s{sSL}, 6"); A(f"v_lshl_add_u32 v{SV+20}, v0, 2, s{sT0}")
    vm(LATE + [f"buffer_load_dword v{SV+21}, v{SV+20}, {srd(X)}, 0 offen"])
    A(f"v_and_b32 v{vA1}, 15, v0"); A(f"s_lshl_b32 s{sT1}, s{sHKV}, 4"); A(f"v_add_u32 v{SV+12}, s{sT1}, v{vA1}")
    A(f"v_mul_u32_u24 v{vA1}, {REC}, v{SV+12}")
    A(f"s_mul_i32 s{sT2}, s{sJ}, 80"); A(f"v_lshl_add_u32 v{vA2}, v{vT0}, 4, v{vA1}")
    A(f"s_mul_i32 s{sPC}, s2, {REC}")
    A(f"v_lshrrev_b32 v{vV}, 2, v0"); A(f"v_mul_u32_u24 v{vV}, 80, v{vV}"); A(f"v_and_b32 v{SV+1}, 3, v0"); A(f"v_lshl_add_u32 v{vV}, v{SV+1}, 4, v{vV}")
    A(f"v_mul_u32_u24 v{SV+1}, 80, v0")
    A("s_mov_b32 s0, 0x01010101"); A("s_mov_b32 s1, 0x01010101")
    A(f"v_lshl_add_u32 v{SV+14}, v0, 4, s{sJ}"); A(f"v_cmp_gt_u32 vcc, 36, v{SV+14}"); A(f"v_lshlrev_b32 v{SV+14}, 10, v{SV+14}")
    A(f"s_lshr_b32 s{sT0}, s{sHKV}, 1"); A(f"s_lshl_b32 s{sT0}, s{sT0}, 7"); A(f"s_and_b32 s{sT1}, s{sHKV}, 1"); A(f"s_lshl2_add_u32 s{sT0}, s{sT1}, s{sT0}")
    A(f"s_add_u32 s{sUO}, s{sT0}, {HINT}"); A(f"s_mov_b64 s[{sUS}:{sUS+1}], vcc")
    A(f"s_getreg_b32 s{sC3}, hwreg(HW_REG_XCC_ID)"); A(f"s_lshl_b32 s{sC3}, s{sC3}, 16")
    FW = 80
    A(f"v_and_b32 v{SV+2}, 15, v0"); A(f"v_lshlrev_b32 v{SV+3}, 2, v{SV+2}"); A(f"v_lshlrev_b32 v{SV+2}, 3, v{SV+2}")
    A(f"v_lshrrev_b32 v{SV}, 5, v0"); A(f"v_lshlrev_b32 v{SV}, 5, v{SV}")
    A("L_mlwait:")
    A(f"s_sleep {mlsleep}")
    A(f"ds_read_b64 {r2(SV+6)}, v{SV+2} offset:{MW}")
    A(f"s_add_u32 s{sSPIN}, s{sSPIN}, 1"); A(f"s_cmp_gt_u32 s{sSPIN}, {spin*16}")
    A("s_waitcnt lgkmcnt(0)")
    A(f"v_cmp_eq_u32 vcc, -1, v{SV+7}")
    A(f"v_max_f32_dpp v{SV+4}, v{SV+6}, v{SV+6} {STEPS[0]} {DPPF}")
    A("s_cbranch_scc1 L_mlgot")
    A("s_cbranch_vccnz L_mlwait")
    A("L_mlgot:")
    A("s_setprio 3")
    A(f"v_max_f32_dpp v{SV+4}, v{SV+4}, v{SV+4} {STEPS[1]} {DPPF}"); A("s_nop 1")
    A(f"v_max_f32_dpp v{SV+4}, v{SV+4}, v{SV+4} {STEPS[2]} {DPPF}")
    A(f"v_sub_f32 v{SV+6}, v{SV+6}, v{SV+4}"); A(f"v_mul_f32 v{SV+6}, s{sLOG2E}, v{SV+6}"); A(f"v_exp_f32 v{SV+6}, v{SV+6}"); A("s_nop 0")
    A(f"ds_write_b32 v{SV+3}, v{SV+6} offset:{FWL}")
    A(f"v_mul_f32 v{SV+5}, v{SV+7}, v{SV+6}")
    A(f"ds_read_b128 {r4(FW)}, v{SV} offset:{FWL}"); A(f"ds_read_b128 {r4(FW+4)}, v{SV} offset:{FWL+16}")
    for s_ in STEPS:
        A(f"v_add_f32_dpp v{SV+5}, v{SV+5}, v{SV+5} {s_} {DPPF}"); A("s_nop 1")
    A(f"v_mov_b32 v{SV+6}, s{sC3}")
    tag4(SV + 4)
    A(f"s_mov_b32 s{sT0}, 0"); A(f"s_add_u32 s{sT3}, s{sSPIN}, {tmo}")
    stamp(4)
    A("s_barrier")
    OT = 128
    for w in range(8):
        A(f"ds_read_b128 {r4(OT+4*w)}, v{vK} offset:{OS+w*1024}")
    A("s_mov_b64 exec, 0xffff")
    A(f"buffer_store_dwordx4 {r4(SV+4)}, v{SV+1}, {srd(WS)}, s{sPC} offen offset:64")
    A("s_mov_b64 exec, -1")
    for w in range(8):
        A(f"s_waitcnt lgkmcnt({7-w})")
        f = FW + (w & ~1); sel = w & 1
        for hlf in range(2):
            d = f"v[{OT+2*hlf}:{OT+2*hlf+1}]"; x = f"v[{OT+4*w+2*hlf}:{OT+4*w+2*hlf+1}]"
            if w == 0: A(f"v_pk_mul_f32 {d}, {x}, v[{f}:{f+1}] op_sel:[0,{sel}] op_sel_hi:[1,{sel}]")
            else: A(f"v_pk_fma_f32 {d}, {x}, v[{f}:{f+1}], {d} op_sel:[0,{sel},0] op_sel_hi:[1,{sel},1]")
    tag4(OT)
    A(f"buffer_store_dwordx4 {r4(OT)}, v{vV}, {srd(WS)}, s{sPC} offen")
    POLL = [f"buffer_load_dwordx4 {r4(PL)}, v{vA2}, {srd(WS)}, s{sT2} offen sc1",
            f"buffer_load_dwordx4 {r4(PL+4)}, v{vA1}, {srd(WS)}, s{sT2} offen offset:64 sc1"]
    for c in POLL: A(c)
    if nwb < 5: A("s_barrier")
    stamp(6)
    A(f"s_waitcnt vmcnt(4)")
    w2_mfmas()
    A("s_branch L_pollo1")
    def safe_o():
        A(f"s_mul_i32 s{sT1}, s2, 1280"); A(f"s_add_u32 s{sT1}, s{sT1}, s{sSF}"); A(f"s_add_u32 s{sT1}, s{sT1}, {SAFO}")
        A(f"buffer_store_dwordx4 {r4(OT)}, v{vV}, {srd(WS)}, s{sT1} offen sc1")
        A("s_mov_b64 exec, 0xffff")
        A(f"buffer_store_dwordx4 {r4(SV+4)}, v{SV+1}, {srd(WS)}, s{sT1} offen offset:64 sc1")
        A("s_mov_b64 exec, -1")
        A(f"s_mov_b32 s{sT0}, 1")
    m, l, M = PL + 4, PL + 5, TT + 1
    A("L_otmo:")
    A(f"s_cmp_lg_u32 s{sT0}, 0"); A("s_cbranch_scc1 L_goto")
    safe_p1("o")
    A("s_setprio 3")
    safe_o()
    A(f"v_mul_u32_u24 v{SV+12}, 1280, v{SV+12}"); A(f"v_lshl_add_u32 v{SV+13}, v{vT0}, 4, v{SV+12}")
    A(f"s_add_u32 s{sC1}, s{sT2}, s{sSF}"); A(f"s_add_u32 s{sC1}, s{sC1}, {SAFO}"); A(f"s_add_u32 s{sT3}, s{sSPIN}, {spin}")
    A("s_branch L_oswap")
    A("L_oretry:")
    A("s_cbranch_scc1 L_otmo")
    A(f"s_cmp_eq_u32 s{sT0}, 0"); A("s_cbranch_scc1 L_pollo")
    A("L_oswap:")
    A(f"v_swap_b32 v{vA1}, v{SV+12}"); A(f"v_swap_b32 v{vA2}, v{SV+13}")
    A(f"s_mov_b32 s{sT1}, s{sT2}"); A(f"s_mov_b32 s{sT2}, s{sC1}"); A(f"s_mov_b32 s{sC1}, s{sT1}")
    A("L_pollo:")
    if psleep: A(f"s_sleep {psleep}")
    for c in POLL: A(c)
    A("L_pollo1:")
    A(f"s_add_u32 s{sSPIN}, s{sSPIN}, 1"); A(f"s_cmp_gt_u32 s{sSPIN}, s{sT3}")
    A("s_waitcnt vmcnt(0)")
    rg = [PL + 4 + i for i in range(4)] + [PL + i for i in range(4)]
    untag_check(rg, rg, [vTAG] * 8, TT + 1)
    A(f"v_max_f32_dpp v{M}, v{m}, v{m} {STEPS[0]} {DPPF}")
    A("s_cbranch_vccnz L_oretry")
    A(f"v_cmp_ne_u32 vcc, s{sC3}, v{PL+6}")
    A("s_cbranch_vccz L_goto")
    A(f"s_cmp_lg_u32 s{sT0}, 0"); A("s_cbranch_scc1 L_goto")
    safe_o()
    A("L_goto:")
    if hat == 'goto': A(f"s_mov_b64 exec, s[{sUS}:{sUS+1}]"); A(f"buffer_store_dword v{vTAG}, v{SV+14}, {srd(WS)}, s{sUO} offen sc1"); A("s_mov_b64 exec, -1")
    stamp(9)
    A(f"v_max_f32_dpp v{M}, v{M}, v{M} {STEPS[1]} {DPPF}"); A("s_nop 1")
    A(f"v_max_f32_dpp v{M}, v{M}, v{M} {STEPS[2]} {DPPF}")
    A(f"v_sub_f32 v{m}, v{m}, v{M}"); A(f"v_mul_f32 v{m}, s{sLOG2E}, v{m}"); A(f"v_exp_f32 v{m}, v{m}"); A("s_nop 0")
    A(f"v_mul_f32 v{l}, v{l}, v{m}")
    for v in range(4): A(f"v_mul_f32 v{PL+v}, v{PL+v}, v{m}")
    for s_ in STEPS:
        for r in (l, PL, PL + 1, PL + 2, PL + 3):
            A(f"v_add_f32_dpp v{r}, v{r}, v{r} {s_} {DPPF}")
    A(f"v_rcp_f32 v{l}, v{l}"); A("s_mov_b64 exec, s[0:1]")
    for v in range(4): A(f"v_mul_f32 v{PL+v}, v{PL+v}, v{l}")
    for v in range(4): A(f"v_cvt_pk_bf16_f32 v{PL+v}, v{PL+v}, v{PL+v}")
    A(f"ds_write_b128 v{vT1}, {r4(PL)} offset:{ZL}")
    A("s_mov_b64 exec, -1")
    A("s_waitcnt lgkmcnt(0)")
    if hat == 'z': A(f"s_mov_b64 exec, s[{sUS}:{sUS+1}]"); A(f"buffer_store_dword v{vTAG}, v{SV+14}, {srd(WS)}, s{sUO} offen sc1"); A("s_mov_b64 exec, -1")
    A("s_barrier")
    stamp(13)
    A(f"ds_read_b128 {r4(PL)}, v{vT1} offset:{ZL}")
    if hat == 'b5': A(f"s_mov_b64 exec, s[{sUS}:{sUS+1}]"); A(f"buffer_store_dword v{vTAG}, v{SV+14}, {srd(WS)}, s{sUO} offen sc1"); A("s_mov_b64 exec, -1")
    A("s_waitcnt lgkmcnt(0)")

    A("s_branch L_tail")
    svc = L[svc0:]; del L[svc0:]
    A("L_tail:")
    for n in range(2):
        for rho in range(2):
            gemv_mfma(PL + 2 * n + rho, WL + 12 + 4 * n, D1 if rho == 0 else D2, False)
    A("s_nop 7")
    for v in range(4):
        A(f"v_add_f32_dpp v{D1+v}, v{D2+v}, v{D1+v} row_ror:8 {DPPF}")
    tag4(D1)
    A(f"s_mov_b64 exec, s[{sMASK}:{sMASK+1}]")
    A(f"buffer_store_dwordx4 {r4(D1)}, v{TT}, {srd(WS)}, s{sC2} offen sc1")
    A("s_mov_b64 exec, -1")
    stamp(10)
    if hat == 'fp':
        A("s_cmp_lg_u32 s3, 8"); A("s_cbranch_scc1 L_nh")
        A(f"s_mov_b64 exec, s[{sUS}:{sUS+1}]"); A(f"buffer_store_dword v{vTAG}, v{SV+14}, {srd(WS)}, s{sUO} offen sc1"); A("s_mov_b64 exec, -1")
        A("L_nh:")
    A(f"s_cmp_lg_u32 s{sCK}, 0"); A("s_cbranch_scc1 L_fin")
    A("s_cmp_eq_u32 s3, 8"); A("s_cbranch_scc1 L_final")
    A(f"v_lshrrev_b32 v{TT}, 3, v0"); A(f"s_lshl_b32 s{sT0}, s3, 5"); A(f"v_add_u32 v{TT}, s{sT0}, v{TT}")
    A(f"v_mul_u32_u24 v{TT}, {REC}, v{TT}"); A(f"v_and_b32 v{TT+1}, 7, v0"); A(f"v_lshl_add_u32 v{TT}, v{TT+1}, 4, v{TT}")
    A(f"s_lshl_b32 s{sT0}, s{sSL}, 7"); A(f"s_add_u32 s{sT0}, s{sT0}, {FPO}")
    A(f"s_add_u32 s{sC1}, s{sT0}, {8*REC}"); A(f"s_add_u32 s{sC2}, s{sT0}, {16*REC}"); A(f"s_add_u32 s{sC3}, s{sT0}, {24*REC}")
    A(f"s_add_u32 s{sT3}, s{sSPIN}, {spin}")
    A(f"v_bfe_u32 v{TT+2}, v0, 3, 2"); A(f"v_lshlrev_b32 v{TT+2}, 2, v{TT+2}"); A(f"v_lshl_add_u32 v{TT+2}, v{TT+1}, 4, v{TT+2}")
    A(f"s_lshl_b32 s{sT1}, s3, 7"); A(f"v_add_u32 v{TT+2}, s{sT1}, v{TT+2}")
    A(f"s_lshl3_add_u32 s{sT1}, s{sSL}, s3"); A(f"s_lshl_b32 s{sT1}, s{sT1}, 7"); A(f"s_add_u32 s{sT1}, s{sT1}, {HINT}")
    if hsc:
        A(f"s_and_b32 s{sT2}, s{sEP}, s{sTM}")
        A("L_hint:")
        A(f"s_load_dwordx2 s[{sUS}:{sUS+1}], s[{WS}:{WS+1}], s{sT1} glc")
        A(f"s_add_u32 s{sSPIN}, s{sSPIN}, 1"); A(f"s_cmp_gt_u32 s{sSPIN}, s{sT3}"); A("s_cbranch_scc1 L_hok")
        A("s_waitcnt lgkmcnt(0)")
        A(f"s_cmp_lg_u32 s{sUS}, s{sT2}"); A("s_cbranch_scc1 L_hint")
        A(f"s_cmp_lg_u32 s{sUS+1}, s{sT2}"); A("s_cbranch_scc1 L_hint")
        A("L_hok:")
    else:
        A(f"v_mov_b32 v{TT+3}, 0")
        A("s_mov_b64 exec, 1")
        if not usehint: A("s_branch L_hok")
        A("L_hint:")
        A(f"buffer_load_dwordx2 {r2(FC)}, v{TT+3}, {srd(WS)}, s{sT1} offen sc1")
        A(f"s_add_u32 s{sSPIN}, s{sSPIN}, 1"); A(f"s_cmp_gt_u32 s{sSPIN}, s{sT3}")
        A("s_waitcnt vmcnt(0)")
        A(f"v_xor_b32 v{FC}, v{vTAG}, v{FC}"); A(f"v_xor_b32 v{FC+1}, v{vTAG}, v{FC+1}"); A(f"v_or_b32 v{FC}, v{FC}, v{FC+1}")
        A(f"v_cmp_ne_u32 vcc, 0, v{FC}")
        A("s_cbranch_scc1 L_hok")
        A("s_cbranch_vccnz L_hint")
        A("L_hok:")
        A("s_mov_b64 exec, -1")
    stamp(7)
    SO = (sT0, sC1, sC2, sC3)
    if psel == 1:
        FB = FC + 16
        for q in range(4): A(f"buffer_load_dwordx4 {r4(FB+4*q)}, v{TT}, {srd(WS)}, s{SO[q]} offen sc1")
        for hf in range(2):
            d = [FC + 8 * hf + i for i in range(8)]
            bufs = [FB + 8 * hf, FB + 16 + 8 * hf]
            def iss(bb):
                for q in range(2): A(f"buffer_load_dwordx4 {r4(bb+4*q)}, v{TT}, {srd(WS)}, s{SO[2*hf+q]} offen sc1")
            A(f"s_waitcnt vmcnt({2 if hf == 0 else 0})")
            untag_check(d, [bufs[0] + i for i in range(8)], [vTAG] * 8, TT + 1)
            A(f"s_cbranch_vccz L_h{hf}ok")
            iss(bufs[0])
            A(f"L_h{hf}:")
            for k in range(2):
                iss(bufs[1 - k])
                if k == 0: A(f"s_add_u32 s{sSPIN}, s{sSPIN}, 1"); A(f"s_cmp_gt_u32 s{sSPIN}, s{sT3}")
                A("s_waitcnt vmcnt(2)")
                untag_check(d, [bufs[k] + i for i in range(8)], [vTAG] * 8, TT + 1)
                if k == 0: A(f"s_cbranch_vccz L_h{hf}ok")
                else: A(f"s_cbranch_scc1 L_h{hf}ok"); A(f"s_cbranch_vccnz L_h{hf}")
            A(f"L_h{hf}ok:")
    elif psel == 2:
        for q in range(4): A(f"buffer_load_dwordx4 {r4(FC+4*q)}, v{TT}, {srd(WS)}, s{SO[q]} offen sc1")
        for q in range(4):
            rg = [FC + 4 * q + i for i in range(4)]
            A(f"s_waitcnt vmcnt({3-q})")
            A(f"s_branch L_q{q}c")
            A(f"L_q{q}:")
            A(f"buffer_load_dwordx4 {r4(FC+4*q)}, v{TT}, {srd(WS)}, s{SO[q]} offen sc1")
            A(f"s_add_u32 s{sSPIN}, s{sSPIN}, 1"); A(f"s_cmp_gt_u32 s{sSPIN}, s{sT3}"); A(f"s_cbranch_scc1 L_gotf")
            A("s_waitcnt vmcnt(0)")
            A(f"L_q{q}c:")
            untag_check(rg, rg, [vTAG] * 4, TT + 1)
            A(f"s_cbranch_vccnz L_q{q}")
    else:
        A("L_pollf:")
        for q, so in enumerate((sT0, sC1, sC2, sC3)):
            A(f"buffer_load_dwordx4 {r4(FC+4*q)}, v{TT}, {srd(WS)}, s{so} offen sc1")
        A(f"s_add_u32 s{sSPIN}, s{sSPIN}, 1"); A(f"s_cmp_gt_u32 s{sSPIN}, s{sT3}")
        A("s_waitcnt vmcnt(0)")
        rg = [FC + i for i in range(16)]
        untag_check(rg, rg, [vTAG] * 16, TT + 1)
        A("s_cbranch_scc1 L_gotf")
        A("s_cbranch_vccnz L_pollf")
    A("L_gotf:")
    stamp(9)
    for hlf in range(2):
        A(f"v_pk_add_f32 {r2(FC+2*hlf)}, {r2(FC+2*hlf)}, {r2(FC+4+2*hlf)}"); A(f"v_pk_add_f32 {r2(FC+8+2*hlf)}, {r2(FC+8+2*hlf)}, {r2(FC+12+2*hlf)}")
    for hlf in range(2):
        A(f"v_pk_add_f32 {r2(FC+2*hlf)}, {r2(FC+2*hlf)}, {r2(FC+8+2*hlf)}")
    a, b = FC + 4, FC + 5
    A("s_nop 0")
    A(f"v_add_f32_dpp v{a}, v{FC}, v{FC} row_ror:8 row_mask:0xf bank_mask:0x3")
    A(f"v_add_f32_dpp v{a}, v{FC+1}, v{FC+1} row_ror:8 row_mask:0xf bank_mask:0xc")
    A(f"v_add_f32_dpp v{b}, v{FC+2}, v{FC+2} row_ror:8 row_mask:0xf bank_mask:0x3")
    A(f"v_add_f32_dpp v{b}, v{FC+3}, v{FC+3} row_ror:8 row_mask:0xf bank_mask:0xc")
    A("s_nop 1")
    A(f"v_permlane16_swap_b32 v{a}, v{b}")
    A("s_nop 1")
    A(f"v_add_f32 v{a}, v{a}, v{b}")
    swap_red(a, b, "v_add_f32", "v_permlane32_swap_b32")
    A(f"ds_write_b32 v{TT+2}, v{a} offset:{FS}")
    A("s_waitcnt lgkmcnt(0)")
    A("s_barrier")
    A("s_branch L_fin")
    A("L_final:")
    A(f"v_lshlrev_b32 v{TT}, 3, v0")
    A(f"v_lshlrev_b32 v{TT+2}, 16, v{SV+21}"); A(f"v_and_b32 v{TT+3}, 0xffff0000, v{SV+21}")
    A(f"v_mov_b32 v{TT+1}, s{sEP}"); A(f"v_mov_b32 v{SV}, {EP}")
    A(f"s_cmp_eq_u32 s2, 0"); A(f"s_cselect_b32 s{sT0}, 0, {HUGE}")
    A("s_mov_b64 exec, 0xffff")
    A("s_barrier")
    for w in range(8):
        A(f"ds_read_b64 {r2(80+2*w)}, v{TT} offset:{FS+128*w}")
    for w in range(8):
        A(f"s_waitcnt lgkmcnt({7-w})")
        A(f"v_pk_add_f32 {r2(TT+2)}, {r2(TT+2)}, {r2(80+2*w)}")
    A(f"v_cvt_pk_bf16_f32 v{TT+2}, v{TT+2}, v{TT+3}")
    A(f"buffer_store_dword v{TT+2}, v{SV+20}, {srd(OUT)}, 0 offen")
    A("s_mov_b64 exec, 1")
    A(f"buffer_store_dword v{TT+1}, v{SV}, {srd(WS)}, s{sT0} offen sc1")
    A("L_fin:")
    if stamps:
        stamp(11)
        A("s_mov_b64 exec, -1")
        A("s_waitcnt vmcnt(0) lgkmcnt(0)")
        A(f"s_mul_i32 s{sT0}, s2, 9"); A(f"s_add_u32 s{sT0}, s{sT0}, s3"); A(f"s_lshl_b32 s{sT0}, s{sT0}, 7"); A(f"s_add_u32 s{sT0}, s{sT0}, {STAMP}")
        for i in range(14):
            A(f"v_mov_b32 v{104+2*i}, s{stamp_reg(i)}"); A(f"v_mov_b32 v{105+2*i}, s{stamp_reg(i)+1}")
        A(f"v_mov_b32 v132, s{sSPIN}")
        A("s_getreg_b32 s76, hwreg(HW_REG_XCC_ID)"); A("v_mov_b32 v133, s76"); A("v_mov_b32 v134, 0"); A("v_mov_b32 v135, 0")
        A("v_mov_b32 v100, 0")
        A("s_mov_b64 exec, 1")
        for i in range(8):
            A(f"buffer_store_dwordx4 {r4(104+4*i)}, v100, {srd(WS)}, s{sT0} offen offset:{16*i}")
    A("L_end:")
    A("s_endpgm")
    L.extend(svc)
    A(".p2align 6")
    A(".type L_tab,@object"); A(".size L_tab, 1024")
    A("L_tab:")
    tb = unit_table(split, slabs)
    for i in range(0, 256, 8): A(".long " + ", ".join(f"{x:#x}" for x in tb[i:i+8]))
    A('.section .rodata,"a"'); A(".p2align 6"); A(f".amdhsa_kernel {NAME}")
    A("  .amdhsa_next_free_vgpr 168"); A("  .amdhsa_next_free_sgpr 102"); A("  .amdhsa_accum_offset 168")
    A("  .amdhsa_group_segment_fixed_size 0"); A("  .amdhsa_kernarg_size 96"); A("  .amdhsa_user_sgpr_count 2")
    A("  .amdhsa_user_sgpr_kernarg_segment_ptr 1"); A("  .amdhsa_system_sgpr_workgroup_id_x 1")
    A(".end_amdhsa_kernel")
    return "\n".join(L) + "\n"


if __name__ == "__main__":
    kw = eval("dict(%s)" % (sys.argv[2] if len(sys.argv) > 2 else ""))
    open(sys.argv[1], "w").write(gen(**kw))
```

```python
import sys
NAME = "parallel_sum__sliding_block_cached__glu_gated_swiglu__decode_kernel"

HEADER = """; Fused decode step: out = x + Attn(LN(x)) + SwiGLU(LN(x)); one launch, 256 workgroups x 9 waves.
;
;
"""

OS = 0
S1 = 0
FS = 8192
QL = 9216
HD = QL + 512
MW = HD + 256
ZL = MW + 128
FWL = ZL + 128
TG = FWL + 64
QF = TG + 4
XN = 10368
assert QF + 4 <= XN
LDS_BYTES = XN + 4608
REC = 6144
FPO = 1536
EP = 1408
P1 = 3 << 19
P1B = 13312 * 4
P1P = 2 * P1B
HINT = (7 << 18) + (1 << 16)
STAMP = 2 << 20
SAFE = 4 << 20
SAFO = 1 << 18
WS_BYTES = 68 << 20
HUGE = 0x40000000
LOG2E = 0x3FB8AA3B
SCALE = 0x3DB504F3
TMASK = 0x3FF
STAMP_NAMES = ["start", "karg", "Bt/B0", "B1", "qgot", "sm", "Vend", "s7", "s8", "gotO", "FPst", "end", "x/B4", "B5"]

X, K, V, SU, WO, W2, OUT, WS = [4 + 4 * i for i in range(8)]
SRD_INFO = {X: (0, 2304), K: (2, 1 << 28), V: (4, 1 << 28), WO: (8, 4096 * 1152),
            W2: (16, 4608 * 1152), OUT: (18, 2304), WS: (22, WS_BYTES)}
sPS, sSP, sPM = 36, 37, 38
sSF = 40
sPC = 42
sU, sRB = 46, 47
sHKV, sJ, sB, sS, sSL, sCK = 48, 49, 50, 51, 52, 53
sT0, sT1, sT2, sT3 = 54, 55, 56, 57
sHASH = 58
sUO, sUS = 59, 60
sTB = 62
sLOG2E = 63
sSPIN = 64
sTM = 65
sC1, sC2, sC3 = 66, 67, 68
sEP = 69
sMASK = 70
sROW, sNSL = 74, 75
KA = 76
def stamp_reg(i): return {0: 100, 1: 72}.get(i, KA + 2 * (i - 2))

vK, vV, vA1, vA2 = 1, 2, 3, 4
MK = 5
vT0, vT1, vT2 = 9, 10, 11
A0, A1 = 12, 16
ACC, D1, D2 = 20, 24, 28
SR = 32
QB = 36
KR = 40
VR = 104
def kreg(t): return KR + 4 * t
def vreg(t): return VR + 4 * t
XA = 32
S1D = 132
WL = 40
PL = 60
HV = 68
vTAG = 74
vA3 = 75
TT = 76
vOS = 80
vA4 = 94
FC = 104
SV = 104


def r4(b): return f"v[{b}:{b+3}]"
def r2(b): return f"v[{b}:{b+1}]"
def srd(b): return f"s[{b}:{b+3}]"
DPPF = "row_mask:0xf bank_mask:0xf"
STEPS = ("quad_perm:[1,0,3,2]", "quad_perm:[2,3,0,1]", "row_half_mirror")


def unit_table(split, slabs):
    tab = []
    assert sum(slabs) == 72
    NSG = [(slabs[h >> 1] + (h & 1)) // 2 for h in range(16)]
    def place(g, left):
        if not left: return {}
        seen = set()
        for h in left:
            key = (NSG[h], h & 1)
            if key in seen: continue
            seen.add(key)
            slow = 2 * sum((g + i) % 8 == 3 for i in range(NSG[h])) + (1 - (h & 1))
            if slow > 12 - 2 * NSG[h]: continue
            r = place(g + NSG[h], [x for x in left if x != h])
            if r is not None:
                r[h] = g; return r
        return None
    G0 = place(0, list(range(16)))
    if G0 is None:
        G0 = {h: sum(NSG[:h]) for h in range(16)}; print("no clean placement", file=sys.stderr)
    for hkv in range(16):
        g0 = G0[hkv]; ns = NSG[hkv]
        assert 3 <= ns <= 6
        units = [4 * hkv + i for i in range(4)] + [64 + g0 + i for i in range(ns)] + [136 + g0 + i for i in range(ns)]
        cls = lambda u: (u - (0 if u < 64 else 64 if u < 136 else 136)) & 7
        nfree = 16 - len(units)
        order = sorted(units, key=lambda u: 0 if cls(u) == 3 else 1)
        nsp = min(nfree, {"c3": sum(cls(u) == 3 for u in units), "all": nfree, "none": 0}[split])
        sp = order[:nsp]
        ent = []
        for u in units:
            if u in sp: ent.append(u | (0x01f << 8))
            else: ent.append(u | (0x1ff << 8) | (1 << 18))
        for u in sp: ent.append(u | (0x1e0 << 8) | (1 << 17))
        while len(ent) < 16: ent.append(255)
        tab += [e | (ns << 19) | (g0 << 22) for e in ent[0::2] + ent[1::2]]
    return tab


def gen(depth=4, b2=11, pre=2, nwb=2, stamps=False, pol=" nt", spin=100000, mlsleep=4, tmo=40, gtmo=12, split="all",
        xg=True, dry=False, psel=0, usehint=True, hat='fp', hsc=True, npf=1, tlb=False, psleep=0, slabs=(10, 10, 10, 10, 8, 8, 8, 8), hold=None):
    L = []
    A = L.append

    def stamp(i):
        if stamps:
            r = stamp_reg(i)
            A(f"s_memrealtime s[{r}:{r+1}]")

    def srd_const(d):
        A(f"s_mov_b32 s{d+2}, {SRD_INFO[d][1]}"); A(f"s_mov_b32 s{d+3}, 0x00020000")

    def srd_ptr(d):
        o = KA + SRD_INFO[d][0]
        A(f"s_mov_b64 s[{d}:{d+1}], s[{o}:{o+1}]")

    def consts():
        A(f"s_mov_b32 s{sLOG2E}, {LOG2E:#x}"); A(f"s_mov_b32 s{sSPIN}, 0"); A(f"s_movk_i32 s{sTM}, {TMASK:#x}")
        A(f"s_mov_b32 s{sMASK}, 0x00ff00ff"); A(f"s_mov_b32 s{sMASK+1}, 0x00ff00ff")
        A(f"s_mul_i32 s{sSL}, s2, 9363"); A(f"s_lshr_b32 s{sSL}, s{sSL}, 16")
        A(f"s_mul_i32 s{sT0}, s{sSL}, 7"); A(f"s_sub_u32 s{sCK}, s2, s{sT0}")
        A("s_cmp_ge_u32 s2, 252"); A(f"s_cselect_b32 s{sCK}, 1, s{sCK}")

    def masks(tmp):
        A(f"v_and_b32 v{vT2}, 1, v0"); A(f"v_lshlrev_b32 v{vT2}, 4, v{vT2}")
        A(f"v_mov_b32 v{MK}, 0xffff"); A(f"v_lshlrev_b32 v{vT2}, v{vT2}, v{MK}")
        A(f"v_bfe_u32 v{tmp}, v0, 1, 2")
        for j in range(4):
            A(f"v_cmp_eq_u32 vcc, {j}, v{tmp}"); A("s_nop 1"); A(f"v_cndmask_b32 v{MK+j}, 0, v{vT2}, vcc")

    def table_load(tag):
        A(f"s_getpc_b64 s[{sPC}:{sPC+1}]")
        A(f"L_pc{tag}:")
        A(f"s_lshl_b32 s{sPC+2}, s2, 2"); A(f"s_add_u32 s{sPC+2}, s{sPC+2}, L_tab-L_pc{tag}")
        A(f"s_load_dword s{sTB}, s[{sPC}:{sPC+1}], s{sPC+2}")

    def group_ids():
        A(f"s_bfe_u32 s{sNSL}, s{sTB}, 0x30013"); A(f"s_lshr_b32 s{sT1}, s{sTB}, 22")
        A(f"s_mul_i32 s{sROW}, s{sNSL}, s{sJ}"); A(f"s_lshl4_add_u32 s{sROW}, s{sT1}, s{sROW}"); A(f"s_lshl_b32 s{sROW}, s{sROW}, 2")

    def tag4(r):
        for v in range(4): A(f"v_bfi_b32 v{r+v}, s{sTM}, v{vTAG}, v{r+v}")

    def untag_check(dst, src, tags, acc):
        for d, r, t in zip(dst, src, tags): A(f"v_xor_b32 v{d}, v{t}, v{r}")
        A(f"v_or3_b32 v{acc}, v{dst[0]}, v{dst[1]}, v{dst[2]}")
        rest = dst[3:]
        while len(rest) >= 2:
            A(f"v_or3_b32 v{acc}, v{acc}, v{rest[0]}, v{rest[1]}"); rest = rest[2:]
        if rest: A(f"v_or_b32 v{acc}, v{acc}, v{rest[0]}")
        A(f"v_and_b32 v{acc}, s{sTM}, v{acc}")
        A(f"v_cmp_ne_u32 vcc, 0, v{acc}")

    def bf16r(dst, src):
        A(f"v_cvt_pk_bf16_f32 v{dst}, v{src}, v{src}"); A(f"v_and_b32 v{dst}, 0xffff0000, v{dst}")

    def swap_red(r, t, op, sw):
        A(f"v_mov_b32 v{t}, v{r}"); A("s_nop 1"); A(f"{sw} v{r}, v{t}"); A("s_nop 1"); A(f"{op} v{r}, v{r}, v{t}")

    def allred32(r, t, op="v_add_f32"):
        for n in (1, 2, 4, 8):
            A("s_nop 1"); A(f"{op}_dpp v{r}, v{r}, v{r} row_ror:{n} {DPPF}")
        swap_red(r, t, op, "v_permlane16_swap_b32")

    def allred_banks_rows(r, t, op):
        for n in (4, 8):
            A("s_nop 1"); A(f"{op}_dpp v{r}, v{r}, v{r} row_ror:{n} {DPPF}")
        swap_red(r, t, op, "v_permlane16_swap_b32"); swap_red(r, t, op, "v_permlane32_swap_b32")

    aflip = [0]
    def gemv_mfma(val, data, acc, first):
        a = A0 if aflip[0] == 0 else A1
        aflip[0] ^= 1
        for j in range(4):
            A(f"v_and_b32 v{a+j}, v{val}, v{MK+j}")
        A("s_nop 1")
        A(f"v_mfma_f32_16x16x32_bf16 {r4(acc)}, {r4(a)}, {r4(data)}, {'0' if first else r4(acc)}")

    def w2_mfmas():
        for n in range(3):
            for rho in range(2):
                gemv_mfma(HV + 2 * n + rho, WL + 4 * n, D1 if rho == 0 else D2, n == 0)

    LATE = [f"buffer_load_dwordx4 {r4(WL)}, v{vA2}, {srd(W2)}, 0 offen{pol}",
            f"buffer_load_dwordx4 {r4(WL+4)}, v{vA4}, {srd(W2)}, 0 offen{pol}",
            f"buffer_load_dwordx4 {r4(WL+8)}, v{vA3}, {srd(W2)}, 0 offen{pol}",
            f"buffer_load_dwordx4 {r4(WL+12)}, v{vA1}, {srd(WO)}, 0 offen{pol}",
            f"buffer_load_dwordx4 {r4(WL+16)}, v{vA1}, {srd(WO)}, 0 offen offset:2304{pol}"]

    def late_addr():
        A(f"v_bfe_u32 v{vT2}, v0, 3, 1")
        A(f"v_lshl_add_u32 v{vA1}, v{vT0}, 2, v{vT2}")
        A(f"s_lshl_b32 s{sT1}, s2, 4"); A(f"v_add_u32 v{vA1}, s{sT1}, v{vA1}")
        A(f"v_mul_u32_u24 v{vA1}, 1152, v{vA1}")
        A(f"v_lshl_add_u32 v{vA2}, v{vT0}, 1, v{vT2}")
        A(f"v_add_u32 v{vA2}, s{sROW}, v{vA2}")
        A(f"v_mul_u32_u24 v{vA2}, 1152, v{vA2}")
        A(f"v_and_b32 v{vT2}, 7, v0"); A(f"v_lshlrev_b32 v{vT2}, 4, v{vT2}")
        A(f"s_lshl_b32 s{sT1}, s3, 7"); A(f"v_add_u32 v{vT2}, s{sT1}, v{vT2}")
        A(f"v_add_u32 v{vA1}, v{vA1}, v{vT2}"); A(f"v_add_u32 v{vA2}, v{vA2}, v{vT2}")

    def tail_addr():
        A(f"s_lshl_b32 s{sT1}, s{sNSL}, 1"); A(f"v_mov_b32 v{TT}, {HUGE}")
        for n_, r_ in ((1, vA4), (2, vA3)):
            A(f"s_sub_i32 s{sT1}, s{sT1}, 4")
            A(f"v_cmp_gt_i32 vcc, s{sT1}, v{vT0}"); A(f"v_add_u32 v{r_}, {8*n_*1152}, v{vA2}"); A("s_nop 0")
            A(f"v_cndmask_b32 v{r_}, v{TT}, v{r_}, vcc")
        A(f"v_lshrrev_b32 v{TT}, 1, v{vT0}"); A(f"v_mul_u32_u24 v{TT}, 2304, v{TT}")
        A(f"v_and_b32 v{TT+1}, 7, v0"); A(f"v_lshl_add_u32 v{TT}, v{TT+1}, 5, v{TT}")
        A(f"v_and_b32 v{TT+1}, 1, v{vT0}"); A(f"v_lshl_add_u32 v{TT}, v{TT+1}, 4, v{TT}")
        A(f"s_mul_i32 s{sC2}, s2, {REC}"); A(f"s_lshl_b32 s{sT1}, s3, 8"); A(f"s_add_u32 s{sC2}, s{sC2}, s{sT1}"); A(f"s_add_u32 s{sC2}, s{sC2}, {FPO}")
        A(f"v_bfe_u32 v{TT+1}, v0, 3, 1"); A(f"v_lshlrev_b32 v{TT+1}, 7, v{TT+1}"); A(f"v_lshl_add_u32 v{TT+1}, v{vT0}, 3, v{TT+1}")
        for i in range(3):
            A(f"ds_read_b64 {r2(HV+2*i)}, v{TT+1} offset:{HD+32*i}")
        A(f"v_lshrrev_b32 v{vT1}, 3, v0"); A(f"v_lshlrev_b32 v{vT1}, 4, v{vT1}")
        A(f"s_and_b32 s{sT1}, s{sEP}, s{sTM}"); A(f"v_mov_b32 v{vTAG}, s{sT1}")

    A(HEADER.rstrip("\n"))
    A(f"; @launch grid=(256,1,1) block=(576,1,1) lds={LDS_BYTES}")
    A('.amdgcn_target "amdgcn-amd-amdhsa--gfx950"')
    A(".text"); A(f".globl {NAME}"); A(".p2align 8"); A(f".type {NAME},@function"); A(f"{NAME}:")
    stamp(0)
    if hold: A("s_memrealtime s[100:101]")
    A(f"s_load_dwordx16 s[{KA}:{KA+15}], s[0:1], 0")
    A(f"s_load_dwordx8 s[{KA+16}:{KA+23}], s[0:1], 64")
    A("v_lshrrev_b32 v1, 6, v0")
    A("s_cmp_ge_u32 s2, 256"); A("s_cbranch_scc1 L_end")
    A("v_readfirstlane_b32 s3, v1")
    A("v_and_b32 v0, 63, v0")
    if xg:
        A(f"s_and_b32 s{sT0}, s2, 7"); A(f"s_lshl_b32 s{sT0}, s{sT0}, 5"); A("s_lshr_b32 s2, s2, 3"); A(f"s_add_u32 s2, s2, s{sT0}")
    A(f"s_lshr_b32 s{sHKV}, s2, 4"); A(f"s_and_b32 s{sJ}, s2, 15"); A(f"s_lshr_b32 s{sB}, s{sJ}, 3"); A(f"s_and_b32 s{sS}, s2, 7")
    A(f"v_lshrrev_b32 v{vT0}, 4, v0")
    A("s_cmp_eq_u32 s3, 8"); A("s_cbranch_scc1 L_service")

    srd_const(K)
    A(f"s_lshl4_add_u32 s{sT0}, s{sB}, s{sHKV}"); A(f"s_lshl_b32 s{sT0}, s{sT0}, 6"); A(f"s_add_u32 s{sT0}, s{sT0}, s{sS}")
    A(f"s_lshl_b32 s{sT0}, s{sT0}, 7"); A(f"s_add_u32 s{sT0}, s{sT0}, s3"); A(f"s_addk_i32 s{sT0}, {7 << 10}"); A(f"s_lshl_b32 s{sT2}, s{sT0}, 10")
    A(f"v_and_b32 v{vK}, 3, v0"); A(f"v_lshl_add_u32 v{vK}, v{vK}, 4, s{sT2}")
    A(f"v_bfe_u32 v{vT1}, v0, 2, 2"); A(f"v_lshl_add_u32 v{vK}, v{vT1}, 8, v{vK}")
    A(f"v_lshl_add_u32 v{vK}, v{vT0}, 6, v{vK}")
    A(f"s_lshl3_add_u32 s{sT0}, s2, s3"); A(f"s_mul_i32 s{sHASH}, s{sT0}, 0x9E3779B1")
    A(f"s_bfe_u32 s{sHASH}, s{sHASH}, 0x40018"); A(f"s_lshl_b32 s{sHASH}, s{sHASH}, 13")
    A("s_waitcnt lgkmcnt(0)")
    stamp(1)
    srd_ptr(K)

    def kvld(nm, t, reg, va, sr):
        return (f"{nm}{t}", [f"s_xor_b32 s{sT0}, s{sHASH}, {t << 13}", f"buffer_load_dwordx4 {r4(reg)}, v{va}, {srd(sr)}, s{sT0} offen{pol}"])
    loads = [kvld("K", t, kreg(t), vK, K) for t in range(pre)]
    for k in range(9):
        c = [f"s_bitcmp1_b32 s{sTB}, {8+k}", f"s_cselect_b32 s{sT0}, s{sUO}, {HUGE}",
             f"buffer_load_dwordx4 {r4(S1D+4*k)}, v{vA1}, {srd(SU)}, s{sT0} offen{pol}"]
        if k < 8: c.append(f"s_add_u32 s{sUO}, s{sUO}, s{sUS}")
        loads.append((f"U{k}", c))
    loads += [kvld("K", t, kreg(t), vK, K) for t in range(pre, 16)]
    loads += [kvld("V", t, vreg(t), vV, V) for t in range(16)]
    loads += [(f"W{i}", [LATE[i]]) for i in range(5 if dry else nwb)]
    names = [n for n, _ in loads]

    def rest_of_prologue():
        A("; remaining set-up; stage-1 slab (matrix, columns, row blocks) comes from the table behind the code")
        A(f"v_lshl_add_u32 v{vV}, v0, 4, s{sT2}")
        for d in (V, WO, W2, WS): srd_const(d); srd_ptr(d)
        consts()
        masks(vT1)
        A(f"v_bfe_u32 v{vT2}, v0, 3, 1"); A(f"s_lshl_b32 s{sT1}, s3, 3")
        A(f"v_lshl_add_u32 v{vA1}, v{vT0}, 1, s{sT1}")
        A(f"v_mul_u32_u24 v{vA2}, 2304, v{vT2}"); A(f"v_lshl_add_u32 v{vA2}, v{vA1}, 2, v{vA2}")
        A(f"v_add_u32 v{vA1}, v{vA1}, v{vT2}")
        A(f"v_and_b32 v{vT1}, 7, v0"); A(f"v_lshlrev_b32 v{vT1}, 4, v{vT1}")
        A(f"s_mov_b32 s{SU+3}, 0x00020000")
        A("s_waitcnt lgkmcnt(0)")
        group_ids()
        A(f"s_and_b32 s{sU}, s{sTB}, 255")
        A(f"s_cmp_lt_u32 s{sU}, 136")
        A(f"s_cselect_b64 s[{SU}:{SU+1}], s[{KA+12}:{KA+13}], s[{KA+14}:{KA+15}]"); A(f"s_cselect_b32 s{sT1}, 64, 136")
        A(f"s_cmp_lt_u32 s{sU}, 64")
        A(f"s_cselect_b64 s[{SU}:{SU+1}], s[{KA+6}:{KA+7}], s[{SU}:{SU+1}]"); A(f"s_cselect_b32 s{sT1}, 0, s{sT1}")
        A(f"s_movk_i32 s{sRB}, 9216"); A(f"s_cselect_b32 s{sRB}, 8192, s{sRB}")
        A(f"s_mul_i32 s{SU+2}, s{sRB}, 576")
        A(f"s_sub_u32 s{sUO}, s{sU}, s{sT1}"); A(f"s_lshl_b32 s{sUO}, s{sUO}, 7"); A(f"s_lshl_b32 s{sUS}, s{sRB}, 6")
        A(f"v_mad_u32_u24 v{vA1}, v{vA1}, s{sRB}, v{vT1}")
        stamp(2)

    def qk_block():
        A("; ---- QK^T for the 16 tiles of this wave, scores rounded as the bf16 reference does, softmax against the wave's true max")
        A(f"v_bfe_u32 v{vT2}, v0, 1, 1"); A(f"v_lshlrev_b32 v{vT2}, 8, v{vT2}"); A(f"v_lshl_add_u32 v{vT2}, v{vT0}, 6, v{vT2}")
        A(f"v_bfe_u32 v{vT1}, v0, 2, 2"); A(f"v_lshl_add_u32 v{vT2}, v{vT1}, 4, v{vT2}")
        A(f"v_mov_b32 v{vT1}, 0")
        stamp(7)
        A("s_branch L_qwait1")
        A("L_qwait:")
        A("s_sleep 2")
        A("L_qwait1:")
        A(f"ds_read_b32 v{SR}, v{vT1} offset:{QF}")
        A(f"ds_read_b128 {r4(QB)}, v{vT2} offset:{QL}")
        A(f"s_add_u32 s{sSPIN}, s{sSPIN}, 1"); A(f"s_cmp_gt_u32 s{sSPIN}, {spin*16}")
        A("s_waitcnt lgkmcnt(0)")
        A(f"v_cmp_eq_u32 vcc, 0, v{SR}")
        A("s_cbranch_scc1 L_qgot")
        A("s_cbranch_vccnz L_qwait")
        A("L_qgot:")
        stamp(4)
        Ds = [A0, A1, D1, D2]
        def mf(t): A(f"v_mfma_f32_16x16x32_bf16 {r4(Ds[t%4])}, {r4(kreg(t))}, {r4(QB)}, 0")
        def ops(t):
            b = t & 3; S = SR + (t >> 2); D = Ds[t % 4]; bm = f"row_mask:0xf bank_mask:{1<<b:#x}"
            A(f"v_add_f32_dpp v{S}, v{D+((b+1)&3)}, v{D+b} row_ror:12 {bm}")
            A(f"v_add_f32_dpp v{S}, v{D+((b+2)&3)}, v{S} row_ror:8 {bm}")
            A(f"v_add_f32_dpp v{S}, v{D+((b+3)&3)}, v{S} row_ror:4 {bm}")
        for t in range(4): mf(t)
        A("s_nop 4")
        for t in range(16):
            ops(t)
            if t + 4 < 16: mf(t + 4)
            elif t < 15: A("s_nop 0")
        for p in (0, 2):
            a, b = SR + p, SR + p + 1
            A(f"v_cvt_pk_bf16_f32 v{b}, v{a}, v{b}"); A(f"v_lshlrev_b32 v{a}, 16, v{b}"); A(f"v_and_b32 v{b}, 0xffff0000, v{b}")
            A(f"v_mul_f32 v{a}, {SCALE:#x}, v{a}"); A(f"v_mul_f32 v{b}, {SCALE:#x}, v{b}")
            A(f"v_cvt_pk_bf16_f32 v{b}, v{a}, v{b}"); A(f"v_lshlrev_b32 v{a}, 16, v{b}"); A(f"v_and_b32 v{b}, 0xffff0000, v{b}")
        m = D1; l = D1 + 1
        A(f"v_max3_f32 v{m}, v{SR}, v{SR+1}, v{SR+2}"); A(f"v_max_f32 v{m}, v{m}, v{SR+3}")
        allred_banks_rows(m, D2, "v_max_f32")
        A(f"v_mul_f32 v{vT2}, s{sLOG2E}, v{m}")
        for T in range(4): A(f"v_fma_f32 v{SR+T}, v{SR+T}, s{sLOG2E}, -v{vT2}")
        for T in range(4): A(f"v_exp_f32 v{SR+T}, v{SR+T}")
        A(f"s_lshl_b32 s{sT1}, s3, 3"); A(f"v_lshl_add_u32 v{QB}, v0, 5, s{sT1}")
        A(f"v_add_f32 v{l}, v{SR}, v{SR+1}"); A(f"v_add_f32 v{D2}, v{SR+2}, v{SR+3}"); A(f"v_add_f32 v{l}, v{l}, v{D2}")
        allred_banks_rows(l, D2, "v_add_f32")
        A("s_mov_b64 exec, 5")
        A(f"ds_write_b64 v{QB}, {r2(m)} offset:{MW}")
        A("s_mov_b64 exec, -1")
        for j in range(8): A(f"v_mov_b32 v{A0+j}, 0")
        A(f"v_and_b32 v{D2}, 1, v0"); A(f"v_lshlrev_b32 v{D2}, 4, v{D2}"); A(f"v_mov_b32 v{D2+1}, 0xffff"); A(f"v_lshlrev_b32 v{D2}, v{D2}, v{D2+1}")
        for T in range(4): A(f"v_cvt_pk_bf16_f32 v{SR+T}, v{SR+T}, v{SR+T}")
        for T in range(4): A(f"v_and_b32 v{SR+T}, v{SR+T}, v{D2}")
        A(f"v_and_b32 v{vOS}, 15, v0"); A(f"v_lshlrev_b32 v{vOS}, 5, v{vOS}"); A(f"v_lshl_add_u32 v{vOS}, v{vT0}, 3, v{vOS}")
        A(f"s_lshl_b32 s{sT1}, s3, 10"); A(f"v_add_u32 v{vOS}, s{sT1}, v{vOS}")
        tail_addr()
        stamp(5)

    def pv(t):
        b = t & 3; P = SR + (t >> 2); a = A0 if t % 2 == 0 else A1
        for j in range(4):
            n = (4 * (j - b)) % 16
            ctl = "quad_perm:[0,1,2,3]" if n == 0 else f"row_ror:{n}"
            A(f"v_mov_b32_dpp v{a+j}, v{P} {ctl} row_mask:0xf bank_mask:{1<<j:#x}")
        A("s_nop 1")
        A(f"v_mfma_f32_16x16x32_bf16 {r4(ACC)}, {r4(a)}, {r4(vreg(t))}, {'0' if t == 0 else r4(ACC)}")

    state = {"qk": False, "pv": 0}

    def on_landed(nm):
        if dry:
            if nm == "U8": stamp(3); late_addr()
            if nm == "V0": tail_addr()
            return
        if nm[0] == "U":
            k = int(nm[1])
            if k == 0:
                A("; B0: xn is in LDS; stage 1 = xn^T (one-hot A operand) x slab rows on MFMA")
                A("s_barrier")
                for i in range(4): A(f"ds_read_b64 {r2(XA+2*i)}, v{vA2} offset:{XN+256*i}")
            A(f"s_waitcnt lgkmcnt({min(k+4, 9) - k - 1})")
            x = XA + 2 * (k % 4)
            gemv_mfma(x, S1D + 4 * k, D1, k == 0)
            gemv_mfma(x + 1, S1D + 4 * k, D2, k == 0)
            if k + 4 < 9: A(f"ds_read_b64 {r2(x)}, v{vA2} offset:{XN+256*(k+4)}")
            if k == 8:
                A(f"v_and_b32 v{vT1}, 7, v0"); A(f"v_lshl_add_u32 v{vT1}, v{vT0}, 3, v{vT1}"); A(f"s_lshl_b32 s{sT1}, s3, 9")
                A(f"v_lshl_add_u32 v{vT1}, v{vT1}, 4, s{sT1}")
                A(f"v_mov_b32 v{vT2}, 0"); A(f"ds_read_b32 v{vT2}, v{vT2} offset:{TG}")
                A("s_nop 1")
                for v in range(4): A(f"v_add_f32_dpp v{D1+v}, v{D2+v}, v{D1+v} row_ror:8 {DPPF}")
                A(f"s_mov_b64 exec, s[{sMASK}:{sMASK+1}]")
                A(f"ds_write_b128 v{vT1}, {r4(D1)} offset:{S1}")
                A("s_mov_b64 exec, -1")
                A("s_waitcnt lgkmcnt(0)"); A("s_barrier")
                stamp(3)
                A(f"v_readfirstlane_b32 s{sEP}, v{vT2}")
                late_addr()
        elif nm[0] in "VW" and state["qk"]:
            t = max(int(n[1:]) for n in names[:names.index(nm)+1] if n[0] == "V")
            while state["pv"] <= t:
                pv(state["pv"]); state["pv"] += 1

    N = len(loads)
    landed = -1
    ib2 = names.index(f"V{b2}")
    assert pre >= 2 and names.index("U8") + depth < names.index("V7") and ib2 - depth >= names.index("K15")
    for i, (nm, code) in enumerate(loads):
        if nm == "U0": rest_of_prologue()
        if i == 1: table_load("a")
        for c in code: A(c)
        if i >= depth:
            A(f"s_waitcnt vmcnt({depth})")
            landed = i - depth
            on_landed(names[landed])
        if i == ib2:
            if dry: stamp(7)
            else: qk_block()
            state["qk"] = True
    def drain(extra):
        ld = landed
        while ld < names.index("V15"):
            ld += 1
            A(f"s_waitcnt vmcnt({N-1-ld+extra})")
            on_landed(names[ld])
    def slot_b4():
        A("; ---- PV done: B4 hands the wave's o to the service wave, B4b lets its record leave first, B5 brings z back")
        A("s_nop 7")
        A(f"ds_write2st64_b64 v{vOS}, {r2(ACC)}, {r2(ACC+2)} offset0:{OS//512} offset1:{OS//512+1}")
        A("s_waitcnt lgkmcnt(0)")
        A("s_barrier")
        stamp(12)
        if nwb < 5: A("s_barrier")
    drain(0)
    stamp(6)
    if dry:
        A("s_waitcnt vmcnt(0)"); stamp(8); A("s_branch L_fin")
    slot_b4()
    for c in LATE[nwb:]: A(c)
    A("s_waitcnt vmcnt(2)")
    w2_mfmas()
    A("s_waitcnt vmcnt(0)")
    stamp(8)
    A("s_barrier")
    A(f"ds_read_b128 {r4(PL)}, v{vT1} offset:{ZL}")
    A("s_waitcnt lgkmcnt(0)")

    svc0 = len(L)
    A("L_service:")
    if dry: A("s_endpgm")
    def vm(ins):
        A("s_setprio 3")
        for x in ins: A(x)
        A("s_setprio 0")
    XS = SV + 8
    PA, PD, TG0 = 100, 96, 63
    srd_const(X); srd_const(WS)
    A(f"v_lshrrev_b32 v{vA1}, 5, v0"); A(f"v_mul_u32_u24 v{vA2}, 1152, v{vA1}")
    A(f"v_and_b32 v{vT2}, 31, v0"); A(f"v_mad_u32_u24 v{vA2}, v{vT2}, 36, v{vA2}")
    A("s_setprio 3")
    A("s_waitcnt lgkmcnt(0)")
    stamp(1)
    srd_ptr(X)
    A(f"buffer_load_dwordx4 {r4(XS)}, v{vA2}, {srd(X)}, 0 offen")
    A(f"buffer_load_dwordx4 {r4(XS+4)}, v{vA2}, {srd(X)}, 0 offen offset:16")
    A(f"buffer_load_dword v{XS+8}, v{vA2}, {srd(X)}, 0 offen offset:32")
    A("s_setprio 0")
    srd_ptr(WS)
    A(f"s_load_dword s{sEP}, s[{WS}:{WS+1}], {EP}")
    table_load("b")
    A(f"v_lshlrev_b32 v{vK}, 4, v0")
    A(f"v_mov_b32 v{SV+4}, 0"); A(f"v_lshlrev_b32 v{SV+5}, 2, v0")
    A(f"ds_write_b32 v{SV+4}, v{SV+4} offset:{QF}")
    A(f"v_mov_b32 v{SV+6}, -1"); A(f"v_and_b32 v{SV+5}, 124, v{SV+5}"); A(f"ds_write_b32 v{SV+5}, v{SV+6} offset:{MW}")
    for d in (WO, W2, OUT): srd_const(d); srd_ptr(d)
    consts()
    masks(SV + 5)
    A(f"v_lshlrev_b32 v{vA2}, 1, v{vA2}")
    if tlb:
        srd_const(V); srd_ptr(V)
        A(f"s_lshl4_add_u32 s{sT0}, s{sB}, s{sHKV}"); A(f"s_lshl_b32 s{sT0}, s{sT0}, 23"); A(f"s_add_u32 s{sT0}, s{sT0}, {(7 << 20) - 128}")
        A(f"s_mul_i32 s{sT1}, s2, {16*1152}"); A(f"s_mul_i32 s{sT2}, s{sROW}, 1152"); A(f"s_mul_i32 s{sT3}, s2, {REC}")
        A("s_mov_b64 exec, 1")
        vm([f"buffer_load_dword v{SV+30}, v{SV+4}, {srd(V)}, s{sT0} offen nt", f"buffer_load_dword v{SV+31}, v{SV+4}, {srd(WO)}, s{sT1} offen nt",
            f"buffer_load_dword v{SV+32}, v{SV+4}, {srd(W2)}, s{sT2} offen nt"])
        A("s_mov_b64 exec, -1")
    U = 12
    A(f"s_waitcnt vmcnt({3 if tlb else 0})")
    stamp(12)
    for i in range(9):
        A(f"v_lshlrev_b32 v{U+2*i}, 16, v{XS+i}"); A(f"v_and_b32 v{U+2*i+1}, 0xffff0000, v{XS+i}")
    s = XS
    A(f"v_add_f32 v{s}, v{U}, v{U+1}"); A(f"v_add_f32 v{s+1}, v{U+2}, v{U+3}")
    for i in range(4, 18, 2):
        A(f"v_add_f32 v{s}, v{s}, v{U+i}"); A(f"v_add_f32 v{s+1}, v{s+1}, v{U+i+1}")
    A(f"v_add_f32 v{s}, v{s}, v{s+1}")
    allred32(s, s + 1)
    A(f"v_mul_f32 v{s}, {0x3AE38E39:#x}, v{s}")
    W = 40
    for i in range(18):
        A(f"v_sub_f32 v{W+i}, v{U+i}, v{s}")
    A(f"v_mul_f32 v{s+2}, v{W}, v{W}"); A(f"v_mul_f32 v{s+3}, v{W+1}, v{W+1}")
    for i in range(2, 18, 2):
        A(f"v_fmac_f32 v{s+2}, v{W+i}, v{W+i}"); A(f"v_fmac_f32 v{s+3}, v{W+i+1}, v{W+i+1}")
    A(f"v_add_f32 v{s+2}, v{s+2}, v{s+3}")
    allred32(s + 2, s + 3)
    A(f"v_mul_f32 v{s+2}, {0x3AE38E39:#x}, v{s+2}")
    bf16r(s + 2, s + 2)
    A(f"v_add_f32 v{s+2}, {0x3727C5AC:#x}, v{s+2}")
    bf16r(s + 2, s + 2)
    A(f"v_sqrt_f32 v{s+2}, v{s+2}")
    bf16r(s, s)
    bf16r(s + 2, s + 2)
    A(f"v_rcp_f32 v{s+2}, v{s+2}")
    for i in range(18):
        A(f"v_sub_f32 v{U+i}, v{U+i}, v{s}")
    for i in range(0, 18, 2):
        A(f"v_cvt_pk_bf16_f32 v{U+i+1}, v{U+i}, v{U+i+1}"); A(f"v_lshlrev_b32 v{U+i}, 16, v{U+i+1}"); A(f"v_and_b32 v{U+i+1}, 0xffff0000, v{U+i+1}")
        A(f"v_mul_f32 v{U+i}, v{U+i}, v{s+2}"); A(f"v_mul_f32 v{U+i+1}, v{U+i+1}, v{s+2}")
        A(f"v_cvt_pk_bf16_f32 v{U+i}, v{U+i}, v{U+i}"); A(f"v_cvt_pk_bf16_f32 v{U+i+1}, v{U+i+1}, v{U+i+1}")
        A(f"ds_write_b64 v{vA2}, {r2(U+i)} offset:{XN+4*i}")
    A("s_waitcnt lgkmcnt(0)")
    A(f"s_add_u32 s{sEP}, s{sEP}, 1")
    A(f"v_mov_b32 v{vTAG}, s{sEP}")
    A(f"ds_write_b32 v{SV+4}, v{vTAG} offset:{TG}")
    A("s_waitcnt lgkmcnt(0)")
    A("s_barrier")
    stamp(2)
    A(f"s_and_b32 s{sT0}, s{sEP}, s{sTM}"); A(f"v_mov_b32 v{vTAG}, s{sT0}")
    A(f"s_bfe_u32 s{sSF}, s{sEP}, 0x6000a"); A(f"s_lshl_b32 s{sSF}, s{sSF}, 20"); A(f"s_add_u32 s{sSF}, s{sSF}, {SAFE}")
    T = SV + 8
    GT = 40
    group_ids()
    A(f"s_and_b32 s{sU}, s{sTB}, 255")
    A(f"v_and_b32 v{SV+1}, 7, v0"); A(f"v_bfe_u32 v{SV}, v0, 3, 1")
    A(f"v_bfe_u32 v{PA}, v0, 4, 1"); A(f"v_mul_u32_u24 v{SV+2}, {P1P}, v{PA}"); A(f"v_mul_u32_u24 v{PA}, {P1B}, v{PA}")
    A(f"v_lshl_add_u32 v{PA}, v{SV+1}, 5, v{PA}")
    A(f"v_lshl_add_u32 v{PA}, v{SV}, 4, v{PA}")
    A(f"s_bfe_u32 s{sT0}, s{sTB}, 0x10011"); A(f"v_xor_b32 v{SV+3}, s{sT0}, v{vA1}"); A(f"v_mul_u32_u24 v{SV+3}, {P1P}, v{SV+3}"); A(f"v_add_u32 v{PA}, v{PA}, v{SV+3}")
    A(f"s_mov_b32 s{sPM}, -1"); A(f"s_bitcmp1_b32 s{sTB}, 18"); A(f"s_cselect_b32 s{sPM+1}, -1, 0")
    A(f"s_lshl_b32 s{sPS}, s{sU}, 8"); A(f"s_add_u32 s{sPS}, s{sPS}, {P1}")
    A(f"s_cmp_lt_u32 s{sU}, 208"); A(f"s_cselect_b32 s{sPS}, s{sPS}, {HUGE}")
    A(f"s_mul_i32 s{sT2}, s{sB}, {P1B}"); A(f"s_lshl_b32 s{sT3}, s{sHKV}, 10"); A(f"s_add_u32 s{sT2}, s{sT2}, s{sT3}"); A(f"s_add_u32 s{sT2}, s{sT2}, {P1}")
    A(f"s_add_u32 s{sC2}, s{sT2}, {P1P}")
    A(f"v_mul_u32_u24 v{vA2}, {P1B}, v{SV}"); A(f"v_mul_u32_u24 v{vA1}, 18432, v{vA1}"); A(f"v_add3_u32 v{vA2}, v{vA2}, v{vA1}, v{SV+2}")
    A(f"v_lshl_add_u32 v{vA2}, v{SV+1}, 4, v{vA2}")
    A(f"v_mov_b32 v{SV+3}, {HUGE}")
    A(f"v_cmp_gt_u32 vcc, s{sNSL}, v{SV+1}"); A("s_nop 1")
    A(f"v_cndmask_b32 v{vA2}, v{SV+3}, v{vA2}, vcc"); A(f"v_cndmask_b32 v{TG0}, 0, v{vTAG}, vcc")
    A(f"s_lshl_b32 s{sT3}, s{sROW}, 2"); A(f"s_add_u32 s{sT3}, s{sT3}, {P1 + 16384}")
    A(f"s_mov_b32 s{sSP}, 0"); A(f"s_mov_b32 s{sC1}, 0"); A(f"s_sub_u32 s{sC3}, s{sSF}, {P1}")
    for v in range(4): A(f"v_mov_b32 v{PD+v}, 0")
    A("s_barrier")
    A("s_mov_b64 exec, 0xffffffff")
    for w in range(8):
        A(f"ds_read_b128 {r4(T+4*w)}, v{vK} offset:{S1 + w*512}")
    for w in range(1, 8):
        A(f"s_waitcnt lgkmcnt({7-w})")
        for v in range(4):
            A(f"v_add_f32 v{PD+v}, v{T+v if w == 1 else PD+v}, v{T+4*w+v}")
    for v in range(4): A(f"v_add_u32 v{PD+v}, {(TMASK+1)//2}, v{PD+v}")
    A("s_mov_b64 exec, -1")
    tag4(PD)
    A(f"s_mov_b64 exec, s[{sPM}:{sPM+1}]")
    vm([f"buffer_store_dwordx4 {r4(PD)}, v{PA}, {srd(WS)}, s{sPS} offen"])
    A("s_mov_b64 exec, -1")
    def safe_p1(tag):
        A(f"s_cmp_lg_u32 s{sSP}, 0"); A(f"s_cbranch_scc1 L_sp{tag}")
        A(f"s_add_u32 s{sPS}, s{sPS}, s{sSF}"); A(f"s_sub_u32 s{sPS}, s{sPS}, {P1}"); A(f"s_mov_b32 s{sSP}, 1")
        A(f"s_mov_b64 exec, s[{sPM}:{sPM+1}]")
        vm([f"buffer_store_dwordx4 {r4(PD)}, v{PA}, {srd(WS)}, s{sPS} offen sc1"])
        A("s_mov_b64 exec, -1")
        A(f"L_sp{tag}:")
    stamp(3)
    A("L_gather:")
    vm([f"buffer_load_dwordx4 {r4(T)}, v{vK}, {srd(WS)}, s{sT2} offen sc1",
        f"buffer_load_dwordx4 {r4(T+4)}, v{vK}, {srd(WS)}, s{sC2} offen sc1",
        f"buffer_load_dwordx4 {r4(GT)}, v{vA2}, {srd(WS)}, s{sT3} offen sc1"])
    A(f"s_add_u32 s{sSPIN}, s{sSPIN}, 1")
    A("s_waitcnt vmcnt(0)")
    rg = [T + i for i in range(8)] + [GT + i for i in range(4)]
    untag_check(rg, rg, [vTAG] * 8 + [TG0] * 4, SV)
    A("s_cbranch_vccz L_gotg")
    A(f"s_cmp_lt_u32 s{sSPIN}, {gtmo}"); A("s_cbranch_scc1 L_gather")
    safe_p1("g")
    for r_ in (sT2, sC2, sT3): A(f"s_sub_u32 s{r_}, s{r_}, s{sC1}")
    A(f"s_xor_b32 s{sC1}, s{sC1}, s{sC3}")
    for r_ in (sT2, sC2, sT3): A(f"s_add_u32 s{r_}, s{r_}, s{sC1}")
    A(f"s_cmp_lt_u32 s{sSPIN}, {spin}"); A("s_cbranch_scc1 L_gather")
    A("L_gotg:")
    for v in range(4): A(f"v_add_f32 v{T+v}, v{T+v}, v{T+4+v}")
    A(f"v_cvt_pk_bf16_f32 v{T}, v{T}, v{T+1}"); A(f"v_cvt_pk_bf16_f32 v{T+1}, v{T+2}, v{T+3}")
    A(f"v_lshlrev_b32 v{vA1}, 3, v0")
    A(f"ds_write_b64 v{vA1}, {r2(T)} offset:{QL}")
    for v in range(4): A(f"v_mov_b32 v{GT+4+v}, v{GT+v}")
    A("s_nop 1")
    for v in range(4): A(f"v_permlane16_swap_b32 v{GT+v}, v{GT+4+v}")
    A("s_nop 1")
    for v in range(4): A(f"v_add_f32 v{GT+v}, v{GT+v}, v{GT+4+v}")
    for v in range(4): bf16r(GT + v, GT + v)
    for v in range(4): A(f"v_mov_b32 v{GT+4+v}, v{GT+v}")
    A("s_nop 1")
    for v in range(4): A(f"v_permlane32_swap_b32 v{GT+v}, v{GT+4+v}")
    A("s_nop 1")
    for v in range(4): A(f"v_mul_f32 v{GT+8+v}, s{sLOG2E}, v{GT+v}")
    for v in range(4): A(f"v_exp_f32 v{GT+8+v}, -v{GT+8+v}")
    for v in range(4): A(f"v_add_f32 v{GT+8+v}, 1.0, v{GT+8+v}")
    for v in range(4): A(f"v_rcp_f32 v{GT+8+v}, v{GT+8+v}")
    for v in range(4): A(f"v_mul_f32 v{GT+v}, v{GT+v}, v{GT+8+v}")
    for v in range(4): bf16r(GT + v, GT + v)
    for v in range(4): A(f"v_mul_f32 v{GT+v}, v{GT+v}, v{GT+4+v}")
    for v in range(4): A(f"v_cvt_pk_bf16_f32 v{GT+v}, v{GT+v}, v{GT+v}")
    A("s_mov_b64 exec, 0xffff")
    A(f"ds_write_b128 v{vK}, {r4(GT)} offset:{HD}")
    A("s_mov_b64 exec, -1")
    A(f"v_mov_b32 v{SV+3}, 1")
    A("s_waitcnt lgkmcnt(0)")
    A(f"ds_write_b32 v{SV+4}, v{SV+3} offset:{QF}")
    stamp(5)
    late_addr(); tail_addr()
    A(f"s_lshl_b32 s{sT0}, s{sSL}, 6"); A(f"v_lshl_add_u32 v{SV+20}, v0, 2, s{sT0}")
    vm(LATE + [f"buffer_load_dword v{SV+21}, v{SV+20}, {srd(X)}, 0 offen"])
    A(f"v_and_b32 v{vA1}, 15, v0"); A(f"s_lshl_b32 s{sT1}, s{sHKV}, 4"); A(f"v_add_u32 v{SV+12}, s{sT1}, v{vA1}")
    A(f"v_mul_u32_u24 v{vA1}, {REC}, v{SV+12}")
    A(f"s_mul_i32 s{sT2}, s{sJ}, 80"); A(f"v_lshl_add_u32 v{vA2}, v{vT0}, 4, v{vA1}")
    A(f"s_mul_i32 s{sPC}, s2, {REC}")
    A(f"v_lshrrev_b32 v{vV}, 2, v0"); A(f"v_mul_u32_u24 v{vV}, 80, v{vV}"); A(f"v_and_b32 v{SV+1}, 3, v0"); A(f"v_lshl_add_u32 v{vV}, v{SV+1}, 4, v{vV}")
    A(f"v_mul_u32_u24 v{SV+1}, 80, v0")
    A("s_mov_b32 s0, 0x01010101"); A("s_mov_b32 s1, 0x01010101")
    A(f"v_lshl_add_u32 v{SV+14}, v0, 4, s{sJ}"); A(f"v_cmp_gt_u32 vcc, 36, v{SV+14}"); A(f"v_lshlrev_b32 v{SV+14}, 10, v{SV+14}")
    A(f"s_lshr_b32 s{sT0}, s{sHKV}, 1"); A(f"s_lshl_b32 s{sT0}, s{sT0}, 7"); A(f"s_and_b32 s{sT1}, s{sHKV}, 1"); A(f"s_lshl2_add_u32 s{sT0}, s{sT1}, s{sT0}")
    A(f"s_add_u32 s{sUO}, s{sT0}, {HINT}"); A(f"s_mov_b64 s[{sUS}:{sUS+1}], vcc")
    A(f"s_getreg_b32 s{sC3}, hwreg(HW_REG_XCC_ID)"); A(f"s_lshl_b32 s{sC3}, s{sC3}, 16")
    FW = 80
    A(f"v_and_b32 v{SV+2}, 15, v0"); A(f"v_lshlrev_b32 v{SV+3}, 2, v{SV+2}"); A(f"v_lshlrev_b32 v{SV+2}, 3, v{SV+2}")
    A(f"v_lshrrev_b32 v{SV}, 5, v0"); A(f"v_lshlrev_b32 v{SV}, 5, v{SV}")
    A("L_mlwait:")
    A(f"s_sleep {mlsleep}")
    A(f"ds_read_b64 {r2(SV+6)}, v{SV+2} offset:{MW}")
    A(f"s_add_u32 s{sSPIN}, s{sSPIN}, 1"); A(f"s_cmp_gt_u32 s{sSPIN}, {spin*16}")
    A("s_waitcnt lgkmcnt(0)")
    A(f"v_cmp_eq_u32 vcc, -1, v{SV+7}")
    A(f"v_max_f32_dpp v{SV+4}, v{SV+6}, v{SV+6} {STEPS[0]} {DPPF}")
    A("s_cbranch_scc1 L_mlgot")
    A("s_cbranch_vccnz L_mlwait")
    A("L_mlgot:")
    A("s_setprio 3")
    A(f"v_max_f32_dpp v{SV+4}, v{SV+4}, v{SV+4} {STEPS[1]} {DPPF}"); A("s_nop 1")
    A(f"v_max_f32_dpp v{SV+4}, v{SV+4}, v{SV+4} {STEPS[2]} {DPPF}")
    A(f"v_sub_f32 v{SV+6}, v{SV+6}, v{SV+4}"); A(f"v_mul_f32 v{SV+6}, s{sLOG2E}, v{SV+6}"); A(f"v_exp_f32 v{SV+6}, v{SV+6}"); A("s_nop 0")
    A(f"ds_write_b32 v{SV+3}, v{SV+6} offset:{FWL}")
    A(f"v_mul_f32 v{SV+5}, v{SV+7}, v{SV+6}")
    A(f"ds_read_b128 {r4(FW)}, v{SV} offset:{FWL}"); A(f"ds_read_b128 {r4(FW+4)}, v{SV} offset:{FWL+16}")
    for s_ in STEPS:
        A(f"v_add_f32_dpp v{SV+5}, v{SV+5}, v{SV+5} {s_} {DPPF}"); A("s_nop 1")
    A(f"v_mov_b32 v{SV+6}, s{sC3}")
    tag4(SV + 4)
    A(f"s_mov_b32 s{sT0}, 0"); A(f"s_add_u32 s{sT3}, s{sSPIN}, {tmo}")
    stamp(4)
    A("s_barrier")
    OT = 128
    for w in range(8):
        A(f"ds_read_b128 {r4(OT+4*w)}, v{vK} offset:{OS+w*1024}")
    A("s_mov_b64 exec, 0xffff")
    A(f"buffer_store_dwordx4 {r4(SV+4)}, v{SV+1}, {srd(WS)}, s{sPC} offen offset:64")
    A("s_mov_b64 exec, -1")
    for w in range(8):
        A(f"s_waitcnt lgkmcnt({7-w})")
        f = FW + (w & ~1); sel = w & 1
        for hlf in range(2):
            d = f"v[{OT+2*hlf}:{OT+2*hlf+1}]"; x = f"v[{OT+4*w+2*hlf}:{OT+4*w+2*hlf+1}]"
            if w == 0: A(f"v_pk_mul_f32 {d}, {x}, v[{f}:{f+1}] op_sel:[0,{sel}] op_sel_hi:[1,{sel}]")
            else: A(f"v_pk_fma_f32 {d}, {x}, v[{f}:{f+1}], {d} op_sel:[0,{sel},0] op_sel_hi:[1,{sel},1]")
    tag4(OT)
    A(f"buffer_store_dwordx4 {r4(OT)}, v{vV}, {srd(WS)}, s{sPC} offen")
    POLL = [f"buffer_load_dwordx4 {r4(PL)}, v{vA2}, {srd(WS)}, s{sT2} offen sc1",
            f"buffer_load_dwordx4 {r4(PL+4)}, v{vA1}, {srd(WS)}, s{sT2} offen offset:64 sc1"]
    for c in POLL: A(c)
    if nwb < 5: A("s_barrier")
    stamp(6)
    A(f"s_waitcnt vmcnt(4)")
    w2_mfmas()
    A("s_branch L_pollo1")
    def safe_o():
        A(f"s_mul_i32 s{sT1}, s2, 1280"); A(f"s_add_u32 s{sT1}, s{sT1}, s{sSF}"); A(f"s_add_u32 s{sT1}, s{sT1}, {SAFO}")
        A(f"buffer_store_dwordx4 {r4(OT)}, v{vV}, {srd(WS)}, s{sT1} offen sc1")
        A("s_mov_b64 exec, 0xffff")
        A(f"buffer_store_dwordx4 {r4(SV+4)}, v{SV+1}, {srd(WS)}, s{sT1} offen offset:64 sc1")
        A("s_mov_b64 exec, -1")
        A(f"s_mov_b32 s{sT0}, 1")
    m, l, M = PL + 4, PL + 5, TT + 1
    A("L_otmo:")
    A(f"s_cmp_lg_u32 s{sT0}, 0"); A("s_cbranch_scc1 L_goto")
    safe_p1("o")
    A("s_setprio 3")
    safe_o()
    A(f"v_mul_u32_u24 v{SV+12}, 1280, v{SV+12}"); A(f"v_lshl_add_u32 v{SV+13}, v{vT0}, 4, v{SV+12}")
    A(f"s_add_u32 s{sC1}, s{sT2}, s{sSF}"); A(f"s_add_u32 s{sC1}, s{sC1}, {SAFO}"); A(f"s_add_u32 s{sT3}, s{sSPIN}, {spin}")
    A("s_branch L_oswap")
    A("L_oretry:")
    A("s_cbranch_scc1 L_otmo")
    A(f"s_cmp_eq_u32 s{sT0}, 0"); A("s_cbranch_scc1 L_pollo")
    A("L_oswap:")
    A(f"v_swap_b32 v{vA1}, v{SV+12}"); A(f"v_swap_b32 v{vA2}, v{SV+13}")
    A(f"s_mov_b32 s{sT1}, s{sT2}"); A(f"s_mov_b32 s{sT2}, s{sC1}"); A(f"s_mov_b32 s{sC1}, s{sT1}")
    A("L_pollo:")
    if psleep: A(f"s_sleep {psleep}")
    for c in POLL: A(c)
    A("L_pollo1:")
    A(f"s_add_u32 s{sSPIN}, s{sSPIN}, 1"); A(f"s_cmp_gt_u32 s{sSPIN}, s{sT3}")
    A("s_waitcnt vmcnt(0)")
    rg = [PL + 4 + i for i in range(4)] + [PL + i for i in range(4)]
    untag_check(rg, rg, [vTAG] * 8, TT + 1)
    A(f"v_max_f32_dpp v{M}, v{m}, v{m} {STEPS[0]} {DPPF}")
    A("s_cbranch_vccnz L_oretry")
    A(f"v_cmp_ne_u32 vcc, s{sC3}, v{PL+6}")
    A("s_cbranch_vccz L_goto")
    A(f"s_cmp_lg_u32 s{sT0}, 0"); A("s_cbranch_scc1 L_goto")
    safe_o()
    A("L_goto:")
    if hat == 'goto': A(f"s_mov_b64 exec, s[{sUS}:{sUS+1}]"); A(f"buffer_store_dword v{vTAG}, v{SV+14}, {srd(WS)}, s{sUO} offen sc1"); A("s_mov_b64 exec, -1")
    stamp(9)
    A(f"v_max_f32_dpp v{M}, v{M}, v{M} {STEPS[1]} {DPPF}"); A("s_nop 1")
    A(f"v_max_f32_dpp v{M}, v{M}, v{M} {STEPS[2]} {DPPF}")
    A(f"v_sub_f32 v{m}, v{m}, v{M}"); A(f"v_mul_f32 v{m}, s{sLOG2E}, v{m}"); A(f"v_exp_f32 v{m}, v{m}"); A("s_nop 0")
    A(f"v_mul_f32 v{l}, v{l}, v{m}")
    for v in range(4): A(f"v_mul_f32 v{PL+v}, v{PL+v}, v{m}")
    for s_ in STEPS:
        for r in (l, PL, PL + 1, PL + 2, PL + 3):
            A(f"v_add_f32_dpp v{r}, v{r}, v{r} {s_} {DPPF}")
    A(f"v_rcp_f32 v{l}, v{l}"); A("s_mov_b64 exec, s[0:1]")
    for v in range(4): A(f"v_mul_f32 v{PL+v}, v{PL+v}, v{l}")
    for v in range(4): A(f"v_cvt_pk_bf16_f32 v{PL+v}, v{PL+v}, v{PL+v}")
    A(f"ds_write_b128 v{vT1}, {r4(PL)} offset:{ZL}")
    A("s_mov_b64 exec, -1")
    A("s_waitcnt lgkmcnt(0)")
    if hat == 'z': A(f"s_mov_b64 exec, s[{sUS}:{sUS+1}]"); A(f"buffer_store_dword v{vTAG}, v{SV+14}, {srd(WS)}, s{sUO} offen sc1"); A("s_mov_b64 exec, -1")
    A("s_barrier")
    stamp(13)
    A(f"ds_read_b128 {r4(PL)}, v{vT1} offset:{ZL}")
    if hat == 'b5': A(f"s_mov_b64 exec, s[{sUS}:{sUS+1}]"); A(f"buffer_store_dword v{vTAG}, v{SV+14}, {srd(WS)}, s{sUO} offen sc1"); A("s_mov_b64 exec, -1")
    A("s_waitcnt lgkmcnt(0)")

    A("s_branch L_tail")
    svc = L[svc0:]; del L[svc0:]
    A("L_tail:")
    for n in range(2):
        for rho in range(2):
            gemv_mfma(PL + 2 * n + rho, WL + 12 + 4 * n, D1 if rho == 0 else D2, False)
    A("s_nop 7")
    for v in range(4):
        A(f"v_add_f32_dpp v{D1+v}, v{D2+v}, v{D1+v} row_ror:8 {DPPF}")
    tag4(D1)
    A(f"s_mov_b64 exec, s[{sMASK}:{sMASK+1}]")
    A(f"buffer_store_dwordx4 {r4(D1)}, v{TT}, {srd(WS)}, s{sC2} offen sc1")
    A("s_mov_b64 exec, -1")
    stamp(10)
    if hat == 'fp':
        A("s_cmp_lg_u32 s3, 8"); A("s_cbranch_scc1 L_nh")
        A(f"s_mov_b64 exec, s[{sUS}:{sUS+1}]"); A(f"buffer_store_dword v{vTAG}, v{SV+14}, {srd(WS)}, s{sUO} offen sc1"); A("s_mov_b64 exec, -1")
        A("L_nh:")
    A(f"s_cmp_lg_u32 s{sCK}, 0"); A("s_cbranch_scc1 L_fin")
    A("s_cmp_eq_u32 s3, 8"); A("s_cbranch_scc1 L_final")
    A(f"v_lshrrev_b32 v{TT}, 3, v0"); A(f"s_lshl_b32 s{sT0}, s3, 5"); A(f"v_add_u32 v{TT}, s{sT0}, v{TT}")
    A(f"v_mul_u32_u24 v{TT}, {REC}, v{TT}"); A(f"v_and_b32 v{TT+1}, 7, v0"); A(f"v_lshl_add_u32 v{TT}, v{TT+1}, 4, v{TT}")
    A(f"s_lshl_b32 s{sT0}, s{sSL}, 7"); A(f"s_add_u32 s{sT0}, s{sT0}, {FPO}")
    A(f"s_add_u32 s{sC1}, s{sT0}, {8*REC}"); A(f"s_add_u32 s{sC2}, s{sT0}, {16*REC}"); A(f"s_add_u32 s{sC3}, s{sT0}, {24*REC}")
    A(f"s_add_u32 s{sT3}, s{sSPIN}, {spin}")
    A(f"v_bfe_u32 v{TT+2}, v0, 3, 2"); A(f"v_lshlrev_b32 v{TT+2}, 2, v{TT+2}"); A(f"v_lshl_add_u32 v{TT+2}, v{TT+1}, 4, v{TT+2}")
    A(f"s_lshl_b32 s{sT1}, s3, 7"); A(f"v_add_u32 v{TT+2}, s{sT1}, v{TT+2}")
    A(f"s_lshl3_add_u32 s{sT1}, s{sSL}, s3"); A(f"s_lshl_b32 s{sT1}, s{sT1}, 7"); A(f"s_add_u32 s{sT1}, s{sT1}, {HINT}")
    if hsc:
        A(f"s_and_b32 s{sT2}, s{sEP}, s{sTM}")
        A("L_hint:")
        A(f"s_load_dwordx2 s[{sUS}:{sUS+1}], s[{WS}:{WS+1}], s{sT1} glc")
        A(f"s_add_u32 s{sSPIN}, s{sSPIN}, 1"); A(f"s_cmp_gt_u32 s{sSPIN}, s{sT3}"); A("s_cbranch_scc1 L_hok")
        A("s_waitcnt lgkmcnt(0)")
        A(f"s_cmp_lg_u32 s{sUS}, s{sT2}"); A("s_cbranch_scc1 L_hint")
        A(f"s_cmp_lg_u32 s{sUS+1}, s{sT2}"); A("s_cbranch_scc1 L_hint")
        A("L_hok:")
    else:
        A(f"v_mov_b32 v{TT+3}, 0")
        A("s_mov_b64 exec, 1")
        if not usehint: A("s_branch L_hok")
        A("L_hint:")
        A(f"buffer_load_dwordx2 {r2(FC)}, v{TT+3}, {srd(WS)}, s{sT1} offen sc1")
        A(f"s_add_u32 s{sSPIN}, s{sSPIN}, 1"); A(f"s_cmp_gt_u32 s{sSPIN}, s{sT3}")
        A("s_waitcnt vmcnt(0)")
        A(f"v_xor_b32 v{FC}, v{vTAG}, v{FC}"); A(f"v_xor_b32 v{FC+1}, v{vTAG}, v{FC+1}"); A(f"v_or_b32 v{FC}, v{FC}, v{FC+1}")
        A(f"v_cmp_ne_u32 vcc, 0, v{FC}")
        A("s_cbranch_scc1 L_hok")
        A("s_cbranch_vccnz L_hint")
        A("L_hok:")
        A("s_mov_b64 exec, -1")
    stamp(7)
    SO = (sT0, sC1, sC2, sC3)
    if psel == 1:
        FB = FC + 16
        for q in range(4): A(f"buffer_load_dwordx4 {r4(FB+4*q)}, v{TT}, {srd(WS)}, s{SO[q]} offen sc1")
        for hf in range(2):
            d = [FC + 8 * hf + i for i in range(8)]
            bufs = [FB + 8 * hf, FB + 16 + 8 * hf]
            def iss(bb):
                for q in range(2): A(f"buffer_load_dwordx4 {r4(bb+4*q)}, v{TT}, {srd(WS)}, s{SO[2*hf+q]} offen sc1")
            A(f"s_waitcnt vmcnt({2 if hf == 0 else 0})")
            untag_check(d, [bufs[0] + i for i in range(8)], [vTAG] * 8, TT + 1)
            A(f"s_cbranch_vccz L_h{hf}ok")
            iss(bufs[0])
            A(f"L_h{hf}:")
            for k in range(2):
                iss(bufs[1 - k])
                if k == 0: A(f"s_add_u32 s{sSPIN}, s{sSPIN}, 1"); A(f"s_cmp_gt_u32 s{sSPIN}, s{sT3}")
                A("s_waitcnt vmcnt(2)")
                untag_check(d, [bufs[k] + i for i in range(8)], [vTAG] * 8, TT + 1)
                if k == 0: A(f"s_cbranch_vccz L_h{hf}ok")
                else: A(f"s_cbranch_scc1 L_h{hf}ok"); A(f"s_cbranch_vccnz L_h{hf}")
            A(f"L_h{hf}ok:")
    elif psel == 2:
        for q in range(4): A(f"buffer_load_dwordx4 {r4(FC+4*q)}, v{TT}, {srd(WS)}, s{SO[q]} offen sc1")
        for q in range(4):
            rg = [FC + 4 * q + i for i in range(4)]
            A(f"s_waitcnt vmcnt({3-q})")
            A(f"s_branch L_q{q}c")
            A(f"L_q{q}:")
            A(f"buffer_load_dwordx4 {r4(FC+4*q)}, v{TT}, {srd(WS)}, s{SO[q]} offen sc1")
            A(f"s_add_u32 s{sSPIN}, s{sSPIN}, 1"); A(f"s_cmp_gt_u32 s{sSPIN}, s{sT3}"); A(f"s_cbranch_scc1 L_gotf")
            A("s_waitcnt vmcnt(0)")
            A(f"L_q{q}c:")
            untag_check(rg, rg, [vTAG] * 4, TT + 1)
            A(f"s_cbranch_vccnz L_q{q}")
    else:
        A("L_pollf:")
        for q, so in enumerate((sT0, sC1, sC2, sC3)):
            A(f"buffer_load_dwordx4 {r4(FC+4*q)}, v{TT}, {srd(WS)}, s{so} offen sc1")
        A(f"s_add_u32 s{sSPIN}, s{sSPIN}, 1"); A(f"s_cmp_gt_u32 s{sSPIN}, s{sT3}")
        A("s_waitcnt vmcnt(0)")
        rg = [FC + i for i in range(16)]
        untag_check(rg, rg, [vTAG] * 16, TT + 1)
        A("s_cbranch_scc1 L_gotf")
        A("s_cbranch_vccnz L_pollf")
    A("L_gotf:")
    stamp(9)
    for hlf in range(2):
        A(f"v_pk_add_f32 {r2(FC+2*hlf)}, {r2(FC+2*hlf)}, {r2(FC+4+2*hlf)}"); A(f"v_pk_add_f32 {r2(FC+8+2*hlf)}, {r2(FC+8+2*hlf)}, {r2(FC+12+2*hlf)}")
    for hlf in range(2):
        A(f"v_pk_add_f32 {r2(FC+2*hlf)}, {r2(FC+2*hlf)}, {r2(FC+8+2*hlf)}")
    a, b = FC + 4, FC + 5
    A("s_nop 0")
    A(f"v_add_f32_dpp v{a}, v{FC}, v{FC} row_ror:8 row_mask:0xf bank_mask:0x3")
    A(f"v_add_f32_dpp v{a}, v{FC+1}, v{FC+1} row_ror:8 row_mask:0xf bank_mask:0xc")
    A(f"v_add_f32_dpp v{b}, v{FC+2}, v{FC+2} row_ror:8 row_mask:0xf bank_mask:0x3")
    A(f"v_add_f32_dpp v{b}, v{FC+3}, v{FC+3} row_ror:8 row_mask:0xf bank_mask:0xc")
    A("s_nop 1")
    A(f"v_permlane16_swap_b32 v{a}, v{b}")
    A("s_nop 1")
    A(f"v_add_f32 v{a}, v{a}, v{b}")
    swap_red(a, b, "v_add_f32", "v_permlane32_swap_b32")
    A(f"ds_write_b32 v{TT+2}, v{a} offset:{FS}")
    A("s_waitcnt lgkmcnt(0)")
    A("s_barrier")
    A("s_branch L_fin")
    A("L_final:")
    A(f"v_lshlrev_b32 v{TT}, 3, v0")
    A(f"v_lshlrev_b32 v{TT+2}, 16, v{SV+21}"); A(f"v_and_b32 v{TT+3}, 0xffff0000, v{SV+21}")
    A(f"v_mov_b32 v{TT+1}, s{sEP}"); A(f"v_mov_b32 v{SV}, {EP}")
    A(f"s_cmp_eq_u32 s2, 0"); A(f"s_cselect_b32 s{sT0}, 0, {HUGE}")
    A("s_mov_b64 exec, 0xffff")
    A("s_barrier")
    for w in range(8):
        A(f"ds_read_b64 {r2(80+2*w)}, v{TT} offset:{FS+128*w}")
    for w in range(8):
        A(f"s_waitcnt lgkmcnt({7-w})")
        A(f"v_pk_add_f32 {r2(TT+2)}, {r2(TT+2)}, {r2(80+2*w)}")
    A(f"v_cvt_pk_bf16_f32 v{TT+2}, v{TT+2}, v{TT+3}")
    A(f"buffer_store_dword v{TT+2}, v{SV+20}, {srd(OUT)}, 0 offen")
    A("s_mov_b64 exec, 1")
    A(f"buffer_store_dword v{TT+1}, v{SV}, {srd(WS)}, s{sT0} offen sc1")
    if hold:
        A("s_getreg_b32 s98, hwreg(HW_REG_XCC_ID)"); A("s_and_b32 s98, s98, 7"); A(f"s_cmp_lg_u32 s98, {hold[1]}"); A("s_cbranch_scc1 L_fin")
        A(f"s_add_u32 s100, s100, {hold[0]}")
        A("L_hold:"); A("s_memrealtime s[98:99]"); A("s_waitcnt lgkmcnt(0)"); A("s_sub_u32 s98, s98, s100"); A("s_cmp_lt_i32 s98, 0"); A("s_cbranch_scc1 L_hold")
    A("L_fin:")
    if stamps:
        stamp(11)
        A("s_mov_b64 exec, -1")
        A("s_waitcnt vmcnt(0) lgkmcnt(0)")
        A(f"s_mul_i32 s{sT0}, s2, 9"); A(f"s_add_u32 s{sT0}, s{sT0}, s3"); A(f"s_lshl_b32 s{sT0}, s{sT0}, 7"); A(f"s_add_u32 s{sT0}, s{sT0}, {STAMP}")
        for i in range(14):
            A(f"v_mov_b32 v{104+2*i}, s{stamp_reg(i)}"); A(f"v_mov_b32 v{105+2*i}, s{stamp_reg(i)+1}")
        A(f"v_mov_b32 v132, s{sSPIN}")
        A("s_getreg_b32 s76, hwreg(HW_REG_XCC_ID)"); A("v_mov_b32 v133, s76"); A("v_mov_b32 v134, 0"); A("v_mov_b32 v135, 0")
        A("v_mov_b32 v100, 0")
        A("s_mov_b64 exec, 1")
        for i in range(8):
            A(f"buffer_store_dwordx4 {r4(104+4*i)}, v100, {srd(WS)}, s{sT0} offen offset:{16*i}")
    A("L_end:")
    A("s_endpgm")
    L.extend(svc)
    A(".p2align 6")
    A(".type L_tab,@object"); A(".size L_tab, 1024")
    A("L_tab:")
    tb = unit_table(split, slabs)
    for i in range(0, 256, 8): A(".long " + ", ".join(f"{x:#x}" for x in tb[i:i+8]))
    A('.section .rodata,"a"'); A(".p2align 6"); A(f".amdhsa_kernel {NAME}")
    A("  .amdhsa_next_free_vgpr 168"); A("  .amdhsa_next_free_sgpr 102"); A("  .amdhsa_accum_offset 168")
    A("  .amdhsa_group_segment_fixed_size 0"); A("  .amdhsa_kernarg_size 96"); A("  .amdhsa_user_sgpr_count 2")
    A("  .amdhsa_user_sgpr_kernarg_segment_ptr 1"); A("  .amdhsa_system_sgpr_workgroup_id_x 1")
    A(".end_amdhsa_kernel")
    return "\n".join(L) + "\n"


if __name__ == "__main__":
    kw = eval("dict(%s)" % (sys.argv[2] if len(sys.argv) > 2 else ""))
    open(sys.argv[1], "w").write(gen(**kw))
```

```python
import sys
NAME = "parallel_sum__sliding_block_cached__glu_gated_swiglu__decode_kernel"

HEADER = """; Fused decode step: out = x + Attn(LN(x)) + SwiGLU(LN(x)); one launch, 256 workgroups x 9 waves.
;
;
"""

OS = 0
S1 = 0
FS = 0
QL = 8192
HD = QL + 512
MW = HD + 256
ZL = MW + 128
FWL = ZL + 128
TG = FWL + 64
QF = TG + 4
XN = 9344
assert QF + 4 <= XN
LDS_BYTES = XN + 4608
REC = 6144
FPO = 1536
EP = 1408
P1 = 3 << 19
P1B = 13312 * 4
P1P = 2 * P1B
HINT = (7 << 18) + (1 << 16)
STAMP = 2 << 20
SAFE = 4 << 20
SAFO = 1 << 18
WS_BYTES = 68 << 20
HUGE = 0x40000000
LOG2E = 0x3FB8AA3B
SCALE = 0x3DB504F3
TMASK = 0x3FF
STAMP_NAMES = ["start", "karg", "Bt/B0", "B1", "qgot", "sm", "Vend", "s7", "s8", "gotO", "FPst", "end", "x/B4", "B5"]

X, K, V, SU, WO, W2, OUT, WS = [4 + 4 * i for i in range(8)]
SRD_INFO = {X: (0, 2304), K: (2, 1 << 28), V: (4, 1 << 28), WO: (8, 4096 * 1152),
            W2: (16, 4608 * 1152), OUT: (18, 2304), WS: (22, WS_BYTES)}
sPS, sSP, sPM = 36, 37, 38
sSF = 40
sPC = 42
sU, sRB = 46, 47
sHKV, sJ, sB, sS, sSL, sCK = 48, 49, 50, 51, 52, 53
sT0, sT1, sT2, sT3 = 54, 55, 56, 57
sHASH = 58
sUO, sUS = 59, 60
sTB = 62
sLOG2E = 63
sSPIN = 64
sTM = 65
sC1, sC2, sC3 = 66, 67, 68
sEP = 69
sMASK = 70
sROW, sNSL = 74, 75
KA = 76
def stamp_reg(i): return {0: 100, 1: 72}.get(i, KA + 2 * (i - 2))

vK, vV, vA1, vA2 = 1, 2, 3, 4
MK = 5
vT0, vT1, vT2 = 9, 10, 11
A0, A1 = 12, 16
ACC, D1, D2 = 20, 24, 28
SR = 32
QB = 36
KR = 40
VR = 104
def kreg(t): return KR + 4 * t
def vreg(t): return VR + 4 * t
XA = 32
S1D = 132
WL = 40
PL = 60
HV = 68
vTAG = 74
vA3 = 75
TT = 76
vOS = 80
vA4 = 94
FC = 104
SV = 104


def r4(b): return f"v[{b}:{b+3}]"
def r2(b): return f"v[{b}:{b+1}]"
def srd(b): return f"s[{b}:{b+3}]"
DPPF = "row_mask:0xf bank_mask:0xf"
STEPS = ("quad_perm:[1,0,3,2]", "quad_perm:[2,3,0,1]", "row_half_mirror")


def unit_table(split, slabs):
    tab = []
    assert sum(slabs) == 72
    NSG = [(slabs[h >> 1] + (h & 1)) // 2 for h in range(16)]
    def place(g, left):
        if not left: return {}
        seen = set()
        for h in left:
            key = (NSG[h], h & 1)
            if key in seen: continue
            seen.add(key)
            slow = 2 * sum((g + i) % 8 == 3 for i in range(NSG[h])) + (1 - (h & 1))
            if slow > 12 - 2 * NSG[h]: continue
            r = place(g + NSG[h], [x for x in left if x != h])
            if r is not None:
                r[h] = g; return r
        return None
    G0 = place(0, list(range(16)))
    if G0 is None:
        G0 = {h: sum(NSG[:h]) for h in range(16)}; print("no clean placement", file=sys.stderr)
    for hkv in range(16):
        g0 = G0[hkv]; ns = NSG[hkv]
        assert 3 <= ns <= 6
        units = [4 * hkv + i for i in range(4)] + [64 + g0 + i for i in range(ns)] + [136 + g0 + i for i in range(ns)]
        cls = lambda u: (u - (0 if u < 64 else 64 if u < 136 else 136)) & 7
        nfree = 16 - len(units)
        order = sorted(units, key=lambda u: 0 if cls(u) == 3 else 1)
        nsp = min(nfree, {"c3": sum(cls(u) == 3 for u in units), "all": nfree, "none": 0}[split])
        sp = order[:nsp]
        ent = []
        for u in units:
            if u in sp: ent.append(u | (0x01f << 8))
            else: ent.append(u | (0x1ff << 8) | (1 << 18))
        for u in sp: ent.append(u | (0x1e0 << 8) | (1 << 17))
        while len(ent) < 16: ent.append(255)
        tab += [e | (ns << 19) | (g0 << 22) for e in ent[0::2] + ent[1::2]]
    return tab


def gen(depth=4, b2=11, pre=2, nwb=2, stamps=False, pol=" nt", spin=100000, mlsleep=4, tmo=40, gtmo=12, split="all",
        xg=True, dry=False, psel=0, usehint=True, hat='fp', hsc=True, npf=1, tlb=False, psleep=0, slabs=(10, 10, 10, 10, 8, 8, 8, 8), hold=None, cslot=0, cstep=1):
    L = []
    A = L.append

    def stamp(i):
        if stamps:
            r = stamp_reg(i)
            A(f"s_memrealtime s[{r}:{r+1}]")

    def srd_const(d):
        A(f"s_mov_b32 s{d+2}, {SRD_INFO[d][1]}"); A(f"s_mov_b32 s{d+3}, 0x00020000")

    def srd_ptr(d):
        o = KA + SRD_INFO[d][0]
        A(f"s_mov_b64 s[{d}:{d+1}], s[{o}:{o+1}]")

    def consts():
        A(f"s_mov_b32 s{sLOG2E}, {LOG2E:#x}"); A(f"s_mov_b32 s{sSPIN}, 0"); A(f"s_movk_i32 s{sTM}, {TMASK:#x}")
        A(f"s_mov_b32 s{sMASK}, 0x00ff00ff"); A(f"s_mov_b32 s{sMASK+1}, 0x00ff00ff")
        if cstep == 1:
            A(f"s_sub_u32 s{sSL}, s2, {32*cslot}"); A(f"s_cmp_ge_u32 s{sSL}, 18"); A(f"s_cselect_b32 s{sCK}, 1, 0")
        else:
            A(f"s_mul_i32 s{sSL}, s2, 4682"); A(f"s_lshr_b32 s{sSL}, s{sSL}, 16"); A(f"s_mul_i32 s{sT0}, s{sSL}, 14"); A(f"s_sub_u32 s{sCK}, s2, s{sT0}")
            A("s_cmp_ge_u32 s2, 252"); A(f"s_cselect_b32 s{sCK}, 1, s{sCK}")

    def masks(tmp):
        A(f"v_and_b32 v{vT2}, 1, v0"); A(f"v_lshlrev_b32 v{vT2}, 4, v{vT2}")
        A(f"v_mov_b32 v{MK}, 0xffff"); A(f"v_lshlrev_b32 v{vT2}, v{vT2}, v{MK}")
        A(f"v_bfe_u32 v{tmp}, v0, 1, 2")
        for j in range(4):
            A(f"v_cmp_eq_u32 vcc, {j}, v{tmp}"); A("s_nop 1"); A(f"v_cndmask_b32 v{MK+j}, 0, v{vT2}, vcc")

    def table_load(tag):
        A(f"s_getpc_b64 s[{sPC}:{sPC+1}]")
        A(f"L_pc{tag}:")
        A(f"s_lshl_b32 s{sPC+2}, s2, 2"); A(f"s_add_u32 s{sPC+2}, s{sPC+2}, L_tab-L_pc{tag}")
        A(f"s_load_dword s{sTB}, s[{sPC}:{sPC+1}], s{sPC+2}")

    def group_ids():
        A(f"s_bfe_u32 s{sNSL}, s{sTB}, 0x30013"); A(f"s_lshr_b32 s{sT1}, s{sTB}, 22")
        A(f"s_mul_i32 s{sROW}, s{sNSL}, s{sJ}"); A(f"s_lshl4_add_u32 s{sROW}, s{sT1}, s{sROW}"); A(f"s_lshl_b32 s{sROW}, s{sROW}, 2")

    def tag4(r):
        for v in range(4): A(f"v_bfi_b32 v{r+v}, s{sTM}, v{vTAG}, v{r+v}")

    def untag_check(dst, src, tags, acc):
        for d, r, t in zip(dst, src, tags): A(f"v_xor_b32 v{d}, v{t}, v{r}")
        A(f"v_or3_b32 v{acc}, v{dst[0]}, v{dst[1]}, v{dst[2]}")
        rest = dst[3:]
        while len(rest) >= 2:
            A(f"v_or3_b32 v{acc}, v{acc}, v{rest[0]}, v{rest[1]}"); rest = rest[2:]
        if rest: A(f"v_or_b32 v{acc}, v{acc}, v{rest[0]}")
        A(f"v_and_b32 v{acc}, s{sTM}, v{acc}")
        A(f"v_cmp_ne_u32 vcc, 0, v{acc}")

    def bf16r(dst, src):
        A(f"v_cvt_pk_bf16_f32 v{dst}, v{src}, v{src}"); A(f"v_and_b32 v{dst}, 0xffff0000, v{dst}")

    def swap_red(r, t, op, sw):
        A(f"v_mov_b32 v{t}, v{r}"); A("s_nop 1"); A(f"{sw} v{r}, v{t}"); A("s_nop 1"); A(f"{op} v{r}, v{r}, v{t}")

    def allred32(r, t, op="v_add_f32"):
        for n in (1, 2, 4, 8):
            A("s_nop 1"); A(f"{op}_dpp v{r}, v{r}, v{r} row_ror:{n} {DPPF}")
        swap_red(r, t, op, "v_permlane16_swap_b32")

    def allred_banks_rows(r, t, op):
        for n in (4, 8):
            A("s_nop 1"); A(f"{op}_dpp v{r}, v{r}, v{r} row_ror:{n} {DPPF}")
        swap_red(r, t, op, "v_permlane16_swap_b32"); swap_red(r, t, op, "v_permlane32_swap_b32")

    aflip = [0]
    def gemv_mfma(val, data, acc, first):
        a = A0 if aflip[0] == 0 else A1
        aflip[0] ^= 1
        for j in range(4):
            A(f"v_and_b32 v{a+j}, v{val}, v{MK+j}")
        A("s_nop 1")
        A(f"v_mfma_f32_16x16x32_bf16 {r4(acc)}, {r4(a)}, {r4(data)}, {'0' if first else r4(acc)}")

    def w2_mfmas():
        for n in range(3):
            for rho in range(2):
                gemv_mfma(HV + 2 * n + rho, WL + 4 * n, D1 if rho == 0 else D2, n == 0)

    LATE = [f"buffer_load_dwordx4 {r4(WL)}, v{vA2}, {srd(W2)}, 0 offen{pol}",
            f"buffer_load_dwordx4 {r4(WL+4)}, v{vA4}, {srd(W2)}, 0 offen{pol}",
            f"buffer_load_dwordx4 {r4(WL+8)}, v{vA3}, {srd(W2)}, 0 offen{pol}",
            f"buffer_load_dwordx4 {r4(WL+12)}, v{vA1}, {srd(WO)}, 0 offen{pol}",
            f"buffer_load_dwordx4 {r4(WL+16)}, v{vA1}, {srd(WO)}, 0 offen offset:2304{pol}"]

    def late_addr():
        A(f"v_bfe_u32 v{vT2}, v0, 3, 1")
        A(f"v_lshl_add_u32 v{vA1}, v{vT0}, 2, v{vT2}")
        A(f"s_lshl_b32 s{sT1}, s2, 4"); A(f"v_add_u32 v{vA1}, s{sT1}, v{vA1}")
        A(f"v_mul_u32_u24 v{vA1}, 1152, v{vA1}")
        A(f"v_lshl_add_u32 v{vA2}, v{vT0}, 1, v{vT2}")
        A(f"v_add_u32 v{vA2}, s{sROW}, v{vA2}")
        A(f"v_mul_u32_u24 v{vA2}, 1152, v{vA2}")
        A(f"v_and_b32 v{vT2}, 7, v0"); A(f"v_lshlrev_b32 v{vT2}, 4, v{vT2}")
        A(f"s_lshl_b32 s{sT1}, s3, 7"); A(f"v_add_u32 v{vT2}, s{sT1}, v{vT2}")
        A(f"v_add_u32 v{vA1}, v{vA1}, v{vT2}"); A(f"v_add_u32 v{vA2}, v{vA2}, v{vT2}")

    def tail_addr():
        A(f"s_lshl_b32 s{sT1}, s{sNSL}, 1"); A(f"v_mov_b32 v{TT}, {HUGE}")
        for n_, r_ in ((1, vA4), (2, vA3)):
            A(f"s_sub_i32 s{sT1}, s{sT1}, 4")
            A(f"v_cmp_gt_i32 vcc, s{sT1}, v{vT0}"); A(f"v_add_u32 v{r_}, {8*n_*1152}, v{vA2}"); A("s_nop 0")
            A(f"v_cndmask_b32 v{r_}, v{TT}, v{r_}, vcc")
        A(f"v_lshrrev_b32 v{TT}, 1, v{vT0}"); A(f"v_mul_u32_u24 v{TT}, 2304, v{TT}")
        A(f"v_and_b32 v{TT+1}, 7, v0"); A(f"v_lshl_add_u32 v{TT}, v{TT+1}, 5, v{TT}")
        A(f"v_and_b32 v{TT+1}, 1, v{vT0}"); A(f"v_lshl_add_u32 v{TT}, v{TT+1}, 4, v{TT}")
        A(f"s_mul_i32 s{sC2}, s2, {REC}"); A(f"s_lshl_b32 s{sT1}, s3, 8"); A(f"s_add_u32 s{sC2}, s{sC2}, s{sT1}"); A(f"s_add_u32 s{sC2}, s{sC2}, {FPO}")
        A(f"v_bfe_u32 v{TT+1}, v0, 3, 1"); A(f"v_lshlrev_b32 v{TT+1}, 7, v{TT+1}"); A(f"v_lshl_add_u32 v{TT+1}, v{vT0}, 3, v{TT+1}")
        for i in range(3):
            A(f"ds_read_b64 {r2(HV+2*i)}, v{TT+1} offset:{HD+32*i}")
        A(f"v_lshrrev_b32 v{vT1}, 3, v0"); A(f"v_lshlrev_b32 v{vT1}, 4, v{vT1}")
        A(f"s_and_b32 s{sT1}, s{sEP}, s{sTM}"); A(f"v_mov_b32 v{vTAG}, s{sT1}")

    A(HEADER.rstrip("\n"))
    A(f"; @launch grid=(256,1,1) block=(576,1,1) lds={LDS_BYTES}")
    A('.amdgcn_target "amdgcn-amd-amdhsa--gfx950"')
    A(".text"); A(f".globl {NAME}"); A(".p2align 8"); A(f".type {NAME},@function"); A(f"{NAME}:")
    stamp(0)
    if hold: A("s_memrealtime s[100:101]")
    A(f"s_load_dwordx16 s[{KA}:{KA+15}], s[0:1], 0")
    A(f"s_load_dwordx8 s[{KA+16}:{KA+23}], s[0:1], 64")
    A("v_lshrrev_b32 v1, 6, v0")
    A("s_cmp_ge_u32 s2, 256"); A("s_cbranch_scc1 L_end")
    A("v_readfirstlane_b32 s3, v1")
    A("v_and_b32 v0, 63, v0")
    if xg:
        A(f"s_and_b32 s{sT0}, s2, 7"); A(f"s_lshl_b32 s{sT0}, s{sT0}, 5"); A("s_lshr_b32 s2, s2, 3"); A(f"s_add_u32 s2, s2, s{sT0}")
    A(f"s_lshr_b32 s{sHKV}, s2, 4"); A(f"s_and_b32 s{sJ}, s2, 15"); A(f"s_lshr_b32 s{sB}, s{sJ}, 3"); A(f"s_and_b32 s{sS}, s2, 7")
    A(f"v_lshrrev_b32 v{vT0}, 4, v0")
    A("s_cmp_eq_u32 s3, 8"); A("s_cbranch_scc1 L_service")

    srd_const(K)
    A(f"s_lshl4_add_u32 s{sT0}, s{sB}, s{sHKV}"); A(f"s_lshl_b32 s{sT0}, s{sT0}, 6"); A(f"s_add_u32 s{sT0}, s{sT0}, s{sS}")
    A(f"s_lshl_b32 s{sT0}, s{sT0}, 7"); A(f"s_add_u32 s{sT0}, s{sT0}, s3"); A(f"s_addk_i32 s{sT0}, {7 << 10}"); A(f"s_lshl_b32 s{sT2}, s{sT0}, 10")
    A(f"v_and_b32 v{vK}, 3, v0"); A(f"v_lshl_add_u32 v{vK}, v{vK}, 4, s{sT2}")
    A(f"v_bfe_u32 v{vT1}, v0, 2, 2"); A(f"v_lshl_add_u32 v{vK}, v{vT1}, 8, v{vK}")
    A(f"v_lshl_add_u32 v{vK}, v{vT0}, 6, v{vK}")
    A(f"s_lshl3_add_u32 s{sT0}, s2, s3"); A(f"s_mul_i32 s{sHASH}, s{sT0}, 0x9E3779B1")
    A(f"s_bfe_u32 s{sHASH}, s{sHASH}, 0x40018"); A(f"s_lshl_b32 s{sHASH}, s{sHASH}, 13")
    A("s_waitcnt lgkmcnt(0)")
    stamp(1)
    srd_ptr(K)

    def kvld(nm, t, reg, va, sr):
        return (f"{nm}{t}", [f"s_xor_b32 s{sT0}, s{sHASH}, {t << 13}", f"buffer_load_dwordx4 {r4(reg)}, v{va}, {srd(sr)}, s{sT0} offen{pol}"])
    loads = [kvld("K", t, kreg(t), vK, K) for t in range(pre)]
    for k in range(9):
        c = [f"s_bitcmp1_b32 s{sTB}, {8+k}", f"s_cselect_b32 s{sT0}, s{sUO}, {HUGE}",
             f"buffer_load_dwordx4 {r4(S1D+4*k)}, v{vA1}, {srd(SU)}, s{sT0} offen{pol}"]
        if k < 8: c.append(f"s_add_u32 s{sUO}, s{sUO}, s{sUS}")
        loads.append((f"U{k}", c))
    loads += [kvld("K", t, kreg(t), vK, K) for t in range(pre, 16)]
    loads += [kvld("V", t, vreg(t), vV, V) for t in range(16)]
    loads += [(f"W{i}", [LATE[i]]) for i in range(5 if dry else nwb)]
    names = [n for n, _ in loads]

    def rest_of_prologue():
        A("; remaining set-up; stage-1 slab (matrix, columns, row blocks) comes from the table behind the code")
        A(f"v_lshl_add_u32 v{vV}, v0, 4, s{sT2}")
        for d in (V, WO, W2, WS): srd_const(d); srd_ptr(d)
        consts()
        masks(vT1)
        A(f"v_bfe_u32 v{vT2}, v0, 3, 1"); A(f"s_lshl_b32 s{sT1}, s3, 3")
        A(f"v_lshl_add_u32 v{vA1}, v{vT0}, 1, s{sT1}")
        A(f"v_mul_u32_u24 v{vA2}, 2304, v{vT2}"); A(f"v_lshl_add_u32 v{vA2}, v{vA1}, 2, v{vA2}")
        A(f"v_add_u32 v{vA1}, v{vA1}, v{vT2}")
        A(f"v_and_b32 v{vT1}, 7, v0"); A(f"v_lshlrev_b32 v{vT1}, 4, v{vT1}")
        A(f"s_mov_b32 s{SU+3}, 0x00020000")
        A("s_waitcnt lgkmcnt(0)")
        group_ids()
        A(f"s_and_b32 s{sU}, s{sTB}, 255")
        A(f"s_cmp_lt_u32 s{sU}, 136")
        A(f"s_cselect_b64 s[{SU}:{SU+1}], s[{KA+12}:{KA+13}], s[{KA+14}:{KA+15}]"); A(f"s_cselect_b32 s{sT1}, 64, 136")
        A(f"s_cmp_lt_u32 s{sU}, 64")
        A(f"s_cselect_b64 s[{SU}:{SU+1}], s[{KA+6}:{KA+7}], s[{SU}:{SU+1}]"); A(f"s_cselect_b32 s{sT1}, 0, s{sT1}")
        A(f"s_movk_i32 s{sRB}, 9216"); A(f"s_cselect_b32 s{sRB}, 8192, s{sRB}")
        A(f"s_mul_i32 s{SU+2}, s{sRB}, 576")
        A(f"s_sub_u32 s{sUO}, s{sU}, s{sT1}"); A(f"s_lshl_b32 s{sUO}, s{sUO}, 7"); A(f"s_lshl_b32 s{sUS}, s{sRB}, 6")
        A(f"v_mad_u32_u24 v{vA1}, v{vA1}, s{sRB}, v{vT1}")
        stamp(2)

    def qk_block():
        A("; ---- QK^T for the 16 tiles of this wave, scores rounded as the bf16 reference does, softmax against the wave's true max")
        A(f"v_bfe_u32 v{vT2}, v0, 1, 1"); A(f"v_lshlrev_b32 v{vT2}, 8, v{vT2}"); A(f"v_lshl_add_u32 v{vT2}, v{vT0}, 6, v{vT2}")
        A(f"v_bfe_u32 v{vT1}, v0, 2, 2"); A(f"v_lshl_add_u32 v{vT2}, v{vT1}, 4, v{vT2}")
        A(f"v_mov_b32 v{vT1}, 0")
        stamp(7)
        A("s_branch L_qwait1")
        A("L_qwait:")
        A("s_sleep 2")
        A("L_qwait1:")
        A(f"ds_read_b32 v{SR}, v{vT1} offset:{QF}")
        A(f"ds_read_b128 {r4(QB)}, v{vT2} offset:{QL}")
        A(f"s_add_u32 s{sSPIN}, s{sSPIN}, 1"); A(f"s_cmp_gt_u32 s{sSPIN}, {spin*16}")
        A("s_waitcnt lgkmcnt(0)")
        A(f"v_cmp_eq_u32 vcc, 0, v{SR}")
        A("s_cbranch_scc1 L_qgot")
        A("s_cbranch_vccnz L_qwait")
        A("L_qgot:")
        stamp(4)
        Ds = [A0, A1, D1, D2]
        def mf(t): A(f"v_mfma_f32_16x16x32_bf16 {r4(Ds[t%4])}, {r4(kreg(t))}, {r4(QB)}, 0")
        def ops(t):
            b = t & 3; S = SR + (t >> 2); D = Ds[t % 4]; bm = f"row_mask:0xf bank_mask:{1<<b:#x}"
            A(f"v_add_f32_dpp v{S}, v{D+((b+1)&3)}, v{D+b} row_ror:12 {bm}")
            A(f"v_add_f32_dpp v{S}, v{D+((b+2)&3)}, v{S} row_ror:8 {bm}")
            A(f"v_add_f32_dpp v{S}, v{D+((b+3)&3)}, v{S} row_ror:4 {bm}")
        for t in range(4): mf(t)
        A("s_nop 4")
        for t in range(16):
            ops(t)
            if t + 4 < 16: mf(t + 4)
            elif t < 15: A("s_nop 0")
        for p in (0, 2):
            a, b = SR + p, SR + p + 1
            A(f"v_cvt_pk_bf16_f32 v{b}, v{a}, v{b}"); A(f"v_lshlrev_b32 v{a}, 16, v{b}"); A(f"v_and_b32 v{b}, 0xffff0000, v{b}")
            A(f"v_mul_f32 v{a}, {SCALE:#x}, v{a}"); A(f"v_mul_f32 v{b}, {SCALE:#x}, v{b}")
            A(f"v_cvt_pk_bf16_f32 v{b}, v{a}, v{b}"); A(f"v_lshlrev_b32 v{a}, 16, v{b}"); A(f"v_and_b32 v{b}, 0xffff0000, v{b}")
        m = D1; l = D1 + 1
        A(f"v_max3_f32 v{m}, v{SR}, v{SR+1}, v{SR+2}"); A(f"v_max_f32 v{m}, v{m}, v{SR+3}")
        allred_banks_rows(m, D2, "v_max_f32")
        A(f"v_mul_f32 v{vT2}, s{sLOG2E}, v{m}")
        for T in range(4): A(f"v_fma_f32 v{SR+T}, v{SR+T}, s{sLOG2E}, -v{vT2}")
        for T in range(4): A(f"v_exp_f32 v{SR+T}, v{SR+T}")
        A(f"s_lshl_b32 s{sT1}, s3, 3"); A(f"v_lshl_add_u32 v{QB}, v0, 5, s{sT1}")
        A(f"v_add_f32 v{l}, v{SR}, v{SR+1}"); A(f"v_add_f32 v{D2}, v{SR+2}, v{SR+3}"); A(f"v_add_f32 v{l}, v{l}, v{D2}")
        allred_banks_rows(l, D2, "v_add_f32")
        A("s_mov_b64 exec, 5")
        A(f"ds_write_b64 v{QB}, {r2(m)} offset:{MW}")
        A("s_mov_b64 exec, -1")
        for j in range(8): A(f"v_mov_b32 v{A0+j}, 0")
        A(f"v_and_b32 v{D2}, 1, v0"); A(f"v_lshlrev_b32 v{D2}, 4, v{D2}"); A(f"v_mov_b32 v{D2+1}, 0xffff"); A(f"v_lshlrev_b32 v{D2}, v{D2}, v{D2+1}")
        for T in range(4): A(f"v_cvt_pk_bf16_f32 v{SR+T}, v{SR+T}, v{SR+T}")
        for T in range(4): A(f"v_and_b32 v{SR+T}, v{SR+T}, v{D2}")
        A(f"v_and_b32 v{vOS}, 15, v0"); A(f"v_lshlrev_b32 v{vOS}, 5, v{vOS}"); A(f"v_lshl_add_u32 v{vOS}, v{vT0}, 3, v{vOS}")
        A(f"s_lshl_b32 s{sT1}, s3, 10"); A(f"v_add_u32 v{vOS}, s{sT1}, v{vOS}")
        tail_addr()
        stamp(5)

    def pv(t):
        b = t & 3; P = SR + (t >> 2); a = A0 if t % 2 == 0 else A1
        for j in range(4):
            n = (4 * (j - b)) % 16
            ctl = "quad_perm:[0,1,2,3]" if n == 0 else f"row_ror:{n}"
            A(f"v_mov_b32_dpp v{a+j}, v{P} {ctl} row_mask:0xf bank_mask:{1<<j:#x}")
        A("s_nop 1")
        A(f"v_mfma_f32_16x16x32_bf16 {r4(ACC)}, {r4(a)}, {r4(vreg(t))}, {'0' if t == 0 else r4(ACC)}")

    state = {"qk": False, "pv": 0}

    def on_landed(nm):
        if dry:
            if nm == "U8": stamp(3); late_addr()
            if nm == "V0": tail_addr()
            return
        if nm[0] == "U":
            k = int(nm[1])
            if k == 0:
                A("; B0: xn is in LDS; stage 1 = xn^T (one-hot A operand) x slab rows on MFMA")
                A("s_barrier")
                for i in range(4): A(f"ds_read_b64 {r2(XA+2*i)}, v{vA2} offset:{XN+256*i}")
            A(f"s_waitcnt lgkmcnt({min(k+4, 9) - k - 1})")
            x = XA + 2 * (k % 4)
            gemv_mfma(x, S1D + 4 * k, D1, k == 0)
            gemv_mfma(x + 1, S1D + 4 * k, D2, k == 0)
            if k + 4 < 9: A(f"ds_read_b64 {r2(x)}, v{vA2} offset:{XN+256*(k+4)}")
            if k == 8:
                A(f"v_and_b32 v{vT1}, 7, v0"); A(f"v_lshl_add_u32 v{vT1}, v{vT0}, 3, v{vT1}"); A(f"s_lshl_b32 s{sT1}, s3, 9")
                A(f"v_lshl_add_u32 v{vT1}, v{vT1}, 4, s{sT1}")
                A(f"v_mov_b32 v{vT2}, 0"); A(f"ds_read_b32 v{vT2}, v{vT2} offset:{TG}")
                A("s_nop 1")
                for v in range(4): A(f"v_add_f32_dpp v{D1+v}, v{D2+v}, v{D1+v} row_ror:8 {DPPF}")
                A(f"s_mov_b64 exec, s[{sMASK}:{sMASK+1}]")
                A(f"ds_write_b128 v{vT1}, {r4(D1)} offset:{S1}")
                A("s_mov_b64 exec, -1")
                A("s_waitcnt lgkmcnt(0)"); A("s_barrier")
                stamp(3)
                A(f"v_readfirstlane_b32 s{sEP}, v{vT2}")
                late_addr()
        elif nm[0] in "VW" and state["qk"]:
            t = max(int(n[1:]) for n in names[:names.index(nm)+1] if n[0] == "V")
            while state["pv"] <= t:
                pv(state["pv"]); state["pv"] += 1

    N = len(loads)
    landed = -1
    ib2 = names.index(f"V{b2}")
    assert pre >= 2 and names.index("U8") + depth < names.index("V7") and ib2 - depth >= names.index("K15")
    for i, (nm, code) in enumerate(loads):
        if nm == "U0": rest_of_prologue()
        if i == 1: table_load("a")
        for c in code: A(c)
        if i >= depth:
            A(f"s_waitcnt vmcnt({depth})")
            landed = i - depth
            on_landed(names[landed])
        if i == ib2:
            if dry: stamp(7)
            else: qk_block()
            state["qk"] = True
    def drain(extra):
        ld = landed
        while ld < names.index("V15"):
            ld += 1
            A(f"s_waitcnt vmcnt({N-1-ld+extra})")
            on_landed(names[ld])
    def slot_b4():
        A("; ---- PV done: B4 hands the wave's o to the service wave, B4b lets its record leave first, B5 brings z back")
        A("s_nop 7")
        A(f"ds_write2st64_b64 v{vOS}, {r2(ACC)}, {r2(ACC+2)} offset0:{OS//512} offset1:{OS//512+1}")
        A("s_waitcnt lgkmcnt(0)")
        A("s_barrier")
        stamp(12)
        if nwb < 5: A("s_barrier")
    drain(0)
    stamp(6)
    if dry:
        A("s_waitcnt vmcnt(0)"); stamp(8); A("s_branch L_fin")
    slot_b4()
    for c in LATE[nwb:]: A(c)
    A("s_waitcnt vmcnt(2)")
    w2_mfmas()
    A("s_waitcnt vmcnt(0)")
    stamp(8)
    A("s_barrier")
    A(f"ds_read_b128 {r4(PL)}, v{vT1} offset:{ZL}")
    A("s_waitcnt lgkmcnt(0)")

    svc0 = len(L)
    A("L_service:")
    if dry: A("s_endpgm")
    def vm(ins):
        A("s_setprio 3")
        for x in ins: A(x)
        A("s_setprio 0")
    XS = SV + 8
    PA, PD, TG0 = 100, 96, 63
    srd_const(X); srd_const(WS)
    A(f"v_lshrrev_b32 v{vA1}, 5, v0"); A(f"v_mul_u32_u24 v{vA2}, 1152, v{vA1}")
    A(f"v_and_b32 v{vT2}, 31, v0"); A(f"v_mad_u32_u24 v{vA2}, v{vT2}, 36, v{vA2}")
    A("s_setprio 3")
    A("s_waitcnt lgkmcnt(0)")
    stamp(1)
    srd_ptr(X)
    A(f"buffer_load_dwordx4 {r4(XS)}, v{vA2}, {srd(X)}, 0 offen")
    A(f"buffer_load_dwordx4 {r4(XS+4)}, v{vA2}, {srd(X)}, 0 offen offset:16")
    A(f"buffer_load_dword v{XS+8}, v{vA2}, {srd(X)}, 0 offen offset:32")
    A("s_setprio 0")
    srd_ptr(WS)
    A(f"s_load_dword s{sEP}, s[{WS}:{WS+1}], {EP}")
    table_load("b")
    A(f"v_lshlrev_b32 v{vK}, 4, v0")
    A(f"v_mov_b32 v{SV+4}, 0"); A(f"v_lshlrev_b32 v{SV+5}, 2, v0")
    A(f"ds_write_b32 v{SV+4}, v{SV+4} offset:{QF}")
    A(f"v_mov_b32 v{SV+6}, -1"); A(f"v_and_b32 v{SV+5}, 124, v{SV+5}"); A(f"ds_write_b32 v{SV+5}, v{SV+6} offset:{MW}")
    for d in (WO, W2, OUT): srd_const(d); srd_ptr(d)
    consts()
    masks(SV + 5)
    A(f"v_lshlrev_b32 v{vA2}, 1, v{vA2}")
    if tlb:
        srd_const(V); srd_ptr(V)
        A(f"s_lshl4_add_u32 s{sT0}, s{sB}, s{sHKV}"); A(f"s_lshl_b32 s{sT0}, s{sT0}, 23"); A(f"s_add_u32 s{sT0}, s{sT0}, {(7 << 20) - 128}")
        A(f"s_mul_i32 s{sT1}, s2, {16*1152}"); A(f"s_mul_i32 s{sT2}, s{sROW}, 1152"); A(f"s_mul_i32 s{sT3}, s2, {REC}")
        A("s_mov_b64 exec, 1")
        vm([f"buffer_load_dword v{SV+30}, v{SV+4}, {srd(V)}, s{sT0} offen nt", f"buffer_load_dword v{SV+31}, v{SV+4}, {srd(WO)}, s{sT1} offen nt",
            f"buffer_load_dword v{SV+32}, v{SV+4}, {srd(W2)}, s{sT2} offen nt"])
        A("s_mov_b64 exec, -1")
    U = 12
    A(f"s_waitcnt vmcnt({3 if tlb else 0})")
    stamp(12)
    for i in range(9):
        A(f"v_lshlrev_b32 v{U+2*i}, 16, v{XS+i}"); A(f"v_and_b32 v{U+2*i+1}, 0xffff0000, v{XS+i}")
    s = XS
    A(f"v_add_f32 v{s}, v{U}, v{U+1}"); A(f"v_add_f32 v{s+1}, v{U+2}, v{U+3}")
    for i in range(4, 18, 2):
        A(f"v_add_f32 v{s}, v{s}, v{U+i}"); A(f"v_add_f32 v{s+1}, v{s+1}, v{U+i+1}")
    A(f"v_add_f32 v{s}, v{s}, v{s+1}")
    allred32(s, s + 1)
    A(f"v_mul_f32 v{s}, {0x3AE38E39:#x}, v{s}")
    W = 40
    for i in range(18):
        A(f"v_sub_f32 v{W+i}, v{U+i}, v{s}")
    A(f"v_mul_f32 v{s+2}, v{W}, v{W}"); A(f"v_mul_f32 v{s+3}, v{W+1}, v{W+1}")
    for i in range(2, 18, 2):
        A(f"v_fmac_f32 v{s+2}, v{W+i}, v{W+i}"); A(f"v_fmac_f32 v{s+3}, v{W+i+1}, v{W+i+1}")
    A(f"v_add_f32 v{s+2}, v{s+2}, v{s+3}")
    allred32(s + 2, s + 3)
    A(f"v_mul_f32 v{s+2}, {0x3AE38E39:#x}, v{s+2}")
    bf16r(s + 2, s + 2)
    A(f"v_add_f32 v{s+2}, {0x3727C5AC:#x}, v{s+2}")
    bf16r(s + 2, s + 2)
    A(f"v_sqrt_f32 v{s+2}, v{s+2}")
    bf16r(s, s)
    bf16r(s + 2, s + 2)
    A(f"v_rcp_f32 v{s+2}, v{s+2}")
    for i in range(18):
        A(f"v_sub_f32 v{U+i}, v{U+i}, v{s}")
    for i in range(0, 18, 2):
        A(f"v_cvt_pk_bf16_f32 v{U+i+1}, v{U+i}, v{U+i+1}"); A(f"v_lshlrev_b32 v{U+i}, 16, v{U+i+1}"); A(f"v_and_b32 v{U+i+1}, 0xffff0000, v{U+i+1}")
        A(f"v_mul_f32 v{U+i}, v{U+i}, v{s+2}"); A(f"v_mul_f32 v{U+i+1}, v{U+i+1}, v{s+2}")
        A(f"v_cvt_pk_bf16_f32 v{U+i}, v{U+i}, v{U+i}"); A(f"v_cvt_pk_bf16_f32 v{U+i+1}, v{U+i+1}, v{U+i+1}")
        A(f"ds_write_b64 v{vA2}, {r2(U+i)} offset:{XN+4*i}")
    A("s_waitcnt lgkmcnt(0)")
    A(f"s_add_u32 s{sEP}, s{sEP}, 1")
    A(f"v_mov_b32 v{vTAG}, s{sEP}")
    A(f"ds_write_b32 v{SV+4}, v{vTAG} offset:{TG}")
    A("s_waitcnt lgkmcnt(0)")
    A("s_barrier")
    stamp(2)
    A(f"s_and_b32 s{sT0}, s{sEP}, s{sTM}"); A(f"v_mov_b32 v{vTAG}, s{sT0}")
    A(f"s_bfe_u32 s{sSF}, s{sEP}, 0x6000a"); A(f"s_lshl_b32 s{sSF}, s{sSF}, 20"); A(f"s_add_u32 s{sSF}, s{sSF}, {SAFE}")
    T = SV + 8
    GT = 40
    group_ids()
    A(f"s_and_b32 s{sU}, s{sTB}, 255")
    A(f"v_and_b32 v{SV+1}, 7, v0"); A(f"v_bfe_u32 v{SV}, v0, 3, 1")
    A(f"v_bfe_u32 v{PA}, v0, 4, 1"); A(f"v_mul_u32_u24 v{SV+2}, {P1P}, v{PA}"); A(f"v_mul_u32_u24 v{PA}, {P1B}, v{PA}")
    A(f"v_lshl_add_u32 v{PA}, v{SV+1}, 5, v{PA}")
    A(f"v_lshl_add_u32 v{PA}, v{SV}, 4, v{PA}")
    A(f"s_bfe_u32 s{sT0}, s{sTB}, 0x10011"); A(f"v_xor_b32 v{SV+3}, s{sT0}, v{vA1}"); A(f"v_mul_u32_u24 v{SV+3}, {P1P}, v{SV+3}"); A(f"v_add_u32 v{PA}, v{PA}, v{SV+3}")
    A(f"s_mov_b32 s{sPM}, -1"); A(f"s_bitcmp1_b32 s{sTB}, 18"); A(f"s_cselect_b32 s{sPM+1}, -1, 0")
    A(f"s_lshl_b32 s{sPS}, s{sU}, 8"); A(f"s_add_u32 s{sPS}, s{sPS}, {P1}")
    A(f"s_cmp_lt_u32 s{sU}, 208"); A(f"s_cselect_b32 s{sPS}, s{sPS}, {HUGE}")
    A(f"s_mul_i32 s{sT2}, s{sB}, {P1B}"); A(f"s_lshl_b32 s{sT3}, s{sHKV}, 10"); A(f"s_add_u32 s{sT2}, s{sT2}, s{sT3}"); A(f"s_add_u32 s{sT2}, s{sT2}, {P1}")
    A(f"s_add_u32 s{sC2}, s{sT2}, {P1P}")
    A(f"v_mul_u32_u24 v{vA2}, {P1B}, v{SV}"); A(f"v_mul_u32_u24 v{vA1}, 18432, v{vA1}"); A(f"v_add3_u32 v{vA2}, v{vA2}, v{vA1}, v{SV+2}")
    A(f"v_lshl_add_u32 v{vA2}, v{SV+1}, 4, v{vA2}")
    A(f"v_mov_b32 v{SV+3}, {HUGE}")
    A(f"v_cmp_gt_u32 vcc, s{sNSL}, v{SV+1}"); A("s_nop 1")
    A(f"v_cndmask_b32 v{vA2}, v{SV+3}, v{vA2}, vcc"); A(f"v_cndmask_b32 v{TG0}, 0, v{vTAG}, vcc")
    A(f"s_lshl_b32 s{sT3}, s{sROW}, 2"); A(f"s_add_u32 s{sT3}, s{sT3}, {P1 + 16384}")
    A(f"s_mov_b32 s{sSP}, 0"); A(f"s_mov_b32 s{sC1}, 0"); A(f"s_sub_u32 s{sC3}, s{sSF}, {P1}")
    for v in range(4): A(f"v_mov_b32 v{PD+v}, 0")
    A("s_barrier")
    A("s_mov_b64 exec, 0xffffffff")
    for w in range(8):
        A(f"ds_read_b128 {r4(T+4*w)}, v{vK} offset:{S1 + w*512}")
    for w in range(1, 8):
        A(f"s_waitcnt lgkmcnt({7-w})")
        for v in range(4):
            A(f"v_add_f32 v{PD+v}, v{T+v if w == 1 else PD+v}, v{T+4*w+v}")
    for v in range(4): A(f"v_add_u32 v{PD+v}, {(TMASK+1)//2}, v{PD+v}")
    A("s_mov_b64 exec, -1")
    tag4(PD)
    A(f"s_mov_b64 exec, s[{sPM}:{sPM+1}]")
    vm([f"buffer_store_dwordx4 {r4(PD)}, v{PA}, {srd(WS)}, s{sPS} offen"])
    A("s_mov_b64 exec, -1")
    def safe_p1(tag):
        A(f"s_cmp_lg_u32 s{sSP}, 0"); A(f"s_cbranch_scc1 L_sp{tag}")
        A(f"s_add_u32 s{sPS}, s{sPS}, s{sSF}"); A(f"s_sub_u32 s{sPS}, s{sPS}, {P1}"); A(f"s_mov_b32 s{sSP}, 1")
        A(f"s_mov_b64 exec, s[{sPM}:{sPM+1}]")
        vm([f"buffer_store_dwordx4 {r4(PD)}, v{PA}, {srd(WS)}, s{sPS} offen sc1"])
        A("s_mov_b64 exec, -1")
        A(f"L_sp{tag}:")
    stamp(3)
    A("L_gather:")
    vm([f"buffer_load_dwordx4 {r4(T)}, v{vK}, {srd(WS)}, s{sT2} offen sc1",
        f"buffer_load_dwordx4 {r4(T+4)}, v{vK}, {srd(WS)}, s{sC2} offen sc1",
        f"buffer_load_dwordx4 {r4(GT)}, v{vA2}, {srd(WS)}, s{sT3} offen sc1"])
    A(f"s_add_u32 s{sSPIN}, s{sSPIN}, 1")
    A("s_waitcnt vmcnt(0)")
    rg = [T + i for i in range(8)] + [GT + i for i in range(4)]
    untag_check(rg, rg, [vTAG] * 8 + [TG0] * 4, SV)
    A("s_cbranch_vccz L_gotg")
    A(f"s_cmp_lt_u32 s{sSPIN}, {gtmo}"); A("s_cbranch_scc1 L_gather")
    safe_p1("g")
    for r_ in (sT2, sC2, sT3): A(f"s_sub_u32 s{r_}, s{r_}, s{sC1}")
    A(f"s_xor_b32 s{sC1}, s{sC1}, s{sC3}")
    for r_ in (sT2, sC2, sT3): A(f"s_add_u32 s{r_}, s{r_}, s{sC1}")
    A(f"s_cmp_lt_u32 s{sSPIN}, {spin}"); A("s_cbranch_scc1 L_gather")
    A("L_gotg:")
    for v in range(4): A(f"v_add_f32 v{T+v}, v{T+v}, v{T+4+v}")
    A(f"v_cvt_pk_bf16_f32 v{T}, v{T}, v{T+1}"); A(f"v_cvt_pk_bf16_f32 v{T+1}, v{T+2}, v{T+3}")
    A(f"v_lshlrev_b32 v{vA1}, 3, v0")
    A(f"ds_write_b64 v{vA1}, {r2(T)} offset:{QL}")
    for v in range(4): A(f"v_mov_b32 v{GT+4+v}, v{GT+v}")
    A("s_nop 1")
    for v in range(4): A(f"v_permlane16_swap_b32 v{GT+v}, v{GT+4+v}")
    A("s_nop 1")
    for v in range(4): A(f"v_add_f32 v{GT+v}, v{GT+v}, v{GT+4+v}")
    for v in range(4): bf16r(GT + v, GT + v)
    for v in range(4): A(f"v_mov_b32 v{GT+4+v}, v{GT+v}")
    A("s_nop 1")
    for v in range(4): A(f"v_permlane32_swap_b32 v{GT+v}, v{GT+4+v}")
    A("s_nop 1")
    for v in range(4): A(f"v_mul_f32 v{GT+8+v}, s{sLOG2E}, v{GT+v}")
    for v in range(4): A(f"v_exp_f32 v{GT+8+v}, -v{GT+8+v}")
    for v in range(4): A(f"v_add_f32 v{GT+8+v}, 1.0, v{GT+8+v}")
    for v in range(4): A(f"v_rcp_f32 v{GT+8+v}, v{GT+8+v}")
    for v in range(4): A(f"v_mul_f32 v{GT+v}, v{GT+v}, v{GT+8+v}")
    for v in range(4): bf16r(GT + v, GT + v)
    for v in range(4): A(f"v_mul_f32 v{GT+v}, v{GT+v}, v{GT+4+v}")
    for v in range(4): A(f"v_cvt_pk_bf16_f32 v{GT+v}, v{GT+v}, v{GT+v}")
    A("s_mov_b64 exec, 0xffff")
    A(f"ds_write_b128 v{vK}, {r4(GT)} offset:{HD}")
    A("s_mov_b64 exec, -1")
    A(f"v_mov_b32 v{SV+3}, 1")
    A("s_waitcnt lgkmcnt(0)")
    A(f"ds_write_b32 v{SV+4}, v{SV+3} offset:{QF}")
    stamp(5)
    late_addr(); tail_addr()
    A(f"s_lshl_b32 s{sT0}, s{sSL}, 7"); A(f"v_lshl_add_u32 v{SV+20}, v0, 2, s{sT0}")
    vm(LATE + [f"buffer_load_dword v{SV+21}, v{SV+20}, {srd(X)}, 0 offen"])
    A(f"v_and_b32 v{vA1}, 15, v0"); A(f"s_lshl_b32 s{sT1}, s{sHKV}, 4"); A(f"v_add_u32 v{SV+12}, s{sT1}, v{vA1}")
    A(f"v_mul_u32_u24 v{vA1}, {REC}, v{SV+12}")
    A(f"s_mul_i32 s{sT2}, s{sJ}, 80"); A(f"v_lshl_add_u32 v{vA2}, v{vT0}, 4, v{vA1}")
    A(f"s_mul_i32 s{sPC}, s2, {REC}")
    A(f"v_lshrrev_b32 v{vV}, 2, v0"); A(f"v_mul_u32_u24 v{vV}, 80, v{vV}"); A(f"v_and_b32 v{SV+1}, 3, v0"); A(f"v_lshl_add_u32 v{vV}, v{SV+1}, 4, v{vV}")
    A(f"v_mul_u32_u24 v{SV+1}, 80, v0")
    A("s_mov_b32 s0, 0x01010101"); A("s_mov_b32 s1, 0x01010101")
    A(f"v_lshl_add_u32 v{SV+14}, v0, 4, s{sJ}"); A(f"v_cmp_gt_u32 vcc, 18, v{SV+14}"); A(f"v_lshlrev_b32 v{SV+14}, 10, v{SV+14}")
    A(f"s_lshr_b32 s{sT0}, s{sHKV}, 1"); A(f"s_lshl_b32 s{sT0}, s{sT0}, 7"); A(f"s_and_b32 s{sT1}, s{sHKV}, 1"); A(f"s_lshl2_add_u32 s{sT0}, s{sT1}, s{sT0}")
    A(f"s_add_u32 s{sUO}, s{sT0}, {HINT}"); A(f"s_mov_b64 s[{sUS}:{sUS+1}], vcc")
    A(f"s_getreg_b32 s{sC3}, hwreg(HW_REG_XCC_ID)"); A(f"s_lshl_b32 s{sC3}, s{sC3}, 16")
    FW = 80
    A(f"v_and_b32 v{SV+2}, 15, v0"); A(f"v_lshlrev_b32 v{SV+3}, 2, v{SV+2}"); A(f"v_lshlrev_b32 v{SV+2}, 3, v{SV+2}")
    A(f"v_lshrrev_b32 v{SV}, 5, v0"); A(f"v_lshlrev_b32 v{SV}, 5, v{SV}")
    A("L_mlwait:")
    A(f"s_sleep {mlsleep}")
    A(f"ds_read_b64 {r2(SV+6)}, v{SV+2} offset:{MW}")
    A(f"s_add_u32 s{sSPIN}, s{sSPIN}, 1"); A(f"s_cmp_gt_u32 s{sSPIN}, {spin*16}")
    A("s_waitcnt lgkmcnt(0)")
    A(f"v_cmp_eq_u32 vcc, -1, v{SV+7}")
    A(f"v_max_f32_dpp v{SV+4}, v{SV+6}, v{SV+6} {STEPS[0]} {DPPF}")
    A("s_cbranch_scc1 L_mlgot")
    A("s_cbranch_vccnz L_mlwait")
    A("L_mlgot:")
    A("s_setprio 3")
    A(f"v_max_f32_dpp v{SV+4}, v{SV+4}, v{SV+4} {STEPS[1]} {DPPF}"); A("s_nop 1")
    A(f"v_max_f32_dpp v{SV+4}, v{SV+4}, v{SV+4} {STEPS[2]} {DPPF}")
    A(f"v_sub_f32 v{SV+6}, v{SV+6}, v{SV+4}"); A(f"v_mul_f32 v{SV+6}, s{sLOG2E}, v{SV+6}"); A(f"v_exp_f32 v{SV+6}, v{SV+6}"); A("s_nop 0")
    A(f"ds_write_b32 v{SV+3}, v{SV+6} offset:{FWL}")
    A(f"v_mul_f32 v{SV+5}, v{SV+7}, v{SV+6}")
    A(f"ds_read_b128 {r4(FW)}, v{SV} offset:{FWL}"); A(f"ds_read_b128 {r4(FW+4)}, v{SV} offset:{FWL+16}")
    for s_ in STEPS:
        A(f"v_add_f32_dpp v{SV+5}, v{SV+5}, v{SV+5} {s_} {DPPF}"); A("s_nop 1")
    A(f"v_mov_b32 v{SV+6}, s{sC3}")
    tag4(SV + 4)
    A(f"s_mov_b32 s{sT0}, 0"); A(f"s_add_u32 s{sT3}, s{sSPIN}, {tmo}")
    stamp(4)
    A("s_barrier")
    OT = 128
    for w in range(8):
        A(f"ds_read_b128 {r4(OT+4*w)}, v{vK} offset:{OS+w*1024}")
    A("s_mov_b64 exec, 0xffff")
    A(f"buffer_store_dwordx4 {r4(SV+4)}, v{SV+1}, {srd(WS)}, s{sPC} offen offset:64")
    A("s_mov_b64 exec, -1")
    for w in range(8):
        A(f"s_waitcnt lgkmcnt({7-w})")
        f = FW + (w & ~1); sel = w & 1
        for hlf in range(2):
            d = f"v[{OT+2*hlf}:{OT+2*hlf+1}]"; x = f"v[{OT+4*w+2*hlf}:{OT+4*w+2*hlf+1}]"
            if w == 0: A(f"v_pk_mul_f32 {d}, {x}, v[{f}:{f+1}] op_sel:[0,{sel}] op_sel_hi:[1,{sel}]")
            else: A(f"v_pk_fma_f32 {d}, {x}, v[{f}:{f+1}], {d} op_sel:[0,{sel},0] op_sel_hi:[1,{sel},1]")
    tag4(OT)
    A(f"buffer_store_dwordx4 {r4(OT)}, v{vV}, {srd(WS)}, s{sPC} offen")
    POLL = [f"buffer_load_dwordx4 {r4(PL)}, v{vA2}, {srd(WS)}, s{sT2} offen sc1",
            f"buffer_load_dwordx4 {r4(PL+4)}, v{vA1}, {srd(WS)}, s{sT2} offen offset:64 sc1"]
    for c in POLL: A(c)
    if nwb < 5: A("s_barrier")
    stamp(6)
    A(f"s_waitcnt vmcnt(4)")
    w2_mfmas()
    A("s_branch L_pollo1")
    def safe_o():
        A(f"s_mul_i32 s{sT1}, s2, 1280"); A(f"s_add_u32 s{sT1}, s{sT1}, s{sSF}"); A(f"s_add_u32 s{sT1}, s{sT1}, {SAFO}")
        A(f"buffer_store_dwordx4 {r4(OT)}, v{vV}, {srd(WS)}, s{sT1} offen sc1")
        A("s_mov_b64 exec, 0xffff")
        A(f"buffer_store_dwordx4 {r4(SV+4)}, v{SV+1}, {srd(WS)}, s{sT1} offen offset:64 sc1")
        A("s_mov_b64 exec, -1")
        A(f"s_mov_b32 s{sT0}, 1")
    m, l, M = PL + 4, PL + 5, TT + 1
    A("L_otmo:")
    A(f"s_cmp_lg_u32 s{sT0}, 0"); A("s_cbranch_scc1 L_goto")
    safe_p1("o")
    A("s_setprio 3")
    safe_o()
    A(f"v_mul_u32_u24 v{SV+12}, 1280, v{SV+12}"); A(f"v_lshl_add_u32 v{SV+13}, v{vT0}, 4, v{SV+12}")
    A(f"s_add_u32 s{sC1}, s{sT2}, s{sSF}"); A(f"s_add_u32 s{sC1}, s{sC1}, {SAFO}"); A(f"s_add_u32 s{sT3}, s{sSPIN}, {spin}")
    A("s_branch L_oswap")
    A("L_oretry:")
    A("s_cbranch_scc1 L_otmo")
    A(f"s_cmp_eq_u32 s{sT0}, 0"); A("s_cbranch_scc1 L_pollo")
    A("L_oswap:")
    A(f"v_swap_b32 v{vA1}, v{SV+12}"); A(f"v_swap_b32 v{vA2}, v{SV+13}")
    A(f"s_mov_b32 s{sT1}, s{sT2}"); A(f"s_mov_b32 s{sT2}, s{sC1}"); A(f"s_mov_b32 s{sC1}, s{sT1}")
    A("L_pollo:")
    if psleep: A(f"s_sleep {psleep}")
    for c in POLL: A(c)
    A("L_pollo1:")
    A(f"s_add_u32 s{sSPIN}, s{sSPIN}, 1"); A(f"s_cmp_gt_u32 s{sSPIN}, s{sT3}")
    A("s_waitcnt vmcnt(0)")
    rg = [PL + 4 + i for i in range(4)] + [PL + i for i in range(4)]
    untag_check(rg, rg, [vTAG] * 8, TT + 1)
    A(f"v_max_f32_dpp v{M}, v{m}, v{m} {STEPS[0]} {DPPF}")
    A("s_cbranch_vccnz L_oretry")
    A(f"v_cmp_ne_u32 vcc, s{sC3}, v{PL+6}")
    A("s_cbranch_vccz L_goto")
    A(f"s_cmp_lg_u32 s{sT0}, 0"); A("s_cbranch_scc1 L_goto")
    safe_o()
    A("L_goto:")
    if hat == 'goto': A(f"s_mov_b64 exec, s[{sUS}:{sUS+1}]"); A(f"buffer_store_dword v{vTAG}, v{SV+14}, {srd(WS)}, s{sUO} offen sc1"); A("s_mov_b64 exec, -1")
    stamp(9)
    A(f"v_max_f32_dpp v{M}, v{M}, v{M} {STEPS[1]} {DPPF}"); A("s_nop 1")
    A(f"v_max_f32_dpp v{M}, v{M}, v{M} {STEPS[2]} {DPPF}")
    A(f"v_sub_f32 v{m}, v{m}, v{M}"); A(f"v_mul_f32 v{m}, s{sLOG2E}, v{m}"); A(f"v_exp_f32 v{m}, v{m}"); A("s_nop 0")
    A(f"v_mul_f32 v{l}, v{l}, v{m}")
    for v in range(4): A(f"v_mul_f32 v{PL+v}, v{PL+v}, v{m}")
    for s_ in STEPS:
        for r in (l, PL, PL + 1, PL + 2, PL + 3):
            A(f"v_add_f32_dpp v{r}, v{r}, v{r} {s_} {DPPF}")
    A(f"v_rcp_f32 v{l}, v{l}"); A("s_mov_b64 exec, s[0:1]")
    for v in range(4): A(f"v_mul_f32 v{PL+v}, v{PL+v}, v{l}")
    for v in range(4): A(f"v_cvt_pk_bf16_f32 v{PL+v}, v{PL+v}, v{PL+v}")
    A(f"ds_write_b128 v{vT1}, {r4(PL)} offset:{ZL}")
    A("s_mov_b64 exec, -1")
    A("s_waitcnt lgkmcnt(0)")
    if hat == 'z': A(f"s_mov_b64 exec, s[{sUS}:{sUS+1}]"); A(f"buffer_store_dword v{vTAG}, v{SV+14}, {srd(WS)}, s{sUO} offen sc1"); A("s_mov_b64 exec, -1")
    A("s_barrier")
    stamp(13)
    A(f"ds_read_b128 {r4(PL)}, v{vT1} offset:{ZL}")
    if hat == 'b5': A(f"s_mov_b64 exec, s[{sUS}:{sUS+1}]"); A(f"buffer_store_dword v{vTAG}, v{SV+14}, {srd(WS)}, s{sUO} offen sc1"); A("s_mov_b64 exec, -1")
    A("s_waitcnt lgkmcnt(0)")

    A("s_branch L_tail")
    svc = L[svc0:]; del L[svc0:]
    A("L_tail:")
    for n in range(2):
        for rho in range(2):
            gemv_mfma(PL + 2 * n + rho, WL + 12 + 4 * n, D1 if rho == 0 else D2, False)
    A("s_nop 7")
    for v in range(4):
        A(f"v_add_f32_dpp v{D1+v}, v{D2+v}, v{D1+v} row_ror:8 {DPPF}")
    tag4(D1)
    A(f"s_mov_b64 exec, s[{sMASK}:{sMASK+1}]")
    A(f"buffer_store_dwordx4 {r4(D1)}, v{TT}, {srd(WS)}, s{sC2} offen sc1")
    A("s_mov_b64 exec, -1")
    stamp(10)
    if hat == 'fp':
        A("s_cmp_lg_u32 s3, 8"); A("s_cbranch_scc1 L_nh")
        A(f"s_mov_b64 exec, s[{sUS}:{sUS+1}]"); A(f"buffer_store_dword v{vTAG}, v{SV+14}, {srd(WS)}, s{sUO} offen sc1"); A("s_mov_b64 exec, -1")
        A("L_nh:")
    A(f"s_cmp_lg_u32 s{sCK}, 0"); A("s_cbranch_scc1 L_fin")
    A("s_cmp_eq_u32 s3, 8"); A("s_cbranch_scc1 L_final")
    A(f"s_lshl_b32 s{sT0}, s3, 5"); A(f"v_add_u32 v{TT}, s{sT0}, v{vT0}")
    A(f"v_mul_u32_u24 v{TT}, {REC}, v{TT}"); A(f"v_and_b32 v{TT+1}, 15, v0"); A(f"v_lshl_add_u32 v{TT}, v{TT+1}, 4, v{TT}")
    A(f"s_lshl_b32 s{sT0}, s{sSL}, 8"); A(f"s_add_u32 s{sT0}, s{sT0}, {FPO}")
    SO = [sT0, sC1, sC2, sC3, 40, 41, 42, 43]
    for q in range(1, 8): A(f"s_add_u32 s{SO[q]}, s{sT0}, {4*q*REC}")
    A(f"s_add_u32 s{sT3}, s{sSPIN}, {spin}")
    A(f"v_lshlrev_b32 v{TT+2}, 2, v{vT0}"); A(f"v_lshl_add_u32 v{TT+2}, v{TT+1}, 4, v{TT+2}")
    A(f"s_lshl_b32 s{sT1}, s3, 8"); A(f"v_add_u32 v{TT+2}, s{sT1}, v{TT+2}")
    A(f"s_lshl3_add_u32 s{sT1}, s{sSL}, s3"); A(f"s_lshl_b32 s{sT1}, s{sT1}, 7"); A(f"s_add_u32 s{sT1}, s{sT1}, {HINT}")
    if hsc:
        A(f"s_and_b32 s{sT2}, s{sEP}, s{sTM}")
        A("L_hint:")
        A(f"s_load_dwordx2 s[{sUS}:{sUS+1}], s[{WS}:{WS+1}], s{sT1} glc")
        A(f"s_add_u32 s{sSPIN}, s{sSPIN}, 1"); A(f"s_cmp_gt_u32 s{sSPIN}, s{sT3}"); A("s_cbranch_scc1 L_hok")
        A("s_waitcnt lgkmcnt(0)")
        A(f"s_cmp_lg_u32 s{sUS}, s{sT2}"); A("s_cbranch_scc1 L_hint")
        A(f"s_cmp_lg_u32 s{sUS+1}, s{sT2}"); A("s_cbranch_scc1 L_hint")
        A("L_hok:")
    else:
        A(f"v_mov_b32 v{TT+3}, 0")
        A("s_mov_b64 exec, 1")
        if not usehint: A("s_branch L_hok")
        A("L_hint:")
        A(f"buffer_load_dwordx2 {r2(FC)}, v{TT+3}, {srd(WS)}, s{sT1} offen sc1")
        A(f"s_add_u32 s{sSPIN}, s{sSPIN}, 1"); A(f"s_cmp_gt_u32 s{sSPIN}, s{sT3}")
        A("s_waitcnt vmcnt(0)")
        A(f"v_xor_b32 v{FC}, v{vTAG}, v{FC}"); A(f"v_xor_b32 v{FC+1}, v{vTAG}, v{FC+1}"); A(f"v_or_b32 v{FC}, v{FC}, v{FC+1}")
        A(f"v_cmp_ne_u32 vcc, 0, v{FC}")
        A("s_cbranch_scc1 L_hok")
        A("s_cbranch_vccnz L_hint")
        A("L_hok:")
        A("s_mov_b64 exec, -1")
    stamp(7)
    A("L_pollf:")
    for q in range(8):
        A(f"buffer_load_dwordx4 {r4(FC+4*q)}, v{TT}, {srd(WS)}, s{SO[q]} offen sc1")
    A(f"s_add_u32 s{sSPIN}, s{sSPIN}, 1"); A(f"s_cmp_gt_u32 s{sSPIN}, s{sT3}")
    for q in range(8):
        A(f"s_waitcnt vmcnt({7-q})")
        rg = [FC + 4 * q + i for i in range(4)]
        for r in rg: A(f"v_xor_b32 v{r}, v{vTAG}, v{r}")
        if q == 0: A(f"v_or3_b32 v{TT+1}, v{rg[0]}, v{rg[1]}, v{rg[2]}"); A(f"v_or_b32 v{TT+1}, v{TT+1}, v{rg[3]}")
        else:
            A(f"v_or3_b32 v{TT+1}, v{TT+1}, v{rg[0]}, v{rg[1]}"); A(f"v_or3_b32 v{TT+1}, v{TT+1}, v{rg[2]}, v{rg[3]}")
            d = PL
            for hlf in range(2):
                A(f"v_pk_add_f32 {r2(d+2*hlf)}, {r2((FC if q == 1 else d)+2*hlf)}, {r2(FC+4*q+2*hlf)}")
    A(f"v_and_b32 v{TT+1}, s{sTM}, v{TT+1}"); A(f"v_cmp_ne_u32 vcc, 0, v{TT+1}")
    A("s_cbranch_scc1 L_gotf")
    A("s_cbranch_vccnz L_pollf")
    A("L_gotf:")
    stamp(9)
    a, b = PL, PL + 2
    A(f"v_permlane16_swap_b32 v{PL}, v{PL+1}"); A(f"v_permlane16_swap_b32 v{PL+2}, v{PL+3}")
    A("s_nop 1")
    A(f"v_add_f32 v{a}, v{PL}, v{PL+1}"); A(f"v_add_f32 v{b}, v{PL+2}, v{PL+3}")
    A("s_nop 1")
    A(f"v_permlane32_swap_b32 v{a}, v{b}")
    A("s_nop 1")
    A(f"v_add_f32 v{a}, v{a}, v{b}")
    A(f"ds_write_b32 v{TT+2}, v{a} offset:{FS}")
    A("s_waitcnt lgkmcnt(0)")
    A("s_barrier")
    A("s_branch L_fin")
    A("L_final:")
    A(f"v_lshlrev_b32 v{TT}, 3, v0")
    A(f"v_lshlrev_b32 v{TT+2}, 16, v{SV+21}"); A(f"v_and_b32 v{TT+3}, 0xffff0000, v{SV+21}")
    A(f"v_mov_b32 v{TT+1}, s{sEP}"); A(f"v_mov_b32 v{SV}, {EP}")
    A(f"s_cmp_eq_u32 s{sSL}, 0"); A(f"s_cselect_b32 s{sT0}, 0, {HUGE}")
    A("s_mov_b64 exec, 0xffffffff")
    A("s_barrier")
    for w in range(8):
        A(f"ds_read_b64 {r2(80+2*w)}, v{TT} offset:{FS+256*w}")
    for w in range(8):
        A(f"s_waitcnt lgkmcnt({7-w})")
        A(f"v_pk_add_f32 {r2(TT+2)}, {r2(TT+2)}, {r2(80+2*w)}")
    A(f"v_cvt_pk_bf16_f32 v{TT+2}, v{TT+2}, v{TT+3}")
    A(f"buffer_store_dword v{TT+2}, v{SV+20}, {srd(OUT)}, 0 offen")
    A("s_mov_b64 exec, 1")
    A(f"buffer_store_dword v{TT+1}, v{SV}, {srd(WS)}, s{sT0} offen sc1")
    if hold:
        A("s_getreg_b32 s98, hwreg(HW_REG_XCC_ID)"); A("s_and_b32 s98, s98, 7"); A(f"s_cmp_lg_u32 s98, {hold[1]}"); A("s_cbranch_scc1 L_fin")
        A(f"s_add_u32 s100, s100, {hold[0]}")
        A("L_hold:"); A("s_memrealtime s[98:99]"); A("s_waitcnt lgkmcnt(0)"); A("s_sub_u32 s98, s98, s100"); A("s_cmp_lt_i32 s98, 0"); A("s_cbranch_scc1 L_hold")
    A("L_fin:")
    if stamps:
        stamp(11)
        A("s_mov_b64 exec, -1")
        A("s_waitcnt vmcnt(0) lgkmcnt(0)")
        A(f"s_mul_i32 s{sT0}, s2, 9"); A(f"s_add_u32 s{sT0}, s{sT0}, s3"); A(f"s_lshl_b32 s{sT0}, s{sT0}, 7"); A(f"s_add_u32 s{sT0}, s{sT0}, {STAMP}")
        for i in range(14):
            A(f"v_mov_b32 v{104+2*i}, s{stamp_reg(i)}"); A(f"v_mov_b32 v{105+2*i}, s{stamp_reg(i)+1}")
        A(f"v_mov_b32 v132, s{sSPIN}")
        A("s_getreg_b32 s76, hwreg(HW_REG_XCC_ID)"); A("v_mov_b32 v133, s76"); A("v_mov_b32 v134, 0"); A("v_mov_b32 v135, 0")
        A("v_mov_b32 v100, 0")
        A("s_mov_b64 exec, 1")
        for i in range(8):
            A(f"buffer_store_dwordx4 {r4(104+4*i)}, v100, {srd(WS)}, s{sT0} offen offset:{16*i}")
    A("L_end:")
    A("s_endpgm")
    L.extend(svc)
    A(".p2align 6")
    A(".type L_tab,@object"); A(".size L_tab, 1024")
    A("L_tab:")
    tb = unit_table(split, slabs)
    for i in range(0, 256, 8): A(".long " + ", ".join(f"{x:#x}" for x in tb[i:i+8]))
    A('.section .rodata,"a"'); A(".p2align 6"); A(f".amdhsa_kernel {NAME}")
    A("  .amdhsa_next_free_vgpr 168"); A("  .amdhsa_next_free_sgpr 102"); A("  .amdhsa_accum_offset 168")
    A("  .amdhsa_group_segment_fixed_size 0"); A("  .amdhsa_kernarg_size 96"); A("  .amdhsa_user_sgpr_count 2")
    A("  .amdhsa_user_sgpr_kernarg_segment_ptr 1"); A("  .amdhsa_system_sgpr_workgroup_id_x 1")
    A(".end_amdhsa_kernel")
    return "\n".join(L) + "\n"


if __name__ == "__main__":
    kw = eval("dict(%s)" % (sys.argv[2] if len(sys.argv) > 2 else ""))
    open(sys.argv[1], "w").write(gen(**kw))
```

```python
import sys
NAME = "parallel_sum__sliding_block_cached__glu_gated_swiglu__decode_kernel"

HEADER = """; Fused decode step: out = x + Attn(LN(x)) + SwiGLU(LN(x)); one launch, 256 workgroups x 9 waves.
;
;
"""

OS = 0
S1 = 0
FS = 0
QL = 8192
HD = QL + 512
MW = HD + 256
ZL = MW + 128
FWL = ZL + 128
TG = FWL + 64
QF = TG + 4
XN = 9344
assert QF + 4 <= XN
LDS_BYTES = XN + 4608
REC = 6144
FPO = 1536
EP = 1408
P1 = 3 << 19
P1B = 13312 * 4
P1P = 2 * P1B
HINT = (7 << 18) + (1 << 16)
STAMP = 2 << 20
SAFE = 4 << 20
SAFO = 1 << 18
WS_BYTES = 68 << 20
HUGE = 0x40000000
LOG2E = 0x3FB8AA3B
SCALE = 0x3DB504F3
TMASK = 0x3FF
STAMP_NAMES = ["start", "karg", "Bt/B0", "B1", "qgot", "sm", "Vend", "s7", "s8", "gotO", "FPst", "end", "x/B4", "B5"]

X, K, V, SU, WO, W2, OUT, WS = [4 + 4 * i for i in range(8)]
SRD_INFO = {X: (0, 2304), K: (2, 1 << 28), V: (4, 1 << 28), WO: (8, 4096 * 1152),
            W2: (16, 4608 * 1152), OUT: (18, 2304), WS: (22, WS_BYTES)}
sPS, sSP, sPM = 36, 37, 38
sSF = 40
sPC = 42
sU, sRB = 46, 47
sHKV, sJ, sB, sS, sSL, sCK = 48, 49, 50, 51, 52, 53
sT0, sT1, sT2, sT3 = 54, 55, 56, 57
sHASH = 58
sUO, sUS = 59, 60
sTB = 62
sLOG2E = 63
sSPIN = 64
sTM = 65
sC1, sC2, sC3 = 66, 67, 68
sEP = 69
sMASK = 70
sROW, sNSL = 74, 75
KA = 76
def stamp_reg(i): return {0: 100, 1: 72}.get(i, KA + 2 * (i - 2))

vK, vV, vA1, vA2 = 1, 2, 3, 4
MK = 5
vT0, vT1, vT2 = 9, 10, 11
A0, A1 = 12, 16
ACC, D1, D2 = 20, 24, 28
SR = 32
QB = 36
KR = 40
VR = 104
def kreg(t): return KR + 4 * t
def vreg(t): return VR + 4 * t
XA = 32
S1D = 132
WL = 40
PL = 60
HV = 68
vTAG = 74
vA3 = 75
TT = 76
vOS = 80
vA4 = 94
FC = 104
SV = 104


def r4(b): return f"v[{b}:{b+3}]"
def r2(b): return f"v[{b}:{b+1}]"
def srd(b): return f"s[{b}:{b+3}]"
DPPF = "row_mask:0xf bank_mask:0xf"
STEPS = ("quad_perm:[1,0,3,2]", "quad_perm:[2,3,0,1]", "row_half_mirror")


def unit_table(split, slabs):
    tab = []
    assert sum(slabs) == 72
    NSG = [(slabs[h >> 1] + (h & 1)) // 2 for h in range(16)]
    def place(g, left):
        if not left: return {}
        seen = set()
        for h in left:
            key = (NSG[h], h & 1)
            if key in seen: continue
            seen.add(key)
            slow = 2 * sum((g + i) % 8 == 3 for i in range(NSG[h])) + (1 - (h & 1))
            if slow > 12 - 2 * NSG[h]: continue
            r = place(g + NSG[h], [x for x in left if x != h])
            if r is not None:
                r[h] = g; return r
        return None
    G0 = place(0, list(range(16)))
    if G0 is None:
        G0 = {h: sum(NSG[:h]) for h in range(16)}; print("no clean placement", file=sys.stderr)
    for hkv in range(16):
        g0 = G0[hkv]; ns = NSG[hkv]
        assert 3 <= ns <= 6
        units = [4 * hkv + i for i in range(4)] + [64 + g0 + i for i in range(ns)] + [136 + g0 + i for i in range(ns)]
        cls = lambda u: (u - (0 if u < 64 else 64 if u < 136 else 136)) & 7
        nfree = 16 - len(units)
        order = sorted(units, key=lambda u: 0 if cls(u) == 3 else 1)
        nsp = min(nfree, {"c3": sum(cls(u) == 3 for u in units), "all": nfree, "none": 0}[split])
        sp = order[:nsp]
        ent = []
        for u in units:
            if u in sp: ent.append(u | (0x01f << 8))
            else: ent.append(u | (0x1ff << 8) | (1 << 18))
        for u in sp: ent.append(u | (0x1e0 << 8) | (1 << 17))
        while len(ent) < 16: ent.append(255)
        tab += [e | (ns << 19) | (g0 << 22) for e in ent[0::2] + ent[1::2]]
    return tab


def gen(depth=4, b2=11, pre=2, nwb=2, stamps=False, pol=" nt", spin=100000, mlsleep=4, tmo=40, gtmo=12, split="all",
        xg=True, dry=False, psel=0, usehint=True, hat='fp', hsc=True, npf=1, tlb=False, psleep=0, slabs=(10, 10, 10, 10, 8, 8, 8, 8), hold=None, cslot=0, cstep=1, clean=False, outsc=''):
    L = []
    A = L.append

    def stamp(i):
        if stamps:
            r = stamp_reg(i)
            A(f"s_memrealtime s[{r}:{r+1}]")

    def srd_const(d):
        A(f"s_mov_b32 s{d+2}, {SRD_INFO[d][1]}"); A(f"s_mov_b32 s{d+3}, 0x00020000")

    def srd_ptr(d):
        o = KA + SRD_INFO[d][0]
        A(f"s_mov_b64 s[{d}:{d+1}], s[{o}:{o+1}]")

    def consts():
        A(f"s_mov_b32 s{sLOG2E}, {LOG2E:#x}"); A(f"s_mov_b32 s{sSPIN}, 0"); A(f"s_movk_i32 s{sTM}, {TMASK:#x}")
        A(f"s_mov_b32 s{sMASK}, 0x00ff00ff"); A(f"s_mov_b32 s{sMASK+1}, 0x00ff00ff")
        if cstep == 1:
            A(f"s_sub_u32 s{sSL}, s2, {32*cslot}"); A(f"s_cmp_ge_u32 s{sSL}, 18"); A(f"s_cselect_b32 s{sCK}, 1, 0")
        else:
            A(f"s_mul_i32 s{sSL}, s2, 4682"); A(f"s_lshr_b32 s{sSL}, s{sSL}, 16"); A(f"s_mul_i32 s{sT0}, s{sSL}, 14"); A(f"s_sub_u32 s{sCK}, s2, s{sT0}")
            A("s_cmp_ge_u32 s2, 252"); A(f"s_cselect_b32 s{sCK}, 1, s{sCK}")

    def masks(tmp):
        A(f"v_and_b32 v{vT2}, 1, v0"); A(f"v_lshlrev_b32 v{vT2}, 4, v{vT2}")
        A(f"v_mov_b32 v{MK}, 0xffff"); A(f"v_lshlrev_b32 v{vT2}, v{vT2}, v{MK}")
        A(f"v_bfe_u32 v{tmp}, v0, 1, 2")
        for j in range(4):
            A(f"v_cmp_eq_u32 vcc, {j}, v{tmp}"); A("s_nop 1"); A(f"v_cndmask_b32 v{MK+j}, 0, v{vT2}, vcc")

    def table_load(tag):
        A(f"s_getpc_b64 s[{sPC}:{sPC+1}]")
        A(f"L_pc{tag}:")
        A(f"s_lshl_b32 s{sPC+2}, s2, 2"); A(f"s_add_u32 s{sPC+2}, s{sPC+2}, L_tab-L_pc{tag}")
        A(f"s_load_dword s{sTB}, s[{sPC}:{sPC+1}], s{sPC+2}")

    def group_ids():
        A(f"s_bfe_u32 s{sNSL}, s{sTB}, 0x30013"); A(f"s_lshr_b32 s{sT1}, s{sTB}, 22")
        A(f"s_mul_i32 s{sROW}, s{sNSL}, s{sJ}"); A(f"s_lshl4_add_u32 s{sROW}, s{sT1}, s{sROW}"); A(f"s_lshl_b32 s{sROW}, s{sROW}, 2")

    def tag4(r):
        for v in range(4): A(f"v_bfi_b32 v{r+v}, s{sTM}, v{vTAG}, v{r+v}")

    def untag_check(dst, src, tags, acc):
        for d, r, t in zip(dst, src, tags): A(f"v_xor_b32 v{d}, v{t}, v{r}")
        A(f"v_or3_b32 v{acc}, v{dst[0]}, v{dst[1]}, v{dst[2]}")
        rest = dst[3:]
        while len(rest) >= 2:
            A(f"v_or3_b32 v{acc}, v{acc}, v{rest[0]}, v{rest[1]}"); rest = rest[2:]
        if rest: A(f"v_or_b32 v{acc}, v{acc}, v{rest[0]}")
        A(f"v_and_b32 v{acc}, s{sTM}, v{acc}")
        A(f"v_cmp_ne_u32 vcc, 0, v{acc}")

    def bf16r(dst, src):
        A(f"v_cvt_pk_bf16_f32 v{dst}, v{src}, v{src}"); A(f"v_and_b32 v{dst}, 0xffff0000, v{dst}")

    def swap_red(r, t, op, sw):
        A(f"v_mov_b32 v{t}, v{r}"); A("s_nop 1"); A(f"{sw} v{r}, v{t}"); A("s_nop 1"); A(f"{op} v{r}, v{r}, v{t}")

    def allred32(r, t, op="v_add_f32"):
        for n in (1, 2, 4, 8):
            A("s_nop 1"); A(f"{op}_dpp v{r}, v{r}, v{r} row_ror:{n} {DPPF}")
        swap_red(r, t, op, "v_permlane16_swap_b32")

    def allred_banks_rows(r, t, op):
        for n in (4, 8):
            A("s_nop 1"); A(f"{op}_dpp v{r}, v{r}, v{r} row_ror:{n} {DPPF}")
        swap_red(r, t, op, "v_permlane16_swap_b32"); swap_red(r, t, op, "v_permlane32_swap_b32")

    aflip = [0]
    def gemv_mfma(val, data, acc, first):
        a = A0 if aflip[0] == 0 else A1
        aflip[0] ^= 1
        for j in range(4):
            A(f"v_and_b32 v{a+j}, v{val}, v{MK+j}")
        A("s_nop 1")
        A(f"v_mfma_f32_16x16x32_bf16 {r4(acc)}, {r4(a)}, {r4(data)}, {'0' if first else r4(acc)}")

    def w2_mfmas():
        for n in range(3):
            for rho in range(2):
                gemv_mfma(HV + 2 * n + rho, WL + 4 * n, D1 if rho == 0 else D2, n == 0)

    LATE = [f"buffer_load_dwordx4 {r4(WL)}, v{vA2}, {srd(W2)}, 0 offen{pol}",
            f"buffer_load_dwordx4 {r4(WL+4)}, v{vA4}, {srd(W2)}, 0 offen{pol}",
            f"buffer_load_dwordx4 {r4(WL+8)}, v{vA3}, {srd(W2)}, 0 offen{pol}",
            f"buffer_load_dwordx4 {r4(WL+12)}, v{vA1}, {srd(WO)}, 0 offen{pol}",
            f"buffer_load_dwordx4 {r4(WL+16)}, v{vA1}, {srd(WO)}, 0 offen offset:2304{pol}"]

    def late_addr():
        A(f"v_bfe_u32 v{vT2}, v0, 3, 1")
        A(f"v_lshl_add_u32 v{vA1}, v{vT0}, 2, v{vT2}")
        A(f"s_lshl_b32 s{sT1}, s2, 4"); A(f"v_add_u32 v{vA1}, s{sT1}, v{vA1}")
        A(f"v_mul_u32_u24 v{vA1}, 1152, v{vA1}")
        A(f"v_lshl_add_u32 v{vA2}, v{vT0}, 1, v{vT2}")
        A(f"v_add_u32 v{vA2}, s{sROW}, v{vA2}")
        A(f"v_mul_u32_u24 v{vA2}, 1152, v{vA2}")
        A(f"v_and_b32 v{vT2}, 7, v0"); A(f"v_lshlrev_b32 v{vT2}, 4, v{vT2}")
        A(f"s_lshl_b32 s{sT1}, s3, 7"); A(f"v_add_u32 v{vT2}, s{sT1}, v{vT2}")
        A(f"v_add_u32 v{vA1}, v{vA1}, v{vT2}"); A(f"v_add_u32 v{vA2}, v{vA2}, v{vT2}")

    def tail_addr():
        A(f"s_lshl_b32 s{sT1}, s{sNSL}, 1"); A(f"v_mov_b32 v{TT}, {HUGE}")
        for n_, r_ in ((1, vA4), (2, vA3)):
            A(f"s_sub_i32 s{sT1}, s{sT1}, 4")
            A(f"v_cmp_gt_i32 vcc, s{sT1}, v{vT0}"); A(f"v_add_u32 v{r_}, {8*n_*1152}, v{vA2}"); A("s_nop 0")
            A(f"v_cndmask_b32 v{r_}, v{TT}, v{r_}, vcc")
        A(f"v_lshrrev_b32 v{TT}, 1, v{vT0}"); A(f"v_mul_u32_u24 v{TT}, 2304, v{TT}")
        A(f"v_and_b32 v{TT+1}, 7, v0"); A(f"v_lshl_add_u32 v{TT}, v{TT+1}, 5, v{TT}")
        A(f"v_and_b32 v{TT+1}, 1, v{vT0}"); A(f"v_lshl_add_u32 v{TT}, v{TT+1}, 4, v{TT}")
        A(f"s_mul_i32 s{sC2}, s2, {REC}"); A(f"s_lshl_b32 s{sT1}, s3, 8"); A(f"s_add_u32 s{sC2}, s{sC2}, s{sT1}"); A(f"s_add_u32 s{sC2}, s{sC2}, {FPO}")
        A(f"v_bfe_u32 v{TT+1}, v0, 3, 1"); A(f"v_lshlrev_b32 v{TT+1}, 7, v{TT+1}"); A(f"v_lshl_add_u32 v{TT+1}, v{vT0}, 3, v{TT+1}")
        for i in range(3):
            A(f"ds_read_b64 {r2(HV+2*i)}, v{TT+1} offset:{HD+32*i}")
        A(f"v_lshrrev_b32 v{vT1}, 3, v0"); A(f"v_lshlrev_b32 v{vT1}, 4, v{vT1}")
        A(f"s_and_b32 s{sT1}, s{sEP}, s{sTM}"); A(f"v_mov_b32 v{vTAG}, s{sT1}")

    A(HEADER.rstrip("\n"))
    A(f"; @launch grid=(256,1,1) block=(576,1,1) lds={LDS_BYTES}")
    A('.amdgcn_target "amdgcn-amd-amdhsa--gfx950"')
    A(".text"); A(f".globl {NAME}"); A(".p2align 8"); A(f".type {NAME},@function"); A(f"{NAME}:")
    stamp(0)
    if hold: A("s_memrealtime s[100:101]")
    A(f"s_load_dwordx16 s[{KA}:{KA+15}], s[0:1], 0")
    A(f"s_load_dwordx8 s[{KA+16}:{KA+23}], s[0:1], 64")
    A("v_lshrrev_b32 v1, 6, v0")
    A("s_cmp_ge_u32 s2, 256"); A("s_cbranch_scc1 L_end")
    A("v_readfirstlane_b32 s3, v1")
    A("v_and_b32 v0, 63, v0")
    if xg:
        A(f"s_and_b32 s{sT0}, s2, 7"); A(f"s_lshl_b32 s{sT0}, s{sT0}, 5"); A("s_lshr_b32 s2, s2, 3"); A(f"s_add_u32 s2, s2, s{sT0}")
    A(f"s_lshr_b32 s{sHKV}, s2, 4"); A(f"s_and_b32 s{sJ}, s2, 15"); A(f"s_lshr_b32 s{sB}, s{sJ}, 3"); A(f"s_and_b32 s{sS}, s2, 7")
    A(f"v_lshrrev_b32 v{vT0}, 4, v0")
    A("s_cmp_eq_u32 s3, 8"); A("s_cbranch_scc1 L_service")

    srd_const(K)
    A(f"s_lshl4_add_u32 s{sT0}, s{sB}, s{sHKV}"); A(f"s_lshl_b32 s{sT0}, s{sT0}, 6"); A(f"s_add_u32 s{sT0}, s{sT0}, s{sS}")
    A(f"s_lshl_b32 s{sT0}, s{sT0}, 7"); A(f"s_add_u32 s{sT0}, s{sT0}, s3"); A(f"s_addk_i32 s{sT0}, {7 << 10}"); A(f"s_lshl_b32 s{sT2}, s{sT0}, 10")
    A(f"v_and_b32 v{vK}, 3, v0"); A(f"v_lshl_add_u32 v{vK}, v{vK}, 4, s{sT2}")
    A(f"v_bfe_u32 v{vT1}, v0, 2, 2"); A(f"v_lshl_add_u32 v{vK}, v{vT1}, 8, v{vK}")
    A(f"v_lshl_add_u32 v{vK}, v{vT0}, 6, v{vK}")
    A(f"s_lshl3_add_u32 s{sT0}, s2, s3"); A(f"s_mul_i32 s{sHASH}, s{sT0}, 0x9E3779B1")
    A(f"s_bfe_u32 s{sHASH}, s{sHASH}, 0x40018"); A(f"s_lshl_b32 s{sHASH}, s{sHASH}, 13")
    A("s_waitcnt lgkmcnt(0)")
    stamp(1)
    srd_ptr(K)

    def kvld(nm, t, reg, va, sr):
        return (f"{nm}{t}", [f"s_xor_b32 s{sT0}, s{sHASH}, {t << 13}", f"buffer_load_dwordx4 {r4(reg)}, v{va}, {srd(sr)}, s{sT0} offen{pol}"])
    loads = [kvld("K", t, kreg(t), vK, K) for t in range(pre)]
    for k in range(9):
        c = [f"s_bitcmp1_b32 s{sTB}, {8+k}", f"s_cselect_b32 s{sT0}, s{sUO}, {HUGE}",
             f"buffer_load_dwordx4 {r4(S1D+4*k)}, v{vA1}, {srd(SU)}, s{sT0} offen{pol}"]
        if k < 8: c.append(f"s_add_u32 s{sUO}, s{sUO}, s{sUS}")
        loads.append((f"U{k}", c))
    loads += [kvld("K", t, kreg(t), vK, K) for t in range(pre, 16)]
    loads += [kvld("V", t, vreg(t), vV, V) for t in range(16)]
    loads += [(f"W{i}", [LATE[i]]) for i in range(5 if dry else nwb)]
    names = [n for n, _ in loads]

    def rest_of_prologue():
        A("; remaining set-up; stage-1 slab (matrix, columns, row blocks) comes from the table behind the code")
        A(f"v_lshl_add_u32 v{vV}, v0, 4, s{sT2}")
        for d in (V, WO, W2, WS): srd_const(d); srd_ptr(d)
        consts()
        masks(vT1)
        A(f"v_bfe_u32 v{vT2}, v0, 3, 1"); A(f"s_lshl_b32 s{sT1}, s3, 3")
        A(f"v_lshl_add_u32 v{vA1}, v{vT0}, 1, s{sT1}")
        A(f"v_mul_u32_u24 v{vA2}, 2304, v{vT2}"); A(f"v_lshl_add_u32 v{vA2}, v{vA1}, 2, v{vA2}")
        A(f"v_add_u32 v{vA1}, v{vA1}, v{vT2}")
        A(f"v_and_b32 v{vT1}, 7, v0"); A(f"v_lshlrev_b32 v{vT1}, 4, v{vT1}")
        A(f"s_mov_b32 s{SU+3}, 0x00020000")
        A("s_waitcnt lgkmcnt(0)")
        group_ids()
        A(f"s_and_b32 s{sU}, s{sTB}, 255")
        A(f"s_cmp_lt_u32 s{sU}, 136")
        A(f"s_cselect_b64 s[{SU}:{SU+1}], s[{KA+12}:{KA+13}], s[{KA+14}:{KA+15}]"); A(f"s_cselect_b32 s{sT1}, 64, 136")
        A(f"s_cmp_lt_u32 s{sU}, 64")
        A(f"s_cselect_b64 s[{SU}:{SU+1}], s[{KA+6}:{KA+7}], s[{SU}:{SU+1}]"); A(f"s_cselect_b32 s{sT1}, 0, s{sT1}")
        A(f"s_movk_i32 s{sRB}, 9216"); A(f"s_cselect_b32 s{sRB}, 8192, s{sRB}")
        A(f"s_mul_i32 s{SU+2}, s{sRB}, 576")
        A(f"s_sub_u32 s{sUO}, s{sU}, s{sT1}"); A(f"s_lshl_b32 s{sUO}, s{sUO}, 7"); A(f"s_lshl_b32 s{sUS}, s{sRB}, 6")
        A(f"v_mad_u32_u24 v{vA1}, v{vA1}, s{sRB}, v{vT1}")
        stamp(2)

    def qk_block():
        A("; ---- QK^T for the 16 tiles of this wave, scores rounded as the bf16 reference does, softmax against the wave's true max")
        A(f"v_bfe_u32 v{vT2}, v0, 1, 1"); A(f"v_lshlrev_b32 v{vT2}, 8, v{vT2}"); A(f"v_lshl_add_u32 v{vT2}, v{vT0}, 6, v{vT2}")
        A(f"v_bfe_u32 v{vT1}, v0, 2, 2"); A(f"v_lshl_add_u32 v{vT2}, v{vT1}, 4, v{vT2}")
        A(f"v_mov_b32 v{vT1}, 0")
        stamp(7)
        A("s_branch L_qwait1")
        A("L_qwait:")
        A("s_sleep 2")
        A("L_qwait1:")
        A(f"ds_read_b32 v{SR}, v{vT1} offset:{QF}")
        A(f"ds_read_b128 {r4(QB)}, v{vT2} offset:{QL}")
        A(f"s_add_u32 s{sSPIN}, s{sSPIN}, 1"); A(f"s_cmp_gt_u32 s{sSPIN}, {spin*16}")
        A("s_waitcnt lgkmcnt(0)")
        A(f"v_cmp_eq_u32 vcc, 0, v{SR}")
        A("s_cbranch_scc1 L_qgot")
        A("s_cbranch_vccnz L_qwait")
        A("L_qgot:")
        stamp(4)
        Ds = [A0, A1, D1, D2]
        def mf(t): A(f"v_mfma_f32_16x16x32_bf16 {r4(Ds[t%4])}, {r4(kreg(t))}, {r4(QB)}, 0")
        def ops(t):
            b = t & 3; S = SR + (t >> 2); D = Ds[t % 4]; bm = f"row_mask:0xf bank_mask:{1<<b:#x}"
            A(f"v_add_f32_dpp v{S}, v{D+((b+1)&3)}, v{D+b} row_ror:12 {bm}")
            A(f"v_add_f32_dpp v{S}, v{D+((b+2)&3)}, v{S} row_ror:8 {bm}")
            A(f"v_add_f32_dpp v{S}, v{D+((b+3)&3)}, v{S} row_ror:4 {bm}")
        for t in range(4): mf(t)
        A("s_nop 4")
        for t in range(16):
            ops(t)
            if t + 4 < 16: mf(t + 4)
            elif t < 15: A("s_nop 0")
        for p in (0, 2):
            a, b = SR + p, SR + p + 1
            A(f"v_cvt_pk_bf16_f32 v{b}, v{a}, v{b}"); A(f"v_lshlrev_b32 v{a}, 16, v{b}"); A(f"v_and_b32 v{b}, 0xffff0000, v{b}")
            A(f"v_mul_f32 v{a}, {SCALE:#x}, v{a}"); A(f"v_mul_f32 v{b}, {SCALE:#x}, v{b}")
            A(f"v_cvt_pk_bf16_f32 v{b}, v{a}, v{b}"); A(f"v_lshlrev_b32 v{a}, 16, v{b}"); A(f"v_and_b32 v{b}, 0xffff0000, v{b}")
        m = D1; l = D1 + 1
        A(f"v_max3_f32 v{m}, v{SR}, v{SR+1}, v{SR+2}"); A(f"v_max_f32 v{m}, v{m}, v{SR+3}")
        allred_banks_rows(m, D2, "v_max_f32")
        A(f"v_mul_f32 v{vT2}, s{sLOG2E}, v{m}")
        for T in range(4): A(f"v_fma_f32 v{SR+T}, v{SR+T}, s{sLOG2E}, -v{vT2}")
        for T in range(4): A(f"v_exp_f32 v{SR+T}, v{SR+T}")
        A(f"s_lshl_b32 s{sT1}, s3, 3"); A(f"v_lshl_add_u32 v{QB}, v0, 5, s{sT1}")
        A(f"v_add_f32 v{l}, v{SR}, v{SR+1}"); A(f"v_add_f32 v{D2}, v{SR+2}, v{SR+3}"); A(f"v_add_f32 v{l}, v{l}, v{D2}")
        allred_banks_rows(l, D2, "v_add_f32")
        A("s_mov_b64 exec, 5")
        A(f"ds_write_b64 v{QB}, {r2(m)} offset:{MW}")
        A("s_mov_b64 exec, -1")
        for j in range(8): A(f"v_mov_b32 v{A0+j}, 0")
        A(f"v_and_b32 v{D2}, 1, v0"); A(f"v_lshlrev_b32 v{D2}, 4, v{D2}"); A(f"v_mov_b32 v{D2+1}, 0xffff"); A(f"v_lshlrev_b32 v{D2}, v{D2}, v{D2+1}")
        for T in range(4): A(f"v_cvt_pk_bf16_f32 v{SR+T}, v{SR+T}, v{SR+T}")
        for T in range(4): A(f"v_and_b32 v{SR+T}, v{SR+T}, v{D2}")
        A(f"v_and_b32 v{vOS}, 15, v0"); A(f"v_lshlrev_b32 v{vOS}, 5, v{vOS}"); A(f"v_lshl_add_u32 v{vOS}, v{vT0}, 3, v{vOS}")
        A(f"s_lshl_b32 s{sT1}, s3, 10"); A(f"v_add_u32 v{vOS}, s{sT1}, v{vOS}")
        tail_addr()
        stamp(5)

    def pv(t):
        b = t & 3; P = SR + (t >> 2); a = A0 if t % 2 == 0 else A1
        for j in range(4):
            n = (4 * (j - b)) % 16
            ctl = "quad_perm:[0,1,2,3]" if n == 0 else f"row_ror:{n}"
            A(f"v_mov_b32_dpp v{a+j}, v{P} {ctl} row_mask:0xf bank_mask:{1<<j:#x}")
        A("s_nop 1")
        A(f"v_mfma_f32_16x16x32_bf16 {r4(ACC)}, {r4(a)}, {r4(vreg(t))}, {'0' if t == 0 else r4(ACC)}")

    state = {"qk": False, "pv": 0}

    def on_landed(nm):
        if dry:
            if nm == "U8": stamp(3); late_addr()
            if nm == "V0": tail_addr()
            return
        if nm[0] == "U":
            k = int(nm[1])
            if k == 0:
                A("; B0: xn is in LDS; stage 1 = xn^T (one-hot A operand) x slab rows on MFMA")
                A("s_barrier")
                for i in range(4): A(f"ds_read_b64 {r2(XA+2*i)}, v{vA2} offset:{XN+256*i}")
            A(f"s_waitcnt lgkmcnt({min(k+4, 9) - k - 1})")
            x = XA + 2 * (k % 4)
            gemv_mfma(x, S1D + 4 * k, D1, k == 0)
            gemv_mfma(x + 1, S1D + 4 * k, D2, k == 0)
            if k + 4 < 9: A(f"ds_read_b64 {r2(x)}, v{vA2} offset:{XN+256*(k+4)}")
            if k == 8:
                A(f"v_and_b32 v{vT1}, 7, v0"); A(f"v_lshl_add_u32 v{vT1}, v{vT0}, 3, v{vT1}"); A(f"s_lshl_b32 s{sT1}, s3, 9")
                A(f"v_lshl_add_u32 v{vT1}, v{vT1}, 4, s{sT1}")
                A(f"v_mov_b32 v{vT2}, 0"); A(f"ds_read_b32 v{vT2}, v{vT2} offset:{TG}")
                A("s_nop 1")
                for v in range(4): A(f"v_add_f32_dpp v{D1+v}, v{D2+v}, v{D1+v} row_ror:8 {DPPF}")
                A(f"s_mov_b64 exec, s[{sMASK}:{sMASK+1}]")
                A(f"ds_write_b128 v{vT1}, {r4(D1)} offset:{S1}")
                A("s_mov_b64 exec, -1")
                A("s_waitcnt lgkmcnt(0)"); A("s_barrier")
                stamp(3)
                A(f"v_readfirstlane_b32 s{sEP}, v{vT2}")
                late_addr()
        elif nm[0] in "VW" and state["qk"]:
            t = max(int(n[1:]) for n in names[:names.index(nm)+1] if n[0] == "V")
            while state["pv"] <= t:
                pv(state["pv"]); state["pv"] += 1

    N = len(loads)
    landed = -1
    ib2 = names.index(f"V{b2}")
    assert pre >= 2 and names.index("U8") + depth < names.index("V7") and ib2 - depth >= names.index("K15")
    for i, (nm, code) in enumerate(loads):
        if nm == "U0": rest_of_prologue()
        if i == 1: table_load("a")
        for c in code: A(c)
        if i >= depth:
            A(f"s_waitcnt vmcnt({depth})")
            landed = i - depth
            on_landed(names[landed])
        if i == ib2:
            if dry: stamp(7)
            else: qk_block()
            state["qk"] = True
    def drain(extra):
        ld = landed
        while ld < names.index("V15"):
            ld += 1
            A(f"s_waitcnt vmcnt({N-1-ld+extra})")
            on_landed(names[ld])
    def slot_b4():
        A("; ---- PV done: B4 hands the wave's o to the service wave, B4b lets its record leave first, B5 brings z back")
        A("s_nop 7")
        A(f"ds_write2st64_b64 v{vOS}, {r2(ACC)}, {r2(ACC+2)} offset0:{OS//512} offset1:{OS//512+1}")
        A("s_waitcnt lgkmcnt(0)")
        A("s_barrier")
        stamp(12)
        if nwb < 5: A("s_barrier")
    drain(0)
    stamp(6)
    if dry:
        A("s_waitcnt vmcnt(0)"); stamp(8); A("s_branch L_fin")
    slot_b4()
    for c in LATE[nwb:]: A(c)
    A("s_waitcnt vmcnt(2)")
    w2_mfmas()
    A("s_waitcnt vmcnt(0)")
    stamp(8)
    A("s_barrier")
    A(f"ds_read_b128 {r4(PL)}, v{vT1} offset:{ZL}")
    A("s_waitcnt lgkmcnt(0)")

    svc0 = len(L)
    A("L_service:")
    if dry: A("s_endpgm")
    def vm(ins):
        A("s_setprio 3")
        for x in ins: A(x)
        A("s_setprio 0")
    XS = SV + 8
    PA, PD, TG0 = 100, 96, 63
    srd_const(X); srd_const(WS)
    A(f"v_lshrrev_b32 v{vA1}, 5, v0"); A(f"v_mul_u32_u24 v{vA2}, 1152, v{vA1}")
    A(f"v_and_b32 v{vT2}, 31, v0"); A(f"v_mad_u32_u24 v{vA2}, v{vT2}, 36, v{vA2}")
    A("s_setprio 3")
    A("s_waitcnt lgkmcnt(0)")
    stamp(1)
    srd_ptr(X)
    A(f"buffer_load_dwordx4 {r4(XS)}, v{vA2}, {srd(X)}, 0 offen")
    A(f"buffer_load_dwordx4 {r4(XS+4)}, v{vA2}, {srd(X)}, 0 offen offset:16")
    A(f"buffer_load_dword v{XS+8}, v{vA2}, {srd(X)}, 0 offen offset:32")
    A("s_setprio 0")
    srd_ptr(WS)
    A(f"s_load_dword s{sEP}, s[{WS}:{WS+1}], {EP}")
    table_load("b")
    A(f"v_lshlrev_b32 v{vK}, 4, v0")
    A(f"v_mov_b32 v{SV+4}, 0"); A(f"v_lshlrev_b32 v{SV+5}, 2, v0")
    A(f"ds_write_b32 v{SV+4}, v{SV+4} offset:{QF}")
    A(f"v_mov_b32 v{SV+6}, -1"); A(f"v_and_b32 v{SV+5}, 124, v{SV+5}"); A(f"ds_write_b32 v{SV+5}, v{SV+6} offset:{MW}")
    for d in (WO, W2, OUT): srd_const(d); srd_ptr(d)
    consts()
    masks(SV + 5)
    A(f"v_lshlrev_b32 v{vA2}, 1, v{vA2}")
    if tlb:
        srd_const(V); srd_ptr(V)
        A(f"s_lshl4_add_u32 s{sT0}, s{sB}, s{sHKV}"); A(f"s_lshl_b32 s{sT0}, s{sT0}, 23"); A(f"s_add_u32 s{sT0}, s{sT0}, {(7 << 20) - 128}")
        A(f"s_mul_i32 s{sT1}, s2, {16*1152}"); A(f"s_mul_i32 s{sT2}, s{sROW}, 1152"); A(f"s_mul_i32 s{sT3}, s2, {REC}")
        A("s_mov_b64 exec, 1")
        vm([f"buffer_load_dword v{SV+30}, v{SV+4}, {srd(V)}, s{sT0} offen nt", f"buffer_load_dword v{SV+31}, v{SV+4}, {srd(WO)}, s{sT1} offen nt",
            f"buffer_load_dword v{SV+32}, v{SV+4}, {srd(W2)}, s{sT2} offen nt"])
        A("s_mov_b64 exec, -1")
    U = 12
    A(f"s_waitcnt vmcnt({3 if tlb else 0})")
    stamp(12)
    for i in range(9):
        A(f"v_lshlrev_b32 v{U+2*i}, 16, v{XS+i}"); A(f"v_and_b32 v{U+2*i+1}, 0xffff0000, v{XS+i}")
    s = XS
    A(f"v_add_f32 v{s}, v{U}, v{U+1}"); A(f"v_add_f32 v{s+1}, v{U+2}, v{U+3}")
    for i in range(4, 18, 2):
        A(f"v_add_f32 v{s}, v{s}, v{U+i}"); A(f"v_add_f32 v{s+1}, v{s+1}, v{U+i+1}")
    A(f"v_add_f32 v{s}, v{s}, v{s+1}")
    allred32(s, s + 1)
    A(f"v_mul_f32 v{s}, {0x3AE38E39:#x}, v{s}")
    W = 40
    for i in range(18):
        A(f"v_sub_f32 v{W+i}, v{U+i}, v{s}")
    A(f"v_mul_f32 v{s+2}, v{W}, v{W}"); A(f"v_mul_f32 v{s+3}, v{W+1}, v{W+1}")
    for i in range(2, 18, 2):
        A(f"v_fmac_f32 v{s+2}, v{W+i}, v{W+i}"); A(f"v_fmac_f32 v{s+3}, v{W+i+1}, v{W+i+1}")
    A(f"v_add_f32 v{s+2}, v{s+2}, v{s+3}")
    allred32(s + 2, s + 3)
    A(f"v_mul_f32 v{s+2}, {0x3AE38E39:#x}, v{s+2}")
    bf16r(s + 2, s + 2)
    A(f"v_add_f32 v{s+2}, {0x3727C5AC:#x}, v{s+2}")
    bf16r(s + 2, s + 2)
    A(f"v_sqrt_f32 v{s+2}, v{s+2}")
    bf16r(s, s)
    bf16r(s + 2, s + 2)
    A(f"v_rcp_f32 v{s+2}, v{s+2}")
    for i in range(18):
        A(f"v_sub_f32 v{U+i}, v{U+i}, v{s}")
    for i in range(0, 18, 2):
        A(f"v_cvt_pk_bf16_f32 v{U+i+1}, v{U+i}, v{U+i+1}"); A(f"v_lshlrev_b32 v{U+i}, 16, v{U+i+1}"); A(f"v_and_b32 v{U+i+1}, 0xffff0000, v{U+i+1}")
        A(f"v_mul_f32 v{U+i}, v{U+i}, v{s+2}"); A(f"v_mul_f32 v{U+i+1}, v{U+i+1}, v{s+2}")
        A(f"v_cvt_pk_bf16_f32 v{U+i}, v{U+i}, v{U+i}"); A(f"v_cvt_pk_bf16_f32 v{U+i+1}, v{U+i+1}, v{U+i+1}")
        A(f"ds_write_b64 v{vA2}, {r2(U+i)} offset:{XN+4*i}")
    A("s_waitcnt lgkmcnt(0)")
    A(f"s_add_u32 s{sEP}, s{sEP}, 1")
    A(f"v_mov_b32 v{vTAG}, s{sEP}")
    A(f"ds_write_b32 v{SV+4}, v{vTAG} offset:{TG}")
    A("s_waitcnt lgkmcnt(0)")
    A("s_barrier")
    stamp(2)
    A(f"s_and_b32 s{sT0}, s{sEP}, s{sTM}"); A(f"v_mov_b32 v{vTAG}, s{sT0}")
    A(f"s_bfe_u32 s{sSF}, s{sEP}, 0x6000a"); A(f"s_lshl_b32 s{sSF}, s{sSF}, 20"); A(f"s_add_u32 s{sSF}, s{sSF}, {SAFE}")
    T = SV + 8
    GT = 40
    group_ids()
    A(f"s_and_b32 s{sU}, s{sTB}, 255")
    A(f"v_and_b32 v{SV+1}, 7, v0"); A(f"v_bfe_u32 v{SV}, v0, 3, 1")
    A(f"v_bfe_u32 v{PA}, v0, 4, 1"); A(f"v_mul_u32_u24 v{SV+2}, {P1P}, v{PA}"); A(f"v_mul_u32_u24 v{PA}, {P1B}, v{PA}")
    A(f"v_lshl_add_u32 v{PA}, v{SV+1}, 5, v{PA}")
    A(f"v_lshl_add_u32 v{PA}, v{SV}, 4, v{PA}")
    A(f"s_bfe_u32 s{sT0}, s{sTB}, 0x10011"); A(f"v_xor_b32 v{SV+3}, s{sT0}, v{vA1}"); A(f"v_mul_u32_u24 v{SV+3}, {P1P}, v{SV+3}"); A(f"v_add_u32 v{PA}, v{PA}, v{SV+3}")
    A(f"s_mov_b32 s{sPM}, -1"); A(f"s_bitcmp1_b32 s{sTB}, 18"); A(f"s_cselect_b32 s{sPM+1}, -1, 0")
    A(f"s_lshl_b32 s{sPS}, s{sU}, 8"); A(f"s_add_u32 s{sPS}, s{sPS}, {P1}")
    A(f"s_cmp_lt_u32 s{sU}, 208"); A(f"s_cselect_b32 s{sPS}, s{sPS}, {HUGE}")
    A(f"s_mul_i32 s{sT2}, s{sB}, {P1B}"); A(f"s_lshl_b32 s{sT3}, s{sHKV}, 10"); A(f"s_add_u32 s{sT2}, s{sT2}, s{sT3}"); A(f"s_add_u32 s{sT2}, s{sT2}, {P1}")
    A(f"s_add_u32 s{sC2}, s{sT2}, {P1P}")
    A(f"v_mul_u32_u24 v{vA2}, {P1B}, v{SV}"); A(f"v_mul_u32_u24 v{vA1}, 18432, v{vA1}"); A(f"v_add3_u32 v{vA2}, v{vA2}, v{vA1}, v{SV+2}")
    A(f"v_lshl_add_u32 v{vA2}, v{SV+1}, 4, v{vA2}")
    A(f"v_mov_b32 v{SV+3}, {HUGE}")
    A(f"v_cmp_gt_u32 vcc, s{sNSL}, v{SV+1}"); A("s_nop 1")
    A(f"v_cndmask_b32 v{vA2}, v{SV+3}, v{vA2}, vcc"); A(f"v_cndmask_b32 v{TG0}, 0, v{vTAG}, vcc")
    A(f"s_lshl_b32 s{sT3}, s{sROW}, 2"); A(f"s_add_u32 s{sT3}, s{sT3}, {P1 + 16384}")
    A(f"s_mov_b32 s{sSP}, 0"); A(f"s_mov_b32 s{sC1}, 0"); A(f"s_sub_u32 s{sC3}, s{sSF}, {P1}")
    for v in range(4): A(f"v_mov_b32 v{PD+v}, 0")
    A("s_barrier")
    A("s_mov_b64 exec, 0xffffffff")
    for w in range(8):
        A(f"ds_read_b128 {r4(T+4*w)}, v{vK} offset:{S1 + w*512}")
    for w in range(1, 8):
        A(f"s_waitcnt lgkmcnt({7-w})")
        for v in range(4):
            A(f"v_add_f32 v{PD+v}, v{T+v if w == 1 else PD+v}, v{T+4*w+v}")
    for v in range(4): A(f"v_add_u32 v{PD+v}, {(TMASK+1)//2}, v{PD+v}")
    A("s_mov_b64 exec, -1")
    tag4(PD)
    A(f"s_mov_b64 exec, s[{sPM}:{sPM+1}]")
    vm([f"buffer_store_dwordx4 {r4(PD)}, v{PA}, {srd(WS)}, s{sPS} offen"])
    A("s_mov_b64 exec, -1")
    def safe_p1(tag):
        A(f"s_cmp_lg_u32 s{sSP}, 0"); A(f"s_cbranch_scc1 L_sp{tag}")
        A(f"s_add_u32 s{sPS}, s{sPS}, s{sSF}"); A(f"s_sub_u32 s{sPS}, s{sPS}, {P1}"); A(f"s_mov_b32 s{sSP}, 1")
        A(f"s_mov_b64 exec, s[{sPM}:{sPM+1}]")
        vm([f"buffer_store_dwordx4 {r4(PD)}, v{PA}, {srd(WS)}, s{sPS} offen sc1"])
        A("s_mov_b64 exec, -1")
        A(f"L_sp{tag}:")
    stamp(3)
    A("L_gather:")
    vm([f"buffer_load_dwordx4 {r4(T)}, v{vK}, {srd(WS)}, s{sT2} offen sc1",
        f"buffer_load_dwordx4 {r4(T+4)}, v{vK}, {srd(WS)}, s{sC2} offen sc1",
        f"buffer_load_dwordx4 {r4(GT)}, v{vA2}, {srd(WS)}, s{sT3} offen sc1"])
    A(f"s_add_u32 s{sSPIN}, s{sSPIN}, 1")
    A("s_waitcnt vmcnt(0)")
    rg = [T + i for i in range(8)] + [GT + i for i in range(4)]
    untag_check(rg, rg, [vTAG] * 8 + [TG0] * 4, SV)
    A("s_cbranch_vccz L_gotg")
    A(f"s_cmp_lt_u32 s{sSPIN}, {gtmo}"); A("s_cbranch_scc1 L_gather")
    safe_p1("g")
    for r_ in (sT2, sC2, sT3): A(f"s_sub_u32 s{r_}, s{r_}, s{sC1}")
    A(f"s_xor_b32 s{sC1}, s{sC1}, s{sC3}")
    for r_ in (sT2, sC2, sT3): A(f"s_add_u32 s{r_}, s{r_}, s{sC1}")
    A(f"s_cmp_lt_u32 s{sSPIN}, {spin}"); A("s_cbranch_scc1 L_gather")
    A("L_gotg:")
    for v in range(4): A(f"v_add_f32 v{T+v}, v{T+v}, v{T+4+v}")
    A(f"v_cvt_pk_bf16_f32 v{T}, v{T}, v{T+1}"); A(f"v_cvt_pk_bf16_f32 v{T+1}, v{T+2}, v{T+3}")
    A(f"v_lshlrev_b32 v{vA1}, 3, v0")
    A(f"ds_write_b64 v{vA1}, {r2(T)} offset:{QL}")
    for v in range(4): A(f"v_mov_b32 v{GT+4+v}, v{GT+v}")
    A("s_nop 1")
    for v in range(4): A(f"v_permlane16_swap_b32 v{GT+v}, v{GT+4+v}")
    A("s_nop 1")
    for v in range(4): A(f"v_add_f32 v{GT+v}, v{GT+v}, v{GT+4+v}")
    for v in range(4): bf16r(GT + v, GT + v)
    for v in range(4): A(f"v_mov_b32 v{GT+4+v}, v{GT+v}")
    A("s_nop 1")
    for v in range(4): A(f"v_permlane32_swap_b32 v{GT+v}, v{GT+4+v}")
    A("s_nop 1")
    for v in range(4): A(f"v_mul_f32 v{GT+8+v}, s{sLOG2E}, v{GT+v}")
    for v in range(4): A(f"v_exp_f32 v{GT+8+v}, -v{GT+8+v}")
    for v in range(4): A(f"v_add_f32 v{GT+8+v}, 1.0, v{GT+8+v}")
    for v in range(4): A(f"v_rcp_f32 v{GT+8+v}, v{GT+8+v}")
    for v in range(4): A(f"v_mul_f32 v{GT+v}, v{GT+v}, v{GT+8+v}")
    for v in range(4): bf16r(GT + v, GT + v)
    for v in range(4): A(f"v_mul_f32 v{GT+v}, v{GT+v}, v{GT+4+v}")
    for v in range(4): A(f"v_cvt_pk_bf16_f32 v{GT+v}, v{GT+v}, v{GT+v}")
    A("s_mov_b64 exec, 0xffff")
    A(f"ds_write_b128 v{vK}, {r4(GT)} offset:{HD}")
    A("s_mov_b64 exec, -1")
    A(f"v_mov_b32 v{SV+3}, 1")
    A("s_waitcnt lgkmcnt(0)")
    A(f"ds_write_b32 v{SV+4}, v{SV+3} offset:{QF}")
    stamp(5)
    late_addr(); tail_addr()
    A(f"s_lshl_b32 s{sT0}, s{sSL}, 7"); A(f"v_lshl_add_u32 v{SV+20}, v0, 2, s{sT0}")
    vm(LATE + [f"buffer_load_dword v{SV+21}, v{SV+20}, {srd(X)}, 0 offen"])
    A(f"v_and_b32 v{vA1}, 15, v0"); A(f"s_lshl_b32 s{sT1}, s{sHKV}, 4"); A(f"v_add_u32 v{SV+12}, s{sT1}, v{vA1}")
    A(f"v_mul_u32_u24 v{vA1}, {REC}, v{SV+12}")
    A(f"s_mul_i32 s{sT2}, s{sJ}, 80"); A(f"v_lshl_add_u32 v{vA2}, v{vT0}, 4, v{vA1}")
    A(f"s_mul_i32 s{sPC}, s2, {REC}")
    A(f"v_lshrrev_b32 v{vV}, 2, v0"); A(f"v_mul_u32_u24 v{vV}, 80, v{vV}"); A(f"v_and_b32 v{SV+1}, 3, v0"); A(f"v_lshl_add_u32 v{vV}, v{SV+1}, 4, v{vV}")
    A(f"v_mul_u32_u24 v{SV+1}, 80, v0")
    A("s_mov_b32 s0, 0x01010101"); A("s_mov_b32 s1, 0x01010101")
    A(f"v_lshl_add_u32 v{SV+14}, v0, 4, s{sJ}"); A(f"v_cmp_gt_u32 vcc, 18, v{SV+14}"); A(f"v_lshlrev_b32 v{SV+14}, 10, v{SV+14}")
    A(f"s_lshr_b32 s{sT0}, s{sHKV}, 1"); A(f"s_lshl_b32 s{sT0}, s{sT0}, 7"); A(f"s_and_b32 s{sT1}, s{sHKV}, 1"); A(f"s_lshl2_add_u32 s{sT0}, s{sT1}, s{sT0}")
    A(f"s_add_u32 s{sUO}, s{sT0}, {HINT}"); A(f"s_mov_b64 s[{sUS}:{sUS+1}], vcc")
    A(f"s_getreg_b32 s{sC3}, hwreg(HW_REG_XCC_ID)"); A(f"s_lshl_b32 s{sC3}, s{sC3}, 16")
    FW = 80
    A(f"v_and_b32 v{SV+2}, 15, v0"); A(f"v_lshlrev_b32 v{SV+3}, 2, v{SV+2}"); A(f"v_lshlrev_b32 v{SV+2}, 3, v{SV+2}")
    A(f"v_lshrrev_b32 v{SV}, 5, v0"); A(f"v_lshlrev_b32 v{SV}, 5, v{SV}")
    A("L_mlwait:")
    A(f"s_sleep {mlsleep}")
    A(f"ds_read_b64 {r2(SV+6)}, v{SV+2} offset:{MW}")
    A(f"s_add_u32 s{sSPIN}, s{sSPIN}, 1"); A(f"s_cmp_gt_u32 s{sSPIN}, {spin*16}")
    A("s_waitcnt lgkmcnt(0)")
    A(f"v_cmp_eq_u32 vcc, -1, v{SV+7}")
    A(f"v_max_f32_dpp v{SV+4}, v{SV+6}, v{SV+6} {STEPS[0]} {DPPF}")
    A("s_cbranch_scc1 L_mlgot")
    A("s_cbranch_vccnz L_mlwait")
    A("L_mlgot:")
    A("s_setprio 3")
    A(f"v_max_f32_dpp v{SV+4}, v{SV+4}, v{SV+4} {STEPS[1]} {DPPF}"); A("s_nop 1")
    A(f"v_max_f32_dpp v{SV+4}, v{SV+4}, v{SV+4} {STEPS[2]} {DPPF}")
    A(f"v_sub_f32 v{SV+6}, v{SV+6}, v{SV+4}"); A(f"v_mul_f32 v{SV+6}, s{sLOG2E}, v{SV+6}"); A(f"v_exp_f32 v{SV+6}, v{SV+6}"); A("s_nop 0")
    A(f"ds_write_b32 v{SV+3}, v{SV+6} offset:{FWL}")
    A(f"v_mul_f32 v{SV+5}, v{SV+7}, v{SV+6}")
    A(f"ds_read_b128 {r4(FW)}, v{SV} offset:{FWL}"); A(f"ds_read_b128 {r4(FW+4)}, v{SV} offset:{FWL+16}")
    for s_ in STEPS:
        A(f"v_add_f32_dpp v{SV+5}, v{SV+5}, v{SV+5} {s_} {DPPF}"); A("s_nop 1")
    A(f"v_mov_b32 v{SV+6}, s{sC3}")
    tag4(SV + 4)
    A(f"s_mov_b32 s{sT0}, 0"); A(f"s_add_u32 s{sT3}, s{sSPIN}, {tmo}")
    stamp(4)
    A("s_barrier")
    OT = 128
    for w in range(8):
        A(f"ds_read_b128 {r4(OT+4*w)}, v{vK} offset:{OS+w*1024}")
    A("s_mov_b64 exec, 0xffff")
    A(f"buffer_store_dwordx4 {r4(SV+4)}, v{SV+1}, {srd(WS)}, s{sPC} offen offset:64")
    A("s_mov_b64 exec, -1")
    for w in range(8):
        A(f"s_waitcnt lgkmcnt({7-w})")
        f = FW + (w & ~1); sel = w & 1
        for hlf in range(2):
            d = f"v[{OT+2*hlf}:{OT+2*hlf+1}]"; x = f"v[{OT+4*w+2*hlf}:{OT+4*w+2*hlf+1}]"
            if w == 0: A(f"v_pk_mul_f32 {d}, {x}, v[{f}:{f+1}] op_sel:[0,{sel}] op_sel_hi:[1,{sel}]")
            else: A(f"v_pk_fma_f32 {d}, {x}, v[{f}:{f+1}], {d} op_sel:[0,{sel},0] op_sel_hi:[1,{sel},1]")
    tag4(OT)
    A(f"buffer_store_dwordx4 {r4(OT)}, v{vV}, {srd(WS)}, s{sPC} offen")
    POLL = [f"buffer_load_dwordx4 {r4(PL)}, v{vA2}, {srd(WS)}, s{sT2} offen sc1",
            f"buffer_load_dwordx4 {r4(PL+4)}, v{vA1}, {srd(WS)}, s{sT2} offen offset:64 sc1"]
    for c in POLL: A(c)
    if nwb < 5: A("s_barrier")
    stamp(6)
    A(f"s_waitcnt vmcnt(4)")
    w2_mfmas()
    A("s_branch L_pollo1")
    def safe_o():
        A(f"s_mul_i32 s{sT1}, s2, 1280"); A(f"s_add_u32 s{sT1}, s{sT1}, s{sSF}"); A(f"s_add_u32 s{sT1}, s{sT1}, {SAFO}")
        A(f"buffer_store_dwordx4 {r4(OT)}, v{vV}, {srd(WS)}, s{sT1} offen sc1")
        A("s_mov_b64 exec, 0xffff")
        A(f"buffer_store_dwordx4 {r4(SV+4)}, v{SV+1}, {srd(WS)}, s{sT1} offen offset:64 sc1")
        A("s_mov_b64 exec, -1")
        A(f"s_mov_b32 s{sT0}, 1")
    m, l, M = PL + 4, PL + 5, TT + 1
    A("L_otmo:")
    A(f"s_cmp_lg_u32 s{sT0}, 0"); A("s_cbranch_scc1 L_goto")
    safe_p1("o")
    A("s_setprio 3")
    safe_o()
    A(f"v_mul_u32_u24 v{SV+12}, 1280, v{SV+12}"); A(f"v_lshl_add_u32 v{SV+13}, v{vT0}, 4, v{SV+12}")
    A(f"s_add_u32 s{sC1}, s{sT2}, s{sSF}"); A(f"s_add_u32 s{sC1}, s{sC1}, {SAFO}"); A(f"s_add_u32 s{sT3}, s{sSPIN}, {spin}")
    A("s_branch L_oswap")
    A("L_oretry:")
    A("s_cbranch_scc1 L_otmo")
    A(f"s_cmp_eq_u32 s{sT0}, 0"); A("s_cbranch_scc1 L_pollo")
    A("L_oswap:")
    A(f"v_swap_b32 v{vA1}, v{SV+12}"); A(f"v_swap_b32 v{vA2}, v{SV+13}")
    A(f"s_mov_b32 s{sT1}, s{sT2}"); A(f"s_mov_b32 s{sT2}, s{sC1}"); A(f"s_mov_b32 s{sC1}, s{sT1}")
    A("L_pollo:")
    if psleep: A(f"s_sleep {psleep}")
    for c in POLL: A(c)
    A("L_pollo1:")
    A(f"s_add_u32 s{sSPIN}, s{sSPIN}, 1"); A(f"s_cmp_gt_u32 s{sSPIN}, s{sT3}")
    A("s_waitcnt vmcnt(0)")
    rg = [PL + 4 + i for i in range(4)] + [PL + i for i in range(4)]
    untag_check(rg, rg, [vTAG] * 8, TT + 1)
    A(f"v_max_f32_dpp v{M}, v{m}, v{m} {STEPS[0]} {DPPF}")
    A("s_cbranch_vccnz L_oretry")
    A(f"v_cmp_ne_u32 vcc, s{sC3}, v{PL+6}")
    A("s_cbranch_vccz L_goto")
    A(f"s_cmp_lg_u32 s{sT0}, 0"); A("s_cbranch_scc1 L_goto")
    safe_o()
    A("L_goto:")
    if hat == 'goto': A(f"s_mov_b64 exec, s[{sUS}:{sUS+1}]"); A(f"buffer_store_dword v{vTAG}, v{SV+14}, {srd(WS)}, s{sUO} offen sc1"); A("s_mov_b64 exec, -1")
    stamp(9)
    A(f"v_max_f32_dpp v{M}, v{M}, v{M} {STEPS[1]} {DPPF}"); A("s_nop 1")
    A(f"v_max_f32_dpp v{M}, v{M}, v{M} {STEPS[2]} {DPPF}")
    A(f"v_sub_f32 v{m}, v{m}, v{M}"); A(f"v_mul_f32 v{m}, s{sLOG2E}, v{m}"); A(f"v_exp_f32 v{m}, v{m}"); A("s_nop 0")
    A(f"v_mul_f32 v{l}, v{l}, v{m}")
    for v in range(4): A(f"v_mul_f32 v{PL+v}, v{PL+v}, v{m}")
    for s_ in STEPS:
        for r in (l, PL, PL + 1, PL + 2, PL + 3):
            A(f"v_add_f32_dpp v{r}, v{r}, v{r} {s_} {DPPF}")
    A(f"v_rcp_f32 v{l}, v{l}"); A("s_mov_b64 exec, s[0:1]")
    for v in range(4): A(f"v_mul_f32 v{PL+v}, v{PL+v}, v{l}")
    for v in range(4): A(f"v_cvt_pk_bf16_f32 v{PL+v}, v{PL+v}, v{PL+v}")
    A(f"ds_write_b128 v{vT1}, {r4(PL)} offset:{ZL}")
    A("s_mov_b64 exec, -1")
    A("s_waitcnt lgkmcnt(0)")
    if hat == 'z': A(f"s_mov_b64 exec, s[{sUS}:{sUS+1}]"); A(f"buffer_store_dword v{vTAG}, v{SV+14}, {srd(WS)}, s{sUO} offen sc1"); A("s_mov_b64 exec, -1")
    A("s_barrier")
    stamp(13)
    A(f"ds_read_b128 {r4(PL)}, v{vT1} offset:{ZL}")
    if hat == 'b5': A(f"s_mov_b64 exec, s[{sUS}:{sUS+1}]"); A(f"buffer_store_dword v{vTAG}, v{SV+14}, {srd(WS)}, s{sUO} offen sc1"); A("s_mov_b64 exec, -1")
    A("s_waitcnt lgkmcnt(0)")

    A("s_branch L_tail")
    svc = L[svc0:]; del L[svc0:]
    A("L_tail:")
    for n in range(2):
        for rho in range(2):
            gemv_mfma(PL + 2 * n + rho, WL + 12 + 4 * n, D1 if rho == 0 else D2, False)
    A("s_nop 7")
    for v in range(4):
        A(f"v_add_f32_dpp v{D1+v}, v{D2+v}, v{D1+v} row_ror:8 {DPPF}")
    tag4(D1)
    A(f"s_mov_b64 exec, s[{sMASK}:{sMASK+1}]")
    A(f"buffer_store_dwordx4 {r4(D1)}, v{TT}, {srd(WS)}, s{sC2} offen sc1")
    A("s_mov_b64 exec, -1")
    stamp(10)
    if hat == 'fp':
        A("s_cmp_lg_u32 s3, 8"); A("s_cbranch_scc1 L_nh")
        A(f"s_mov_b64 exec, s[{sUS}:{sUS+1}]"); A(f"buffer_store_dword v{vTAG}, v{SV+14}, {srd(WS)}, s{sUO} offen sc1"); A("s_mov_b64 exec, -1")
        if clean:
            A(f"s_cmp_ge_u32 s2, 32"); A("s_cbranch_scc1 L_nh")
            A(f"buffer_store_dwordx4 {r4(128)}, v{vV}, {srd(WS)}, s{sPC} offen sc1")
            A("s_mov_b64 exec, 0xffff")
            A(f"buffer_store_dwordx4 {r4(SV+4)}, v{SV+1}, {srd(WS)}, s{sPC} offen offset:64 sc1")
            A(f"s_mov_b64 exec, s[{sPM}:{sPM+1}]")
            A(f"s_lshl_b32 s{sT0}, s{sU}, 8"); A(f"s_add_u32 s{sT0}, s{sT0}, {P1}")
            A(f"buffer_store_dwordx4 {r4(96)}, v100, {srd(WS)}, s{sT0} offen sc1")
            A("s_mov_b64 exec, -1")
        A("L_nh:")
    A(f"s_cmp_lg_u32 s{sCK}, 0"); A("s_cbranch_scc1 L_fin")
    A("s_cmp_eq_u32 s3, 8"); A("s_cbranch_scc1 L_final")
    A(f"s_lshl_b32 s{sT0}, s3, 5"); A(f"v_add_u32 v{TT}, s{sT0}, v{vT0}")
    A(f"v_mul_u32_u24 v{TT}, {REC}, v{TT}"); A(f"v_and_b32 v{TT+1}, 15, v0"); A(f"v_lshl_add_u32 v{TT}, v{TT+1}, 4, v{TT}")
    A(f"s_lshl_b32 s{sT0}, s{sSL}, 8"); A(f"s_add_u32 s{sT0}, s{sT0}, {FPO}")
    SO = [sT0, sC1, sC2, sC3, 40, 41, 42, 43]
    for q in range(1, 8): A(f"s_add_u32 s{SO[q]}, s{sT0}, {4*q*REC}")
    A(f"s_add_u32 s{sT3}, s{sSPIN}, {spin}")
    A(f"v_lshlrev_b32 v{TT+2}, 2, v{vT0}"); A(f"v_lshl_add_u32 v{TT+2}, v{TT+1}, 4, v{TT+2}")
    A(f"s_lshl_b32 s{sT1}, s3, 8"); A(f"v_add_u32 v{TT+2}, s{sT1}, v{TT+2}")
    A(f"s_lshl3_add_u32 s{sT1}, s{sSL}, s3"); A(f"s_lshl_b32 s{sT1}, s{sT1}, 7"); A(f"s_add_u32 s{sT1}, s{sT1}, {HINT}")
    if hsc:
        A(f"s_and_b32 s{sT2}, s{sEP}, s{sTM}")
        A("L_hint:")
        A(f"s_load_dwordx2 s[{sUS}:{sUS+1}], s[{WS}:{WS+1}], s{sT1} glc")
        A(f"s_add_u32 s{sSPIN}, s{sSPIN}, 1"); A(f"s_cmp_gt_u32 s{sSPIN}, s{sT3}"); A("s_cbranch_scc1 L_hok")
        A("s_waitcnt lgkmcnt(0)")
        A(f"s_cmp_lg_u32 s{sUS}, s{sT2}"); A("s_cbranch_scc1 L_hint")
        A(f"s_cmp_lg_u32 s{sUS+1}, s{sT2}"); A("s_cbranch_scc1 L_hint")
        A("L_hok:")
    else:
        A(f"v_mov_b32 v{TT+3}, 0")
        A("s_mov_b64 exec, 1")
        if not usehint: A("s_branch L_hok")
        A("L_hint:")
        A(f"buffer_load_dwordx2 {r2(FC)}, v{TT+3}, {srd(WS)}, s{sT1} offen sc1")
        A(f"s_add_u32 s{sSPIN}, s{sSPIN}, 1"); A(f"s_cmp_gt_u32 s{sSPIN}, s{sT3}")
        A("s_waitcnt vmcnt(0)")
        A(f"v_xor_b32 v{FC}, v{vTAG}, v{FC}"); A(f"v_xor_b32 v{FC+1}, v{vTAG}, v{FC+1}"); A(f"v_or_b32 v{FC}, v{FC}, v{FC+1}")
        A(f"v_cmp_ne_u32 vcc, 0, v{FC}")
        A("s_cbranch_scc1 L_hok")
        A("s_cbranch_vccnz L_hint")
        A("L_hok:")
        A("s_mov_b64 exec, -1")
    stamp(7)
    A("L_pollf:")
    for q in range(8):
        A(f"buffer_load_dwordx4 {r4(FC+4*q)}, v{TT}, {srd(WS)}, s{SO[q]} offen sc1")
    A(f"s_add_u32 s{sSPIN}, s{sSPIN}, 1"); A(f"s_cmp_gt_u32 s{sSPIN}, s{sT3}")
    for q in range(8):
        A(f"s_waitcnt vmcnt({7-q})")
        rg = [FC + 4 * q + i for i in range(4)]
        for r in rg: A(f"v_xor_b32 v{r}, v{vTAG}, v{r}")
        if q == 0: A(f"v_or3_b32 v{TT+1}, v{rg[0]}, v{rg[1]}, v{rg[2]}"); A(f"v_or_b32 v{TT+1}, v{TT+1}, v{rg[3]}")
        else:
            A(f"v_or3_b32 v{TT+1}, v{TT+1}, v{rg[0]}, v{rg[1]}"); A(f"v_or3_b32 v{TT+1}, v{TT+1}, v{rg[2]}, v{rg[3]}")
            d = PL
            for hlf in range(2):
                A(f"v_pk_add_f32 {r2(d+2*hlf)}, {r2((FC if q == 1 else d)+2*hlf)}, {r2(FC+4*q+2*hlf)}")
    A(f"v_and_b32 v{TT+1}, s{sTM}, v{TT+1}"); A(f"v_cmp_ne_u32 vcc, 0, v{TT+1}")
    A("s_cbranch_scc1 L_gotf")
    A("s_cbranch_vccnz L_pollf")
    A("L_gotf:")
    stamp(9)
    a, b = PL, PL + 2
    A(f"v_permlane16_swap_b32 v{PL}, v{PL+1}"); A(f"v_permlane16_swap_b32 v{PL+2}, v{PL+3}")
    A("s_nop 1")
    A(f"v_add_f32 v{a}, v{PL}, v{PL+1}"); A(f"v_add_f32 v{b}, v{PL+2}, v{PL+3}")
    A("s_nop 1")
    A(f"v_permlane32_swap_b32 v{a}, v{b}")
    A("s_nop 1")
    A(f"v_add_f32 v{a}, v{a}, v{b}")
    A(f"ds_write_b32 v{TT+2}, v{a} offset:{FS}")
    A("s_waitcnt lgkmcnt(0)")
    A("s_barrier")
    A("s_branch L_fin")
    A("L_final:")
    A(f"v_lshlrev_b32 v{TT}, 3, v0")
    A(f"v_lshlrev_b32 v{TT+2}, 16, v{SV+21}"); A(f"v_and_b32 v{TT+3}, 0xffff0000, v{SV+21}")
    A(f"v_mov_b32 v{TT+1}, s{sEP}"); A(f"v_mov_b32 v{SV}, {EP}")
    A(f"s_cmp_eq_u32 s{sSL}, 0"); A(f"s_cselect_b32 s{sT0}, 0, {HUGE}")
    A("s_mov_b64 exec, 0xffffffff")
    A("s_barrier")
    for w in range(8):
        A(f"ds_read_b64 {r2(80+2*w)}, v{TT} offset:{FS+256*w}")
    for w in range(8):
        A(f"s_waitcnt lgkmcnt({7-w})")
        A(f"v_pk_add_f32 {r2(TT+2)}, {r2(TT+2)}, {r2(80+2*w)}")
    A(f"v_cvt_pk_bf16_f32 v{TT+2}, v{TT+2}, v{TT+3}")
    A(f"buffer_store_dword v{TT+2}, v{SV+20}, {srd(OUT)}, 0 offen{outsc}")
    A("s_mov_b64 exec, 1")
    A(f"buffer_store_dword v{TT+1}, v{SV}, {srd(WS)}, s{sT0} offen sc1")
    if hold:
        A("s_getreg_b32 s98, hwreg(HW_REG_XCC_ID)"); A("s_and_b32 s98, s98, 7"); A(f"s_cmp_lg_u32 s98, {hold[1]}"); A("s_cbranch_scc1 L_fin")
        A(f"s_add_u32 s100, s100, {hold[0]}")
        A("L_hold:"); A("s_memrealtime s[98:99]"); A("s_waitcnt lgkmcnt(0)"); A("s_sub_u32 s98, s98, s100"); A("s_cmp_lt_i32 s98, 0"); A("s_cbranch_scc1 L_hold")
    A("L_fin:")
    if stamps:
        stamp(11)
        A("s_mov_b64 exec, -1")
        A("s_waitcnt vmcnt(0) lgkmcnt(0)")
        A(f"s_mul_i32 s{sT0}, s2, 9"); A(f"s_add_u32 s{sT0}, s{sT0}, s3"); A(f"s_lshl_b32 s{sT0}, s{sT0}, 7"); A(f"s_add_u32 s{sT0}, s{sT0}, {STAMP}")
        for i in range(14):
            A(f"v_mov_b32 v{104+2*i}, s{stamp_reg(i)}"); A(f"v_mov_b32 v{105+2*i}, s{stamp_reg(i)+1}")
        A(f"v_mov_b32 v132, s{sSPIN}")
        A("s_getreg_b32 s76, hwreg(HW_REG_XCC_ID)"); A("v_mov_b32 v133, s76"); A("v_mov_b32 v134, 0"); A("v_mov_b32 v135, 0")
        A("v_mov_b32 v100, 0")
        A("s_mov_b64 exec, 1")
        for i in range(8):
            A(f"buffer_store_dwordx4 {r4(104+4*i)}, v100, {srd(WS)}, s{sT0} offen offset:{16*i}")
    A("L_end:")
    A("s_endpgm")
    L.extend(svc)
    A(".p2align 6")
    A(".type L_tab,@object"); A(".size L_tab, 1024")
    A("L_tab:")
    tb = unit_table(split, slabs)
    for i in range(0, 256, 8): A(".long " + ", ".join(f"{x:#x}" for x in tb[i:i+8]))
    A('.section .rodata,"a"'); A(".p2align 6"); A(f".amdhsa_kernel {NAME}")
    A("  .amdhsa_next_free_vgpr 168"); A("  .amdhsa_next_free_sgpr 102"); A("  .amdhsa_accum_offset 168")
    A("  .amdhsa_group_segment_fixed_size 0"); A("  .amdhsa_kernarg_size 96"); A("  .amdhsa_user_sgpr_count 2")
    A("  .amdhsa_user_sgpr_kernarg_segment_ptr 1"); A("  .amdhsa_system_sgpr_workgroup_id_x 1")
    A(".end_amdhsa_kernel")
    return "\n".join(L) + "\n"


if __name__ == "__main__":
    kw = eval("dict(%s)" % (sys.argv[2] if len(sys.argv) > 2 else ""))
    open(sys.argv[1], "w").write(gen(**kw))
```

```python
import sys
NAME = "parallel_sum__sliding_block_cached__glu_gated_swiglu__decode_kernel"

HEADER = """; Fused decode step: out = x + Attn(LN(x)) + SwiGLU(LN(x)); one launch, 256 workgroups x 9 waves.
;
;
"""

OS = 0
S1 = 0
FS = 0
QL = 8192
HD = QL + 512
MW = HD + 256
ZL = MW + 128
FWL = ZL + 128
TG = FWL + 64
QF = TG + 4
XN = 9344
assert QF + 4 <= XN
LDS_BYTES = XN + 4608
REC = 6144
FPO = 1536
EP = 1408
P1 = 3 << 19
P1B = 13312 * 4
P1P = 2 * P1B
HINT = (7 << 18) + (1 << 16)
STAMP = 2 << 20
SAFE = 4 << 20
SAFO = 1 << 18
WS_BYTES = 68 << 20
HUGE = 0x40000000
LOG2E = 0x3FB8AA3B
SCALE = 0x3DB504F3
TMASK = 0x3FF
STAMP_NAMES = ["start", "karg", "Bt/B0", "B1", "qgot", "sm", "Vend", "s7", "s8", "gotO", "FPst", "end", "x/B4", "B5"]

X, K, V, SU, WO, W2, OUT, WS = [4 + 4 * i for i in range(8)]
SRD_INFO = {X: (0, 2304), K: (2, 1 << 28), V: (4, 1 << 28), WO: (8, 4096 * 1152),
            W2: (16, 4608 * 1152), OUT: (18, 2304), WS: (22, WS_BYTES)}
sPS, sSP, sPM = 36, 37, 38
sSF = 40
sPC = 42
sU, sRB = 46, 47
sHKV, sJ, sB, sS, sSL, sCK = 48, 49, 50, 51, 52, 53
sT0, sT1, sT2, sT3 = 54, 55, 56, 57
sHASH = 58
sUO, sUS = 59, 60
sTB = 62
sLOG2E = 63
sSPIN = 64
sTM = 65
sC1, sC2, sC3 = 66, 67, 68
sEP = 69
sMASK = 70
sROW, sNSL = 74, 75
KA = 76
def stamp_reg(i): return {0: 100, 1: 72}.get(i, KA + 2 * (i - 2))

vK, vV, vA1, vA2 = 1, 2, 3, 4
MK = 5
vT0, vT1, vT2 = 9, 10, 11
A0, A1 = 12, 16
ACC, D1, D2 = 20, 24, 28
SR = 32
QB = 36
KR = 40
VR = 104
def kreg(t): return KR + 4 * t
def vreg(t): return VR + 4 * t
XA = 32
S1D = 132
WL = 40
PL = 60
HV = 68
vTAG = 74
vA3 = 75
TT = 76
vOS = 80
vA4 = 94
FC = 104
SV = 104


def r4(b): return f"v[{b}:{b+3}]"
def r2(b): return f"v[{b}:{b+1}]"
def srd(b): return f"s[{b}:{b+3}]"
DPPF = "row_mask:0xf bank_mask:0xf"
STEPS = ("quad_perm:[1,0,3,2]", "quad_perm:[2,3,0,1]", "row_half_mirror")


def unit_table(split, slabs):
    tab = []
    assert sum(slabs) == 72
    NSG = [(slabs[h >> 1] + (h & 1)) // 2 for h in range(16)]
    def place(g, left):
        if not left: return {}
        seen = set()
        for h in left:
            key = (NSG[h], h & 1)
            if key in seen: continue
            seen.add(key)
            slow = 2 * sum((g + i) % 8 == 3 for i in range(NSG[h])) + (1 - (h & 1))
            if slow > 12 - 2 * NSG[h]: continue
            r = place(g + NSG[h], [x for x in left if x != h])
            if r is not None:
                r[h] = g; return r
        return None
    G0 = place(0, list(range(16)))
    if G0 is None:
        G0 = {h: sum(NSG[:h]) for h in range(16)}; print("no clean placement", file=sys.stderr)
    for hkv in range(16):
        g0 = G0[hkv]; ns = NSG[hkv]
        assert 3 <= ns <= 6
        units = [4 * hkv + i for i in range(4)] + [64 + g0 + i for i in range(ns)] + [136 + g0 + i for i in range(ns)]
        cls = lambda u: (u - (0 if u < 64 else 64 if u < 136 else 136)) & 7
        nfree = 16 - len(units)
        order = sorted(units, key=lambda u: 0 if cls(u) == 3 else 2 if u < 64 else 1)
        nsp = min(nfree, {"c3": sum(cls(u) == 3 for u in units), "all": nfree, "none": 0}[split])
        sp = order[:nsp]
        ent = []
        for u in units:
            if u in sp: ent.append(u | (0x01f << 8))
            else: ent.append(u | (0x1ff << 8) | (1 << 18))
        for u in sp: ent.append(u | (0x1e0 << 8) | (1 << 17))
        while len(ent) < 16: ent.append(255)
        tab += [e | (ns << 19) | (g0 << 22) for e in ent[0::2] + ent[1::2]]
    return tab


def gen(depth=4, b2=11, pre=2, nwb=2, stamps=False, pol=" nt", spin=100000, mlsleep=4, tmo=40, gtmo=12, split="all",
        xg=True, dry=False, psel=0, usehint=True, hat='fp', hsc=True, npf=1, tlb=False, psleep=0, slabs=(10, 10, 10, 10, 8, 8, 8, 8), hold=None, cslot=0, cstep=1, clean=False, outsc=''):
    L = []
    A = L.append

    def stamp(i):
        if stamps:
            r = stamp_reg(i)
            A(f"s_memrealtime s[{r}:{r+1}]")

    def srd_const(d):
        A(f"s_mov_b32 s{d+2}, {SRD_INFO[d][1]}"); A(f"s_mov_b32 s{d+3}, 0x00020000")

    def srd_ptr(d):
        o = KA + SRD_INFO[d][0]
        A(f"s_mov_b64 s[{d}:{d+1}], s[{o}:{o+1}]")

    def consts():
        A(f"s_mov_b32 s{sLOG2E}, {LOG2E:#x}"); A(f"s_mov_b32 s{sSPIN}, 0"); A(f"s_movk_i32 s{sTM}, {TMASK:#x}")
        A(f"s_mov_b32 s{sMASK}, 0x00ff00ff"); A(f"s_mov_b32 s{sMASK+1}, 0x00ff00ff")
        if cstep == 1:
            A(f"s_sub_u32 s{sSL}, s2, {32*cslot}"); A(f"s_cmp_ge_u32 s{sSL}, 18"); A(f"s_cselect_b32 s{sCK}, 1, 0")
        else:
            A(f"s_mul_i32 s{sSL}, s2, 4682"); A(f"s_lshr_b32 s{sSL}, s{sSL}, 16"); A(f"s_mul_i32 s{sT0}, s{sSL}, 14"); A(f"s_sub_u32 s{sCK}, s2, s{sT0}")
            A("s_cmp_ge_u32 s2, 252"); A(f"s_cselect_b32 s{sCK}, 1, s{sCK}")

    def masks(tmp):
        A(f"v_and_b32 v{vT2}, 1, v0"); A(f"v_lshlrev_b32 v{vT2}, 4, v{vT2}")
        A(f"v_mov_b32 v{MK}, 0xffff"); A(f"v_lshlrev_b32 v{vT2}, v{vT2}, v{MK}")
        A(f"v_bfe_u32 v{tmp}, v0, 1, 2")
        for j in range(4):
            A(f"v_cmp_eq_u32 vcc, {j}, v{tmp}"); A("s_nop 1"); A(f"v_cndmask_b32 v{MK+j}, 0, v{vT2}, vcc")

    def table_load(tag):
        A(f"s_getpc_b64 s[{sPC}:{sPC+1}]")
        A(f"L_pc{tag}:")
        A(f"s_lshl_b32 s{sPC+2}, s2, 2"); A(f"s_add_u32 s{sPC+2}, s{sPC+2}, L_tab-L_pc{tag}")
        A(f"s_load_dword s{sTB}, s[{sPC}:{sPC+1}], s{sPC+2}")

    def group_ids():
        A(f"s_bfe_u32 s{sNSL}, s{sTB}, 0x30013"); A(f"s_lshr_b32 s{sT1}, s{sTB}, 22")
        A(f"s_mul_i32 s{sROW}, s{sNSL}, s{sJ}"); A(f"s_lshl4_add_u32 s{sROW}, s{sT1}, s{sROW}"); A(f"s_lshl_b32 s{sROW}, s{sROW}, 2")

    def tag4(r):
        for v in range(4): A(f"v_bfi_b32 v{r+v}, s{sTM}, v{vTAG}, v{r+v}")

    def untag_check(dst, src, tags, acc):
        for d, r, t in zip(dst, src, tags): A(f"v_xor_b32 v{d}, v{t}, v{r}")
        A(f"v_or3_b32 v{acc}, v{dst[0]}, v{dst[1]}, v{dst[2]}")
        rest = dst[3:]
        while len(rest) >= 2:
            A(f"v_or3_b32 v{acc}, v{acc}, v{rest[0]}, v{rest[1]}"); rest = rest[2:]
        if rest: A(f"v_or_b32 v{acc}, v{acc}, v{rest[0]}")
        A(f"v_and_b32 v{acc}, s{sTM}, v{acc}")
        A(f"v_cmp_ne_u32 vcc, 0, v{acc}")

    def bf16r(dst, src):
        A(f"v_cvt_pk_bf16_f32 v{dst}, v{src}, v{src}"); A(f"v_and_b32 v{dst}, 0xffff0000, v{dst}")

    def swap_red(r, t, op, sw):
        A(f"v_mov_b32 v{t}, v{r}"); A("s_nop 1"); A(f"{sw} v{r}, v{t}"); A("s_nop 1"); A(f"{op} v{r}, v{r}, v{t}")

    def allred32(r, t, op="v_add_f32"):
        for n in (1, 2, 4, 8):
            A("s_nop 1"); A(f"{op}_dpp v{r}, v{r}, v{r} row_ror:{n} {DPPF}")
        swap_red(r, t, op, "v_permlane16_swap_b32")

    def allred_banks_rows(r, t, op):
        for n in (4, 8):
            A("s_nop 1"); A(f"{op}_dpp v{r}, v{r}, v{r} row_ror:{n} {DPPF}")
        swap_red(r, t, op, "v_permlane16_swap_b32"); swap_red(r, t, op, "v_permlane32_swap_b32")

    aflip = [0]
    def gemv_mfma(val, data, acc, first):
        a = A0 if aflip[0] == 0 else A1
        aflip[0] ^= 1
        for j in range(4):
            A(f"v_and_b32 v{a+j}, v{val}, v{MK+j}")
        A("s_nop 1")
        A(f"v_mfma_f32_16x16x32_bf16 {r4(acc)}, {r4(a)}, {r4(data)}, {'0' if first else r4(acc)}")

    def w2_mfmas():
        for n in range(3):
            for rho in range(2):
                gemv_mfma(HV + 2 * n + rho, WL + 4 * n, D1 if rho == 0 else D2, n == 0)

    LATE = [f"buffer_load_dwordx4 {r4(WL)}, v{vA2}, {srd(W2)}, 0 offen{pol}",
            f"buffer_load_dwordx4 {r4(WL+4)}, v{vA4}, {srd(W2)}, 0 offen{pol}",
            f"buffer_load_dwordx4 {r4(WL+8)}, v{vA3}, {srd(W2)}, 0 offen{pol}",
            f"buffer_load_dwordx4 {r4(WL+12)}, v{vA1}, {srd(WO)}, 0 offen{pol}",
            f"buffer_load_dwordx4 {r4(WL+16)}, v{vA1}, {srd(WO)}, 0 offen offset:2304{pol}"]

    def late_addr():
        A(f"v_bfe_u32 v{vT2}, v0, 3, 1")
        A(f"v_lshl_add_u32 v{vA1}, v{vT0}, 2, v{vT2}")
        A(f"s_lshl_b32 s{sT1}, s2, 4"); A(f"v_add_u32 v{vA1}, s{sT1}, v{vA1}")
        A(f"v_mul_u32_u24 v{vA1}, 1152, v{vA1}")
        A(f"v_lshl_add_u32 v{vA2}, v{vT0}, 1, v{vT2}")
        A(f"v_add_u32 v{vA2}, s{sROW}, v{vA2}")
        A(f"v_mul_u32_u24 v{vA2}, 1152, v{vA2}")
        A(f"v_and_b32 v{vT2}, 7, v0"); A(f"v_lshlrev_b32 v{vT2}, 4, v{vT2}")
        A(f"s_lshl_b32 s{sT1}, s3, 7"); A(f"v_add_u32 v{vT2}, s{sT1}, v{vT2}")
        A(f"v_add_u32 v{vA1}, v{vA1}, v{vT2}"); A(f"v_add_u32 v{vA2}, v{vA2}, v{vT2}")

    def tail_addr():
        A(f"s_lshl_b32 s{sT1}, s{sNSL}, 1"); A(f"v_mov_b32 v{TT}, {HUGE}")
        for n_, r_ in ((1, vA4), (2, vA3)):
            A(f"s_sub_i32 s{sT1}, s{sT1}, 4")
            A(f"v_cmp_gt_i32 vcc, s{sT1}, v{vT0}"); A(f"v_add_u32 v{r_}, {8*n_*1152}, v{vA2}"); A("s_nop 0")
            A(f"v_cndmask_b32 v{r_}, v{TT}, v{r_}, vcc")
        A(f"v_lshrrev_b32 v{TT}, 1, v{vT0}"); A(f"v_mul_u32_u24 v{TT}, 2304, v{TT}")
        A(f"v_and_b32 v{TT+1}, 7, v0"); A(f"v_lshl_add_u32 v{TT}, v{TT+1}, 5, v{TT}")
        A(f"v_and_b32 v{TT+1}, 1, v{vT0}"); A(f"v_lshl_add_u32 v{TT}, v{TT+1}, 4, v{TT}")
        A(f"s_mul_i32 s{sC2}, s2, {REC}"); A(f"s_lshl_b32 s{sT1}, s3, 8"); A(f"s_add_u32 s{sC2}, s{sC2}, s{sT1}"); A(f"s_add_u32 s{sC2}, s{sC2}, {FPO}")
        A(f"v_bfe_u32 v{TT+1}, v0, 3, 1"); A(f"v_lshlrev_b32 v{TT+1}, 7, v{TT+1}"); A(f"v_lshl_add_u32 v{TT+1}, v{vT0}, 3, v{TT+1}")
        for i in range(3):
            A(f"ds_read_b64 {r2(HV+2*i)}, v{TT+1} offset:{HD+32*i}")
        A(f"v_lshrrev_b32 v{vT1}, 3, v0"); A(f"v_lshlrev_b32 v{vT1}, 4, v{vT1}")
        A(f"s_and_b32 s{sT1}, s{sEP}, s{sTM}"); A(f"v_mov_b32 v{vTAG}, s{sT1}")

    A(HEADER.rstrip("\n"))
    A(f"; @launch grid=(256,1,1) block=(576,1,1) lds={LDS_BYTES}")
    A('.amdgcn_target "amdgcn-amd-amdhsa--gfx950"')
    A(".text"); A(f".globl {NAME}"); A(".p2align 8"); A(f".type {NAME},@function"); A(f"{NAME}:")
    stamp(0)
    if hold: A("s_memrealtime s[100:101]")
    A(f"s_load_dwordx16 s[{KA}:{KA+15}], s[0:1], 0")
    A(f"s_load_dwordx8 s[{KA+16}:{KA+23}], s[0:1], 64")
    A("v_lshrrev_b32 v1, 6, v0")
    A("s_cmp_ge_u32 s2, 256"); A("s_cbranch_scc1 L_end")
    A("v_readfirstlane_b32 s3, v1")
    A("v_and_b32 v0, 63, v0")
    if xg:
        A(f"s_and_b32 s{sT0}, s2, 7"); A(f"s_lshl_b32 s{sT0}, s{sT0}, 5"); A("s_lshr_b32 s2, s2, 3"); A(f"s_add_u32 s2, s2, s{sT0}")
    A(f"s_lshr_b32 s{sHKV}, s2, 4"); A(f"s_and_b32 s{sJ}, s2, 15"); A(f"s_lshr_b32 s{sB}, s{sJ}, 3"); A(f"s_and_b32 s{sS}, s2, 7")
    A(f"v_lshrrev_b32 v{vT0}, 4, v0")
    A("s_cmp_eq_u32 s3, 8"); A("s_cbranch_scc1 L_service")

    srd_const(K)
    A(f"s_lshl4_add_u32 s{sT0}, s{sB}, s{sHKV}"); A(f"s_lshl_b32 s{sT0}, s{sT0}, 6"); A(f"s_add_u32 s{sT0}, s{sT0}, s{sS}")
    A(f"s_lshl_b32 s{sT0}, s{sT0}, 7"); A(f"s_add_u32 s{sT0}, s{sT0}, s3"); A(f"s_addk_i32 s{sT0}, {7 << 10}"); A(f"s_lshl_b32 s{sT2}, s{sT0}, 10")
    A(f"v_and_b32 v{vK}, 3, v0"); A(f"v_lshl_add_u32 v{vK}, v{vK}, 4, s{sT2}")
    A(f"v_bfe_u32 v{vT1}, v0, 2, 2"); A(f"v_lshl_add_u32 v{vK}, v{vT1}, 8, v{vK}")
    A(f"v_lshl_add_u32 v{vK}, v{vT0}, 6, v{vK}")
    A(f"s_lshl3_add_u32 s{sT0}, s2, s3"); A(f"s_mul_i32 s{sHASH}, s{sT0}, 0x9E3779B1")
    A(f"s_bfe_u32 s{sHASH}, s{sHASH}, 0x40018"); A(f"s_lshl_b32 s{sHASH}, s{sHASH}, 13")
    A("s_waitcnt lgkmcnt(0)")
    stamp(1)
    srd_ptr(K)

    def kvld(nm, t, reg, va, sr):
        return (f"{nm}{t}", [f"s_xor_b32 s{sT0}, s{sHASH}, {t << 13}", f"buffer_load_dwordx4 {r4(reg)}, v{va}, {srd(sr)}, s{sT0} offen{pol}"])
    loads = [kvld("K", t, kreg(t), vK, K) for t in range(pre)]
    for k in range(9):
        c = [f"s_bitcmp1_b32 s{sTB}, {8+k}", f"s_cselect_b32 s{sT0}, s{sUO}, {HUGE}",
             f"buffer_load_dwordx4 {r4(S1D+4*k)}, v{vA1}, {srd(SU)}, s{sT0} offen{pol}"]
        if k < 8: c.append(f"s_add_u32 s{sUO}, s{sUO}, s{sUS}")
        loads.append((f"U{k}", c))
    loads += [kvld("K", t, kreg(t), vK, K) for t in range(pre, 16)]
    loads += [kvld("V", t, vreg(t), vV, V) for t in range(16)]
    loads += [(f"W{i}", [LATE[i]]) for i in range(5 if dry else nwb)]
    names = [n for n, _ in loads]

    def rest_of_prologue():
        A("; remaining set-up; stage-1 slab (matrix, columns, row blocks) comes from the table behind the code")
        A(f"v_lshl_add_u32 v{vV}, v0, 4, s{sT2}")
        for d in (V, WO, W2, WS): srd_const(d); srd_ptr(d)
        consts()
        masks(vT1)
        A(f"v_bfe_u32 v{vT2}, v0, 3, 1"); A(f"s_lshl_b32 s{sT1}, s3, 3")
        A(f"v_lshl_add_u32 v{vA1}, v{vT0}, 1, s{sT1}")
        A(f"v_mul_u32_u24 v{vA2}, 2304, v{vT2}"); A(f"v_lshl_add_u32 v{vA2}, v{vA1}, 2, v{vA2}")
        A(f"v_add_u32 v{vA1}, v{vA1}, v{vT2}")
        A(f"v_and_b32 v{vT1}, 7, v0"); A(f"v_lshlrev_b32 v{vT1}, 4, v{vT1}")
        A(f"s_mov_b32 s{SU+3}, 0x00020000")
        A("s_waitcnt lgkmcnt(0)")
        group_ids()
        A(f"s_and_b32 s{sU}, s{sTB}, 255")
        A(f"s_cmp_lt_u32 s{sU}, 136")
        A(f"s_cselect_b64 s[{SU}:{SU+1}], s[{KA+12}:{KA+13}], s[{KA+14}:{KA+15}]"); A(f"s_cselect_b32 s{sT1}, 64, 136")
        A(f"s_cmp_lt_u32 s{sU}, 64")
        A(f"s_cselect_b64 s[{SU}:{SU+1}], s[{KA+6}:{KA+7}], s[{SU}:{SU+1}]"); A(f"s_cselect_b32 s{sT1}, 0, s{sT1}")
        A(f"s_movk_i32 s{sRB}, 9216"); A(f"s_cselect_b32 s{sRB}, 8192, s{sRB}")
        A(f"s_mul_i32 s{SU+2}, s{sRB}, 576")
        A(f"s_sub_u32 s{sUO}, s{sU}, s{sT1}"); A(f"s_lshl_b32 s{sUO}, s{sUO}, 7"); A(f"s_lshl_b32 s{sUS}, s{sRB}, 6")
        A(f"v_mad_u32_u24 v{vA1}, v{vA1}, s{sRB}, v{vT1}")
        stamp(2)

    def qk_block():
        A("; ---- QK^T for the 16 tiles of this wave, scores rounded as the bf16 reference does, softmax against the wave's true max")
        A(f"v_bfe_u32 v{vT2}, v0, 1, 1"); A(f"v_lshlrev_b32 v{vT2}, 8, v{vT2}"); A(f"v_lshl_add_u32 v{vT2}, v{vT0}, 6, v{vT2}")
        A(f"v_bfe_u32 v{vT1}, v0, 2, 2"); A(f"v_lshl_add_u32 v{vT2}, v{vT1}, 4, v{vT2}")
        A(f"v_mov_b32 v{vT1}, 0")
        stamp(7)
        A("s_branch L_qwait1")
        A("L_qwait:")
        A("s_sleep 2")
        A("L_qwait1:")
        A(f"ds_read_b32 v{SR}, v{vT1} offset:{QF}")
        A(f"ds_read_b128 {r4(QB)}, v{vT2} offset:{QL}")
        A(f"s_add_u32 s{sSPIN}, s{sSPIN}, 1"); A(f"s_cmp_gt_u32 s{sSPIN}, {spin*16}")
        A("s_waitcnt lgkmcnt(0)")
        A(f"v_cmp_eq_u32 vcc, 0, v{SR}")
        A("s_cbranch_scc1 L_qgot")
        A("s_cbranch_vccnz L_qwait")
        A("L_qgot:")
        stamp(4)
        Ds = [A0, A1, D1, D2]
        def mf(t): A(f"v_mfma_f32_16x16x32_bf16 {r4(Ds[t%4])}, {r4(kreg(t))}, {r4(QB)}, 0")
        def ops(t):
            b = t & 3; S = SR + (t >> 2); D = Ds[t % 4]; bm = f"row_mask:0xf bank_mask:{1<<b:#x}"
            A(f"v_add_f32_dpp v{S}, v{D+((b+1)&3)}, v{D+b} row_ror:12 {bm}")
            A(f"v_add_f32_dpp v{S}, v{D+((b+2)&3)}, v{S} row_ror:8 {bm}")
            A(f"v_add_f32_dpp v{S}, v{D+((b+3)&3)}, v{S} row_ror:4 {bm}")
        for t in range(4): mf(t)
        A("s_nop 4")
        for t in range(16):
            ops(t)
            if t + 4 < 16: mf(t + 4)
            elif t < 15: A("s_nop 0")
        for p in (0, 2):
            a, b = SR + p, SR + p + 1
            A(f"v_cvt_pk_bf16_f32 v{b}, v{a}, v{b}"); A(f"v_lshlrev_b32 v{a}, 16, v{b}"); A(f"v_and_b32 v{b}, 0xffff0000, v{b}")
            A(f"v_mul_f32 v{a}, {SCALE:#x}, v{a}"); A(f"v_mul_f32 v{b}, {SCALE:#x}, v{b}")
            A(f"v_cvt_pk_bf16_f32 v{b}, v{a}, v{b}"); A(f"v_lshlrev_b32 v{a}, 16, v{b}"); A(f"v_and_b32 v{b}, 0xffff0000, v{b}")
        m = D1; l = D1 + 1
        A(f"v_max3_f32 v{m}, v{SR}, v{SR+1}, v{SR+2}"); A(f"v_max_f32 v{m}, v{m}, v{SR+3}")
        allred_banks_rows(m, D2, "v_max_f32")
        A(f"v_mul_f32 v{vT2}, s{sLOG2E}, v{m}")
        for T in range(4): A(f"v_fma_f32 v{SR+T}, v{SR+T}, s{sLOG2E}, -v{vT2}")
        for T in range(4): A(f"v_exp_f32 v{SR+T}, v{SR+T}")
        A(f"s_lshl_b32 s{sT1}, s3, 3"); A(f"v_lshl_add_u32 v{QB}, v0, 5, s{sT1}")
        A(f"v_add_f32 v{l}, v{SR}, v{SR+1}"); A(f"v_add_f32 v{D2}, v{SR+2}, v{SR+3}"); A(f"v_add_f32 v{l}, v{l}, v{D2}")
        allred_banks_rows(l, D2, "v_add_f32")
        A("s_mov_b64 exec, 5")
        A(f"ds_write_b64 v{QB}, {r2(m)} offset:{MW}")
        A("s_mov_b64 exec, -1")
        for j in range(8): A(f"v_mov_b32 v{A0+j}, 0")
        A(f"v_and_b32 v{D2}, 1, v0"); A(f"v_lshlrev_b32 v{D2}, 4, v{D2}"); A(f"v_mov_b32 v{D2+1}, 0xffff"); A(f"v_lshlrev_b32 v{D2}, v{D2}, v{D2+1}")
        for T in range(4): A(f"v_cvt_pk_bf16_f32 v{SR+T}, v{SR+T}, v{SR+T}")
        for T in range(4): A(f"v_and_b32 v{SR+T}, v{SR+T}, v{D2}")
        A(f"v_and_b32 v{vOS}, 15, v0"); A(f"v_lshlrev_b32 v{vOS}, 5, v{vOS}"); A(f"v_lshl_add_u32 v{vOS}, v{vT0}, 3, v{vOS}")
        A(f"s_lshl_b32 s{sT1}, s3, 10"); A(f"v_add_u32 v{vOS}, s{sT1}, v{vOS}")
        tail_addr()
        stamp(5)

    def pv(t):
        b = t & 3; P = SR + (t >> 2); a = A0 if t % 2 == 0 else A1
        for j in range(4):
            n = (4 * (j - b)) % 16
            ctl = "quad_perm:[0,1,2,3]" if n == 0 else f"row_ror:{n}"
            A(f"v_mov_b32_dpp v{a+j}, v{P} {ctl} row_mask:0xf bank_mask:{1<<j:#x}")
        A("s_nop 1")
        A(f"v_mfma_f32_16x16x32_bf16 {r4(ACC)}, {r4(a)}, {r4(vreg(t))}, {'0' if t == 0 else r4(ACC)}")

    state = {"qk": False, "pv": 0}

    def on_landed(nm):
        if dry:
            if nm == "U8": stamp(3); late_addr()
            if nm == "V0": tail_addr()
            return
        if nm[0] == "U":
            k = int(nm[1])
            if k == 0:
                A("; B0: xn is in LDS; stage 1 = xn^T (one-hot A operand) x slab rows on MFMA")
                A("s_barrier")
                for i in range(4): A(f"ds_read_b64 {r2(XA+2*i)}, v{vA2} offset:{XN+256*i}")
            A(f"s_waitcnt lgkmcnt({min(k+4, 9) - k - 1})")
            x = XA + 2 * (k % 4)
            gemv_mfma(x, S1D + 4 * k, D1, k == 0)
            gemv_mfma(x + 1, S1D + 4 * k, D2, k == 0)
            if k + 4 < 9: A(f"ds_read_b64 {r2(x)}, v{vA2} offset:{XN+256*(k+4)}")
            if k == 8:
                A(f"v_and_b32 v{vT1}, 7, v0"); A(f"v_lshl_add_u32 v{vT1}, v{vT0}, 3, v{vT1}"); A(f"s_lshl_b32 s{sT1}, s3, 9")
                A(f"v_lshl_add_u32 v{vT1}, v{vT1}, 4, s{sT1}")
                A(f"v_mov_b32 v{vT2}, 0"); A(f"ds_read_b32 v{vT2}, v{vT2} offset:{TG}")
                A("s_nop 1")
                for v in range(4): A(f"v_add_f32_dpp v{D1+v}, v{D2+v}, v{D1+v} row_ror:8 {DPPF}")
                A(f"s_mov_b64 exec, s[{sMASK}:{sMASK+1}]")
                A(f"ds_write_b128 v{vT1}, {r4(D1)} offset:{S1}")
                A("s_mov_b64 exec, -1")
                A("s_waitcnt lgkmcnt(0)"); A("s_barrier")
                stamp(3)
                A(f"v_readfirstlane_b32 s{sEP}, v{vT2}")
                late_addr()
        elif nm[0] in "VW" and state["qk"]:
            t = max(int(n[1:]) for n in names[:names.index(nm)+1] if n[0] == "V")
            while state["pv"] <= t:
                pv(state["pv"]); state["pv"] += 1

    N = len(loads)
    landed = -1
    ib2 = names.index(f"V{b2}")
    assert pre >= 2 and names.index("U8") + depth < names.index("V7") and ib2 - depth >= names.index("K15")
    for i, (nm, code) in enumerate(loads):
        if nm == "U0": rest_of_prologue()
        if i == 1: table_load("a")
        for c in code: A(c)
        if i >= depth:
            A(f"s_waitcnt vmcnt({depth})")
            landed = i - depth
            on_landed(names[landed])
        if i == ib2:
            if dry: stamp(7)
            else: qk_block()
            state["qk"] = True
    def drain(extra):
        ld = landed
        while ld < names.index("V15"):
            ld += 1
            A(f"s_waitcnt vmcnt({N-1-ld+extra})")
            on_landed(names[ld])
    def slot_b4():
        A("; ---- PV done: B4 hands the wave's o to the service wave, B4b lets its record leave first, B5 brings z back")
        A("s_nop 7")
        A(f"ds_write2st64_b64 v{vOS}, {r2(ACC)}, {r2(ACC+2)} offset0:{OS//512} offset1:{OS//512+1}")
        A("s_waitcnt lgkmcnt(0)")
        A("s_barrier")
        stamp(12)
        if nwb < 5: A("s_barrier")
    drain(0)
    stamp(6)
    if dry:
        A("s_waitcnt vmcnt(0)"); stamp(8); A("s_branch L_fin")
    slot_b4()
    for c in LATE[nwb:]: A(c)
    A("s_waitcnt vmcnt(2)")
    w2_mfmas()
    A("s_waitcnt vmcnt(0)")
    stamp(8)
    A("s_barrier")
    A(f"ds_read_b128 {r4(PL)}, v{vT1} offset:{ZL}")
    A("s_waitcnt lgkmcnt(0)")

    svc0 = len(L)
    A("L_service:")
    if dry: A("s_endpgm")
    def vm(ins):
        A("s_setprio 3")
        for x in ins: A(x)
        A("s_setprio 0")
    XS = SV + 8
    PA, PD, TG0 = 100, 96, 63
    srd_const(X); srd_const(WS)
    A(f"v_lshrrev_b32 v{vA1}, 5, v0"); A(f"v_mul_u32_u24 v{vA2}, 1152, v{vA1}")
    A(f"v_and_b32 v{vT2}, 31, v0"); A(f"v_mad_u32_u24 v{vA2}, v{vT2}, 36, v{vA2}")
    A("s_setprio 3")
    A("s_waitcnt lgkmcnt(0)")
    stamp(1)
    srd_ptr(X)
    A(f"buffer_load_dwordx4 {r4(XS)}, v{vA2}, {srd(X)}, 0 offen")
    A(f"buffer_load_dwordx4 {r4(XS+4)}, v{vA2}, {srd(X)}, 0 offen offset:16")
    A(f"buffer_load_dword v{XS+8}, v{vA2}, {srd(X)}, 0 offen offset:32")
    A("s_setprio 0")
    srd_ptr(WS)
    A(f"s_load_dword s{sEP}, s[{WS}:{WS+1}], {EP}")
    table_load("b")
    A(f"v_lshlrev_b32 v{vK}, 4, v0")
    A(f"v_mov_b32 v{SV+4}, 0"); A(f"v_lshlrev_b32 v{SV+5}, 2, v0")
    A(f"ds_write_b32 v{SV+4}, v{SV+4} offset:{QF}")
    A(f"v_mov_b32 v{SV+6}, -1"); A(f"v_and_b32 v{SV+5}, 124, v{SV+5}"); A(f"ds_write_b32 v{SV+5}, v{SV+6} offset:{MW}")
    for d in (WO, W2, OUT): srd_const(d); srd_ptr(d)
    consts()
    masks(SV + 5)
    A(f"v_lshlrev_b32 v{vA2}, 1, v{vA2}")
    if tlb:
        srd_const(V); srd_ptr(V)
        A(f"s_lshl4_add_u32 s{sT0}, s{sB}, s{sHKV}"); A(f"s_lshl_b32 s{sT0}, s{sT0}, 23"); A(f"s_add_u32 s{sT0}, s{sT0}, {(7 << 20) - 128}")
        A(f"s_mul_i32 s{sT1}, s2, {16*1152}"); A(f"s_mul_i32 s{sT2}, s{sROW}, 1152"); A(f"s_mul_i32 s{sT3}, s2, {REC}")
        A("s_mov_b64 exec, 1")
        vm([f"buffer_load_dword v{SV+30}, v{SV+4}, {srd(V)}, s{sT0} offen nt", f"buffer_load_dword v{SV+31}, v{SV+4}, {srd(WO)}, s{sT1} offen nt",
            f"buffer_load_dword v{SV+32}, v{SV+4}, {srd(W2)}, s{sT2} offen nt"])
        A("s_mov_b64 exec, -1")
    U = 12
    A(f"s_waitcnt vmcnt({3 if tlb else 0})")
    stamp(12)
    for i in range(9):
        A(f"v_lshlrev_b32 v{U+2*i}, 16, v{XS+i}"); A(f"v_and_b32 v{U+2*i+1}, 0xffff0000, v{XS+i}")
    s = XS
    A(f"v_add_f32 v{s}, v{U}, v{U+1}"); A(f"v_add_f32 v{s+1}, v{U+2}, v{U+3}")
    for i in range(4, 18, 2):
        A(f"v_add_f32 v{s}, v{s}, v{U+i}"); A(f"v_add_f32 v{s+1}, v{s+1}, v{U+i+1}")
    A(f"v_add_f32 v{s}, v{s}, v{s+1}")
    allred32(s, s + 1)
    A(f"v_mul_f32 v{s}, {0x3AE38E39:#x}, v{s}")
    W = 40
    for i in range(18):
        A(f"v_sub_f32 v{W+i}, v{U+i}, v{s}")
    A(f"v_mul_f32 v{s+2}, v{W}, v{W}"); A(f"v_mul_f32 v{s+3}, v{W+1}, v{W+1}")
    for i in range(2, 18, 2):
        A(f"v_fmac_f32 v{s+2}, v{W+i}, v{W+i}"); A(f"v_fmac_f32 v{s+3}, v{W+i+1}, v{W+i+1}")
    A(f"v_add_f32 v{s+2}, v{s+2}, v{s+3}")
    allred32(s + 2, s + 3)
    A(f"v_mul_f32 v{s+2}, {0x3AE38E39:#x}, v{s+2}")
    bf16r(s + 2, s + 2)
    A(f"v_add_f32 v{s+2}, {0x3727C5AC:#x}, v{s+2}")
    bf16r(s + 2, s + 2)
    A(f"v_sqrt_f32 v{s+2}, v{s+2}")
    bf16r(s, s)
    bf16r(s + 2, s + 2)
    A(f"v_rcp_f32 v{s+2}, v{s+2}")
    for i in range(18):
        A(f"v_sub_f32 v{U+i}, v{U+i}, v{s}")
    for i in range(0, 18, 2):
        A(f"v_cvt_pk_bf16_f32 v{U+i+1}, v{U+i}, v{U+i+1}"); A(f"v_lshlrev_b32 v{U+i}, 16, v{U+i+1}"); A(f"v_and_b32 v{U+i+1}, 0xffff0000, v{U+i+1}")
        A(f"v_mul_f32 v{U+i}, v{U+i}, v{s+2}"); A(f"v_mul_f32 v{U+i+1}, v{U+i+1}, v{s+2}")
        A(f"v_cvt_pk_bf16_f32 v{U+i}, v{U+i}, v{U+i}"); A(f"v_cvt_pk_bf16_f32 v{U+i+1}, v{U+i+1}, v{U+i+1}")
        A(f"ds_write_b64 v{vA2}, {r2(U+i)} offset:{XN+4*i}")
    A("s_waitcnt lgkmcnt(0)")
    A(f"s_add_u32 s{sEP}, s{sEP}, 1")
    A(f"v_mov_b32 v{vTAG}, s{sEP}")
    A(f"ds_write_b32 v{SV+4}, v{vTAG} offset:{TG}")
    A("s_waitcnt lgkmcnt(0)")
    A("s_barrier")
    stamp(2)
    A(f"s_and_b32 s{sT0}, s{sEP}, s{sTM}"); A(f"v_mov_b32 v{vTAG}, s{sT0}")
    A(f"s_bfe_u32 s{sSF}, s{sEP}, 0x6000a"); A(f"s_lshl_b32 s{sSF}, s{sSF}, 20"); A(f"s_add_u32 s{sSF}, s{sSF}, {SAFE}")
    T = SV + 8
    GT = 40
    group_ids()
    A(f"s_and_b32 s{sU}, s{sTB}, 255")
    A(f"v_and_b32 v{SV+1}, 7, v0"); A(f"v_bfe_u32 v{SV}, v0, 3, 1")
    A(f"v_bfe_u32 v{PA}, v0, 4, 1"); A(f"v_mul_u32_u24 v{SV+2}, {P1P}, v{PA}"); A(f"v_mul_u32_u24 v{PA}, {P1B}, v{PA}")
    A(f"v_lshl_add_u32 v{PA}, v{SV+1}, 5, v{PA}")
    A(f"v_lshl_add_u32 v{PA}, v{SV}, 4, v{PA}")
    A(f"s_bfe_u32 s{sT0}, s{sTB}, 0x10011"); A(f"v_xor_b32 v{SV+3}, s{sT0}, v{vA1}"); A(f"v_mul_u32_u24 v{SV+3}, {P1P}, v{SV+3}"); A(f"v_add_u32 v{PA}, v{PA}, v{SV+3}")
    A(f"s_mov_b32 s{sPM}, -1"); A(f"s_bitcmp1_b32 s{sTB}, 18"); A(f"s_cselect_b32 s{sPM+1}, -1, 0")
    A(f"s_lshl_b32 s{sPS}, s{sU}, 8"); A(f"s_add_u32 s{sPS}, s{sPS}, {P1}")
    A(f"s_cmp_lt_u32 s{sU}, 208"); A(f"s_cselect_b32 s{sPS}, s{sPS}, {HUGE}")
    A(f"s_mul_i32 s{sT2}, s{sB}, {P1B}"); A(f"s_lshl_b32 s{sT3}, s{sHKV}, 10"); A(f"s_add_u32 s{sT2}, s{sT2}, s{sT3}"); A(f"s_add_u32 s{sT2}, s{sT2}, {P1}")
    A(f"s_add_u32 s{sC2}, s{sT2}, {P1P}")
    A(f"v_mul_u32_u24 v{vA2}, {P1B}, v{SV}"); A(f"v_mul_u32_u24 v{vA1}, 18432, v{vA1}"); A(f"v_add3_u32 v{vA2}, v{vA2}, v{vA1}, v{SV+2}")
    A(f"v_lshl_add_u32 v{vA2}, v{SV+1}, 4, v{vA2}")
    A(f"v_mov_b32 v{SV+3}, {HUGE}")
    A(f"v_cmp_gt_u32 vcc, s{sNSL}, v{SV+1}"); A("s_nop 1")
    A(f"v_cndmask_b32 v{vA2}, v{SV+3}, v{vA2}, vcc"); A(f"v_cndmask_b32 v{TG0}, 0, v{vTAG}, vcc")
    A(f"s_lshl_b32 s{sT3}, s{sROW}, 2"); A(f"s_add_u32 s{sT3}, s{sT3}, {P1 + 16384}")
    A(f"s_mov_b32 s{sSP}, 0"); A(f"s_mov_b32 s{sC1}, 0"); A(f"s_sub_u32 s{sC3}, s{sSF}, {P1}")
    for v in range(4): A(f"v_mov_b32 v{PD+v}, 0")
    A("s_barrier")
    A("s_mov_b64 exec, 0xffffffff")
    for w in range(8):
        A(f"ds_read_b128 {r4(T+4*w)}, v{vK} offset:{S1 + w*512}")
    for w in range(1, 8):
        A(f"s_waitcnt lgkmcnt({7-w})")
        for v in range(4):
            A(f"v_add_f32 v{PD+v}, v{T+v if w == 1 else PD+v}, v{T+4*w+v}")
    A(f"s_bitcmp1_b32 s{sTB}, 18"); A("s_cbranch_scc1 L_whole")
    for v in range(4): A(f"v_add_u32 v{PD+v}, {(TMASK+1)//2}, v{PD+v}")
    A("s_branch L_part")
    A("L_whole:")
    for v in range(4): bf16r(PD + v, PD + v)
    A("L_part:")
    A("s_mov_b64 exec, -1")
    tag4(PD)
    A(f"s_mov_b64 exec, s[{sPM}:{sPM+1}]")
    vm([f"buffer_store_dwordx4 {r4(PD)}, v{PA}, {srd(WS)}, s{sPS} offen"])
    A("s_mov_b64 exec, -1")
    def safe_p1(tag):
        A(f"s_cmp_lg_u32 s{sSP}, 0"); A(f"s_cbranch_scc1 L_sp{tag}")
        A(f"s_add_u32 s{sPS}, s{sPS}, s{sSF}"); A(f"s_sub_u32 s{sPS}, s{sPS}, {P1}"); A(f"s_mov_b32 s{sSP}, 1")
        A(f"s_mov_b64 exec, s[{sPM}:{sPM+1}]")
        vm([f"buffer_store_dwordx4 {r4(PD)}, v{PA}, {srd(WS)}, s{sPS} offen sc1"])
        A("s_mov_b64 exec, -1")
        A(f"L_sp{tag}:")
    stamp(3)
    A("L_gather:")
    vm([f"buffer_load_dwordx4 {r4(T)}, v{vK}, {srd(WS)}, s{sT2} offen sc1",
        f"buffer_load_dwordx4 {r4(T+4)}, v{vK}, {srd(WS)}, s{sC2} offen sc1",
        f"buffer_load_dwordx4 {r4(GT)}, v{vA2}, {srd(WS)}, s{sT3} offen sc1"])
    A(f"s_add_u32 s{sSPIN}, s{sSPIN}, 1")
    A("s_waitcnt vmcnt(0)")
    rg = [T + i for i in range(8)] + [GT + i for i in range(4)]
    untag_check(rg, rg, [vTAG] * 8 + [TG0] * 4, SV)
    A("s_cbranch_vccz L_gotg")
    A(f"s_cmp_lt_u32 s{sSPIN}, {gtmo}"); A("s_cbranch_scc1 L_gather")
    safe_p1("g")
    for r_ in (sT2, sC2, sT3): A(f"s_sub_u32 s{r_}, s{r_}, s{sC1}")
    A(f"s_xor_b32 s{sC1}, s{sC1}, s{sC3}")
    for r_ in (sT2, sC2, sT3): A(f"s_add_u32 s{r_}, s{r_}, s{sC1}")
    A(f"s_cmp_lt_u32 s{sSPIN}, {spin}"); A("s_cbranch_scc1 L_gather")
    A("L_gotg:")
    for v in range(4): A(f"v_add_f32 v{T+v}, v{T+v}, v{T+4+v}")
    A(f"v_cvt_pk_bf16_f32 v{T}, v{T}, v{T+1}"); A(f"v_cvt_pk_bf16_f32 v{T+1}, v{T+2}, v{T+3}")
    A(f"v_lshlrev_b32 v{vA1}, 3, v0")
    A(f"ds_write_b64 v{vA1}, {r2(T)} offset:{QL}")
    for v in range(4): A(f"v_mov_b32 v{GT+4+v}, v{GT+v}")
    A("s_nop 1")
    for v in range(4): A(f"v_permlane16_swap_b32 v{GT+v}, v{GT+4+v}")
    A("s_nop 1")
    for v in range(4): A(f"v_add_f32 v{GT+v}, v{GT+v}, v{GT+4+v}")
    for v in range(4): bf16r(GT + v, GT + v)
    for v in range(4): A(f"v_mov_b32 v{GT+4+v}, v{GT+v}")
    A("s_nop 1")
    for v in range(4): A(f"v_permlane32_swap_b32 v{GT+v}, v{GT+4+v}")
    A("s_nop 1")
    for v in range(4): A(f"v_mul_f32 v{GT+8+v}, s{sLOG2E}, v{GT+v}")
    for v in range(4): A(f"v_exp_f32 v{GT+8+v}, -v{GT+8+v}")
    for v in range(4): A(f"v_add_f32 v{GT+8+v}, 1.0, v{GT+8+v}")
    for v in range(4): A(f"v_rcp_f32 v{GT+8+v}, v{GT+8+v}")
    for v in range(4): A(f"v_mul_f32 v{GT+v}, v{GT+v}, v{GT+8+v}")
    for v in range(4): bf16r(GT + v, GT + v)
    for v in range(4): A(f"v_mul_f32 v{GT+v}, v{GT+v}, v{GT+4+v}")
    for v in range(4): A(f"v_cvt_pk_bf16_f32 v{GT+v}, v{GT+v}, v{GT+v}")
    A("s_mov_b64 exec, 0xffff")
    A(f"ds_write_b128 v{vK}, {r4(GT)} offset:{HD}")
    A("s_mov_b64 exec, -1")
    A(f"v_mov_b32 v{SV+3}, 1")
    A("s_waitcnt lgkmcnt(0)")
    A(f"ds_write_b32 v{SV+4}, v{SV+3} offset:{QF}")
    stamp(5)
    late_addr(); tail_addr()
    A(f"s_lshl_b32 s{sT0}, s{sSL}, 7"); A(f"v_lshl_add_u32 v{SV+20}, v0, 2, s{sT0}")
    vm(LATE + [f"buffer_load_dword v{SV+21}, v{SV+20}, {srd(X)}, 0 offen"])
    A(f"v_and_b32 v{vA1}, 15, v0"); A(f"s_lshl_b32 s{sT1}, s{sHKV}, 4"); A(f"v_add_u32 v{SV+12}, s{sT1}, v{vA1}")
    A(f"v_mul_u32_u24 v{vA1}, {REC}, v{SV+12}")
    A(f"s_mul_i32 s{sT2}, s{sJ}, 80"); A(f"v_lshl_add_u32 v{vA2}, v{vT0}, 4, v{vA1}")
    A(f"s_mul_i32 s{sPC}, s2, {REC}")
    A(f"v_lshrrev_b32 v{vV}, 2, v0"); A(f"v_mul_u32_u24 v{vV}, 80, v{vV}"); A(f"v_and_b32 v{SV+1}, 3, v0"); A(f"v_lshl_add_u32 v{vV}, v{SV+1}, 4, v{vV}")
    A(f"v_mul_u32_u24 v{SV+1}, 80, v0")
    A("s_mov_b32 s0, 0x01010101"); A("s_mov_b32 s1, 0x01010101")
    A(f"v_lshl_add_u32 v{SV+14}, v0, 4, s{sJ}"); A(f"v_cmp_gt_u32 vcc, 18, v{SV+14}"); A(f"v_lshlrev_b32 v{SV+14}, 10, v{SV+14}")
    A(f"s_lshr_b32 s{sT0}, s{sHKV}, 1"); A(f"s_lshl_b32 s{sT0}, s{sT0}, 7"); A(f"s_and_b32 s{sT1}, s{sHKV}, 1"); A(f"s_lshl2_add_u32 s{sT0}, s{sT1}, s{sT0}")
    A(f"s_add_u32 s{sUO}, s{sT0}, {HINT}"); A(f"s_mov_b64 s[{sUS}:{sUS+1}], vcc")
    A(f"s_getreg_b32 s{sC3}, hwreg(HW_REG_XCC_ID)"); A(f"s_lshl_b32 s{sC3}, s{sC3}, 16")
    FW = 80
    A(f"v_and_b32 v{SV+2}, 15, v0"); A(f"v_lshlrev_b32 v{SV+3}, 2, v{SV+2}"); A(f"v_lshlrev_b32 v{SV+2}, 3, v{SV+2}")
    A(f"v_lshrrev_b32 v{SV}, 5, v0"); A(f"v_lshlrev_b32 v{SV}, 5, v{SV}")
    A("L_mlwait:")
    A(f"s_sleep {mlsleep}")
    A(f"ds_read_b64 {r2(SV+6)}, v{SV+2} offset:{MW}")
    A(f"s_add_u32 s{sSPIN}, s{sSPIN}, 1"); A(f"s_cmp_gt_u32 s{sSPIN}, {spin*16}")
    A("s_waitcnt lgkmcnt(0)")
    A(f"v_cmp_eq_u32 vcc, -1, v{SV+7}")
    A(f"v_max_f32_dpp v{SV+4}, v{SV+6}, v{SV+6} {STEPS[0]} {DPPF}")
    A("s_cbranch_scc1 L_mlgot")
    A("s_cbranch_vccnz L_mlwait")
    A("L_mlgot:")
    A("s_setprio 3")
    A(f"v_max_f32_dpp v{SV+4}, v{SV+4}, v{SV+4} {STEPS[1]} {DPPF}"); A("s_nop 1")
    A(f"v_max_f32_dpp v{SV+4}, v{SV+4}, v{SV+4} {STEPS[2]} {DPPF}")
    A(f"v_sub_f32 v{SV+6}, v{SV+6}, v{SV+4}"); A(f"v_mul_f32 v{SV+6}, s{sLOG2E}, v{SV+6}"); A(f"v_exp_f32 v{SV+6}, v{SV+6}"); A("s_nop 0")
    A(f"ds_write_b32 v{SV+3}, v{SV+6} offset:{FWL}")
    A(f"v_mul_f32 v{SV+5}, v{SV+7}, v{SV+6}")
    A(f"ds_read_b128 {r4(FW)}, v{SV} offset:{FWL}"); A(f"ds_read_b128 {r4(FW+4)}, v{SV} offset:{FWL+16}")
    for s_ in STEPS:
        A(f"v_add_f32_dpp v{SV+5}, v{SV+5}, v{SV+5} {s_} {DPPF}"); A("s_nop 1")
    A(f"v_mov_b32 v{SV+6}, s{sC3}")
    tag4(SV + 4)
    A(f"s_mov_b32 s{sT0}, 0"); A(f"s_add_u32 s{sT3}, s{sSPIN}, {tmo}")
    stamp(4)
    A("s_barrier")
    OT = 128
    for w in range(8):
        A(f"ds_read_b128 {r4(OT+4*w)}, v{vK} offset:{OS+w*1024}")
    A("s_mov_b64 exec, 0xffff")
    A(f"buffer_store_dwordx4 {r4(SV+4)}, v{SV+1}, {srd(WS)}, s{sPC} offen offset:64")
    A("s_mov_b64 exec, -1")
    for w in range(8):
        A(f"s_waitcnt lgkmcnt({7-w})")
        f = FW + (w & ~1); sel = w & 1
        for hlf in range(2):
            d = f"v[{OT+2*hlf}:{OT+2*hlf+1}]"; x = f"v[{OT+4*w+2*hlf}:{OT+4*w+2*hlf+1}]"
            if w == 0: A(f"v_pk_mul_f32 {d}, {x}, v[{f}:{f+1}] op_sel:[0,{sel}] op_sel_hi:[1,{sel}]")
            else: A(f"v_pk_fma_f32 {d}, {x}, v[{f}:{f+1}], {d} op_sel:[0,{sel},0] op_sel_hi:[1,{sel},1]")
    tag4(OT)
    A(f"buffer_store_dwordx4 {r4(OT)}, v{vV}, {srd(WS)}, s{sPC} offen")
    POLL = [f"buffer_load_dwordx4 {r4(PL)}, v{vA2}, {srd(WS)}, s{sT2} offen sc1",
            f"buffer_load_dwordx4 {r4(PL+4)}, v{vA1}, {srd(WS)}, s{sT2} offen offset:64 sc1"]
    for c in POLL: A(c)
    if nwb < 5: A("s_barrier")
    stamp(6)
    A(f"s_waitcnt vmcnt(4)")
    w2_mfmas()
    A("s_branch L_pollo1")
    def safe_o():
        A(f"s_mul_i32 s{sT1}, s2, 1280"); A(f"s_add_u32 s{sT1}, s{sT1}, s{sSF}"); A(f"s_add_u32 s{sT1}, s{sT1}, {SAFO}")
        A(f"buffer_store_dwordx4 {r4(OT)}, v{vV}, {srd(WS)}, s{sT1} offen sc1")
        A("s_mov_b64 exec, 0xffff")
        A(f"buffer_store_dwordx4 {r4(SV+4)}, v{SV+1}, {srd(WS)}, s{sT1} offen offset:64 sc1")
        A("s_mov_b64 exec, -1")
        A(f"s_mov_b32 s{sT0}, 1")
    m, l, M = PL + 4, PL + 5, TT + 1
    A("L_otmo:")
    A(f"s_cmp_lg_u32 s{sT0}, 0"); A("s_cbranch_scc1 L_goto")
    safe_p1("o")
    A("s_setprio 3")
    safe_o()
    A(f"v_mul_u32_u24 v{SV+12}, 1280, v{SV+12}"); A(f"v_lshl_add_u32 v{SV+13}, v{vT0}, 4, v{SV+12}")
    A(f"s_add_u32 s{sC1}, s{sT2}, s{sSF}"); A(f"s_add_u32 s{sC1}, s{sC1}, {SAFO}"); A(f"s_add_u32 s{sT3}, s{sSPIN}, {spin}")
    A("s_branch L_oswap")
    A("L_oretry:")
    A("s_cbranch_scc1 L_otmo")
    A(f"s_cmp_eq_u32 s{sT0}, 0"); A("s_cbranch_scc1 L_pollo")
    A("L_oswap:")
    A(f"v_swap_b32 v{vA1}, v{SV+12}"); A(f"v_swap_b32 v{vA2}, v{SV+13}")
    A(f"s_mov_b32 s{sT1}, s{sT2}"); A(f"s_mov_b32 s{sT2}, s{sC1}"); A(f"s_mov_b32 s{sC1}, s{sT1}")
    A("L_pollo:")
    if psleep: A(f"s_sleep {psleep}")
    for c in POLL: A(c)
    A("L_pollo1:")
    A(f"s_add_u32 s{sSPIN}, s{sSPIN}, 1"); A(f"s_cmp_gt_u32 s{sSPIN}, s{sT3}")
    A("s_waitcnt vmcnt(0)")
    rg = [PL + 4 + i for i in range(4)] + [PL + i for i in range(4)]
    untag_check(rg, rg, [vTAG] * 8, TT + 1)
    A(f"v_max_f32_dpp v{M}, v{m}, v{m} {STEPS[0]} {DPPF}")
    A("s_cbranch_vccnz L_oretry")
    A(f"v_cmp_ne_u32 vcc, s{sC3}, v{PL+6}")
    A("s_cbranch_vccz L_goto")
    A(f"s_cmp_lg_u32 s{sT0}, 0"); A("s_cbranch_scc1 L_goto")
    safe_o()
    A("L_goto:")
    if hat == 'goto': A(f"s_mov_b64 exec, s[{sUS}:{sUS+1}]"); A(f"buffer_store_dword v{vTAG}, v{SV+14}, {srd(WS)}, s{sUO} offen sc1"); A("s_mov_b64 exec, -1")
    stamp(9)
    A(f"v_max_f32_dpp v{M}, v{M}, v{M} {STEPS[1]} {DPPF}"); A("s_nop 1")
    A(f"v_max_f32_dpp v{M}, v{M}, v{M} {STEPS[2]} {DPPF}")
    A(f"v_sub_f32 v{m}, v{m}, v{M}"); A(f"v_mul_f32 v{m}, s{sLOG2E}, v{m}"); A(f"v_exp_f32 v{m}, v{m}"); A("s_nop 0")
    A(f"v_mul_f32 v{l}, v{l}, v{m}")
    for v in range(4): A(f"v_mul_f32 v{PL+v}, v{PL+v}, v{m}")
    for s_ in STEPS:
        for r in (l, PL, PL + 1, PL + 2, PL + 3):
            A(f"v_add_f32_dpp v{r}, v{r}, v{r} {s_} {DPPF}")
    A(f"v_rcp_f32 v{l}, v{l}"); A("s_mov_b64 exec, s[0:1]")
    for v in range(4): A(f"v_mul_f32 v{PL+v}, v{PL+v}, v{l}")
    for v in range(4): A(f"v_cvt_pk_bf16_f32 v{PL+v}, v{PL+v}, v{PL+v}")
    A(f"ds_write_b128 v{vT1}, {r4(PL)} offset:{ZL}")
    A("s_mov_b64 exec, -1")
    A("s_waitcnt lgkmcnt(0)")
    if hat == 'z': A(f"s_mov_b64 exec, s[{sUS}:{sUS+1}]"); A(f"buffer_store_dword v{vTAG}, v{SV+14}, {srd(WS)}, s{sUO} offen sc1"); A("s_mov_b64 exec, -1")
    A("s_barrier")
    stamp(13)
    A(f"ds_read_b128 {r4(PL)}, v{vT1} offset:{ZL}")
    if hat == 'b5': A(f"s_mov_b64 exec, s[{sUS}:{sUS+1}]"); A(f"buffer_store_dword v{vTAG}, v{SV+14}, {srd(WS)}, s{sUO} offen sc1"); A("s_mov_b64 exec, -1")
    A("s_waitcnt lgkmcnt(0)")

    A("s_branch L_tail")
    svc = L[svc0:]; del L[svc0:]
    A("L_tail:")
    for n in range(2):
        for rho in range(2):
            gemv_mfma(PL + 2 * n + rho, WL + 12 + 4 * n, D1 if rho == 0 else D2, False)
    A("s_nop 7")
    for v in range(4):
        A(f"v_add_f32_dpp v{D1+v}, v{D2+v}, v{D1+v} row_ror:8 {DPPF}")
    tag4(D1)
    A(f"s_mov_b64 exec, s[{sMASK}:{sMASK+1}]")
    A(f"buffer_store_dwordx4 {r4(D1)}, v{TT}, {srd(WS)}, s{sC2} offen sc1")
    A("s_mov_b64 exec, -1")
    stamp(10)
    if hat == 'fp':
        A("s_cmp_lg_u32 s3, 8"); A("s_cbranch_scc1 L_nh")
        A(f"s_mov_b64 exec, s[{sUS}:{sUS+1}]"); A(f"buffer_store_dword v{vTAG}, v{SV+14}, {srd(WS)}, s{sUO} offen sc1"); A("s_mov_b64 exec, -1")
        if clean:
            A(f"s_cmp_ge_u32 s2, 32"); A("s_cbranch_scc1 L_nh")
            A(f"buffer_store_dwordx4 {r4(128)}, v{vV}, {srd(WS)}, s{sPC} offen sc1")
            A("s_mov_b64 exec, 0xffff")
            A(f"buffer_store_dwordx4 {r4(SV+4)}, v{SV+1}, {srd(WS)}, s{sPC} offen offset:64 sc1")
            A(f"s_mov_b64 exec, s[{sPM}:{sPM+1}]")
            A(f"s_lshl_b32 s{sT0}, s{sU}, 8"); A(f"s_add_u32 s{sT0}, s{sT0}, {P1}")
            A(f"buffer_store_dwordx4 {r4(96)}, v100, {srd(WS)}, s{sT0} offen sc1")
            A("s_mov_b64 exec, -1")
        A("L_nh:")
    A(f"s_cmp_lg_u32 s{sCK}, 0"); A("s_cbranch_scc1 L_fin")
    A("s_cmp_eq_u32 s3, 8"); A("s_cbranch_scc1 L_final")
    A(f"s_lshl_b32 s{sT0}, s3, 5"); A(f"v_add_u32 v{TT}, s{sT0}, v{vT0}")
    A(f"v_mul_u32_u24 v{TT}, {REC}, v{TT}"); A(f"v_and_b32 v{TT+1}, 15, v0"); A(f"v_lshl_add_u32 v{TT}, v{TT+1}, 4, v{TT}")
    A(f"s_lshl_b32 s{sT0}, s{sSL}, 8"); A(f"s_add_u32 s{sT0}, s{sT0}, {FPO}")
    SO = [sT0, sC1, sC2, sC3, 40, 41, 42, 43]
    for q in range(1, 8): A(f"s_add_u32 s{SO[q]}, s{sT0}, {4*q*REC}")
    A(f"s_add_u32 s{sT3}, s{sSPIN}, {spin}")
    A(f"v_lshlrev_b32 v{TT+2}, 2, v{vT0}"); A(f"v_lshl_add_u32 v{TT+2}, v{TT+1}, 4, v{TT+2}")
    A(f"s_lshl_b32 s{sT1}, s3, 8"); A(f"v_add_u32 v{TT+2}, s{sT1}, v{TT+2}")
    A(f"s_lshl3_add_u32 s{sT1}, s{sSL}, s3"); A(f"s_lshl_b32 s{sT1}, s{sT1}, 7"); A(f"s_add_u32 s{sT1}, s{sT1}, {HINT}")
    if hsc:
        A(f"s_and_b32 s{sT2}, s{sEP}, s{sTM}")
        A("L_hint:")
        A(f"s_load_dwordx2 s[{sUS}:{sUS+1}], s[{WS}:{WS+1}], s{sT1} glc")
        A(f"s_add_u32 s{sSPIN}, s{sSPIN}, 1"); A(f"s_cmp_gt_u32 s{sSPIN}, s{sT3}"); A("s_cbranch_scc1 L_hok")
        A("s_waitcnt lgkmcnt(0)")
        A(f"s_cmp_lg_u32 s{sUS}, s{sT2}"); A("s_cbranch_scc1 L_hint")
        A(f"s_cmp_lg_u32 s{sUS+1}, s{sT2}"); A("s_cbranch_scc1 L_hint")
        A("L_hok:")
    else:
        A(f"v_mov_b32 v{TT+3}, 0")
        A("s_mov_b64 exec, 1")
        if not usehint: A("s_branch L_hok")
        A("L_hint:")
        A(f"buffer_load_dwordx2 {r2(FC)}, v{TT+3}, {srd(WS)}, s{sT1} offen sc1")
        A(f"s_add_u32 s{sSPIN}, s{sSPIN}, 1"); A(f"s_cmp_gt_u32 s{sSPIN}, s{sT3}")
        A("s_waitcnt vmcnt(0)")
        A(f"v_xor_b32 v{FC}, v{vTAG}, v{FC}"); A(f"v_xor_b32 v{FC+1}, v{vTAG}, v{FC+1}"); A(f"v_or_b32 v{FC}, v{FC}, v{FC+1}")
        A(f"v_cmp_ne_u32 vcc, 0, v{FC}")
        A("s_cbranch_scc1 L_hok")
        A("s_cbranch_vccnz L_hint")
        A("L_hok:")
        A("s_mov_b64 exec, -1")
    stamp(7)
    A("L_pollf:")
    for q in range(8):
        A(f"buffer_load_dwordx4 {r4(FC+4*q)}, v{TT}, {srd(WS)}, s{SO[q]} offen sc1")
    A(f"s_add_u32 s{sSPIN}, s{sSPIN}, 1"); A(f"s_cmp_gt_u32 s{sSPIN}, s{sT3}")
    for q in range(8):
        A(f"s_waitcnt vmcnt({7-q})")
        rg = [FC + 4 * q + i for i in range(4)]
        for r in rg: A(f"v_xor_b32 v{r}, v{vTAG}, v{r}")
        if q == 0: A(f"v_or3_b32 v{TT+1}, v{rg[0]}, v{rg[1]}, v{rg[2]}"); A(f"v_or_b32 v{TT+1}, v{TT+1}, v{rg[3]}")
        else:
            A(f"v_or3_b32 v{TT+1}, v{TT+1}, v{rg[0]}, v{rg[1]}"); A(f"v_or3_b32 v{TT+1}, v{TT+1}, v{rg[2]}, v{rg[3]}")
            d = PL
            for hlf in range(2):
                A(f"v_pk_add_f32 {r2(d+2*hlf)}, {r2((FC if q == 1 else d)+2*hlf)}, {r2(FC+4*q+2*hlf)}")
    A(f"v_and_b32 v{TT+1}, s{sTM}, v{TT+1}"); A(f"v_cmp_ne_u32 vcc, 0, v{TT+1}")
    A("s_cbranch_scc1 L_gotf")
    A("s_cbranch_vccnz L_pollf")
    A("L_gotf:")
    stamp(9)
    a, b = PL, PL + 2
    A(f"v_permlane16_swap_b32 v{PL}, v{PL+1}"); A(f"v_permlane16_swap_b32 v{PL+2}, v{PL+3}")
    A("s_nop 1")
    A(f"v_add_f32 v{a}, v{PL}, v{PL+1}"); A(f"v_add_f32 v{b}, v{PL+2}, v{PL+3}")
    A("s_nop 1")
    A(f"v_permlane32_swap_b32 v{a}, v{b}")
    A("s_nop 1")
    A(f"v_add_f32 v{a}, v{a}, v{b}")
    A(f"ds_write_b32 v{TT+2}, v{a} offset:{FS}")
    A("s_waitcnt lgkmcnt(0)")
    A("s_barrier")
    A("s_branch L_fin")
    A("L_final:")
    A(f"v_lshlrev_b32 v{TT}, 3, v0")
    A(f"v_lshlrev_b32 v{TT+2}, 16, v{SV+21}"); A(f"v_and_b32 v{TT+3}, 0xffff0000, v{SV+21}")
    A(f"v_mov_b32 v{TT+1}, s{sEP}"); A(f"v_mov_b32 v{SV}, {EP}")
    A(f"s_cmp_eq_u32 s{sSL}, 0"); A(f"s_cselect_b32 s{sT0}, 0, {HUGE}")
    A("s_mov_b64 exec, 0xffffffff")
    A("s_barrier")
    for w in range(8):
        A(f"ds_read_b64 {r2(80+2*w)}, v{TT} offset:{FS+256*w}")
    for w in range(8):
        A(f"s_waitcnt lgkmcnt({7-w})")
        A(f"v_pk_add_f32 {r2(TT+2)}, {r2(TT+2)}, {r2(80+2*w)}")
    A(f"v_cvt_pk_bf16_f32 v{TT+2}, v{TT+2}, v{TT+3}")
    A(f"buffer_store_dword v{TT+2}, v{SV+20}, {srd(OUT)}, 0 offen{outsc}")
    A("s_mov_b64 exec, 1")
    A(f"buffer_store_dword v{TT+1}, v{SV}, {srd(WS)}, s{sT0} offen sc1")
    if hold:
        A("s_getreg_b32 s98, hwreg(HW_REG_XCC_ID)"); A("s_and_b32 s98, s98, 7"); A(f"s_cmp_lg_u32 s98, {hold[1]}"); A("s_cbranch_scc1 L_fin")
        A(f"s_add_u32 s100, s100, {hold[0]}")
        A("L_hold:"); A("s_memrealtime s[98:99]"); A("s_waitcnt lgkmcnt(0)"); A("s_sub_u32 s98, s98, s100"); A("s_cmp_lt_i32 s98, 0"); A("s_cbranch_scc1 L_hold")
    A("L_fin:")
    if stamps:
        stamp(11)
        A("s_mov_b64 exec, -1")
        A("s_waitcnt vmcnt(0) lgkmcnt(0)")
        A(f"s_mul_i32 s{sT0}, s2, 9"); A(f"s_add_u32 s{sT0}, s{sT0}, s3"); A(f"s_lshl_b32 s{sT0}, s{sT0}, 7"); A(f"s_add_u32 s{sT0}, s{sT0}, {STAMP}")
        for i in range(14):
            A(f"v_mov_b32 v{104+2*i}, s{stamp_reg(i)}"); A(f"v_mov_b32 v{105+2*i}, s{stamp_reg(i)+1}")
        A(f"v_mov_b32 v132, s{sSPIN}")
        A("s_getreg_b32 s76, hwreg(HW_REG_XCC_ID)"); A("v_mov_b32 v133, s76"); A("v_mov_b32 v134, 0"); A("v_mov_b32 v135, 0")
        A("v_mov_b32 v100, 0")
        A("s_mov_b64 exec, 1")
        for i in range(8):
            A(f"buffer_store_dwordx4 {r4(104+4*i)}, v100, {srd(WS)}, s{sT0} offen offset:{16*i}")
    A("L_end:")
    A("s_endpgm")
    L.extend(svc)
    A(".p2align 6")
    A(".type L_tab,@object"); A(".size L_tab, 1024")
    A("L_tab:")
    tb = unit_table(split, slabs)
    for i in range(0, 256, 8): A(".long " + ", ".join(f"{x:#x}" for x in tb[i:i+8]))
    A('.section .rodata,"a"'); A(".p2align 6"); A(f".amdhsa_kernel {NAME}")
    A("  .amdhsa_next_free_vgpr 168"); A("  .amdhsa_next_free_sgpr 102"); A("  .amdhsa_accum_offset 168")
    A("  .amdhsa_group_segment_fixed_size 0"); A("  .amdhsa_kernarg_size 96"); A("  .amdhsa_user_sgpr_count 2")
    A("  .amdhsa_user_sgpr_kernarg_segment_ptr 1"); A("  .amdhsa_system_sgpr_workgroup_id_x 1")
    A(".end_amdhsa_kernel")
    return "\n".join(L) + "\n"


if __name__ == "__main__":
    kw = eval("dict(%s)" % (sys.argv[2] if len(sys.argv) > 2 else ""))
    open(sys.argv[1], "w").write(gen(**kw))
```
